```python
import torch

def _softmax(x, axis=-1):
    return torch.softmax(x, dim=axis)
def _gelu(x):
    return torch.nn.functional.gelu(x, approximate="tanh")
def _silu(x):
    return torch.nn.functional.silu(x)
def _sigmoid(x):
    return torch.sigmoid(x)
def _layernorm(x, axis=-1, eps=1e-5):
    m = x.mean(dim=axis, keepdim=True)
    v = x.var(dim=axis, keepdim=True, unbiased=False)
    return (x - m) / torch.sqrt(v + eps)
def _scatter_add(tgt, idx, src, axis=0):
    return tgt.clone().index_add_(axis, idx, src)
def _segment_sum(src, seg, n):
    out = torch.zeros((n,) + src.shape[1:], dtype=src.dtype)
    return out.index_add_(0, seg, src)
def _pad(x, pw):
    flat = tuple(v for pair in reversed(pw) for v in pair)
    return torch.nn.functional.pad(x, flat)

kernel_name = 'standalone__self_sup_conv_stem_wavlm__speech'

def setup_inputs():

    _w = (lambda a: (lambda t: t.to(torch.bfloat16) if t.is_floating_point() else t)(torch.as_tensor(a)))
    B, T, D, K = 2, 16000, 512, 3
    scale = (K * D) ** -0.5
    return {
        "x": _w((lambda *s: torch.randn(*s, dtype=torch.bfloat16) * 0.05)(B, T, D)),
        "w": _w((lambda *s: torch.randn(*s, dtype=torch.bfloat16) * 0.05)(K, D, D) * scale),
        "gn_gamma": _w((lambda *s: torch.randn(*s, dtype=torch.bfloat16) * 0.05)(D) * 0.1 + 1.0),
        "gn_beta": _w((lambda *s: torch.randn(*s, dtype=torch.bfloat16) * 0.05)(D) * 0.1),
    }

def reference(x, w, gn_gamma, gn_beta):
    B, T, D = x.shape
    K = w.shape[0]
    s = 2
    L = (T - K) // s + 1
    h = torch.einsum('blc,cd->bld', x[:, 0:s * L:s, :], w[0])
    for i in range(1, K):
        h = h + torch.einsum('blc,cd->bld', x[:, i:i + s * L:s, :], w[i])
    mu = torch.einsum('bld->bd', h)[:, None, :] / L
    var = torch.einsum('bld->bd', (h - mu) ** 2)[:, None, :] / L
    h = (h - mu) / torch.sqrt(var + 1e-5)
    h = h * gn_gamma[None, None, :] + gn_beta[None, None, :]
    return _gelu(h)
```

```python
NAME = "standalone__self_sup_conv_stem_wavlm__speech"

HDR = """; Kernarg layout for this problem (56 bytes, ptrs only, base s[0:1]):
"""

class Asm:
    def __init__(self):
        self.lines = []
        self.nlabel = 0
    def __call__(self, s):
        for ln in s.strip("\n").split("\n"):
            ln = ln.strip()
            if not ln: continue
            if ln.endswith(":"):
                self.lines.append(ln)
            else:
                self.lines.append("    " + ln)
    def c(self, s):
        self.lines.append("    ; " + s)
    def label(self, base="L"):
        self.nlabel += 1
        return f"{base}_{self.nlabel}"
    def text(self):
        return "\n".join(self.lines) + "\n"

def wrap(body, grid, block, lds, vgpr, sgpr=102, accum=None, name=NAME + "_kernel"):
    if accum is None:
        accum = (min(vgpr, 256) + 3) // 4 * 4
    s = HDR
    s += f"; @launch grid=({grid},1,1) block=({block},1,1) lds={lds}\n"
    s += '.amdgcn_target "amdgcn-amd-amdhsa--gfx950"\n.text\n'
    s += f".globl {name}\n.p2align 8\n.type {name},@function\n{name}:\n"
    s += body
    s += '.section .rodata,"a"\n.p2align 6\n'
    s += f".amdhsa_kernel {name}\n"
    s += f"  .amdhsa_next_free_vgpr {vgpr}\n  .amdhsa_next_free_sgpr {sgpr}\n  .amdhsa_accum_offset {accum}\n"
    s += "  .amdhsa_group_segment_fixed_size 0\n  .amdhsa_kernarg_size 56\n  .amdhsa_user_sgpr_count 2\n"
    s += "  .amdhsa_user_sgpr_kernarg_segment_ptr 1\n  .amdhsa_system_sgpr_workgroup_id_x 1\n"
    s += ".end_amdhsa_kernel\n"
    return s
```

```python
import sys, json, struct
from asmlib import *

def f2u(f): return struct.unpack("<I", struct.pack("<f", f))[0]

LROWS = 7999
C1 = -2.0 * 0.7978845608028654 * 1.4426950408889634
C2 = C1 * 0.044715
SENT = 0xBF800000
A_SLOT = 32768
W_BASE = 98304
PART = 131072
CONST = 131072 + 2048
STAMP_OFF = 1 << 20

def gen(stamps=False, xmod="", omod="", prio=1):
    a = Asm()
    nst = [0]
    def stamp(role):
        if not stamps: return
        k = nst[0]; nst[0] += 1
        assert k < 16
        a(f"s_memrealtime s[{64+2*k}:{65+2*k}]")
    a(f"""
    s_cmp_ge_u32 s2, 256
    s_cbranch_scc1 L_end
    s_load_dwordx4 s[4:7], s[0:1], 0      ; x, w
    s_load_dwordx4 s[28:31], s[0:1], 16
    s_load_dwordx4 s[32:35], s[0:1], 32
    s_load_dwordx2 s[36:37], s[0:1], 48   ; ws
    """)
    stamp("all")
    a(f"""
    v_lshrrev_b32 v1, 6, v0
    v_and_b32 v0, 63, v0
    v_readfirstlane_b32 s3, v1
    s_and_b32 s38, s2, 7
    s_lshr_b32 s39, s2, 3                 ; j
    s_lshr_b32 s40, s39, 2
    s_and_b32 s41, s39, 3
    s_lshl_b32 s42, s38, 3
    s_add_u32 s42, s42, s40               ; mt 0..63
    s_lshr_b32 s43, s42, 5                ; batch
    s_and_b32 s44, s42, 31
    s_mul_i32 s45, s44, 250
    s_mul_i32 s46, s43, 8000
    s_add_u32 s46, s46, s45
    s_cmp_eq_u32 s44, 31
    s_cselect_b32 s47, 1, 0
    s_sub_u32 s47, 250, s47               ; nvalid
    s_lshl_b32 s48, s43, 2
    s_add_u32 s48, s48, s41
    s_cmp_ge_u32 s3, 4
    s_cbranch_scc1 L_loader
    """)
    ACC = 128
    def acc(mt, nt): return ACC + (mt * 2 + nt) * 16
    AF = 64
    BF = 96
    PA, PS, CA, PB, CB = 8, 12, 16, 20, 22
    if prio: a(f"s_setprio {prio}")
    a(f"""
    s_lshr_b32 s49, s3, 1                 ; wm
    s_and_b32 s50, s3, 1                  ; wn
    s_waitcnt lgkmcnt(0)
    s_cmp_lg_u32 s3, 0
    s_cbranch_scc1 L_nosent
    s_lshl_b32 s51, s48, 5
    s_add_u32 s51, s51, s44
    s_lshl_b32 s51, s51, 10
    v_lshlrev_b32 v1, 4, v0
    v_add_u32 v1, s51, v1
    v_mov_b32 v4, {SENT}
    v_mov_b32 v5, {SENT}
    v_mov_b32 v6, {SENT}
    v_mov_b32 v7, {SENT}
    global_store_dwordx4 v1, v[4:7], s[36:37] sc1
    s_lshl_b32 s51, s48, 2
    v_mov_b32 v2, s51
    v_mov_b32 v3, 1
    v_cmp_eq_u32 vcc, 0, v0
    s_waitcnt vmcnt(0)
    s_and_saveexec_b64 s[52:53], vcc
    global_atomic_add v2, v3, s[34:35]
    s_mov_b64 exec, s[52:53]
    L_nosent:
    v_and_b32 v1, 31, v0
    s_lshl_b32 s51, s49, 7
    v_add_u32 v1, s51, v1                 ; row
    v_lshrrev_b32 v2, 5, v0               ; h
    v_add_u32 v3, 1, v1                   ; row+1
    v_lshrrev_b32 v4, 1, v1
    v_and_b32 v4, 7, v4
    v_lshrrev_b32 v5, 1, v3
    v_and_b32 v5, 7, v5
    v_lshlrev_b32 v1, 7, v1
    v_lshlrev_b32 v3, 7, v3
    """)
    for ks in range(4):
        a(f"""
        v_add_u32 v6, {2*ks}, v2
        v_xor_b32 v7, v6, v4
        v_lshl_add_u32 v{PA+ks}, v7, 4, v1
        v_xor_b32 v7, v6, v5
        v_lshl_add_u32 v{PS+ks}, v7, 4, v3
        v_mov_b32 v{CA+ks}, v{PA+ks}
        """)
    a(f"""
    v_lshrrev_b32 v1, 4, v0               ; g
    v_bfe_u32 v2, v0, 2, 2                ; r
    v_and_b32 v3, 3, v0                   ; c
    v_lshrrev_b32 v4, 1, v1               ; g>>1
    v_lshl_add_u32 v4, v4, 3, v2          ; k_lane
    v_lshlrev_b32 v4, 8, v4               ; *256
    v_and_b32 v1, 1, v1
    v_lshlrev_b32 v1, 5, v1               ; 16*(g&1)*2 bytes
    v_lshl_add_u32 v1, v3, 3, v1          ; + 4c*2
    s_lshl_b32 s51, s50, 7
    v_add_u32 v1, s51, v1
    v_lshlrev_b32 v2, 6, v2
    v_add_u32 v4, {W_BASE}, v4
    v_xor_b32 v5, v1, v2
    v_add_u32 v{PB}, v4, v5
    v_add_u32 v1, 64, v1
    v_xor_b32 v5, v1, v2
    v_add_u32 v{PB+1}, v4, v5
    v_mov_b32 v{CB}, v{PB}
    v_mov_b32 v{CB+1}, v{PB+1}
    """)
    for i in range(128): a(f"v_mov_b32 v{ACC+i}, 0")
    a(f"""
    s_mov_b32 s54, 0                      ; sE
    s_mov_b32 s55, {A_SLOT}               ; sO
    s_mov_b32 s56, 0
    s_mov_b32 s57, 8
    s_barrier
    """)
    stamp("c")
    def reads(ks, st):
        r = []
        for mt in range(4):
            d = AF + st * 16 + mt * 4
            r.append(f"ds_read_b128 v[{d}:{d+3}], v{CA+ks} offset:{mt*4096}")
        for nt in range(2):
            for h in range(2):
                d = BF + st * 8 + nt * 4 + h * 2
                r.append(f"ds_read_b64_tr_b16 v[{d}:{d+1}], v{CB+nt} offset:{ks*4096 + h*1024}")
        return [r[4], r[5], r[0], r[1], r[6], r[7], r[2], r[3]]
    def mfmas(st):
        m = []
        for mt, nt in [(0,0),(1,0),(0,1),(1,1),(2,0),(2,1),(3,0),(3,1)]:
            d = acc(mt, nt); A = AF + st * 16 + mt * 4; Bq = BF + st * 8 + nt * 4
            m.append(f"v_mfma_f32_32x32x16_bf16 v[{d}:{d+15}], v[{A}:{A+3}], v[{Bq}:{Bq+3}], v[{d}:{d+15}]")
        return m
    for r in reads(0, 0): a(r)
    a(f"v_add_u32 v{CA}, s54, v{PS}")
    a("L_cloop:")
    for t in range(3):
        def nextA(tt):
            return [(PS, "s54"), (PA, "s55"), (PA, "s58")][tt]
        for ks in range(4):
            st = ks & 1
            m = mfmas(st)
            a("s_waitcnt lgkmcnt(0)")
            extra = []
            if ks == 3:
                a(m[0])
                a("s_barrier")
                rd = reads(0, st ^ 1)
                m = m[1:]
                pat, base = nextA((t + 1) % 3)
                if t == 2:
                    extra.append("s_mov_b32 s55, s54")
                    extra.append("s_mov_b32 s54, s58")
                extra.append(f"v_add_u32 v{CA}, {base}, v{pat}")
            else:
                rd = reads(ks + 1, st ^ 1)
                pat, base = nextA(t)
                extra.append(f"v_add_u32 v{CA+ks+1}, {base}, v{pat+ks+1}")
                if ks == 0 and t == 0:
                    extra.insert(0, f"s_add_u32 s58, s54, s55")
                    extra.insert(1, f"s_sub_u32 s58, {3*A_SLOT}, s58")
                if ks == 2:
                    extra.append("s_add_u32 s56, s56, 16384")
                    extra.append("s_and_b32 s56, s56, 0xffff")
                    extra.append(f"v_add_u32 v{CB}, s56, v{PB}")
                    extra.append(f"v_add_u32 v{CB+1}, s56, v{PB+1}")
            q = list(rd) + extra
            if ks == 3:
                a(q.pop(0)); a(q.pop(0))
            for i, mm in enumerate(m):
                a(mm)
                for _ in range(2):
                    if q: a(q.pop(0))
            assert not q
    a(f"""
    s_sub_u32 s57, s57, 1
    s_cmp_lg_u32 s57, 0
    s_cbranch_scc1 L_cloop
    s_waitcnt lgkmcnt(0)
    """)
    stamp("c")
    a(f"""
    s_lshl_b32 s51, s49, 7
    s_add_u32 s51, s51, 120
    v_lshrrev_b32 v1, 5, v0
    v_lshl_add_u32 v1, v1, 2, s51
    s_nop 7
    s_nop 7
    """)
    for r in range(4):
        a(f"v_add_u32 v2, {r}, v1")
        a(f"v_cmp_gt_u32 vcc, s47, v2")
        a("s_nop 1")
        for nt in range(2):
            x = acc(3, nt) + 12 + r
            a(f"v_cndmask_b32 v{x}, 0, v{x}, vcc")
    for nt in range(2):
        first = True
        for mt in range(4):
            for i in range(0, 16, 2):
                x = acc(mt, nt) + i
                S = 24 + 2 * nt; Q = 28 + 2 * nt
                if first:
                    a(f"v_pk_mul_f32 v[{Q}:{Q+1}], v[{x}:{x+1}], v[{x}:{x+1}]")
                    a(f"v_mov_b32 v{S}, v{x}")
                    a(f"v_mov_b32 v{S+1}, v{x+1}")
                    first = False
                else:
                    a(f"v_pk_fma_f32 v[{Q}:{Q+1}], v[{x}:{x+1}], v[{x}:{x+1}], v[{Q}:{Q+1}]")
                    a(f"v_pk_add_f32 v[{S}:{S+1}], v[{S}:{S+1}], v[{x}:{x+1}]")
    a(f"""
    v_add_f32 v24, v24, v25
    v_add_f32 v26, v26, v27
    v_add_f32 v28, v28, v29
    v_add_f32 v30, v30, v31
    s_lshl_b32 s51, s49, 10
    s_lshl_b32 s52, s50, 9
    s_add_u32 s51, s51, s52
    s_add_u32 s51, s51, {PART}
    v_permlane32_swap_b32 v24, v26
    v_permlane32_swap_b32 v28, v30
    v_lshl_add_u32 v1, v0, 3, s51
    v_add_f32 v24, v24, v26
    v_add_f32 v25, v28, v30
    ds_write_b64 v1, v[24:25]
    s_waitcnt lgkmcnt(0)
    s_barrier
    """)
    stamp("c")
    a(f"""
    v_and_b32 v1, 31, v0
    s_lshl_b32 s51, s50, 6
    v_add_u32 v1, s51, v1
    v_lshrrev_b32 v2, 5, v0
    s_lshl_b32 s51, s49, 5
    v_add_u32 v2, s51, v2                 ; (wm*128 + 4h)/4
    v_lshlrev_b32 v2, 11, v2              ; row*512
    v_and_b32 v3, 3, v1
    v_lshl_add_u32 v2, v3, 2, v2
    """)
    for nt in range(2):
        a(f"""
        v_add_u32 v3, {32*nt}, v1
        v_bfe_u32 v4, v3, 2, 1                ; u&1
        v_lshrrev_b32 v3, 3, v3               ; u>>1
        v_lshl_add_u32 v3, v4, 2, v3          ; +4*(u&1)
        v_and_b32 v3, 15, v3
        v_lshl_add_u32 v3, v4, 4, v3          ; +16*(u&1)
        v_lshl_add_u32 v{32+nt}, v3, 4, v2
        v_add_u32 v{34+nt}, 32768, v{32+nt}
        """)
    for mt in range(4):
        for nt in range(2):
            for g in range(4):
                for r in range(0, 4, 2):
                    x = acc(mt, nt) + g * 4 + r
                    row = (mt & 1) * 32 + 8 * g + r
                    base = 32 + nt + 2 * (mt >> 1)
                    a(f"ds_write2st64_b32 v{base}, v{x}, v{x+1} offset0:{row*2} offset1:{row*2+2}")
    a("s_branch L_final")

    nst_c = nst[0]; nst[0] = 1
    VA, VW = 8, 16
    a(f"""
    L_loader:
    s_sub_u32 s49, s3, 4                  ; lw
    v_lshrrev_b32 v2, 3, v0
    s_lshl_b32 s51, s49, 6
    v_add_u32 v2, s51, v2
    v_and_b32 v3, 7, v0
    """)
    for n in range(8):
        a(f"""
        v_add_u32 v4, {8*n}, v2
        v_bfe_u32 v5, v4, 1, 3
        v_xor_b32 v5, v5, v3
        v_add_u32 v4, s46, v4
        v_min_u32 v4, 15999, v4
        v_lshlrev_b32 v4, 11, v4
        v_lshl_add_u32 v4, v5, 4, v4
        v_subrev_u32 v{VA+n}, {(n&3)*1024}, v4
        """)
    a(f"""
    v_lshrrev_b32 v2, 4, v0               ; l>>4 = k&3
    v_and_b32 v3, 15, v0
    v_lshlrev_b32 v4, 2, v2
    v_xor_b32 v3, v3, v4
    v_lshlrev_b32 v3, 4, v3
    s_lshl_b32 s51, s49, 4
    v_add_u32 v2, s51, v2
    v_lshl_add_u32 v2, v2, 10, v3
    s_lshl_b32 s51, s41, 8
    v_add_u32 v{VW}, s51, v2
    """)
    for n in range(1, 4):
        a(f"v_add_u32 v{VW+n}, {3072*n}, v{VW}")
    a(f"""
    s_lshl_b32 s50, s49, 13
    s_lshl_b32 s51, s49, 12
    s_add_u32 s51, s51, {W_BASE}
    s_waitcnt lgkmcnt(0)
    s_mov_b32 s8, s4
    s_mov_b32 s9, s5
    s_mov_b32 s10, 32768000
    s_mov_b32 s11, 0x20000
    s_mov_b32 s12, s6
    s_mov_b32 s13, s7
    s_mov_b32 s14, 1572864
    s_mov_b32 s15, 0x20000
    """)
    def issueA(slot_s, soff):
        for half in range(2):
            if isinstance(slot_s, int):
                a(f"s_add_u32 m0, s50, {slot_s + half*4096}")
            else:
                if half == 0: a(f"s_add_u32 m0, s50, {slot_s}")
                else: a(f"s_add_u32 m0, m0, 4096")
            a("s_nop 0")
            for n in range(4):
                a(f"buffer_load_dwordx4 v{VA+half*4+n}, s[8:11], {soff} offen offset:{n*1024}{xmod} lds")
    def issueW(slot_s, soff):
        a(f"s_add_u32 m0, s51, {slot_s}")
        a("s_nop 0")
        for n in range(4):
            a(f"buffer_load_dwordx4 v{VW+n}, s[12:15], {soff} offen offset:{n*1024} lds")
    a(f"""
    s_mov_b32 s52, 0                      ; x k-offset (E)
    s_mov_b32 s53, 1024                   ; x k-offset (O)
    s_mov_b32 s54, 0
    s_mov_b32 s55, 0x100000               ; W tap2
    s_mov_b32 s56, 0x80000                ; W tap1
    """)
    issueA(0, "s52"); issueW(0, "s54"); issueW(16384, "s55"); issueA(A_SLOT, "s53"); issueW(32768, "s56")
    a(f"""
    s_mov_b32 s57, {2*A_SLOT}
    s_mov_b32 s58, 0
    s_mov_b32 s59, 49152
    s_mov_b32 s60, 7
    s_waitcnt vmcnt(16)
    s_barrier
    """)
    stamp("l")
    def wnext():
        a("s_add_u32 s59, s59, 16384")
        a("s_and_b32 s59, s59, 0xffff")
    a(f"""
    L_lloop:
    s_add_u32 s52, s52, 128
    s_add_u32 s53, s53, 128
    s_add_u32 s54, s54, 0x10000
    s_add_u32 s55, s55, 0x10000
    s_add_u32 s56, s56, 0x10000
    """)
    issueA("s57", "s52"); issueW("s59", "s54"); wnext()
    a("s_waitcnt vmcnt(24)\ns_barrier")
    issueW("s59", "s55"); wnext()
    a("s_waitcnt vmcnt(16)\ns_barrier")
    issueA("s58", "s53"); issueW("s59", "s56"); wnext()
    a(f"""
    s_add_u32 s61, s57, s58
    s_mov_b32 s58, s57
    s_sub_u32 s57, {3*A_SLOT}, s61
    s_waitcnt vmcnt(16)
    s_barrier
    s_sub_u32 s60, s60, 1
    s_cmp_lg_u32 s60, 0
    s_cbranch_scc1 L_lloop
    s_waitcnt vmcnt(12)
    s_barrier
    s_waitcnt vmcnt(0)
    s_barrier
    """)
    stamp("l")
    a(f"""
    v_and_b32 v1, 15, v0
    v_lshrrev_b32 v2, 5, v0
    v_lshl_add_u32 v1, v1, 1, v2
    s_lshl_b32 s52, s49, 5
    v_add_u32 v20, s52, v1
    s_lshl_b32 s52, s41, 7
    v_add_u32 v1, s52, v20
    v_lshlrev_b32 v1, 1, v1
    global_load_ushort v21, v1, s[28:29]
    global_load_ushort v22, v1, s[30:31]
    s_lshl_b32 s52, s48, 2
    v_mov_b32 v2, s52
    s_mov_b32 s60, 0x20000
    L_cnt:
    global_load_dword v3, v2, s[34:35] sc1
    s_waitcnt vmcnt(0)
    v_readfirstlane_b32 s52, v3
    s_sub_u32 s60, s60, 1
    s_cmp_eq_u32 s60, 0
    s_cbranch_scc1 L_cnt_done
    s_cmp_lt_u32 s52, 32
    s_cbranch_scc1 L_cnt
    L_cnt_done:
    v_lshlrev_b32 v21, 16, v21
    v_lshlrev_b32 v22, 16, v22
    v_lshrrev_b32 v1, 4, v0
    v_and_b32 v2, 15, v0
    v_lshlrev_b32 v2, 4, v2
    v_lshl_add_u32 v1, v1, 10, v2
    s_lshl_b32 s52, s48, 15
    s_lshl_b32 s53, s49, 8
    s_add_u32 s52, s52, s53
    v_add_u32 v23, s52, v1
    s_mov_b32 s20, s36
    s_mov_b32 s21, s37
    s_mov_b32 s22, 0x40000
    s_mov_b32 s23, 0x20000
    s_barrier
    s_barrier
    """)
    stamp("l")
    a(f"""
    s_cmp_lg_u32 s49, 0
    s_cbranch_scc1 L_nopub
    v_lshlrev_b32 v1, 4, v0
    v_add_u32 v2, {PART}, v1
    ds_read_b128 v[4:7], v2
    ds_read_b128 v[8:11], v2 offset:1024
    s_lshl_b32 s52, s48, 5
    s_add_u32 s52, s52, s44
    s_lshl_b32 s52, s52, 10
    v_add_u32 v1, s52, v1
    s_waitcnt lgkmcnt(0)
    v_pk_add_f32 v[4:5], v[4:5], v[8:9]
    v_pk_add_f32 v[6:7], v[6:7], v[10:11]
    buffer_store_dwordx4 v[4:7], v1, s[20:23], 0 offen sc1
    L_nopub:
    s_mov_b32 s60, 0x20000
    L_poll:
    """)
    G = 32
    for i in range(8):
        a(f"s_mov_b32 s52, {i*4096}")
        a(f"buffer_load_dwordx4 v[{G+4*i}:{G+4*i+3}], v23, s[20:23], s52 offen sc1")
    a("s_waitcnt vmcnt(0)")
    a(f"v_min_f32 v1, v{G+1}, v{G+3}")
    for i in range(1, 8):
        a(f"v_min3_f32 v1, v1, v{G+4*i+1}, v{G+4*i+3}")
    a(f"""
    v_cmp_gt_f32 vcc, 0, v1
    s_sub_u32 s60, s60, 1
    s_cmp_eq_u32 s60, 0
    s_cbranch_scc1 L_poll_done
    s_cbranch_vccnz L_poll
    L_poll_done:
    """)
    stamp("l")
    for step in (4, 2, 1):
        for i in range(step):
            for h in range(2):
                x = G + 4 * i + 2 * h; y = G + 4 * (i + step) + 2 * h
                a(f"v_pk_add_f32 v[{x}:{x+1}], v[{x}:{x+1}], v[{y}:{y+1}]")
    a(f"""
    s_nop 1
    v_permlane32_swap_b32 v{G}, v{G+2}
    v_permlane32_swap_b32 v{G+1}, v{G+3}
    s_nop 1
    v_add_f32 v{G}, v{G}, v{G+2}          ; S
    v_add_f32 v{G+1}, v{G+1}, v{G+3}      ; Q
    v_mov_b32 v{G+2}, v{G}
    v_mov_b32 v{G+3}, v{G+1}
    s_nop 1
    v_permlane16_swap_b32 v{G}, v{G+2}
    v_permlane16_swap_b32 v{G+1}, v{G+3}
    s_mov_b32 s52, {f2u(1.0/LROWS)}
    s_nop 0
    v_add_f32 v{G}, v{G}, v{G+2}
    v_add_f32 v{G+1}, v{G+1}, v{G+3}
    v_mul_f32 v{G}, s52, v{G}             ; mean
    v_mul_f32 v{G+1}, s52, v{G+1}         ; E[h^2]
    v_fma_f32 v{G+1}, -v{G}, v{G}, v{G+1} ; var
    v_max_f32 v{G+1}, 0, v{G+1}
    v_add_f32 v{G+1}, {f2u(1e-5)}, v{G+1}
    v_rsq_f32 v{G+1}, v{G+1}
    v_lshlrev_b32 v1, 2, v20
    v_add_u32 v1, {CONST}, v1
    v_mul_f32 v{G+1}, v{G+1}, v21         ; scale
    v_fma_f32 v{G}, -v{G}, v{G+1}, v22    ; shift
    ds_write_b32 v1, v{G+1}
    ds_write_b32 v1, v{G} offset:512
    """)
    nst_l = nst[0]
    nst[0] = 8
    a(f"""
    L_final:
    s_mul_i32 s52, s43, {LROWS}
    s_add_u32 s52, s52, s45
    s_lshl_b32 s52, s52, 10
    s_add_u32 s16, s32, s52
    s_addc_u32 s17, s33, 0
    s_lshl_b32 s18, s47, 10
    s_mov_b32 s19, 0x20000
    v_and_b32 v1, 15, v0
    v_lshrrev_b32 v2, 4, v0
    s_lshl_b32 s52, s3, 5
    v_add_u32 v2, s52, v2                 ; row = 32*w + (l>>4)
    v_lshlrev_b32 v3, 9, v2
    v_lshl_add_u32 v8, v1, 4, v3
    v_add_u32 v4, 4, v1
    v_and_b32 v4, 15, v4
    v_lshl_add_u32 v9, v4, 4, v3
    v_lshlrev_b32 v3, 10, v2
    v_lshl_add_u32 v10, v1, 4, v3
    s_lshl_b32 s52, s41, 8
    v_add_u32 v10, s52, v10
    v_lshlrev_b32 v11, 5, v1
    v_add_u32 v11, {CONST}, v11
    s_mov_b32 s24, {f2u(C1)}
    s_mov_b32 s25, {f2u(C1)}
    s_mov_b32 s26, 0x3f800000
    s_mov_b32 s27, 0x3f800000
    v_mov_b32 v12, {f2u(C2)}
    v_mov_b32 v13, {f2u(C2)}
    s_waitcnt lgkmcnt(0)
    s_barrier
    """)
    stamp("f")
    SC, SH, H, T, O = 16, 24, 64, 32, 40
    a(f"""
    ds_read_b128 v[{SC}:{SC+3}], v11
    ds_read_b128 v[{SC+4}:{SC+7}], v11 offset:16
    ds_read_b128 v[{SH}:{SH+3}], v11 offset:512
    ds_read_b128 v[{SH+4}:{SH+7}], v11 offset:528
    """)
    def rd(i):
        return [f"ds_read_b128 v[{H+8*i}:{H+8*i+3}], v8 offset:{i*2048}",
                f"ds_read_b128 v[{H+8*i+4}:{H+8*i+7}], v9 offset:{i*2048+256}"]
    LOOK = 4
    for i in range(LOOK):
        for r in rd(i): a(r)
    def p(x): return f"v[{x}:{x+1}]"
    for i in range(8):
        issued = min(8, i + LOOK)
        a(f"s_waitcnt lgkmcnt({2*(issued - i - 1)})")
        if i + LOOK < 8:
            for r in rd(i + LOOK): a(r)
        h = H + 8 * i; o = O + 4 * (i & 1)
        for j in range(0, 8, 2): a(f"v_pk_fma_f32 {p(h+j)}, {p(h+j)}, {p(SC+j)}, {p(SH+j)}")
        for j in range(0, 8, 2): a(f"v_pk_mul_f32 {p(T+j)}, {p(h+j)}, {p(h+j)}")
        for j in range(0, 8, 2): a(f"v_pk_fma_f32 {p(T+j)}, {p(T+j)}, v[12:13], s[24:25]")
        for j in range(0, 8, 2): a(f"v_pk_mul_f32 {p(T+j)}, {p(T+j)}, {p(h+j)}")
        for j in range(8): a(f"v_exp_f32 v{T+j}, v{T+j}")
        for j in range(0, 8, 2): a(f"v_pk_add_f32 {p(T+j)}, {p(T+j)}, s[26:27]")
        for j in range(8): a(f"v_rcp_f32 v{T+j}, v{T+j}")
        for j in range(0, 8, 2): a(f"v_pk_mul_f32 {p(T+j)}, {p(T+j)}, {p(h+j)}")
        for j in range(0, 8, 2): a(f"v_cvt_pk_bf16_f32 v{o+j//2}, v{T+j}, v{T+j+1}")
        a(f"buffer_store_dwordx4 v[{o}:{o+3}], v10, s[16:19], 0 offen{omod}")
        if i < 7: a("v_add_u32 v10, 4096, v10")
    if stamps:
        stamp("f")
        a("s_waitcnt vmcnt(0)")
        stamp("f")
        a(f"""
        s_waitcnt lgkmcnt(0)
        s_and_b32 s52, s3, 3
        s_cmp_lg_u32 s52, 0
        s_cbranch_scc1 L_end
        s_lshl_b32 s52, s2, 7
        s_lshl_b32 s53, s3, 4
        s_add_u32 s52, s52, s53
        s_add_u32 s52, s52, {STAMP_OFF}
        v_mov_b32 v1, s52
        v_cmp_eq_u32 vcc, 0, v0
        s_and_saveexec_b64 s[52:53], vcc
        """)
        for k in range(16):
            a(f"v_mov_b32 v{16+k}, s{64+2*k}")
        for k in range(4):
            a(f"global_store_dwordx4 v1, v[{16+4*k}:{16+4*k+3}], s[36:37] offset:{16*k}")
        a("s_waitcnt vmcnt(0)")
    a("L_end:\ns_endpgm")
    return wrap(a.text(), 256, 512, 163840, 256)

if __name__ == "__main__":
    out = sys.argv[1]
    kw = json.loads(sys.argv[2]) if len(sys.argv) > 2 else {}
    open(out, "w").write(gen(**kw))
```

```python
import sys, json, struct
from asmlib import *

def f2u(f): return struct.unpack("<I", struct.pack("<f", f))[0]

LROWS = 7999
C1 = -2.0 * 0.7978845608028654 * 1.4426950408889634
C2 = C1 * 0.044715
SENT = 0xBF800000
A_SLOT = 32768
W_BASE = 98304
PART = 131072
CONST = 131072 + 2048
STAMP_OFF = 1 << 20

def gen(stamps=False, xmod="", omod="", prio=1, nodma=False, nomfma=False, noreads=False, nosent=False):
    a = Asm()
    nst = [0]
    def stamp(role):
        if not stamps: return
        k = nst[0]; nst[0] += 1
        assert k < 16
        a(f"s_memrealtime s[{64+2*k}:{65+2*k}]")
    a(f"""
    s_cmp_ge_u32 s2, 256
    s_cbranch_scc1 L_end
    s_load_dwordx4 s[4:7], s[0:1], 0      ; x, w
    s_load_dwordx4 s[28:31], s[0:1], 16
    s_load_dwordx4 s[32:35], s[0:1], 32
    s_load_dwordx2 s[36:37], s[0:1], 48   ; ws
    """)
    stamp("all")
    a(f"""
    v_lshrrev_b32 v1, 6, v0
    v_and_b32 v0, 63, v0
    v_readfirstlane_b32 s3, v1
    s_and_b32 s38, s2, 7
    s_lshr_b32 s39, s2, 3                 ; j
    s_lshr_b32 s40, s39, 2
    s_and_b32 s41, s39, 3
    s_lshl_b32 s42, s38, 3
    s_add_u32 s42, s42, s40               ; mt 0..63
    s_lshr_b32 s43, s42, 5                ; batch
    s_and_b32 s44, s42, 31
    s_mul_i32 s45, s44, 250
    s_mul_i32 s46, s43, 8000
    s_add_u32 s46, s46, s45
    s_cmp_eq_u32 s44, 31
    s_cselect_b32 s47, 1, 0
    s_sub_u32 s47, 250, s47               ; nvalid
    s_lshl_b32 s48, s43, 2
    s_add_u32 s48, s48, s41
    s_cmp_ge_u32 s3, 4
    s_cbranch_scc1 L_loader
    """)
    ACC = 128
    def acc(mt, nt): return ACC + (mt * 2 + nt) * 16
    AF = 64
    BF = 96
    PA, PS, CA, PB, CB = 8, 12, 16, 20, 22
    if prio: a(f"s_setprio {prio}")
    a(f"""
    s_lshr_b32 s49, s3, 1                 ; wm
    s_and_b32 s50, s3, 1                  ; wn
    s_waitcnt lgkmcnt(0)
    s_cmp_lg_u32 s3, 0
    s_cbranch_scc1 L_nosent
    s_lshl_b32 s51, s48, 5
    s_add_u32 s51, s51, s44
    s_lshl_b32 s51, s51, 10
    v_lshlrev_b32 v1, 4, v0
    v_add_u32 v1, s51, v1
    v_mov_b32 v4, {SENT}
    v_mov_b32 v5, {SENT}
    v_mov_b32 v6, {SENT}
    v_mov_b32 v7, {SENT}
    global_store_dwordx4 v1, v[4:7], s[36:37] sc1
    s_lshl_b32 s51, s48, 2
    v_mov_b32 v2, s51
    v_mov_b32 v3, 1
    v_cmp_eq_u32 vcc, 0, v0
    s_waitcnt vmcnt(0)
    s_and_saveexec_b64 s[52:53], vcc
    global_atomic_add v2, v3, s[34:35]
    s_mov_b64 exec, s[52:53]
    L_nosent:
    v_and_b32 v1, 31, v0
    s_lshl_b32 s51, s49, 7
    v_add_u32 v1, s51, v1                 ; row
    v_lshrrev_b32 v2, 5, v0               ; h
    v_add_u32 v3, 1, v1                   ; row+1
    v_lshrrev_b32 v4, 1, v1
    v_and_b32 v4, 7, v4
    v_lshrrev_b32 v5, 1, v3
    v_and_b32 v5, 7, v5
    v_lshlrev_b32 v1, 7, v1
    v_lshlrev_b32 v3, 7, v3
    """)
    for ks in range(4):
        a(f"""
        v_add_u32 v6, {2*ks}, v2
        v_xor_b32 v7, v6, v4
        v_lshl_add_u32 v{PA+ks}, v7, 4, v1
        v_xor_b32 v7, v6, v5
        v_lshl_add_u32 v{PS+ks}, v7, 4, v3
        v_mov_b32 v{CA+ks}, v{PA+ks}
        """)
    a(f"""
    v_lshrrev_b32 v1, 4, v0               ; g
    v_bfe_u32 v2, v0, 2, 2                ; r
    v_and_b32 v3, 3, v0                   ; c
    v_lshrrev_b32 v4, 1, v1               ; g>>1
    v_lshl_add_u32 v4, v4, 3, v2          ; k_lane
    v_lshlrev_b32 v4, 8, v4               ; *256
    v_and_b32 v1, 1, v1
    v_lshlrev_b32 v1, 5, v1               ; 16*(g&1)*2 bytes
    v_lshl_add_u32 v1, v3, 3, v1          ; + 4c*2
    s_lshl_b32 s51, s50, 7
    v_add_u32 v1, s51, v1
    v_lshlrev_b32 v2, 6, v2
    v_add_u32 v4, {W_BASE}, v4
    v_xor_b32 v5, v1, v2
    v_add_u32 v{PB}, v4, v5
    v_add_u32 v1, 64, v1
    v_xor_b32 v5, v1, v2
    v_add_u32 v{PB+1}, v4, v5
    v_mov_b32 v{CB}, v{PB}
    v_mov_b32 v{CB+1}, v{PB+1}
    """)
    for i in range(128): a(f"v_mov_b32 v{ACC+i}, 0")
    a(f"""
    s_mov_b32 s54, 0                      ; sE
    s_mov_b32 s55, {A_SLOT}               ; sO
    s_mov_b32 s56, 0
    s_mov_b32 s57, 8
    s_barrier
    """)
    stamp("c")
    if stamps: a("s_memtime s[88:89]")
    def reads(ks, st):
        r = []
        for mt in range(4):
            d = AF + st * 16 + mt * 4
            r.append(f"ds_read_b128 v[{d}:{d+3}], v{CA+ks} offset:{mt*4096}")
        for nt in range(2):
            for h in range(2):
                d = BF + st * 8 + nt * 4 + h * 2
                r.append(f"ds_read_b64_tr_b16 v[{d}:{d+1}], v{CB+nt} offset:{ks*4096 + h*1024}")
        if noreads: return ["s_nop 0"] * 8
        return [r[4], r[5], r[0], r[1], r[6], r[7], r[2], r[3]]
    def mfmas(st):
        m = []
        for mt, nt in [(0,0),(1,0),(0,1),(1,1),(2,0),(2,1),(3,0),(3,1)]:
            d = acc(mt, nt); A = AF + st * 16 + mt * 4; Bq = BF + st * 8 + nt * 4
            m.append(f"v_mfma_f32_32x32x16_bf16 v[{d}:{d+15}], v[{A}:{A+3}], v[{Bq}:{Bq+3}], v[{d}:{d+15}]")
        if nomfma: return ["s_nop 0"] * 8
        return m
    for r in reads(0, 0): a(r)
    a(f"v_add_u32 v{CA}, s54, v{PS}")
    a("L_cloop:")
    for t in range(3):
        def nextA(tt):
            return [(PS, "s54"), (PA, "s55"), (PA, "s58")][tt]
        for ks in range(4):
            st = ks & 1
            m = mfmas(st)
            a("s_waitcnt lgkmcnt(0)")
            extra = []
            if ks == 3:
                a(m[0])
                a("s_barrier")
                rd = reads(0, st ^ 1)
                m = m[1:]
                pat, base = nextA((t + 1) % 3)
                if t == 2:
                    extra.append("s_mov_b32 s55, s54")
                    extra.append("s_mov_b32 s54, s58")
                extra.append(f"v_add_u32 v{CA}, {base}, v{pat}")
            else:
                rd = reads(ks + 1, st ^ 1)
                pat, base = nextA(t)
                extra.append(f"v_add_u32 v{CA+ks+1}, {base}, v{pat+ks+1}")
                if ks == 0 and t == 0:
                    extra.insert(0, f"s_add_u32 s58, s54, s55")
                    extra.insert(1, f"s_sub_u32 s58, {3*A_SLOT}, s58")
                if ks == 2:
                    extra.append("s_add_u32 s56, s56, 16384")
                    extra.append("s_and_b32 s56, s56, 0xffff")
                    extra.append(f"v_add_u32 v{CB}, s56, v{PB}")
                    extra.append(f"v_add_u32 v{CB+1}, s56, v{PB+1}")
            q = list(rd) + extra
            if ks == 3:
                a(q.pop(0)); a(q.pop(0))
            for i, mm in enumerate(m):
                a(mm)
                for _ in range(2):
                    if q: a(q.pop(0))
            assert not q
    a(f"""
    s_sub_u32 s57, s57, 1
    s_cmp_lg_u32 s57, 0
    s_cbranch_scc1 L_cloop
    s_waitcnt lgkmcnt(0)
    """)
    stamp("c")
    if stamps: a("s_memtime s[90:91]")
    a(f"""
    s_lshl_b32 s51, s49, 7
    s_add_u32 s51, s51, 120
    v_lshrrev_b32 v1, 5, v0
    v_lshl_add_u32 v1, v1, 2, s51
    s_nop 7
    s_nop 7
    """)
    for r in range(4):
        a(f"v_add_u32 v2, {r}, v1")
        a(f"v_cmp_gt_u32 vcc, s47, v2")
        a("s_nop 1")
        for nt in range(2):
            x = acc(3, nt) + 12 + r
            a(f"v_cndmask_b32 v{x}, 0, v{x}, vcc")
    for nt in range(2):
        first = True
        for mt in range(4):
            for i in range(0, 16, 2):
                x = acc(mt, nt) + i
                S = 24 + 2 * nt; Q = 28 + 2 * nt
                if first:
                    a(f"v_pk_mul_f32 v[{Q}:{Q+1}], v[{x}:{x+1}], v[{x}:{x+1}]")
                    a(f"v_mov_b32 v{S}, v{x}")
                    a(f"v_mov_b32 v{S+1}, v{x+1}")
                    first = False
                else:
                    a(f"v_pk_fma_f32 v[{Q}:{Q+1}], v[{x}:{x+1}], v[{x}:{x+1}], v[{Q}:{Q+1}]")
                    a(f"v_pk_add_f32 v[{S}:{S+1}], v[{S}:{S+1}], v[{x}:{x+1}]")
    a(f"""
    v_add_f32 v24, v24, v25
    v_add_f32 v26, v26, v27
    v_add_f32 v28, v28, v29
    v_add_f32 v30, v30, v31
    s_lshl_b32 s51, s49, 10
    s_lshl_b32 s52, s50, 9
    s_add_u32 s51, s51, s52
    s_add_u32 s51, s51, {PART}
    v_permlane32_swap_b32 v24, v26
    v_permlane32_swap_b32 v28, v30
    v_lshl_add_u32 v1, v0, 3, s51
    v_add_f32 v24, v24, v26
    v_add_f32 v25, v28, v30
    ds_write_b64 v1, v[24:25]
    s_waitcnt lgkmcnt(0)
    s_barrier
    """)
    stamp("c")
    a(f"""
    v_and_b32 v1, 31, v0
    s_lshl_b32 s51, s50, 6
    v_add_u32 v1, s51, v1
    v_lshrrev_b32 v2, 5, v0
    s_lshl_b32 s51, s49, 5
    v_add_u32 v2, s51, v2                 ; (wm*128 + 4h)/4
    v_lshlrev_b32 v2, 11, v2              ; row*512
    v_and_b32 v3, 3, v1
    v_lshl_add_u32 v2, v3, 2, v2
    """)
    for nt in range(2):
        a(f"""
        v_add_u32 v3, {32*nt}, v1
        v_bfe_u32 v4, v3, 2, 1                ; u&1
        v_lshrrev_b32 v3, 3, v3               ; u>>1
        v_lshl_add_u32 v3, v4, 2, v3          ; +4*(u&1)
        v_and_b32 v3, 15, v3
        v_lshl_add_u32 v3, v4, 4, v3          ; +16*(u&1)
        v_lshl_add_u32 v{32+nt}, v3, 4, v2
        v_add_u32 v{34+nt}, 32768, v{32+nt}
        """)
    for mt in range(4):
        for nt in range(2):
            for g in range(4):
                for r in range(0, 4, 2):
                    x = acc(mt, nt) + g * 4 + r
                    row = (mt & 1) * 32 + 8 * g + r
                    base = 32 + nt + 2 * (mt >> 1)
                    a(f"ds_write2st64_b32 v{base}, v{x}, v{x+1} offset0:{row*2} offset1:{row*2+2}")
    a("s_branch L_final")

    nst_c = nst[0]; nst[0] = 1
    VA, VW = 8, 16
    a(f"""
    L_loader:
    s_sub_u32 s49, s3, 4                  ; lw
    v_lshrrev_b32 v2, 3, v0
    s_lshl_b32 s51, s49, 6
    v_add_u32 v2, s51, v2
    v_and_b32 v3, 7, v0
    """)
    for n in range(8):
        a(f"""
        v_add_u32 v4, {8*n}, v2
        v_bfe_u32 v5, v4, 1, 3
        v_xor_b32 v5, v5, v3
        v_add_u32 v4, s46, v4
        v_min_u32 v4, 15999, v4
        v_lshlrev_b32 v4, 11, v4
        v_lshl_add_u32 v4, v5, 4, v4
        v_subrev_u32 v{VA+n}, {(n&3)*1024}, v4
        """)
    a(f"""
    v_lshrrev_b32 v2, 4, v0               ; l>>4 = k&3
    v_and_b32 v3, 15, v0
    v_lshlrev_b32 v4, 2, v2
    v_xor_b32 v3, v3, v4
    v_lshlrev_b32 v3, 4, v3
    s_lshl_b32 s51, s49, 4
    v_add_u32 v2, s51, v2
    v_lshl_add_u32 v2, v2, 10, v3
    s_lshl_b32 s51, s41, 8
    v_add_u32 v{VW}, s51, v2
    """)
    for n in range(1, 4):
        a(f"v_add_u32 v{VW+n}, {3072*n}, v{VW}")
    a(f"""
    s_lshl_b32 s50, s49, 13
    s_lshl_b32 s51, s49, 12
    s_add_u32 s51, s51, {W_BASE}
    s_waitcnt lgkmcnt(0)
    s_mov_b32 s8, s4
    s_mov_b32 s9, s5
    s_mov_b32 s10, 32768000
    s_mov_b32 s11, 0x20000
    s_mov_b32 s12, s6
    s_mov_b32 s13, s7
    s_mov_b32 s14, 1572864
    s_mov_b32 s15, 0x20000
    """)
    def issueA(slot_s, soff):
        for half in range(2):
            if isinstance(slot_s, int):
                a(f"s_add_u32 m0, s50, {slot_s + half*4096}")
            else:
                if half == 0: a(f"s_add_u32 m0, s50, {slot_s}")
                else: a(f"s_add_u32 m0, m0, 4096")
            a("s_nop 0")
            for n in range(4):
                if nodma: continue
                a(f"buffer_load_dwordx4 v{VA+half*4+n}, s[8:11], {soff} offen offset:{n*1024}{xmod} lds")
    def issueW(slot_s, soff):
        a(f"s_add_u32 m0, s51, {slot_s}")
        a("s_nop 0")
        for n in range(4):
            if nodma: continue
            a(f"buffer_load_dwordx4 v{VW+n}, s[12:15], {soff} offen offset:{n*1024} lds")
    a(f"""
    s_mov_b32 s52, 0                      ; x k-offset (E)
    s_mov_b32 s53, 1024                   ; x k-offset (O)
    s_mov_b32 s54, 0
    s_mov_b32 s55, 0x100000               ; W tap2
    s_mov_b32 s56, 0x80000                ; W tap1
    """)
    issueA(0, "s52"); issueW(0, "s54"); issueW(16384, "s55"); issueA(A_SLOT, "s53"); issueW(32768, "s56")
    a(f"""
    s_mov_b32 s57, {2*A_SLOT}
    s_mov_b32 s58, 0
    s_mov_b32 s59, 49152
    s_mov_b32 s60, 7
    s_waitcnt vmcnt(16)
    s_barrier
    """)
    stamp("l")
    def wnext():
        a("s_add_u32 s59, s59, 16384")
        a("s_and_b32 s59, s59, 0xffff")
    a(f"""
    L_lloop:
    s_add_u32 s52, s52, 128
    s_add_u32 s53, s53, 128
    s_add_u32 s54, s54, 0x10000
    s_add_u32 s55, s55, 0x10000
    s_add_u32 s56, s56, 0x10000
    """)
    issueA("s57", "s52"); issueW("s59", "s54"); wnext()
    a("s_waitcnt vmcnt(24)\ns_barrier")
    issueW("s59", "s55"); wnext()
    a("s_waitcnt vmcnt(16)\ns_barrier")
    issueA("s58", "s53"); issueW("s59", "s56"); wnext()
    a(f"""
    s_add_u32 s61, s57, s58
    s_mov_b32 s58, s57
    s_sub_u32 s57, {3*A_SLOT}, s61
    s_waitcnt vmcnt(16)
    s_barrier
    s_sub_u32 s60, s60, 1
    s_cmp_lg_u32 s60, 0
    s_cbranch_scc1 L_lloop
    s_waitcnt vmcnt(12)
    s_barrier
    s_waitcnt vmcnt(0)
    s_barrier
    """)
    stamp("l")
    a(f"""
    v_and_b32 v1, 15, v0
    v_lshrrev_b32 v2, 5, v0
    v_lshl_add_u32 v1, v1, 1, v2
    s_lshl_b32 s52, s49, 5
    v_add_u32 v20, s52, v1
    s_lshl_b32 s52, s41, 7
    v_add_u32 v1, s52, v20
    v_lshlrev_b32 v1, 1, v1
    global_load_ushort v21, v1, s[28:29]
    global_load_ushort v22, v1, s[30:31]
    s_lshl_b32 s52, s48, 2
    v_mov_b32 v2, s52
    s_mov_b32 s60, 0x20000
    L_cnt:
    global_load_dword v3, v2, s[34:35] sc1
    s_waitcnt vmcnt(0)
    v_readfirstlane_b32 s52, v3
    s_sub_u32 s60, s60, 1
    s_cmp_eq_u32 s60, 0
    s_cbranch_scc1 L_cnt_done
    s_cmp_lt_u32 s52, 32
    s_cbranch_scc1 L_cnt
    L_cnt_done:
    v_lshlrev_b32 v21, 16, v21
    v_lshlrev_b32 v22, 16, v22
    v_lshrrev_b32 v1, 4, v0
    v_and_b32 v2, 15, v0
    v_lshlrev_b32 v2, 4, v2
    v_lshl_add_u32 v1, v1, 10, v2
    s_lshl_b32 s52, s48, 15
    s_lshl_b32 s53, s49, 8
    s_add_u32 s52, s52, s53
    v_add_u32 v23, s52, v1
    s_mov_b32 s20, s36
    s_mov_b32 s21, s37
    s_mov_b32 s22, 0x40000
    s_mov_b32 s23, 0x20000
    s_barrier
    s_barrier
    """)
    stamp("l")
    a(f"""
    s_cmp_lg_u32 s49, 0
    s_cbranch_scc1 L_nopub
    v_lshlrev_b32 v1, 4, v0
    v_add_u32 v2, {PART}, v1
    ds_read_b128 v[4:7], v2
    ds_read_b128 v[8:11], v2 offset:1024
    s_lshl_b32 s52, s48, 5
    s_add_u32 s52, s52, s44
    s_lshl_b32 s52, s52, 10
    v_add_u32 v1, s52, v1
    s_waitcnt lgkmcnt(0)
    v_pk_add_f32 v[4:5], v[4:5], v[8:9]
    v_pk_add_f32 v[6:7], v[6:7], v[10:11]
    buffer_store_dwordx4 v[4:7], v1, s[20:23], 0 offen sc1
    L_nopub:
    s_mov_b32 s60, 0x20000
    L_poll:
    """)
    G = 32
    for i in range(8):
        a(f"s_mov_b32 s52, {i*4096}")
        a(f"buffer_load_dwordx4 v[{G+4*i}:{G+4*i+3}], v23, s[20:23], s52 offen sc1")
    a("s_waitcnt vmcnt(0)")
    a(f"v_min_f32 v1, v{G+1}, v{G+3}")
    for i in range(1, 8):
        a(f"v_min3_f32 v1, v1, v{G+4*i+1}, v{G+4*i+3}")
    a(f"""
    v_cmp_gt_f32 vcc, 0, v1
    s_sub_u32 s60, s60, 1
    s_cmp_eq_u32 s60, 0
    s_cbranch_scc1 L_poll_done
    s_cbranch_vccnz L_poll
    L_poll_done:
    """)
    stamp("l")
    for step in (4, 2, 1):
        for i in range(step):
            for h in range(2):
                x = G + 4 * i + 2 * h; y = G + 4 * (i + step) + 2 * h
                a(f"v_pk_add_f32 v[{x}:{x+1}], v[{x}:{x+1}], v[{y}:{y+1}]")
    a(f"""
    s_nop 1
    v_permlane32_swap_b32 v{G}, v{G+2}
    v_permlane32_swap_b32 v{G+1}, v{G+3}
    s_nop 1
    v_add_f32 v{G}, v{G}, v{G+2}          ; S
    v_add_f32 v{G+1}, v{G+1}, v{G+3}      ; Q
    v_mov_b32 v{G+2}, v{G}
    v_mov_b32 v{G+3}, v{G+1}
    s_nop 1
    v_permlane16_swap_b32 v{G}, v{G+2}
    v_permlane16_swap_b32 v{G+1}, v{G+3}
    s_mov_b32 s52, {f2u(1.0/LROWS)}
    s_nop 0
    v_add_f32 v{G}, v{G}, v{G+2}
    v_add_f32 v{G+1}, v{G+1}, v{G+3}
    v_mul_f32 v{G}, s52, v{G}             ; mean
    v_mul_f32 v{G+1}, s52, v{G+1}         ; E[h^2]
    v_fma_f32 v{G+1}, -v{G}, v{G}, v{G+1} ; var
    v_max_f32 v{G+1}, 0, v{G+1}
    v_add_f32 v{G+1}, {f2u(1e-5)}, v{G+1}
    v_rsq_f32 v{G+1}, v{G+1}
    v_lshlrev_b32 v1, 2, v20
    v_add_u32 v1, {CONST}, v1
    v_mul_f32 v{G+1}, v{G+1}, v21         ; scale
    v_fma_f32 v{G}, -v{G}, v{G+1}, v22    ; shift
    ds_write_b32 v1, v{G+1}
    ds_write_b32 v1, v{G} offset:512
    """)
    nst_l = nst[0]
    nst[0] = 8
    a(f"""
    L_final:
    s_mul_i32 s52, s43, {LROWS}
    s_add_u32 s52, s52, s45
    s_lshl_b32 s52, s52, 10
    s_add_u32 s16, s32, s52
    s_addc_u32 s17, s33, 0
    s_lshl_b32 s18, s47, 10
    s_mov_b32 s19, 0x20000
    v_and_b32 v1, 15, v0
    v_lshrrev_b32 v2, 4, v0
    s_lshl_b32 s52, s3, 5
    v_add_u32 v2, s52, v2                 ; row = 32*w + (l>>4)
    v_lshlrev_b32 v3, 9, v2
    v_lshl_add_u32 v8, v1, 4, v3
    v_add_u32 v4, 4, v1
    v_and_b32 v4, 15, v4
    v_lshl_add_u32 v9, v4, 4, v3
    v_lshlrev_b32 v3, 10, v2
    v_lshl_add_u32 v10, v1, 4, v3
    s_lshl_b32 s52, s41, 8
    v_add_u32 v10, s52, v10
    v_lshlrev_b32 v11, 5, v1
    v_add_u32 v11, {CONST}, v11
    s_mov_b32 s24, {f2u(C1)}
    s_mov_b32 s25, {f2u(C1)}
    s_mov_b32 s26, 0x3f800000
    s_mov_b32 s27, 0x3f800000
    v_mov_b32 v12, {f2u(C2)}
    v_mov_b32 v13, {f2u(C2)}
    s_waitcnt lgkmcnt(0)
    s_barrier
    """)
    stamp("f")
    SC, SH, H, T, O = 16, 24, 64, 32, 40
    a(f"""
    ds_read_b128 v[{SC}:{SC+3}], v11
    ds_read_b128 v[{SC+4}:{SC+7}], v11 offset:16
    ds_read_b128 v[{SH}:{SH+3}], v11 offset:512
    ds_read_b128 v[{SH+4}:{SH+7}], v11 offset:528
    """)
    def rd(i):
        return [f"ds_read_b128 v[{H+8*i}:{H+8*i+3}], v8 offset:{i*2048}",
                f"ds_read_b128 v[{H+8*i+4}:{H+8*i+7}], v9 offset:{i*2048+256}"]
    LOOK = 4
    for i in range(LOOK):
        for r in rd(i): a(r)
    def p(x): return f"v[{x}:{x+1}]"
    for i in range(8):
        issued = min(8, i + LOOK)
        a(f"s_waitcnt lgkmcnt({2*(issued - i - 1)})")
        if i + LOOK < 8:
            for r in rd(i + LOOK): a(r)
        h = H + 8 * i; o = O + 4 * (i & 1)
        for j in range(0, 8, 2): a(f"v_pk_fma_f32 {p(h+j)}, {p(h+j)}, {p(SC+j)}, {p(SH+j)}")
        for j in range(0, 8, 2): a(f"v_pk_mul_f32 {p(T+j)}, {p(h+j)}, {p(h+j)}")
        for j in range(0, 8, 2): a(f"v_pk_fma_f32 {p(T+j)}, {p(T+j)}, v[12:13], s[24:25]")
        for j in range(0, 8, 2): a(f"v_pk_mul_f32 {p(T+j)}, {p(T+j)}, {p(h+j)}")
        for j in range(8): a(f"v_exp_f32 v{T+j}, v{T+j}")
        for j in range(0, 8, 2): a(f"v_pk_add_f32 {p(T+j)}, {p(T+j)}, s[26:27]")
        for j in range(8): a(f"v_rcp_f32 v{T+j}, v{T+j}")
        for j in range(0, 8, 2): a(f"v_pk_mul_f32 {p(T+j)}, {p(T+j)}, {p(h+j)}")
        for j in range(0, 8, 2): a(f"v_cvt_pk_bf16_f32 v{o+j//2}, v{T+j}, v{T+j+1}")
        a(f"buffer_store_dwordx4 v[{o}:{o+3}], v10, s[16:19], 0 offen{omod}")
        if i < 7: a("v_add_u32 v10, 4096, v10")
    if stamps:
        stamp("f")
        a("s_waitcnt vmcnt(0)")
        stamp("f")
        a(f"""
        s_waitcnt lgkmcnt(0)
        s_and_b32 s52, s3, 3
        s_cmp_lg_u32 s52, 0
        s_cbranch_scc1 L_end
        s_lshl_b32 s52, s2, 7
        s_lshl_b32 s53, s3, 4
        s_add_u32 s52, s52, s53
        s_add_u32 s52, s52, {STAMP_OFF}
        v_mov_b32 v1, s52
        v_cmp_eq_u32 vcc, 0, v0
        s_and_saveexec_b64 s[52:53], vcc
        """)
        for k in range(16):
            a(f"v_mov_b32 v{16+k}, s{64+2*k}")
        for k in range(4):
            a(f"global_store_dwordx4 v1, v[{16+4*k}:{16+4*k+3}], s[36:37] offset:{16*k}")
        a("s_waitcnt vmcnt(0)")
    a("L_end:\ns_endpgm")
    return wrap(a.text(), 256, 512, 163840, 256)

if __name__ == "__main__":
    out = sys.argv[1]
    kw = json.loads(sys.argv[2]) if len(sys.argv) > 2 else {}
    open(out, "w").write(gen(**kw))
```

```python
import sys, json, struct
from asmlib import *

def f2u(f): return struct.unpack("<I", struct.pack("<f", f))[0]

LROWS = 7999
C1 = -2.0 * 0.7978845608028654 * 1.4426950408889634
C2 = C1 * 0.044715
SENT = 0xBF800000
A_SLOT = 32768
W_BASE = 98304
PART = 131072
CONST = 131072 + 2048
STAMP_OFF = 1 << 20
SPIN = 0x20000

def gen(stamps=False, xmod="", omod=" sc0 sc1", prio=0, LA=2, nodma=False, order="a", codepf=True, sleep=0, itstamps=False, loopA=True, loopW=True, smallx=False, nobar=False, barpos=0, sideit=6, flagmode='atomic', pert1=None, pertall=None):
    inloop = [False]
    a = Asm()
    VST, VST2 = 2, 3
    def stamp(k):
        if not stamps: return
        a(f"s_memrealtime s[96:97]\ns_memtime s[98:99]\ns_waitcnt lgkmcnt(0)\nv_writelane_b32 v{VST}, s96, {k}\nv_writelane_b32 v{VST2}, s98, {k}")
    a(f"""
    s_cmp_ge_u32 s2, 256
    s_cbranch_scc1 L_end
    s_load_dwordx4 s[4:7], s[0:1], 0      ; x, w
    s_load_dwordx4 s[28:31], s[0:1], 16
    s_load_dwordx4 s[32:35], s[0:1], 32
    s_load_dwordx2 s[36:37], s[0:1], 48   ; ws
    """)
    if stamps: a("s_memrealtime s[92:93]\ns_memtime s[94:95]")
    a(f"""
    v_lshrrev_b32 v1, 6, v0
    v_and_b32 v0, 63, v0
    v_readfirstlane_b32 s3, v1
    s_and_b32 s38, s2, 7
    s_bfe_u32 s40, s2, 0x30005
    s_bfe_u32 s41, s2, 0x20003
    s_lshl_b32 s42, s38, 3
    s_add_u32 s42, s42, s40               ; mt 0..63
    s_lshr_b32 s43, s42, 5                ; batch
    s_and_b32 s44, s42, 31
    s_mul_i32 s45, s44, 250
    s_mul_i32 s46, s43, 8000
    s_add_u32 s46, s46, s45
    s_cmp_eq_u32 s44, 31
    s_cselect_b32 s47, 1, 0
    s_sub_u32 s47, 250, s47               ; nvalid
    s_lshl_b32 s48, s43, 2
    s_add_u32 s48, s48, s41
    s_cmp_lt_u32 s3, 4
    s_cbranch_scc1 L_compute
    """)
    VA, VW = 8, 12
    a(f"""
    s_sub_u32 s49, s3, 4                  ; lw
    v_lshrrev_b32 v4, 4, v0               ; l>>4
    v_and_b32 v5, 15, v0
    v_lshlrev_b32 v6, 1, v4
    v_xor_b32 v5, v5, v6                  ; W chunk (n<2)
    s_and_b32 s50, s49, 1
    s_lshl_b32 s51, s50, 14
    s_lshl_b32 s52, s41, 8
    s_add_u32 s51, s51, s52
    v_lshlrev_b32 v5, 4, v5
    v_lshl_add_u32 v5, v4, 10, v5
    v_add_u32 v{VW}, s51, v5
    v_add_u32 v{VW+1}, 3072, v{VW}
    v_xor_b32 v{VW+2}, 128, v{VW}
    v_add_u32 v{VW+3}, 9216, v{VW+2}
    v_add_u32 v{VW+2}, 6144, v{VW+2}
    v_and_b32 v5, 7, v0
    v_xor_b32 v5, v5, v4
    v_lshlrev_b32 v5, 4, v5
    v_lshrrev_b32 v6, 3, v0
    v_lshl_add_u32 v5, v6, 14, v5
    s_lshr_b32 s52, s49, 1
    s_lshl_b32 s52, s52, 18
    s_lshl_b32 s53, s50, 13
    s_add_u32 s52, s52, s53
    v_add_u32 v{VA}, s52, v5
    v_xor_b32 v{VA+1}, 64, v{VA}
    v_add_u32 v{VA+1}, {64*2048 - 1024}, v{VA+1}
    v_add_u32 v{VA+2}, 4096, v{VA}
    v_add_u32 v{VA+3}, 4096, v{VA+1}
    s_lshl_b32 s50, s49, 13
    s_lshl_b32 s51, s49, 12
    s_add_u32 s51, s51, {W_BASE}
    s_lshr_b32 s52, s49, 1                ; lw>=2
    s_lshl_b32 s54, s52, 20               ; sB0
    s_add_u32 s55, s54, 0x8000            ; sB1
    s_lshl_b32 s56, s52, 15
    s_add_u32 s56, s56, 0x80000           ; sB2
    s_mov_b32 s52, 0                      ; x k-offset (E)
    s_mov_b32 s53, 1024                   ; x k-offset (O)
    s_lshl_b32 s10, s47, 11
    s_add_u32 s10, s10, 1024
    s_mov_b32 s11, 0x20000
    s_mov_b32 s14, 1572864
    s_mov_b32 s15, 0x20000
    s_lshl_b32 s57, s46, 11
    {"s_mov_b32 s57, 0" if smallx else ""}
    s_waitcnt lgkmcnt(0)
    s_add_u32 s8, s4, s57
    s_addc_u32 s9, s5, 0
    s_mov_b32 s12, s6
    s_mov_b32 s13, s7
    """)
    vq = []
    def issueA(slot_s, soff, tag):
        for half in range(2):
            if isinstance(slot_s, int):
                a(f"s_add_u32 m0, s50, {slot_s + half*4096}")
            else:
                if half == 0: a(f"s_add_u32 m0, s50, {slot_s}")
                else: a(f"s_add_u32 m0, m0, 4096")
            a("s_nop 0")
            for n in range(4):
                vq.append(tag)
                if nodma or (inloop[0] and not loopA): continue
                a(f"buffer_load_dwordx4 v{VA+half*2+(n&1)}, s[8:11], {soff} offen offset:{n*1024}{xmod} lds")
    def issueW(slot_s, soff, tag):
        a(f"s_add_u32 m0, s51, {slot_s}")
        a("s_nop 0")
        for n in range(4):
            vq.append(tag)
            if nodma or (inloop[0] and not loopW): continue
            a(f"buffer_load_dwordx4 v{VW+n}, s[12:15], {soff} offen offset:{n*1024} lds")
    def vwait(tags):
        last = max([i for i, t in enumerate(vq) if t in tags], default=-1)
        n = len(vq) - 1 - last
        a(f"s_waitcnt vmcnt({n})")
        return n
    def Aname(k): return f"E{k//3}" if k % 3 < 2 else f"O{k//3}"
    issueW(0, "s54", "B0"); issueA(0, "s52", "E0"); issueW(16384, "s55", "B1"); issueW(32768, "s56", "B2")
    issueA(A_SLOT, "s53", "O0")
    a("s_add_u32 s54, s54, 0x10000\ns_add_u32 s52, s52, 128")
    issueW(49152, "s54", "B3"); issueA(2 * A_SLOT, "s52", "E1")
    if stamps: a(f"v_writelane_b32 v{VST}, s92, 0\nv_writelane_b32 v{VST2}, s94, 0")
    a(f"""
    s_mov_b32 s57, {A_SLOT}
    s_mov_b32 s58, 0
    s_mov_b32 s59, 0
    s_mov_b32 s60, 6
    """)
    vwait({"B0", "E0"}); a("s_barrier")
    vwait({"B1"}); a("s_barrier")
    stamp(1)
    def wnext():
        a("s_add_u32 s59, s59, 16384")
        a("s_and_b32 s59, s59, 0xffff")
    def lstep(k, emit=True):
        c = k // 3
        kb = k + 5
        if kb <= 23:
            sreg = ["s54", "s55", "s56"][kb % 3]
            a(f"s_add_u32 {sreg}, {sreg}, 0x10000")
            issueW("s59", sreg, f"B{kb}"); wnext()
        if k % 3 == 1 and c + 1 <= 7:
            a("s_add_u32 s53, s53, 128")
            issueA("s58", "s53", f"O{c+1}")
        if k % 3 == 2 and k >= 0 and c + 2 <= 7:
            a("s_add_u32 s52, s52, 128")
            issueA("s57", "s52", f"E{c+2}")
            a(f"s_add_u32 s61, s57, s58\ns_mov_b32 s57, s58\ns_sub_u32 s58, {3*A_SLOT}, s61")
        need = set()
        if k + 2 <= 23: need.add(Aname(k + 2))
        if k + 3 <= 23: need.add(f"B{k+3}")
        n = vwait(need) if need else None
        return n
    inloop[0] = True
    def lbar():
        if not nobar: a("s_barrier")
    lstep(-1); lbar()
    mark = len(a.lines)
    a("L_lloop:")
    ns = []
    for k in range(0, 3):
        ns.append(lstep(k)); lbar()
    a("s_sub_u32 s60, s60, 1\ns_cmp_lg_u32 s60, 0\ns_cbranch_scc1 L_lloop")
    keep = len(a.lines)
    for c in range(1, 6):
        for k in range(3 * c, 3 * c + 3):
            n = lstep(k); assert n == ns[k % 3], (k, n, ns)
    del a.lines[keep:]
    for k in range(18, 22):
        lstep(k); lbar()
    stamp(2)
    if flagmode == "atomic":
        cnt = f"""s_lshl_b32 s52, s48, 2
        v_mov_b32 v4, s52
        s_mov_b32 s60, {SPIN}
        L_cnt:
        global_load_dword v5, v4, s[34:35] sc1
        s_waitcnt vmcnt(0)
        v_readfirstlane_b32 s52, v5
        s_sub_u32 s60, s60, 1
        s_cmp_eq_u32 s60, 0
        s_cbranch_scc1 L_cnt_done
        s_cmp_lt_u32 s52, 32
        s_cbranch_scc1 L_cnt
        L_cnt_done:"""
    else:
        cnt = f"""s_lshl_b32 s52, s48, 5
        v_and_b32 v4, 7, v0
        v_lshl_add_u32 v4, v4, 2, s52
        s_mov_b32 s60, {SPIN}
        L_cnt:
        global_load_dword v5, v4, s[34:35] sc1
        s_waitcnt vmcnt(0)
        v_cmp_ne_u32 vcc, 0x01010101, v5
        s_sub_u32 s60, s60, 1
        s_cmp_eq_u32 s60, 0
        s_cbranch_scc1 L_cnt_done
        s_cbranch_vccnz L_cnt
        L_cnt_done:"""

    a(f"""
    v_and_b32 v1, 15, v0
    v_lshrrev_b32 v4, 5, v0
    v_lshl_add_u32 v1, v1, 1, v4
    s_lshl_b32 s52, s49, 5
    v_add_u32 v20, s52, v1
    s_lshl_b32 s52, s41, 7
    v_add_u32 v1, s52, v20
    v_lshlrev_b32 v1, 1, v1
    global_load_ushort v21, v1, s[28:29]
    global_load_ushort v22, v1, s[30:31]
    {cnt}
    v_lshlrev_b32 v21, 16, v21
    v_lshlrev_b32 v22, 16, v22
    v_lshrrev_b32 v1, 4, v0
    v_and_b32 v4, 15, v0
    v_lshlrev_b32 v4, 4, v4
    v_lshl_add_u32 v1, v1, 10, v4
    s_lshl_b32 s52, s48, 15
    s_lshl_b32 s53, s49, 8
    s_add_u32 s52, s52, s53
    v_add_u32 v23, s52, v1
    s_mov_b32 s20, s36
    s_mov_b32 s21, s37
    s_mov_b32 s22, 0x40000
    s_mov_b32 s23, 0x20000
    v_lshlrev_b32 v1, 4, v0
    v_add_u32 v24, {PART}, v1
    s_lshl_b32 s52, s48, 5
    s_add_u32 s52, s52, s44
    s_lshl_b32 s52, s52, 10
    v_add_u32 v25, s52, v1
    """)
    for i in range(8):
        a(f"s_mov_b64 s[{64+2*i}:{65+2*i}], -1")
    a(f"""
    s_mov_b32 s60, {SPIN}
    {"" if nobar else "s_barrier"}
    s_barrier
    """)
    stamp(3)
    a(f"""
    s_cmp_lg_u32 s49, 0
    s_cbranch_scc1 L_poll
    ds_read_b128 v[4:7], v24
    ds_read_b128 v[8:11], v24 offset:1024
    s_waitcnt lgkmcnt(0)
    v_pk_add_f32 v[4:5], v[4:5], v[8:9]
    v_pk_add_f32 v[6:7], v[6:7], v[10:11]
    buffer_store_dwordx4 v[4:7], v25, s[20:23], 0 offen sc1
    L_poll:
    """)
    G = 32
    for i in range(8):
        a(f"""
        s_mov_b64 exec, s[{64+2*i}:{65+2*i}]
        s_cbranch_execz L_pskip{i}
        s_mov_b32 s52, {i*4096}
        buffer_load_dwordx4 v[{G+4*i}:{G+4*i+3}], v23, s[20:23], s52 offen sc1
        L_pskip{i}:
        """)
    a("s_mov_b64 exec, -1\ns_waitcnt vmcnt(0)")
    for i in range(8):
        a(f"v_min_f32 v1, v{G+4*i+1}, v{G+4*i+3}")
        a(f"v_cmp_gt_f32 s[{64+2*i}:{65+2*i}], 0, v1")
    a("s_or_b64 s[52:53], s[64:65], s[66:67]")
    for i in range(2, 8):
        a(f"s_or_b64 s[52:53], s[52:53], s[{64+2*i}:{65+2*i}]")
    a(f"""
    s_cbranch_scc0 L_poll_done
    """)
    if sleep: a(f"s_sleep {sleep}")
    a(f"""
    s_sub_u32 s60, s60, 1
    s_cmp_lg_u32 s60, 0
    s_cbranch_scc1 L_poll
    L_poll_done:
    """)
    stamp(4)
    for step in (4, 2, 1):
        for i in range(step):
            for h in range(2):
                x = G + 4 * i + 2 * h; y = G + 4 * (i + step) + 2 * h
                a(f"v_pk_add_f32 v[{x}:{x+1}], v[{x}:{x+1}], v[{y}:{y+1}]")
    a(f"""
    s_nop 1
    v_permlane32_swap_b32 v{G}, v{G+2}
    v_permlane32_swap_b32 v{G+1}, v{G+3}
    s_nop 1
    v_add_f32 v{G}, v{G}, v{G+2}          ; S
    v_add_f32 v{G+1}, v{G+1}, v{G+3}      ; Q
    v_mov_b32 v{G+2}, v{G}
    v_mov_b32 v{G+3}, v{G+1}
    s_nop 1
    v_permlane16_swap_b32 v{G}, v{G+2}
    v_permlane16_swap_b32 v{G+1}, v{G+3}
    s_mov_b32 s52, {f2u(1.0/LROWS)}
    s_nop 0
    v_add_f32 v{G}, v{G}, v{G+2}
    v_add_f32 v{G+1}, v{G+1}, v{G+3}
    v_mul_f32 v{G}, s52, v{G}             ; mean
    v_mul_f32 v{G+1}, s52, v{G+1}         ; E[h^2]
    v_fma_f32 v{G+1}, -v{G}, v{G}, v{G+1} ; var
    v_max_f32 v{G+1}, 0, v{G+1}
    v_add_f32 v{G+1}, {f2u(1e-5)}, v{G+1}
    v_rsq_f32 v{G+1}, v{G+1}
    v_lshlrev_b32 v1, 2, v20
    v_add_u32 v1, {CONST}, v1
    v_mul_f32 v{G+1}, v{G+1}, v21         ; scale
    v_fma_f32 v{G}, -v{G}, v{G+1}, v22    ; shift
    ds_write_b32 v1, v{G+1}
    ds_write_b32 v1, v{G} offset:512
    s_branch L_final
    """)

    ACC = 128
    def acc(j, n): return ACC + (j * 4 + n) * 4
    BF = 64
    AF = 32
    NRING = 8
    aE, aE8, aO, bB = 8, 10, 12, 14
    a("L_compute:")
    if prio: a(f"s_setprio {prio}")
    a(f"""
    s_lshr_b32 s49, s3, 1                 ; wm
    s_and_b32 s50, s3, 1                  ; wn
    s_mov_b32 s62, -1
    s_cmp_lg_u32 s3, 0
    s_cbranch_scc1 L_nosent
    s_lshl_b32 s51, s48, 5
    s_add_u32 s51, s51, s44
    s_lshl_b32 s51, s51, 10
    v_lshlrev_b32 v1, 4, v0
    v_add_u32 v1, s51, v1
    v_mov_b32 v4, {SENT}
    v_mov_b32 v5, {SENT}
    v_mov_b32 v6, {SENT}
    v_mov_b32 v7, {SENT}
    s_mov_b32 s62, {sideit}
    s_waitcnt lgkmcnt(0)
    global_store_dwordx4 v1, v[4:7], s[36:37] sc1
    L_nosent:
    """)
    if codepf:
        a(f"""
        s_cmp_lg_u32 s3, 1
        s_cbranch_scc1 L_nopf
        s_getpc_b64 s[52:53]
        L_pfbase:
        s_sub_u32 s52, s52, L_pfbase-{NAME}_kernel
        s_subb_u32 s53, s53, 0
        v_lshlrev_b32 v1, 7, v0
        v_min_u32 v4, L_end-{NAME}_kernel, v1
        global_load_dword v5, v4, s[52:53]
        v_add_u32 v1, 8192, v1
        v_min_u32 v4, L_end-{NAME}_kernel, v1
        global_load_dword v6, v4, s[52:53]
        L_nopf:
        """)
    a(f"""
    v_and_b32 v18, 15, v0                 ; i
    v_lshrrev_b32 v19, 4, v0              ; g
    s_lshl_b32 s51, s49, 14
    v_bfe_u32 v20, v18, 1, 3
    v_xor_b32 v20, v20, v19
    v_lshlrev_b32 v20, 4, v20
    v_lshl_add_u32 v20, v18, 7, v20
    v_add_u32 v{aE}, s51, v20
    v_xor_b32 v{aE+1}, 64, v{aE}
    v_add_u32 v{aO}, {A_SLOT}, v{aE}
    v_add_u32 v{aO+1}, {A_SLOT}, v{aE+1}
    v_add_u32 v21, 1, v18
    s_mul_i32 s52, s49, 127
    s_add_u32 s52, s52, 128
    s_lshl_b32 s53, s49, 7
    v_add_u32 v21, s53, v21
    v_mov_b32 v22, s52
    v_cmp_eq_u32 vcc, 15, v18
    s_nop 1
    v_cndmask_b32 v21, v21, v22, vcc
    v_bfe_u32 v20, v21, 1, 3
    v_xor_b32 v20, v20, v19
    v_lshlrev_b32 v20, 4, v20
    v_lshl_add_u32 v{aE8}, v21, 7, v20
    v_xor_b32 v{aE8+1}, 64, v{aE8}
    v_bfe_u32 v20, v0, 2, 2               ; r
    v_lshl_add_u32 v21, v19, 3, v20       ; row
    v_and_b32 v22, 1, v19
    v_lshl_add_u32 v20, v22, 2, v20       ; s
    v_lshlrev_b32 v20, 5, v20
    s_lshl_b32 s51, s50, 7
    v_xor_b32 v20, s51, v20               ; (wn*128) ^ (s<<5)
    v_and_b32 v22, 3, v0
    v_lshl_add_u32 v20, v22, 3, v20
    v_lshl_add_u32 v20, v21, 8, v20
    v_add_u32 v{bB}, {W_BASE}, v20
    v_xor_b32 v{bB+1}, 32, v{bB}
    v_xor_b32 v{bB+2}, 64, v{bB}
    v_xor_b32 v{bB+3}, 96, v{bB}
    s_mov_b64 s[64:65], -1
    s_mov_b64 s[66:67], -1
    s_cmp_eq_u32 s49, 0
    s_cbranch_scc1 L_nomask
    s_cmp_eq_u32 s47, 249
    s_cselect_b32 s65, 0xffff, -1
    s_cselect_b32 s67, -1, 0xffff
    L_nomask:
    """)
    for i in range(0, 128, 2): a(f"v_pk_mul_f32 v[{ACC+i}:{ACC+i+1}], 0, 0") if False else a(f"v_mov_b64 v[{ACC+i}:{ACC+i+1}], 0")
    if stamps: a(f"s_waitcnt lgkmcnt(0)\nv_writelane_b32 v{VST}, s92, 0\nv_writelane_b32 v{VST2}, s94, 0")
    a(f"""
    s_mov_b32 s54, 0                      ; sE
    s_mov_b32 s55, {A_SLOT}               ; sO
    s_mov_b32 s56, 0
    s_mov_b32 s57, 8
    s_waitcnt lgkmcnt(0)
    s_barrier
    """)
    lq = []
    ring = {}
    rpos = [0]
    def afrags(t, j):
        if t < 2:
            return [("F", t, 0), ("F", t, 1)] if j == 0 else [("F", t, j + 1)]
        return [("G", 0, j), ("G", 1, j)]
    occ = {}
    dead = set()
    def aread(tag):
        idx = rpos[0] % NRING; rpos[0] += 1
        if tag[0] == "F" and tag[2] == 8: rpos[0] += 1
        if idx in occ: assert occ[idx] in dead, (tag, idx, occ[idx])
        occ[idx] = tag; dead.discard(tag)
        ring[tag] = idx
        d = AF + idx * 4
        kind, x, j = tag
        if kind == "F":
            if j < 8: s = f"ds_read_b128 v[{d}:{d+3}], v{aE+x} offset:{j*2048}"
            else: s = f"ds_read_b128 v[{d}:{d+3}], v{aE8+x}"
        else:
            s = f"ds_read_b128 v[{d}:{d+3}], v{aO+x} offset:{j*2048}"
        return ("lds", tag, s)
    def breads(buf):
        r = []
        for n in range(4):
            for pq in range(2):
                for h in range(2):
                    d = BF + buf * 32 + (pq * 4 + n) * 4 + h * 2
                    r.append(("lds", ("B", buf), f"ds_read_b64_tr_b16 v[{d}:{d+1}], v{bB+n} offset:{pq*8192 + h*1024}"))
        return r
    def emit(op):
        if isinstance(op, tuple):
            lq.append(op[1]); a(op[2])
        else: a(op)
    def lwait(tags):
        last = max([i for i, t in enumerate(lq) if t in tags], default=-1)
        if last < 0: return
        n = len(lq) - 1 - last
        assert n <= 15
        a(f"s_waitcnt lgkmcnt({n})")
        del lq[:last + 1]
    def badv():
        return ["s_add_u32 s56, s56, 16384", "s_cmp_eq_u32 s56, 0x10000", "s_cselect_b32 s58, 0xffff4000, s63", "s_and_b32 s56, s56, 0xffff"] + \
               [f"v_add_u32 v{bB+n}, s58, v{bB+n}" for n in range(4)]
    a("s_mov_b32 s63, 16384\ns_mov_b32 s61, 16")
    for op in breads(0): emit(op)
    lwait({("B", 0)})
    for j in range(LA):
        for tg in afrags(0, j): emit(aread(tg))
    for op in badv(): a(op)
    a("s_barrier")
    stamp(1)
    init_state = (list(lq), dict(ring), rpos[0] % NRING)
    NSTEP = 6
    a("L_cloop:")
    a("s_cmp_eq_u32 s57, s62\ns_cbranch_scc1 L_side\nL_side_ret:")
    def step(k, last=False):
        t = k % 3; buf = k & 1
        tn = (t + 1) % 3
        bq = breads(buf ^ 1)
        JB = 8 - LA
        nb_per = -(-16 // (JB - 1))
        for j in range(8):
            X, Y = (("F", t, j), ("F", t, j + 1)) if t < 2 else (("G", 0, j), ("G", 1, j))
            need = {X, Y}
            if j == 0: need.add(("B", buf))
            q = []
            if j == JB:
                lwait(set(lq))
            else:
                lwait(need)
            if j + LA < 8: q += [("A", tg) for tg in afrags(t, j + LA)]
            else: q += [("A", tg) for tg in afrags(tn, j + LA - 8)]
            for _ in range(nb_per):
                if bq: q.append(bq.pop(0))
            if j == JB - 1: q += badv()
            if j == JB:
                pass
            if t == 1 and j == 7:
                q += [f"s_add_u32 s59, s54, s55", f"s_sub_u32 s59, {3*A_SLOT}, s59", "s_sub_u32 s60, s59, s54"]
                q += [f"v_add_u32 v{r}, s60, v{r}" for r in (aE, aE + 1, aE8, aE8 + 1)]
            if t == 2 and j == 7:
                q += ["s_sub_u32 s60, s54, s55", "s_mov_b32 s55, s54", "s_mov_b32 s54, s59"]
                q += [f"v_add_u32 v{r}, s60, v{r}" for r in (aO, aO + 1)]
            xr = AF + ring[X] * 4; yr = AF + ring[Y] * 4
            per = -(-len(q) // 4)
            for n in range(4):
                d = acc(j, n)
                P = BF + buf * 32 + n * 4; Q = BF + buf * 32 + (4 + n) * 4
                pr = [(xr, P), (yr, Q)]
                if order == "a" and n % 2 == 1: pr = pr[::-1]
                if order == "a2" and n % 2 == 0: pr = pr[::-1]
                for ar, br in pr:
                    a(f"v_mfma_f32_16x16x32_bf16 v[{d}:{d+3}], v[{ar}:{ar+3}], v[{br}:{br+3}], v[{d}:{d+3}]")
                if j == JB and n == barpos:
                    if not nobar: a("s_barrier")
                    if itstamps:
                        a(f"s_mov_b32 m0, s61\ns_add_u32 s61, s61, 1\nv_writelane_b32 v{VST}, s96, m0\nv_writelane_b32 v{VST2}, s98, m0")
                        a("s_memrealtime s[96:97]\ns_memtime s[98:99]")
                if j == JB and n < barpos: continue
                if j == JB: per = 2
                for _ in range(per):
                    if q:
                        op = q.pop(0)
                        if isinstance(op, tuple) and op[0] == "A": op = aread(op[1])
                        emit(op)
            assert not q
            dead.add(X)
            if t == 2 or j == 7: dead.add(Y)
        assert not bq
    for k in range(NSTEP):
        a(f"; ---- step {k}")
        step(k)
        if itstamps and stamps and k % 3 == 2:
            pass
    end_state = (list(lq), {k_: v for k_, v in ring.items() if k_ in init_state[1]}, rpos[0] % NRING)
    assert end_state == init_state, (end_state, init_state)
    a(f"""
    s_sub_u32 s57, s57, 2
    s_cmp_lg_u32 s57, 0
    s_cbranch_scc1 L_cloop
    s_waitcnt lgkmcnt(0)
    """)
    stamp(2)
    a("s_nop 7")
    for n in range(4):
        a(f"v_cndmask_b32 v{acc(1,n)+3}, 0, v{acc(1,n)+3}, s[64:65]")
        a(f"v_cndmask_b32 v{acc(2,n)+3}, 0, v{acc(2,n)+3}, s[66:67]")
    S0, Q0 = 32, 40
    for j in range(8):
        for hh in range(2):
            for n in range(4):
                x = acc(j, n) + 2 * hh; S = S0 + 2 * n; Q = Q0 + 2 * n
                if j == 0 and hh == 0:
                    a(f"v_pk_mul_f32 v[{Q}:{Q+1}], v[{x}:{x+1}], v[{x}:{x+1}]")
                elif j == 0 and hh == 1:
                    a(f"v_pk_fma_f32 v[{Q}:{Q+1}], v[{x}:{x+1}], v[{x}:{x+1}], v[{Q}:{Q+1}]")
                    a(f"v_pk_add_f32 v[{S}:{S+1}], v[{x-2}:{x-1}], v[{x}:{x+1}]")
                else:
                    a(f"v_pk_fma_f32 v[{Q}:{Q+1}], v[{x}:{x+1}], v[{x}:{x+1}], v[{Q}:{Q+1}]")
                    a(f"v_pk_add_f32 v[{S}:{S+1}], v[{S}:{S+1}], v[{x}:{x+1}]")
    for n in range(4):
        a(f"v_add_f32 v{S0+2*n}, v{S0+2*n}, v{S0+2*n+1}")
        a(f"v_add_f32 v{Q0+2*n}, v{Q0+2*n}, v{Q0+2*n+1}")
    a(f"""
    s_lshl_b32 s51, s49, 10
    s_lshl_b32 s52, s50, 9
    v_permlane32_swap_b32 v{S0}, v{S0+4}
    v_permlane32_swap_b32 v{S0+2}, v{S0+6}
    v_permlane32_swap_b32 v{Q0}, v{Q0+4}
    v_permlane32_swap_b32 v{Q0+2}, v{Q0+6}
    s_add_u32 s51, s51, s52
    s_add_u32 s51, s51, {PART}
    v_add_f32 v{S0}, v{S0}, v{S0+4}
    v_add_f32 v{S0+2}, v{S0+2}, v{S0+6}
    v_add_f32 v{Q0}, v{Q0}, v{Q0+4}
    v_add_f32 v{Q0+2}, v{Q0+2}, v{Q0+6}
    v_lshl_add_u32 v1, v0, 3, s51
    s_nop 0
    v_permlane16_swap_b32 v{S0}, v{S0+2}
    v_permlane16_swap_b32 v{Q0}, v{Q0+2}
    s_nop 0
    v_add_f32 v{S0}, v{S0}, v{S0+2}
    v_add_f32 v{S0+1}, v{Q0}, v{Q0+2}
    ds_write_b64 v1, v[{S0}:{S0+1}]
    s_waitcnt lgkmcnt(0)
    s_barrier
    """)
    stamp(3)
    a(f"""
    s_lshl_b32 s51, s49, 16
    v_lshlrev_b32 v20, 14, v19
    v_add_u32 v20, s51, v20               ; (128wm+32g)*512
    v_and_b32 v21, 3, v18
    v_lshl_add_u32 v20, v21, 2, v20       ; + (col&3)*4
    v_bfe_u32 v21, v18, 2, 1              ; u&1
    v_lshrrev_b32 v22, 3, v18             ; (i>>3)
    s_lshl_b32 s51, s50, 3
    v_add_u32 v22, s51, v22               ; u>>1 for n=0
    v_lshl_add_u32 v22, v21, 2, v22       ; + 4*(u&1)
    v_lshl_add_u32 v20, v21, 8, v20       ; + 256*(u&1)
    v_and_b32 v23, 1, v19
    v_lshlrev_b32 v23, 1, v23
    """)
    for n in range(4):
        a(f"""
        v_add_u32 v21, {2*n}, v22
        v_and_b32 v21, 15, v21
        v_xor_b32 v21, v21, v23
        v_lshl_add_u32 v{24+n}, v21, 4, v20
        """)
    for j in range(8):
        for n in range(4):
            for r in (0, 2):
                x = acc(j, n) + r
                a(f"ds_write2st64_b32 v{24+n}, v{x}, v{x+1} offset0:{r*16 + j*2} offset1:{(r+1)*16 + j*2}")
    a(f"""
    L_final:
    s_mul_i32 s52, s43, {LROWS}
    s_add_u32 s52, s52, s45
    s_lshl_b32 s52, s52, 10
    s_add_u32 s16, s32, s52
    s_addc_u32 s17, s33, 0
    s_lshl_b32 s18, s47, 10
    s_mov_b32 s19, 0x20000
    v_and_b32 v1, 15, v0
    v_lshrrev_b32 v4, 4, v0
    s_lshl_b32 s52, s3, 5
    v_add_u32 v4, s52, v4                 ; row = 32*w + (l>>4)
    v_lshlrev_b32 v5, 9, v4
    s_and_b32 s52, s3, 1
    s_lshl_b32 s52, s52, 1
    v_xor_b32 v6, s52, v1
    v_lshl_add_u32 v8, v6, 4, v5
    v_add_u32 v6, 4, v1
    v_and_b32 v6, 15, v6
    v_xor_b32 v6, s52, v6
    v_lshl_add_u32 v9, v6, 4, v5
    v_lshlrev_b32 v5, 10, v4
    v_lshl_add_u32 v10, v1, 4, v5
    s_lshl_b32 s52, s41, 8
    v_add_u32 v10, s52, v10
    v_lshlrev_b32 v11, 5, v1
    v_add_u32 v11, {CONST}, v11
    s_mov_b32 s24, {f2u(C1)}
    s_mov_b32 s25, {f2u(C1)}
    s_mov_b32 s26, 0x3f800000
    s_mov_b32 s27, 0x3f800000
    v_mov_b32 v12, {f2u(C2)}
    v_mov_b32 v13, {f2u(C2)}
    s_mov_b32 s57, 4
    s_waitcnt lgkmcnt(0)
    s_barrier
    """)
    stamp(8)
    if pert1 is not None:
        a(f"""
        s_lshl_b32 s52, s2, 3
        s_add_u32 s52, s52, s3
        v_add_u32 v14, s52, v0
        v_cmp_eq_u32 vcc, 0, v14
        v_mov_b32 v15, {f2u(pert1)}
        s_nop 1
        v_cndmask_b32 v14, 0, v15, vcc
        """)
    SC, SH, H, T, O = 16, 24, 64, 32, 40
    a(f"""
    ds_read_b128 v[{SC}:{SC+3}], v11
    ds_read_b128 v[{SC+4}:{SC+7}], v11 offset:16
    ds_read_b128 v[{SH}:{SH+3}], v11 offset:512
    ds_read_b128 v[{SH+4}:{SH+7}], v11 offset:528
    """)
    def rd(i, off):
        return [f"ds_read_b128 v[{H+8*i}:{H+8*i+3}], v8 offset:{off}",
                f"ds_read_b128 v[{H+8*i+4}:{H+8*i+7}], v9 offset:{off+256}"]
    for r in rd(0, 0) + rd(1, 2048): a(r)
    def p(x): return f"v[{x}:{x+1}]"
    a("L_gloop:")
    for i in range(2):
        h = H + 8 * i; Y = 48 + 8 * 0; o = O + 4 * i
        a("s_waitcnt lgkmcnt(2)")
        for j in range(0, 8, 2): a(f"v_pk_fma_f32 {p(Y+j)}, {p(h+j)}, {p(SC+j)}, {p(SH+j)}")
        for r in rd(i, 4096 + 2048 * i): a(r)
        for j in range(0, 8, 2): a(f"v_pk_mul_f32 {p(T+j)}, {p(Y+j)}, {p(Y+j)}")
        for j in range(0, 8, 2): a(f"v_pk_fma_f32 {p(T+j)}, {p(T+j)}, v[12:13], s[24:25]")
        for j in range(0, 8, 2): a(f"v_pk_mul_f32 {p(T+j)}, {p(T+j)}, {p(Y+j)}")
        for j in range(8): a(f"v_exp_f32 v{T+j}, v{T+j}")
        for j in range(0, 8, 2): a(f"v_pk_add_f32 {p(T+j)}, {p(T+j)}, s[26:27]")
        for j in range(8): a(f"v_rcp_f32 v{T+j}, v{T+j}")
        if i == 1: a("v_add_u32 v8, 4096, v8\nv_add_u32 v9, 4096, v9")
        for j in range(0, 8, 2): a(f"v_pk_mul_f32 {p(T+j)}, {p(T+j)}, {p(Y+j)}")
        if pert1 is not None and i == 0:
            a(f"v_add_f32 v{T}, v14, v{T}\nv_mov_b32 v14, 0")
        if pertall is not None:
            for j in range(8): a(f"v_mul_f32 v{T+j}, {f2u(1.0+pertall)}, v{T+j}")
        for j in range(0, 8, 2): a(f"v_cvt_pk_bf16_f32 v{o+j//2}, v{T+j}, v{T+j+1}")
        a(f"buffer_store_dwordx4 v[{o}:{o+3}], v10, s[16:19], 0 offen{omod}")
        a("v_add_u32 v10, 4096, v10")
    a("s_sub_u32 s57, s57, 1\ns_cmp_lg_u32 s57, 0\ns_cbranch_scc1 L_gloop")
    if stamps:
        stamp(9)
        a("s_waitcnt vmcnt(0)")
        stamp(10)
        a(f"""
        s_and_b32 s52, s3, 3
        s_cmp_lg_u32 s52, 0
        s_cbranch_scc1 L_end
        s_lshl_b32 s52, s2, 10
        s_lshl_b32 s53, s3, 7
        s_add_u32 s52, s52, s53
        s_add_u32 s52, s52, {STAMP_OFF}
        v_lshlrev_b32 v1, 3, v0
        v_add_u32 v1, s52, v1
        global_store_dwordx2 v1, v[{VST}:{VST2}], s[36:37]
        s_waitcnt vmcnt(0)
        """)
    a("s_endpgm")
    if flagmode == "atomic":
        side = """s_lshl_b32 s51, s48, 2
        v_mov_b32 v4, s51
        v_mov_b32 v5, 1
        s_waitcnt vmcnt(0)
        s_mov_b64 exec, 1
        global_atomic_add v4, v5, s[34:35]
        s_mov_b64 exec, -1"""
    elif flagmode == "byte":
        side = """s_lshl_b32 s51, s48, 5
        s_add_u32 s51, s51, s44
        v_mov_b32 v4, s51
        v_mov_b32 v5, 1
        s_waitcnt vmcnt(0)
        s_mov_b64 exec, 1
        global_store_byte v4, v5, s[34:35] sc0 sc1
        s_mov_b64 exec, -1"""

    a(f"""
    L_side:
    {side}
    s_branch L_side_ret
    L_end:
    s_endpgm
    """)
    return wrap(a.text(), 256, 512, 163840, 256)

if __name__ == "__main__":
    out = sys.argv[1]
    kw = json.loads(sys.argv[2]) if len(sys.argv) > 2 else {}
    open(out, "w").write(gen(**kw))
```

```python
import sys, json, struct
from asmlib import *

def f2u(f): return struct.unpack("<I", struct.pack("<f", f))[0]

LROWS = 7999
C1 = -2.0 * 0.7978845608028654 * 1.4426950408889634
C2 = C1 * 0.044715
SENT = 0xBF800000
A_SLOT = 32768
W_BASE = 98304
PART = 131072
CONST = 131072 + 2048
STAMP_OFF = 1 << 20
SPIN = 0x20000

def gen(stamps=False, xmod="", omod=" sc0 sc1", prio=0, LA=2, nodma=False, order="a", codepf=True, sleep=0, itstamps=False, loopA=True, loopW=True, smallx=False, nobar=False, barpos=0, sideit=6, flagmode='atomic', pert1=None, pertall=None, hold=None, holdus=40):
    inloop = [False]
    a = Asm()
    VST, VST2 = 2, 3
    def stamp(k):
        if hold == k:
            lb = a.label("L_hold")
            a(f"""s_waitcnt lgkmcnt(0)
            {lb}:
            s_memrealtime s[96:97]
            s_waitcnt lgkmcnt(0)
            s_sub_u32 s96, s96, s92
            s_cmp_lt_u32 s96, {holdus*100}
            s_cbranch_scc1 {lb}""")
        if not stamps: return
        a(f"s_memrealtime s[96:97]\ns_memtime s[98:99]\ns_waitcnt lgkmcnt(0)\nv_writelane_b32 v{VST}, s96, {k}\nv_writelane_b32 v{VST2}, s98, {k}")
    a(f"""
    s_cmp_ge_u32 s2, 256
    s_cbranch_scc1 L_end
    s_load_dwordx4 s[4:7], s[0:1], 0      ; x, w
    s_load_dwordx4 s[28:31], s[0:1], 16
    s_load_dwordx4 s[32:35], s[0:1], 32
    s_load_dwordx2 s[36:37], s[0:1], 48   ; ws
    """)
    if stamps or hold is not None: a("s_memrealtime s[92:93]\ns_memtime s[94:95]")
    a(f"""
    v_lshrrev_b32 v1, 6, v0
    v_and_b32 v0, 63, v0
    v_readfirstlane_b32 s3, v1
    s_and_b32 s38, s2, 7
    s_bfe_u32 s40, s2, 0x30005
    s_bfe_u32 s41, s2, 0x20003
    s_lshl_b32 s42, s38, 3
    s_add_u32 s42, s42, s40               ; mt 0..63
    s_lshr_b32 s43, s42, 5                ; batch
    s_and_b32 s44, s42, 31
    s_mul_i32 s45, s44, 250
    s_mul_i32 s46, s43, 8000
    s_add_u32 s46, s46, s45
    s_cmp_eq_u32 s44, 31
    s_cselect_b32 s47, 1, 0
    s_sub_u32 s47, 250, s47               ; nvalid
    s_lshl_b32 s48, s43, 2
    s_add_u32 s48, s48, s41
    s_cmp_lt_u32 s3, 4
    s_cbranch_scc1 L_compute
    """)
    VA, VW = 8, 12
    a(f"""
    s_sub_u32 s49, s3, 4                  ; lw
    v_lshrrev_b32 v4, 4, v0               ; l>>4
    v_and_b32 v5, 15, v0
    v_lshlrev_b32 v6, 1, v4
    v_xor_b32 v5, v5, v6                  ; W chunk (n<2)
    s_and_b32 s50, s49, 1
    s_lshl_b32 s51, s50, 14
    s_lshl_b32 s52, s41, 8
    s_add_u32 s51, s51, s52
    v_lshlrev_b32 v5, 4, v5
    v_lshl_add_u32 v5, v4, 10, v5
    v_add_u32 v{VW}, s51, v5
    v_add_u32 v{VW+1}, 3072, v{VW}
    v_xor_b32 v{VW+2}, 128, v{VW}
    v_add_u32 v{VW+3}, 9216, v{VW+2}
    v_add_u32 v{VW+2}, 6144, v{VW+2}
    v_and_b32 v5, 7, v0
    v_xor_b32 v5, v5, v4
    v_lshlrev_b32 v5, 4, v5
    v_lshrrev_b32 v6, 3, v0
    v_lshl_add_u32 v5, v6, 14, v5
    s_lshr_b32 s52, s49, 1
    s_lshl_b32 s52, s52, 18
    s_lshl_b32 s53, s50, 13
    s_add_u32 s52, s52, s53
    v_add_u32 v{VA}, s52, v5
    v_xor_b32 v{VA+1}, 64, v{VA}
    v_add_u32 v{VA+1}, {64*2048 - 1024}, v{VA+1}
    v_add_u32 v{VA+2}, 4096, v{VA}
    v_add_u32 v{VA+3}, 4096, v{VA+1}
    s_lshl_b32 s50, s49, 13
    s_lshl_b32 s51, s49, 12
    s_add_u32 s51, s51, {W_BASE}
    s_lshr_b32 s52, s49, 1                ; lw>=2
    s_lshl_b32 s54, s52, 20               ; sB0
    s_add_u32 s55, s54, 0x8000            ; sB1
    s_lshl_b32 s56, s52, 15
    s_add_u32 s56, s56, 0x80000           ; sB2
    s_mov_b32 s52, 0                      ; x k-offset (E)
    s_mov_b32 s53, 1024                   ; x k-offset (O)
    s_lshl_b32 s10, s47, 11
    s_add_u32 s10, s10, 1024
    s_mov_b32 s11, 0x20000
    s_mov_b32 s14, 1572864
    s_mov_b32 s15, 0x20000
    s_lshl_b32 s57, s46, 11
    {"s_mov_b32 s57, 0" if smallx else ""}
    s_waitcnt lgkmcnt(0)
    s_add_u32 s8, s4, s57
    s_addc_u32 s9, s5, 0
    s_mov_b32 s12, s6
    s_mov_b32 s13, s7
    """)
    vq = []
    def issueA(slot_s, soff, tag):
        for half in range(2):
            if isinstance(slot_s, int):
                a(f"s_add_u32 m0, s50, {slot_s + half*4096}")
            else:
                if half == 0: a(f"s_add_u32 m0, s50, {slot_s}")
                else: a(f"s_add_u32 m0, m0, 4096")
            a("s_nop 0")
            for n in range(4):
                vq.append(tag)
                if nodma or (inloop[0] and not loopA): continue
                a(f"buffer_load_dwordx4 v{VA+half*2+(n&1)}, s[8:11], {soff} offen offset:{n*1024}{xmod} lds")
    def issueW(slot_s, soff, tag):
        a(f"s_add_u32 m0, s51, {slot_s}")
        a("s_nop 0")
        for n in range(4):
            vq.append(tag)
            if nodma or (inloop[0] and not loopW): continue
            a(f"buffer_load_dwordx4 v{VW+n}, s[12:15], {soff} offen offset:{n*1024} lds")
    def vwait(tags):
        last = max([i for i, t in enumerate(vq) if t in tags], default=-1)
        n = len(vq) - 1 - last
        a(f"s_waitcnt vmcnt({n})")
        return n
    def Aname(k): return f"E{k//3}" if k % 3 < 2 else f"O{k//3}"
    issueW(0, "s54", "B0"); issueA(0, "s52", "E0"); issueW(16384, "s55", "B1"); issueW(32768, "s56", "B2")
    issueA(A_SLOT, "s53", "O0")
    a("s_add_u32 s54, s54, 0x10000\ns_add_u32 s52, s52, 128")
    issueW(49152, "s54", "B3"); issueA(2 * A_SLOT, "s52", "E1")
    if stamps: a(f"v_writelane_b32 v{VST}, s92, 0\nv_writelane_b32 v{VST2}, s94, 0")
    a(f"""
    s_mov_b32 s57, {A_SLOT}
    s_mov_b32 s58, 0
    s_mov_b32 s59, 0
    s_mov_b32 s60, 6
    """)
    vwait({"B0", "E0"}); a("s_barrier")
    vwait({"B1"}); a("s_barrier")
    stamp(1)
    def wnext():
        a("s_add_u32 s59, s59, 16384")
        a("s_and_b32 s59, s59, 0xffff")
    def lstep(k, emit=True):
        c = k // 3
        kb = k + 5
        if kb <= 23:
            sreg = ["s54", "s55", "s56"][kb % 3]
            a(f"s_add_u32 {sreg}, {sreg}, 0x10000")
            issueW("s59", sreg, f"B{kb}"); wnext()
        if k % 3 == 1 and c + 1 <= 7:
            a("s_add_u32 s53, s53, 128")
            issueA("s58", "s53", f"O{c+1}")
        if k % 3 == 2 and k >= 0 and c + 2 <= 7:
            a("s_add_u32 s52, s52, 128")
            issueA("s57", "s52", f"E{c+2}")
            a(f"s_add_u32 s61, s57, s58\ns_mov_b32 s57, s58\ns_sub_u32 s58, {3*A_SLOT}, s61")
        need = set()
        if k + 2 <= 23: need.add(Aname(k + 2))
        if k + 3 <= 23: need.add(f"B{k+3}")
        n = vwait(need) if need else None
        return n
    inloop[0] = True
    def lbar():
        if not nobar: a("s_barrier")
    lstep(-1); lbar()
    mark = len(a.lines)
    a("L_lloop:")
    ns = []
    for k in range(0, 3):
        ns.append(lstep(k)); lbar()
    a("s_sub_u32 s60, s60, 1\ns_cmp_lg_u32 s60, 0\ns_cbranch_scc1 L_lloop")
    keep = len(a.lines)
    for c in range(1, 6):
        for k in range(3 * c, 3 * c + 3):
            n = lstep(k); assert n == ns[k % 3], (k, n, ns)
    del a.lines[keep:]
    for k in range(18, 22):
        lstep(k); lbar()
    stamp(2)
    if flagmode == "atomic":
        cnt = f"""s_lshl_b32 s52, s48, 2
        v_mov_b32 v4, s52
        s_mov_b32 s60, {SPIN}
        L_cnt:
        global_load_dword v5, v4, s[34:35] sc1
        s_waitcnt vmcnt(0)
        v_readfirstlane_b32 s52, v5
        s_sub_u32 s60, s60, 1
        s_cmp_eq_u32 s60, 0
        s_cbranch_scc1 L_cnt_done
        s_cmp_lt_u32 s52, 32
        s_cbranch_scc1 L_cnt
        L_cnt_done:"""
    else:
        cnt = f"""s_lshl_b32 s52, s48, 5
        v_and_b32 v4, 7, v0
        v_lshl_add_u32 v4, v4, 2, s52
        s_mov_b32 s60, {SPIN}
        L_cnt:
        global_load_dword v5, v4, s[34:35] sc1
        s_waitcnt vmcnt(0)
        v_cmp_ne_u32 vcc, 0x01010101, v5
        s_sub_u32 s60, s60, 1
        s_cmp_eq_u32 s60, 0
        s_cbranch_scc1 L_cnt_done
        s_cbranch_vccnz L_cnt
        L_cnt_done:"""

    a(f"""
    v_and_b32 v1, 15, v0
    v_lshrrev_b32 v4, 5, v0
    v_lshl_add_u32 v1, v1, 1, v4
    s_lshl_b32 s52, s49, 5
    v_add_u32 v20, s52, v1
    s_lshl_b32 s52, s41, 7
    v_add_u32 v1, s52, v20
    v_lshlrev_b32 v1, 1, v1
    global_load_ushort v21, v1, s[28:29]
    global_load_ushort v22, v1, s[30:31]
    {cnt}
    v_lshlrev_b32 v21, 16, v21
    v_lshlrev_b32 v22, 16, v22
    v_lshrrev_b32 v1, 4, v0
    v_and_b32 v4, 15, v0
    v_lshlrev_b32 v4, 4, v4
    v_lshl_add_u32 v1, v1, 10, v4
    s_lshl_b32 s52, s48, 15
    s_lshl_b32 s53, s49, 8
    s_add_u32 s52, s52, s53
    v_add_u32 v23, s52, v1
    s_mov_b32 s20, s36
    s_mov_b32 s21, s37
    s_mov_b32 s22, 0x40000
    s_mov_b32 s23, 0x20000
    v_lshlrev_b32 v1, 4, v0
    v_add_u32 v24, {PART}, v1
    s_lshl_b32 s52, s48, 5
    s_add_u32 s52, s52, s44
    s_lshl_b32 s52, s52, 10
    v_add_u32 v25, s52, v1
    """)
    for i in range(8):
        a(f"s_mov_b64 s[{64+2*i}:{65+2*i}], -1")
    a(f"""
    s_mov_b32 s60, {SPIN}
    {"" if nobar else "s_barrier"}
    s_barrier
    """)
    stamp(3)
    a(f"""
    s_cmp_lg_u32 s49, 0
    s_cbranch_scc1 L_poll
    ds_read_b128 v[4:7], v24
    ds_read_b128 v[8:11], v24 offset:1024
    s_waitcnt lgkmcnt(0)
    v_pk_add_f32 v[4:5], v[4:5], v[8:9]
    v_pk_add_f32 v[6:7], v[6:7], v[10:11]
    buffer_store_dwordx4 v[4:7], v25, s[20:23], 0 offen sc1
    L_poll:
    """)
    G = 32
    for i in range(8):
        a(f"""
        s_mov_b64 exec, s[{64+2*i}:{65+2*i}]
        s_cbranch_execz L_pskip{i}
        s_mov_b32 s52, {i*4096}
        buffer_load_dwordx4 v[{G+4*i}:{G+4*i+3}], v23, s[20:23], s52 offen sc1
        L_pskip{i}:
        """)
    a("s_mov_b64 exec, -1\ns_waitcnt vmcnt(0)")
    for i in range(8):
        a(f"v_min_f32 v1, v{G+4*i+1}, v{G+4*i+3}")
        a(f"v_cmp_gt_f32 s[{64+2*i}:{65+2*i}], 0, v1")
    a("s_or_b64 s[52:53], s[64:65], s[66:67]")
    for i in range(2, 8):
        a(f"s_or_b64 s[52:53], s[52:53], s[{64+2*i}:{65+2*i}]")
    a(f"""
    s_cbranch_scc0 L_poll_done
    """)
    if sleep: a(f"s_sleep {sleep}")
    a(f"""
    s_sub_u32 s60, s60, 1
    s_cmp_lg_u32 s60, 0
    s_cbranch_scc1 L_poll
    L_poll_done:
    """)
    stamp(4)
    for step in (4, 2, 1):
        for i in range(step):
            for h in range(2):
                x = G + 4 * i + 2 * h; y = G + 4 * (i + step) + 2 * h
                a(f"v_pk_add_f32 v[{x}:{x+1}], v[{x}:{x+1}], v[{y}:{y+1}]")
    a(f"""
    s_nop 1
    v_permlane32_swap_b32 v{G}, v{G+2}
    v_permlane32_swap_b32 v{G+1}, v{G+3}
    s_nop 1
    v_add_f32 v{G}, v{G}, v{G+2}          ; S
    v_add_f32 v{G+1}, v{G+1}, v{G+3}      ; Q
    v_mov_b32 v{G+2}, v{G}
    v_mov_b32 v{G+3}, v{G+1}
    s_nop 1
    v_permlane16_swap_b32 v{G}, v{G+2}
    v_permlane16_swap_b32 v{G+1}, v{G+3}
    s_mov_b32 s52, {f2u(1.0/LROWS)}
    s_nop 0
    v_add_f32 v{G}, v{G}, v{G+2}
    v_add_f32 v{G+1}, v{G+1}, v{G+3}
    v_mul_f32 v{G}, s52, v{G}             ; mean
    v_mul_f32 v{G+1}, s52, v{G+1}         ; E[h^2]
    v_fma_f32 v{G+1}, -v{G}, v{G}, v{G+1} ; var
    v_max_f32 v{G+1}, 0, v{G+1}
    v_add_f32 v{G+1}, {f2u(1e-5)}, v{G+1}
    v_rsq_f32 v{G+1}, v{G+1}
    v_lshlrev_b32 v1, 2, v20
    v_add_u32 v1, {CONST}, v1
    v_mul_f32 v{G+1}, v{G+1}, v21         ; scale
    v_fma_f32 v{G}, -v{G}, v{G+1}, v22    ; shift
    ds_write_b32 v1, v{G+1}
    ds_write_b32 v1, v{G} offset:512
    s_branch L_final
    """)

    ACC = 128
    def acc(j, n): return ACC + (j * 4 + n) * 4
    BF = 64
    AF = 32
    NRING = 8
    aE, aE8, aO, bB = 8, 10, 12, 14
    a("L_compute:")
    if prio: a(f"s_setprio {prio}")
    a(f"""
    s_lshr_b32 s49, s3, 1                 ; wm
    s_and_b32 s50, s3, 1                  ; wn
    s_mov_b32 s62, -1
    s_cmp_lg_u32 s3, 0
    s_cbranch_scc1 L_nosent
    s_lshl_b32 s51, s48, 5
    s_add_u32 s51, s51, s44
    s_lshl_b32 s51, s51, 10
    v_lshlrev_b32 v1, 4, v0
    v_add_u32 v1, s51, v1
    v_mov_b32 v4, {SENT}
    v_mov_b32 v5, {SENT}
    v_mov_b32 v6, {SENT}
    v_mov_b32 v7, {SENT}
    s_mov_b32 s62, {sideit}
    s_waitcnt lgkmcnt(0)
    global_store_dwordx4 v1, v[4:7], s[36:37] sc1
    L_nosent:
    """)
    if codepf:
        a(f"""
        s_cmp_lg_u32 s3, 1
        s_cbranch_scc1 L_nopf
        s_getpc_b64 s[52:53]
        L_pfbase:
        s_sub_u32 s52, s52, L_pfbase-{NAME}_kernel
        s_subb_u32 s53, s53, 0
        v_lshlrev_b32 v1, 7, v0
        v_min_u32 v4, L_end-{NAME}_kernel, v1
        global_load_dword v5, v4, s[52:53]
        v_add_u32 v1, 8192, v1
        v_min_u32 v4, L_end-{NAME}_kernel, v1
        global_load_dword v6, v4, s[52:53]
        L_nopf:
        """)
    a(f"""
    v_and_b32 v18, 15, v0                 ; i
    v_lshrrev_b32 v19, 4, v0              ; g
    s_lshl_b32 s51, s49, 14
    v_bfe_u32 v20, v18, 1, 3
    v_xor_b32 v20, v20, v19
    v_lshlrev_b32 v20, 4, v20
    v_lshl_add_u32 v20, v18, 7, v20
    v_add_u32 v{aE}, s51, v20
    v_xor_b32 v{aE+1}, 64, v{aE}
    v_add_u32 v{aO}, {A_SLOT}, v{aE}
    v_add_u32 v{aO+1}, {A_SLOT}, v{aE+1}
    v_add_u32 v21, 1, v18
    s_mul_i32 s52, s49, 127
    s_add_u32 s52, s52, 128
    s_lshl_b32 s53, s49, 7
    v_add_u32 v21, s53, v21
    v_mov_b32 v22, s52
    v_cmp_eq_u32 vcc, 15, v18
    s_nop 1
    v_cndmask_b32 v21, v21, v22, vcc
    v_bfe_u32 v20, v21, 1, 3
    v_xor_b32 v20, v20, v19
    v_lshlrev_b32 v20, 4, v20
    v_lshl_add_u32 v{aE8}, v21, 7, v20
    v_xor_b32 v{aE8+1}, 64, v{aE8}
    v_bfe_u32 v20, v0, 2, 2               ; r
    v_lshl_add_u32 v21, v19, 3, v20       ; row
    v_and_b32 v22, 1, v19
    v_lshl_add_u32 v20, v22, 2, v20       ; s
    v_lshlrev_b32 v20, 5, v20
    s_lshl_b32 s51, s50, 7
    v_xor_b32 v20, s51, v20               ; (wn*128) ^ (s<<5)
    v_and_b32 v22, 3, v0
    v_lshl_add_u32 v20, v22, 3, v20
    v_lshl_add_u32 v20, v21, 8, v20
    v_add_u32 v{bB}, {W_BASE}, v20
    v_xor_b32 v{bB+1}, 32, v{bB}
    v_xor_b32 v{bB+2}, 64, v{bB}
    v_xor_b32 v{bB+3}, 96, v{bB}
    s_mov_b64 s[64:65], -1
    s_mov_b64 s[66:67], -1
    s_cmp_eq_u32 s49, 0
    s_cbranch_scc1 L_nomask
    s_cmp_eq_u32 s47, 249
    s_cselect_b32 s65, 0xffff, -1
    s_cselect_b32 s67, -1, 0xffff
    L_nomask:
    """)
    for i in range(0, 128, 2): a(f"v_pk_mul_f32 v[{ACC+i}:{ACC+i+1}], 0, 0") if False else a(f"v_mov_b64 v[{ACC+i}:{ACC+i+1}], 0")
    if stamps: a(f"s_waitcnt lgkmcnt(0)\nv_writelane_b32 v{VST}, s92, 0\nv_writelane_b32 v{VST2}, s94, 0")
    a(f"""
    s_mov_b32 s54, 0                      ; sE
    s_mov_b32 s55, {A_SLOT}               ; sO
    s_mov_b32 s56, 0
    s_mov_b32 s57, 8
    s_waitcnt lgkmcnt(0)
    s_barrier
    """)
    lq = []
    ring = {}
    rpos = [0]
    def afrags(t, j):
        if t < 2:
            return [("F", t, 0), ("F", t, 1)] if j == 0 else [("F", t, j + 1)]
        return [("G", 0, j), ("G", 1, j)]
    occ = {}
    dead = set()
    def aread(tag):
        idx = rpos[0] % NRING; rpos[0] += 1
        if tag[0] == "F" and tag[2] == 8: rpos[0] += 1
        if idx in occ: assert occ[idx] in dead, (tag, idx, occ[idx])
        occ[idx] = tag; dead.discard(tag)
        ring[tag] = idx
        d = AF + idx * 4
        kind, x, j = tag
        if kind == "F":
            if j < 8: s = f"ds_read_b128 v[{d}:{d+3}], v{aE+x} offset:{j*2048}"
            else: s = f"ds_read_b128 v[{d}:{d+3}], v{aE8+x}"
        else:
            s = f"ds_read_b128 v[{d}:{d+3}], v{aO+x} offset:{j*2048}"
        return ("lds", tag, s)
    def breads(buf):
        r = []
        for n in range(4):
            for pq in range(2):
                for h in range(2):
                    d = BF + buf * 32 + (pq * 4 + n) * 4 + h * 2
                    r.append(("lds", ("B", buf), f"ds_read_b64_tr_b16 v[{d}:{d+1}], v{bB+n} offset:{pq*8192 + h*1024}"))
        return r
    def emit(op):
        if isinstance(op, tuple):
            lq.append(op[1]); a(op[2])
        else: a(op)
    def lwait(tags):
        last = max([i for i, t in enumerate(lq) if t in tags], default=-1)
        if last < 0: return
        n = len(lq) - 1 - last
        assert n <= 15
        a(f"s_waitcnt lgkmcnt({n})")
        del lq[:last + 1]
    def badv():
        return ["s_add_u32 s56, s56, 16384", "s_cmp_eq_u32 s56, 0x10000", "s_cselect_b32 s58, 0xffff4000, s63", "s_and_b32 s56, s56, 0xffff"] + \
               [f"v_add_u32 v{bB+n}, s58, v{bB+n}" for n in range(4)]
    a("s_mov_b32 s63, 16384\ns_mov_b32 s61, 16")
    for op in breads(0): emit(op)
    lwait({("B", 0)})
    for j in range(LA):
        for tg in afrags(0, j): emit(aread(tg))
    for op in badv(): a(op)
    a("s_barrier")
    stamp(1)
    init_state = (list(lq), dict(ring), rpos[0] % NRING)
    NSTEP = 6
    a("L_cloop:")
    a("s_cmp_eq_u32 s57, s62\ns_cbranch_scc1 L_side\nL_side_ret:")
    def step(k, last=False):
        t = k % 3; buf = k & 1
        tn = (t + 1) % 3
        bq = breads(buf ^ 1)
        JB = 8 - LA
        nb_per = -(-16 // (JB - 1))
        for j in range(8):
            X, Y = (("F", t, j), ("F", t, j + 1)) if t < 2 else (("G", 0, j), ("G", 1, j))
            need = {X, Y}
            if j == 0: need.add(("B", buf))
            q = []
            if j == JB:
                lwait(set(lq))
            else:
                lwait(need)
            if j + LA < 8: q += [("A", tg) for tg in afrags(t, j + LA)]
            else: q += [("A", tg) for tg in afrags(tn, j + LA - 8)]
            for _ in range(nb_per):
                if bq: q.append(bq.pop(0))
            if j == JB - 1: q += badv()
            if j == JB:
                pass
            if t == 1 and j == 7:
                q += [f"s_add_u32 s59, s54, s55", f"s_sub_u32 s59, {3*A_SLOT}, s59", "s_sub_u32 s60, s59, s54"]
                q += [f"v_add_u32 v{r}, s60, v{r}" for r in (aE, aE + 1, aE8, aE8 + 1)]
            if t == 2 and j == 7:
                q += ["s_sub_u32 s60, s54, s55", "s_mov_b32 s55, s54", "s_mov_b32 s54, s59"]
                q += [f"v_add_u32 v{r}, s60, v{r}" for r in (aO, aO + 1)]
            xr = AF + ring[X] * 4; yr = AF + ring[Y] * 4
            per = -(-len(q) // 4)
            for n in range(4):
                d = acc(j, n)
                P = BF + buf * 32 + n * 4; Q = BF + buf * 32 + (4 + n) * 4
                pr = [(xr, P), (yr, Q)]
                if order == "a" and n % 2 == 1: pr = pr[::-1]
                if order == "a2" and n % 2 == 0: pr = pr[::-1]
                for ar, br in pr:
                    a(f"v_mfma_f32_16x16x32_bf16 v[{d}:{d+3}], v[{ar}:{ar+3}], v[{br}:{br+3}], v[{d}:{d+3}]")
                if j == JB and n == barpos:
                    if not nobar: a("s_barrier")
                    if itstamps:
                        a(f"s_mov_b32 m0, s61\ns_add_u32 s61, s61, 1\nv_writelane_b32 v{VST}, s96, m0\nv_writelane_b32 v{VST2}, s98, m0")
                        a("s_memrealtime s[96:97]\ns_memtime s[98:99]")
                if j == JB and n < barpos: continue
                if j == JB: per = 2
                for _ in range(per):
                    if q:
                        op = q.pop(0)
                        if isinstance(op, tuple) and op[0] == "A": op = aread(op[1])
                        emit(op)
            assert not q
            dead.add(X)
            if t == 2 or j == 7: dead.add(Y)
        assert not bq
    for k in range(NSTEP):
        a(f"; ---- step {k}")
        step(k)
        if itstamps and stamps and k % 3 == 2:
            pass
    end_state = (list(lq), {k_: v for k_, v in ring.items() if k_ in init_state[1]}, rpos[0] % NRING)
    assert end_state == init_state, (end_state, init_state)
    a(f"""
    s_sub_u32 s57, s57, 2
    s_cmp_lg_u32 s57, 0
    s_cbranch_scc1 L_cloop
    s_waitcnt lgkmcnt(0)
    """)
    stamp(2)
    a("s_nop 7")
    for n in range(4):
        a(f"v_cndmask_b32 v{acc(1,n)+3}, 0, v{acc(1,n)+3}, s[64:65]")
        a(f"v_cndmask_b32 v{acc(2,n)+3}, 0, v{acc(2,n)+3}, s[66:67]")
    S0, Q0 = 32, 40
    for j in range(8):
        for hh in range(2):
            for n in range(4):
                x = acc(j, n) + 2 * hh; S = S0 + 2 * n; Q = Q0 + 2 * n
                if j == 0 and hh == 0:
                    a(f"v_pk_mul_f32 v[{Q}:{Q+1}], v[{x}:{x+1}], v[{x}:{x+1}]")
                elif j == 0 and hh == 1:
                    a(f"v_pk_fma_f32 v[{Q}:{Q+1}], v[{x}:{x+1}], v[{x}:{x+1}], v[{Q}:{Q+1}]")
                    a(f"v_pk_add_f32 v[{S}:{S+1}], v[{x-2}:{x-1}], v[{x}:{x+1}]")
                else:
                    a(f"v_pk_fma_f32 v[{Q}:{Q+1}], v[{x}:{x+1}], v[{x}:{x+1}], v[{Q}:{Q+1}]")
                    a(f"v_pk_add_f32 v[{S}:{S+1}], v[{S}:{S+1}], v[{x}:{x+1}]")
    for n in range(4):
        a(f"v_add_f32 v{S0+2*n}, v{S0+2*n}, v{S0+2*n+1}")
        a(f"v_add_f32 v{Q0+2*n}, v{Q0+2*n}, v{Q0+2*n+1}")
    a(f"""
    s_lshl_b32 s51, s49, 10
    s_lshl_b32 s52, s50, 9
    v_permlane32_swap_b32 v{S0}, v{S0+4}
    v_permlane32_swap_b32 v{S0+2}, v{S0+6}
    v_permlane32_swap_b32 v{Q0}, v{Q0+4}
    v_permlane32_swap_b32 v{Q0+2}, v{Q0+6}
    s_add_u32 s51, s51, s52
    s_add_u32 s51, s51, {PART}
    v_add_f32 v{S0}, v{S0}, v{S0+4}
    v_add_f32 v{S0+2}, v{S0+2}, v{S0+6}
    v_add_f32 v{Q0}, v{Q0}, v{Q0+4}
    v_add_f32 v{Q0+2}, v{Q0+2}, v{Q0+6}
    v_lshl_add_u32 v1, v0, 3, s51
    s_nop 0
    v_permlane16_swap_b32 v{S0}, v{S0+2}
    v_permlane16_swap_b32 v{Q0}, v{Q0+2}
    s_nop 0
    v_add_f32 v{S0}, v{S0}, v{S0+2}
    v_add_f32 v{S0+1}, v{Q0}, v{Q0+2}
    ds_write_b64 v1, v[{S0}:{S0+1}]
    s_waitcnt lgkmcnt(0)
    s_barrier
    """)
    stamp(3)
    a(f"""
    s_lshl_b32 s51, s49, 16
    v_lshlrev_b32 v20, 14, v19
    v_add_u32 v20, s51, v20               ; (128wm+32g)*512
    v_and_b32 v21, 3, v18
    v_lshl_add_u32 v20, v21, 2, v20       ; + (col&3)*4
    v_bfe_u32 v21, v18, 2, 1              ; u&1
    v_lshrrev_b32 v22, 3, v18             ; (i>>3)
    s_lshl_b32 s51, s50, 3
    v_add_u32 v22, s51, v22               ; u>>1 for n=0
    v_lshl_add_u32 v22, v21, 2, v22       ; + 4*(u&1)
    v_lshl_add_u32 v20, v21, 8, v20       ; + 256*(u&1)
    v_and_b32 v23, 1, v19
    v_lshlrev_b32 v23, 1, v23
    """)
    for n in range(4):
        a(f"""
        v_add_u32 v21, {2*n}, v22
        v_and_b32 v21, 15, v21
        v_xor_b32 v21, v21, v23
        v_lshl_add_u32 v{24+n}, v21, 4, v20
        """)
    for j in range(8):
        for n in range(4):
            for r in (0, 2):
                x = acc(j, n) + r
                a(f"ds_write2st64_b32 v{24+n}, v{x}, v{x+1} offset0:{r*16 + j*2} offset1:{(r+1)*16 + j*2}")
    a(f"""
    L_final:
    s_mul_i32 s52, s43, {LROWS}
    s_add_u32 s52, s52, s45
    s_lshl_b32 s52, s52, 10
    s_add_u32 s16, s32, s52
    s_addc_u32 s17, s33, 0
    s_lshl_b32 s18, s47, 10
    s_mov_b32 s19, 0x20000
    v_and_b32 v1, 15, v0
    v_lshrrev_b32 v4, 4, v0
    s_lshl_b32 s52, s3, 5
    v_add_u32 v4, s52, v4                 ; row = 32*w + (l>>4)
    v_lshlrev_b32 v5, 9, v4
    s_and_b32 s52, s3, 1
    s_lshl_b32 s52, s52, 1
    v_xor_b32 v6, s52, v1
    v_lshl_add_u32 v8, v6, 4, v5
    v_add_u32 v6, 4, v1
    v_and_b32 v6, 15, v6
    v_xor_b32 v6, s52, v6
    v_lshl_add_u32 v9, v6, 4, v5
    v_lshlrev_b32 v5, 10, v4
    v_lshl_add_u32 v10, v1, 4, v5
    s_lshl_b32 s52, s41, 8
    v_add_u32 v10, s52, v10
    v_lshlrev_b32 v11, 5, v1
    v_add_u32 v11, {CONST}, v11
    s_mov_b32 s24, {f2u(C1)}
    s_mov_b32 s25, {f2u(C1)}
    s_mov_b32 s26, 0x3f800000
    s_mov_b32 s27, 0x3f800000
    v_mov_b32 v12, {f2u(C2)}
    v_mov_b32 v13, {f2u(C2)}
    s_mov_b32 s57, 4
    s_waitcnt lgkmcnt(0)
    s_barrier
    """)
    stamp(8)
    if pert1 is not None:
        a(f"""
        s_lshl_b32 s52, s2, 3
        s_add_u32 s52, s52, s3
        v_add_u32 v14, s52, v0
        v_cmp_eq_u32 vcc, 0, v14
        v_mov_b32 v15, {f2u(pert1)}
        s_nop 1
        v_cndmask_b32 v14, 0, v15, vcc
        """)
    SC, SH, H, T, O = 16, 24, 64, 32, 40
    a(f"""
    ds_read_b128 v[{SC}:{SC+3}], v11
    ds_read_b128 v[{SC+4}:{SC+7}], v11 offset:16
    ds_read_b128 v[{SH}:{SH+3}], v11 offset:512
    ds_read_b128 v[{SH+4}:{SH+7}], v11 offset:528
    """)
    def rd(i, off):
        return [f"ds_read_b128 v[{H+8*i}:{H+8*i+3}], v8 offset:{off}",
                f"ds_read_b128 v[{H+8*i+4}:{H+8*i+7}], v9 offset:{off+256}"]
    for r in rd(0, 0) + rd(1, 2048): a(r)
    def p(x): return f"v[{x}:{x+1}]"
    a("L_gloop:")
    for i in range(2):
        h = H + 8 * i; Y = 48 + 8 * 0; o = O + 4 * i
        a("s_waitcnt lgkmcnt(2)")
        for j in range(0, 8, 2): a(f"v_pk_fma_f32 {p(Y+j)}, {p(h+j)}, {p(SC+j)}, {p(SH+j)}")
        for r in rd(i, 4096 + 2048 * i): a(r)
        for j in range(0, 8, 2): a(f"v_pk_mul_f32 {p(T+j)}, {p(Y+j)}, {p(Y+j)}")
        for j in range(0, 8, 2): a(f"v_pk_fma_f32 {p(T+j)}, {p(T+j)}, v[12:13], s[24:25]")
        for j in range(0, 8, 2): a(f"v_pk_mul_f32 {p(T+j)}, {p(T+j)}, {p(Y+j)}")
        for j in range(8): a(f"v_exp_f32 v{T+j}, v{T+j}")
        for j in range(0, 8, 2): a(f"v_pk_add_f32 {p(T+j)}, {p(T+j)}, s[26:27]")
        for j in range(8): a(f"v_rcp_f32 v{T+j}, v{T+j}")
        if i == 1: a("v_add_u32 v8, 4096, v8\nv_add_u32 v9, 4096, v9")
        for j in range(0, 8, 2): a(f"v_pk_mul_f32 {p(T+j)}, {p(T+j)}, {p(Y+j)}")
        if pert1 is not None and i == 0:
            a(f"v_add_f32 v{T}, v14, v{T}\nv_mov_b32 v14, 0")
        if pertall is not None:
            for j in range(8): a(f"v_mul_f32 v{T+j}, {f2u(1.0+pertall)}, v{T+j}")
        for j in range(0, 8, 2): a(f"v_cvt_pk_bf16_f32 v{o+j//2}, v{T+j}, v{T+j+1}")
        a(f"buffer_store_dwordx4 v[{o}:{o+3}], v10, s[16:19], 0 offen{omod}")
        a("v_add_u32 v10, 4096, v10")
    a("s_sub_u32 s57, s57, 1\ns_cmp_lg_u32 s57, 0\ns_cbranch_scc1 L_gloop")
    if hold in (9, 10) and not stamps: stamp(hold)
    if stamps:
        stamp(9)
        a("s_waitcnt vmcnt(0)")
        stamp(10)
        a(f"""
        s_and_b32 s52, s3, 3
        s_cmp_lg_u32 s52, 0
        s_cbranch_scc1 L_end
        s_lshl_b32 s52, s2, 10
        s_lshl_b32 s53, s3, 7
        s_add_u32 s52, s52, s53
        s_add_u32 s52, s52, {STAMP_OFF}
        v_lshlrev_b32 v1, 3, v0
        v_add_u32 v1, s52, v1
        global_store_dwordx2 v1, v[{VST}:{VST2}], s[36:37]
        s_waitcnt vmcnt(0)
        """)
    a("s_endpgm")
    if flagmode == "atomic":
        side = """s_lshl_b32 s51, s48, 2
        v_mov_b32 v4, s51
        v_mov_b32 v5, 1
        s_waitcnt vmcnt(0)
        s_mov_b64 exec, 1
        global_atomic_add v4, v5, s[34:35]
        s_mov_b64 exec, -1"""
    elif flagmode == "byte":
        side = """s_lshl_b32 s51, s48, 5
        s_add_u32 s51, s51, s44
        v_mov_b32 v4, s51
        v_mov_b32 v5, 1
        s_waitcnt vmcnt(0)
        s_mov_b64 exec, 1
        global_store_byte v4, v5, s[34:35] sc0 sc1
        s_mov_b64 exec, -1"""

    a(f"""
    L_side:
    {side}
    s_branch L_side_ret
    L_end:
    s_endpgm
    """)
    return wrap(a.text(), 256, 512, 163840, 256)

if __name__ == "__main__":
    out = sys.argv[1]
    kw = json.loads(sys.argv[2]) if len(sys.argv) > 2 else {}
    open(out, "w").write(gen(**kw))
```

```python
import sys, json, struct
from asmlib import *

def f2u(f): return struct.unpack("<I", struct.pack("<f", f))[0]

LROWS = 7999
C1 = -2.0 * 0.7978845608028654 * 1.4426950408889634
C2 = C1 * 0.044715
SENT = 0xBF800000
A_SLOT = 32768
W_BASE = 98304
MISC = 32768
PART = MISC
CONST = MISC + 4096
FLAGS = MISC + 5120
STAMP_OFF = 1 << 20
SPIN = 0x20000

def gen(stamps=False, xmod="", wmod="", omod=" sc0 sc1", prio=0, codepf=True, itstamps=False,
        hold=None, holdus=40, parity=True, eorder="j", sthr=None):
    a = Asm()
    VST, VST2 = 2, 3
    def stamp(k):
        if hold == k:
            lb = a.label("L_hold")
            a(f"""s_waitcnt lgkmcnt(0)
            {lb}:
            s_memrealtime s[96:97]
            s_waitcnt lgkmcnt(0)
            s_sub_u32 s96, s96, s92
            s_cmp_lt_u32 s96, {holdus*100}
            s_cbranch_scc1 {lb}""")
        if not stamps: return
        a(f"s_memrealtime s[96:97]\ns_memtime s[98:99]\ns_waitcnt lgkmcnt(0)\nv_writelane_b32 v{VST}, s96, {k}\nv_writelane_b32 v{VST2}, s98, {k}")
    a(f"""
    s_cmp_ge_u32 s2, 256
    s_cbranch_scc1 L_end
    s_load_dwordx4 s[4:7], s[0:1], 0      ; x, w
    s_load_dwordx4 s[28:31], s[0:1], 16
    s_load_dwordx4 s[32:35], s[0:1], 32
    s_load_dwordx2 s[36:37], s[0:1], 48   ; ws
    """)
    if stamps or hold is not None: a("s_memrealtime s[92:93]\ns_memtime s[94:95]")
    a(f"""
    v_lshrrev_b32 v1, 6, v0
    v_and_b32 v0, 63, v0
    v_readfirstlane_b32 s3, v1
    s_and_b32 s38, s2, 7
    s_bfe_u32 s40, s2, 0x30005
    s_bfe_u32 s41, s2, 0x20003
    s_lshl_b32 s42, s38, 3
    s_add_u32 s42, s42, s40               ; mt 0..63
    s_lshr_b32 s43, s42, 5                ; batch
    s_and_b32 s44, s42, 31
    s_mul_i32 s45, s44, 250
    s_mul_i32 s46, s43, 8000
    s_add_u32 s46, s46, s45
    s_cmp_eq_u32 s44, 31
    s_cselect_b32 s47, 1, 0
    s_sub_u32 s47, 250, s47               ; nvalid
    s_lshl_b32 s48, s43, 2
    s_add_u32 s48, s48, s41
    s_and_b32 s49, s3, 3
    s_cmp_lt_u32 s3, 4
    s_cbranch_scc1 L_compute
    """)
    VA, VW = 8, 12
    a(f"""
    v_lshrrev_b32 v4, 4, v0               ; l>>4
    v_and_b32 v7, 7, v0
    v_lshrrev_b32 v6, 3, v0               ; l>>3
    v_and_b32 v5, 2, v6                   ; ((l>>4)&1)<<1
    v_xor_b32 v5, v5, v7
    s_and_b32 s50, s49, 1
    s_lshr_b32 s62, s49, 1
    s_lshl_b32 s51, s50, 7
    s_lshl_b32 s52, s41, 8
    s_add_u32 s51, s51, s52
    v_lshlrev_b32 v5, 4, v5
    v_lshl_add_u32 v5, v6, 10, v5
    v_add_u32 v{VW}, s51, v5
    v_xor_b32 v{VW+1}, 64, v{VW}
    v_add_u32 v{VW+2}, 14336, v{VW}
    v_add_u32 v{VW+3}, 21504, v{VW+1}
    v_add_u32 v{VW+1}, 7168, v{VW+1}
    s_lshl_b32 s51, s50, 13
    s_lshl_b32 s52, s62, 12
    s_add_u32 s51, s51, s52
    s_add_u32 s51, s51, {W_BASE}
    s_lshl_b32 s54, s62, 20               ; sB0
    s_mov_b32 s14, 1572864
    s_mov_b32 s15, 0x20000
    s_mov_b32 m0, s51
    s_waitcnt lgkmcnt(0)
    s_mov_b32 s12, s6
    s_mov_b32 s13, s7
    """)
    if stamps: a(f"v_writelane_b32 v{VST}, s92, 0\nv_writelane_b32 v{VST2}, s94, 0")
    vq = []
    def issueA(slot_s, soff, tag):
        for half in range(2):
            if half == 0: a(f"s_add_u32 m0, s50, {slot_s}")
            else: a(f"s_xor_b32 m0, m0, 4096")
            a("s_nop 0")
            for n in range(4):
                vq.append(tag)
                a(f"buffer_load_dwordx4 v{VA+half*2+(n&1)}, s[8:11], {soff} offen offset:{n*1024}{xmod} lds")
    def issueW(slot_s, soff, tag, setm0=True):
        if setm0:
            a(f"s_add_u32 m0, s51, {slot_s}")
            a("s_nop 0")
        for n in range(4):
            vq.append(tag)
            a(f"buffer_load_dwordx4 v{VW+n}, s[12:15], {soff} offen offset:{n*1024}{wmod} lds")
    def vwait(tags):
        last = max([i for i, t in enumerate(vq) if t in tags], default=-1)
        n = len(vq) - 1 - last
        a(f"s_waitcnt vmcnt({n})")
        return n
    def Aname(k): return f"E{k//3}" if k % 3 < 2 else f"O{k//3}"
    issueW(0, "s54", "B0", setm0=False)
    a(f"""
    v_xor_b32 v5, v7, v4
    v_lshlrev_b32 v5, 4, v5
    v_lshl_add_u32 v5, v6, 13, v5         ; 4*(l>>3)*2048
    s_lshl_b32 s52, s49, 17               ; 64*lw*2048
    s_and_b32 s53, s41, {1 if parity else 0}
    s_lshl_b32 s53, s53, 12
    s_add_u32 s52, s52, s53
    v_add_u32 v{VA}, s52, v5
    v_xor_b32 v{VA+2}, 4096, v{VA}
    v_xor_b32 v{VA+1}, 64, v{VA}
    v_xor_b32 v{VA+3}, 64, v{VA+2}
    v_add_u32 v{VA+1}, {32*2048 - 1024}, v{VA+1}
    v_add_u32 v{VA+3}, {32*2048 - 1024}, v{VA+3}
    s_lshl_b32 s50, s49, 13
    s_add_u32 s50, s50, s53
    s_lshl_b32 s10, s47, 11
    s_add_u32 s10, s10, 1024
    s_mov_b32 s11, 0x20000
    s_lshl_b32 s57, s46, 11
    s_add_u32 s8, s4, s57
    s_addc_u32 s9, s5, 0
    s_mov_b32 s52, 0                      ; x k-offset (E)
    s_mov_b32 s53, 1024                   ; x k-offset (O)
    s_add_u32 s55, s54, 0x8000            ; sB1
    s_lshl_b32 s56, s62, 15
    s_add_u32 s56, s56, 0x80000           ; sB2
    """)
    issueA(0, "s52", "E0"); issueW(16384, "s55", "B1")
    a(f"""
    s_mov_b32 s20, s36
    s_mov_b32 s21, s37
    s_mov_b32 s22, 0x40000
    s_mov_b32 s23, 0x20000
    s_lshl_b32 s57, s48, 5
    s_add_u32 s57, s57, s44
    s_lshl_b32 s57, s57, 10
    s_lshl_b32 s58, s49, 8
    s_add_u32 s39, s57, s58
    v_lshl_add_u32 v1, v0, 2, s39
    v_mov_b32 v4, {SENT}
    buffer_store_dword v4, v1, s[20:23], 0 offen sc1
    s_mov_b32 s57, {2*A_SLOT}
    s_mov_b32 s58, {A_SLOT}
    s_mov_b32 s59, 32768
    """)
    vq.append("S")
    def iB(kb):
        sreg = ["s54", "s55", "s56"][kb % 3]
        if kb >= 3: a(f"s_add_u32 {sreg}, {sreg}, 0x10000")
        issueW("s59", sreg, f"B{kb}")
        a("s_add_u32 s59, s59, 16384\ns_and_b32 s59, s59, 0xffff")
    def iO(c):
        if c > 0: a("s_add_u32 s53, s53, 128")
        issueA("s58", "s53", f"O{c}")
    def iE(c):
        a("s_add_u32 s52, s52, 128")
        issueA("s57", "s52", f"E{c}")
        a(f"s_add_u32 s61, s57, s58\ns_mov_b32 s57, s58\ns_sub_u32 s58, {3*A_SLOT}, s61")
    stamp(6)
    vwait({"B0", "E0"}); stamp(7); a("s_barrier")
    stamp(1)
    ramp = {-1: [("O", 0), ("B", 2)], 0: [("E", 1), ("B", 3)], 1: [("B", 4), ("O", 1)], 2: [("B", 5), ("E", 2), ("B", 6)]}
    def lstep(k):
        c = k // 3
        if k in ramp: todo = list(ramp[k])
        else:
            todo = []
            if k + 4 <= 23: todo.append(("B", k + 4))
            if k % 3 == 0 and c + 1 <= 7: todo.append(("O", c + 1))
            if k % 3 == 1 and c + 2 <= 7: todo.append(("E", c + 2))
        for kind, i in todo: {"B": iB, "O": iO, "E": iE}[kind](i)
        return vwait({f"B{k+2}", Aname(k + 3)})
    for k in range(-1, 3):
        lstep(k); a("s_barrier")
    NL = 5
    a(f"s_mov_b32 s60, {NL}")
    a("L_lloop:")
    ns = []
    for k in range(3, 6):
        ns.append(lstep(k)); a("s_barrier")
    a("s_sub_u32 s60, s60, 1\ns_cmp_lg_u32 s60, 0\ns_cbranch_scc1 L_lloop")
    keep = len(a.lines)
    for k in range(6, 18):
        n = lstep(k); assert n >= ns[k % 3], (k, n, ns)
    del a.lines[keep:]
    lstep(18); a("s_barrier")
    iB(23)
    a(f"""
    v_mov_b32 v4, {SENT}
    v_mov_b32 v5, {SENT}
    v_mov_b32 v6, {SENT}
    v_mov_b32 v7, {SENT}
    s_lshl_b32 s52, s49, 10
    s_add_u32 s52, s52, {PART}
    v_lshl_add_u32 v1, v0, 4, s52
    ds_write_b128 v1, v[4:7]
    v_lshlrev_b32 v1, 2, v0
    v_mov_b32 v4, 0
    ds_write_b32 v1, v4 offset:{FLAGS}
    v_and_b32 v1, 15, v0
    v_lshrrev_b32 v4, 5, v0
    v_lshl_add_u32 v1, v1, 1, v4
    v_lshl_add_u32 v25, v1, 3, s39
    s_lshl_b32 s52, s49, 5
    v_add_u32 v20, s52, v1
    s_lshl_b32 s52, s41, 7
    v_add_u32 v1, s52, v20
    v_lshlrev_b32 v1, 1, v1
    global_load_ushort v21, v1, s[28:29]
    global_load_ushort v22, v1, s[30:31]
    s_lshl_b32 s52, s48, 5
    v_mov_b32 v24, s52
    s_cmp_lg_u32 s49, 0
    s_cbranch_scc1 L_noat
    v_mov_b32 v5, 1
    s_mov_b64 exec, 1
    global_atomic_add v24, v5, s[34:35]
    s_mov_b64 exec, -1
    L_noat:
    s_waitcnt lgkmcnt(0)
    """)
    vq.append("g"); vq.append("g")
    vwait({"B21", "E7"}); a("s_barrier")
    stamp(11)
    vwait({"B22", "O7"}); a("s_barrier")
    NG = 8; MK = 64; G = 32
    a(f"""
    v_lshrrev_b32 v1, 4, v0
    v_and_b32 v4, 15, v0
    v_lshlrev_b32 v4, 4, v4
    v_lshl_add_u32 v1, v1, 10, v4
    s_lshl_b32 s53, s49, 8
    v_add_u32 v26, s53, v1
    s_lshl_b32 s52, s48, 15
    v_add_u32 v23, s52, v26
    """)
    for i in range(NG): a(f"s_mov_b64 s[{MK+2*i}:{MK+2*i+1}], -1")
    vwait({"B23"}); a("s_barrier")
    stamp(2)
    def red4(x):
        a(f"""
        v_permlane32_swap_b32 v{x}, v{x+2}
        v_permlane32_swap_b32 v{x+1}, v{x+3}
        s_nop 1
        v_add_f32 v{x}, v{x}, v{x+2}
        v_add_f32 v{x+1}, v{x+1}, v{x+3}
        v_mov_b32 v{x+2}, v{x}
        v_mov_b32 v{x+3}, v{x+1}
        s_nop 1
        v_permlane16_swap_b32 v{x}, v{x+2}
        v_permlane16_swap_b32 v{x+1}, v{x+3}
        s_nop 1
        v_add_f32 v{x}, v{x}, v{x+2}
        v_add_f32 v{x+1}, v{x+1}, v{x+3}
        """)
    a(f"""
    s_mov_b32 s59, {SPIN}
    global_load_dword v27, v24, s[34:35] sc1
    L_part:
    ds_read_b128 v[4:7], v26 offset:{PART}
    s_waitcnt lgkmcnt(0)
    v_min_f32 v1, v5, v7
    v_cmp_gt_f32 vcc, 0, v1
    s_cbranch_vccz L_part_ok
    s_sleep 1
    s_sub_u32 s59, s59, 1
    s_cmp_gt_i32 s59, 0
    s_cbranch_scc1 L_part
    L_part_ok:
    """)
    red4(4)
    a(f"""
    s_mov_b32 s52, 0xffff
    s_mov_b32 s53, 0xffff
    s_mov_b64 exec, s[52:53]
    buffer_store_dwordx2 v[4:5], v25, s[20:23], 0 offen sc1
    s_mov_b64 exec, -1
    """)
    stamp(3)
    a(f"""
    s_waitcnt vmcnt(1)
    L_cnt:
    v_readfirstlane_b32 s52, v27
    s_cmp_ge_u32 s52, 32
    s_cbranch_scc1 L_poll
    global_load_dword v27, v24, s[34:35] sc1
    s_waitcnt vmcnt(0)
    s_sub_u32 s59, s59, 1
    s_cmp_gt_i32 s59, 0
    s_cbranch_scc1 L_cnt
    L_poll:
    """)
    for i in range(NG):
        a(f"""
        s_mov_b64 exec, s[{MK+2*i}:{MK+2*i+1}]
        s_cbranch_execz L_pskip{i}
        s_mov_b32 s52, {i*4096}
        buffer_load_dwordx4 v[{G+4*i}:{G+4*i+3}], v23, s[20:23], s52 offen sc1
        L_pskip{i}:
        """)
    a("s_mov_b64 exec, -1\ns_waitcnt vmcnt(0)")
    for i in range(NG):
        a(f"v_min_f32 v1, v{G+4*i+1}, v{G+4*i+3}")
        a(f"v_cmp_gt_f32 s[{MK+2*i}:{MK+2*i+1}], 0, v1")
    a(f"s_or_b64 s[52:53], s[{MK}:{MK+1}], s[{MK+2}:{MK+3}]")
    for i in range(2, NG):
        a(f"s_or_b64 s[52:53], s[52:53], s[{MK+2*i}:{MK+2*i+1}]")
    a(f"""
    s_cbranch_scc0 L_poll_done
    s_sub_u32 s59, s59, 1
    s_cmp_gt_i32 s59, 0
    s_cbranch_scc1 L_poll
    L_poll_done:
    """)
    stamp(4)
    for step_ in (4, 2, 1):
        for i in range(step_):
            for h in range(4):
                x = G + 4 * i + h; y = G + 4 * (i + step_) + h
                a(f"v_add_f32 v{x}, v{x}, v{y}")
    a("v_lshlrev_b32 v21, 16, v21\nv_lshlrev_b32 v22, 16, v22")
    red4(G)
    a(f"""
    s_mov_b32 s52, {f2u(1.0/LROWS)}
    v_mul_f32 v{G}, s52, v{G}             ; mean
    v_mul_f32 v{G+1}, s52, v{G+1}         ; E[h^2]
    v_fma_f32 v{G+1}, -v{G}, v{G}, v{G+1} ; var
    v_max_f32 v{G+1}, 0, v{G+1}
    v_add_f32 v{G+1}, {f2u(1e-5)}, v{G+1}
    v_rsq_f32 v{G+1}, v{G+1}
    v_lshlrev_b32 v1, 2, v20
    s_lshl_b32 s52, s49, 2
    v_mul_f32 v{G+1}, v{G+1}, v21         ; scale
    v_mov_b32 v4, s52
    v_fma_f32 v{G}, -v{G}, v{G+1}, v22    ; shift
    v_mov_b32 v5, 1
    ds_write_b32 v1, v{G+1} offset:{CONST}
    ds_write_b32 v1, v{G} offset:{CONST+512}
    ds_write_b32 v4, v5 offset:{FLAGS}
    s_lshl_b32 s50, s49, 14
    s_add_u32 s50, s50, {W_BASE}
    s_mov_b32 s51, 1                      ; half
    s_branch L_final
    """)

    ACC = 128
    def acc(j, n): return ACC + (n * 4 + j) * 4
    XS = [32, 52, 72]
    BR = 104
    aE, aE4, aO, bB = 8, 10, 12, 14
    a("L_compute:")
    if prio: a(f"s_setprio {prio}")
    if codepf:
        a(f"""
        s_cmp_lg_u32 s3, 1
        s_cbranch_scc1 L_nopf
        s_getpc_b64 s[52:53]
        L_pfbase:
        s_sub_u32 s52, s52, L_pfbase-{NAME}_kernel
        s_subb_u32 s53, s53, 0
        v_lshlrev_b32 v1, 7, v0
        v_min_u32 v4, L_end-{NAME}_kernel, v1
        global_load_dword v5, v4, s[52:53]
        v_add_u32 v1, 8192, v1
        v_min_u32 v4, L_end-{NAME}_kernel, v1
        global_load_dword v6, v4, s[52:53]
        L_nopf:
        """)
    a(f"""
    v_and_b32 v18, 15, v0                 ; i
    v_lshrrev_b32 v19, 4, v0              ; g
    s_lshl_b32 s51, s49, 13               ; w*64 rows*128B
    v_bfe_u32 v20, v18, 1, 3
    v_xor_b32 v20, v20, v19
    v_lshlrev_b32 v20, 4, v20
    v_lshl_add_u32 v20, v18, 7, v20
    v_add_u32 v{aE}, s51, v20
    v_xor_b32 v{aE+1}, 64, v{aE}
    v_add_u32 v{aO}, {A_SLOT}, v{aE}
    v_add_u32 v{aO+1}, {A_SLOT}, v{aE+1}
    s_lshl_b32 s53, s49, 6
    s_add_u32 s52, s53, 64
    s_min_u32 s52, s52, 255
    v_add_u32 v21, 1, v18
    v_add_u32 v21, s53, v21
    v_mov_b32 v22, s52
    v_cmp_eq_u32 vcc, 15, v18
    s_nop 1
    v_cndmask_b32 v21, v21, v22, vcc
    v_bfe_u32 v20, v21, 1, 3
    v_xor_b32 v20, v20, v19
    v_lshlrev_b32 v20, 4, v20
    v_lshl_add_u32 v{aE4}, v21, 7, v20
    v_xor_b32 v{aE4+1}, 64, v{aE4}
    v_bfe_u32 v20, v0, 2, 2               ; r
    v_lshl_add_u32 v21, v19, 3, v20       ; row
    v_bfe_u32 v20, v0, 3, 2               ; (r>>1) | ((g&1)<<1)
    v_lshlrev_b32 v20, 5, v20
    v_and_b32 v22, 3, v0
    v_lshl_add_u32 v20, v22, 3, v20
    v_lshl_add_u32 v20, v21, 7, v20
    v_add_u32 v{bB}, {W_BASE}, v20
    v_xor_b32 v{bB+1}, 32, v{bB}
    v_xor_b32 v{bB+2}, 64, v{bB}
    v_xor_b32 v{bB+3}, 96, v{bB}
    s_mov_b64 s[64:65], -1
    s_mov_b64 s[66:67], -1
    s_cmp_lg_u32 s49, 3
    s_cbranch_scc1 L_nomask
    s_cmp_eq_u32 s47, 249
    s_cselect_b32 s65, 0xffff, -1
    s_cselect_b32 s67, -1, 0xffff
    L_nomask:
    v_bfe_u32 v20, v18, 2, 1
    v_mul_u32_u24 v20, 10, v20
    v_lshrrev_b32 v21, 3, v18
    v_or_b32 v20, v20, v21
    v_and_b32 v21, 1, v19
    v_lshl_add_u32 v20, v21, 2, v20
    v_lshlrev_b32 v20, 4, v20
    v_and_b32 v21, 3, v18
    v_lshl_add_u32 v20, v21, 2, v20
    v_lshl_add_u32 v31, v19, 12, v20
    s_lshr_b32 s50, s49, 1
    s_lshl_b32 s50, s50, 16
    s_and_b32 s51, s49, 1
    s_lshl_b32 s51, s51, 14
    s_add_u32 s50, s50, s51
    s_lshl_b32 s51, s49, 10
    s_add_u32 s51, s51, {PART}
    v_lshl_add_u32 v30, v0, 3, s51
    """)
    for i in range(0, 128, 2): a(f"v_mov_b64 v[{ACC+i}:{ACC+i+1}], 0")
    if stamps: a(f"s_waitcnt lgkmcnt(0)\nv_writelane_b32 v{VST}, s92, 0\nv_writelane_b32 v{VST2}, s94, 0")
    a(f"""
    s_mov_b32 s54, 0                      ; sE
    s_mov_b32 s55, {A_SLOT}               ; sO
    s_mov_b32 s56, 0
    s_mov_b32 s57, 7
    s_mov_b32 s63, 16384
    s_mov_b32 s61, 16
    s_waitcnt lgkmcnt(0)
    """)
    stamp(7)
    a("s_barrier")
    stamp(1)
    lq = []; bpos = [0]; bring = {}
    def aset(t):
        r = []
        if t < 2:
            for j in range(5):
                d = XS[t] + 4 * j
                s = f"ds_read_b128 v[{d}:{d+3}], v{aE+t} offset:{j*2048}" if j < 4 else f"ds_read_b128 v[{d}:{d+3}], v{aE4+t}"
                r.append(("lds", ("A", t, j), s))
        else:
            for j in range(4):
                for kk in range(2):
                    d = XS[2] + 8 * j + 4 * kk
                    r.append(("lds", ("A", 2, 2 * j + kk), f"ds_read_b128 v[{d}:{d+3}], v{aO+kk} offset:{j*2048}"))
        return r
    def bpair(tag, n, extra=0):
        idx = bpos[0] % 3; bpos[0] += 1
        bring[tag] = idx
        r = []
        for pq in range(2):
            for h in range(2):
                d = BR + idx * 8 + pq * 4 + h * 2
                off = extra + (n >> 2) * 8192 + pq * 4096 + h * 512
                r.append(("lds", tag, f"ds_read_b64_tr_b16 v[{d}:{d+1}], v{bB+(n&3)} offset:{off}"))
        return r
    def emit(op):
        if isinstance(op, tuple):
            lq.append(op[1]); a(op[2])
        else: a(op)
    def lwait(tags):
        last = max([i for i, t in enumerate(lq) if t in tags], default=-1)
        if last < 0: return
        n = min(15, len(lq) - 1 - last)
        a(f"s_waitcnt lgkmcnt({n})")
        del lq[:len(lq) - n]
    def badv():
        return ["s_add_u32 s56, s56, 16384", "s_cmp_eq_u32 s56, 0x10000", "s_cselect_b32 s58, 0xffff4000, s63", "s_and_b32 s56, s56, 0xffff"] + \
               [f"v_add_u32 v{bB+n}, s58, v{bB+n}" for n in range(4)]
    def col(t, n, tag, q, barrier=False):
        P = BR + bring[tag] * 8; Q = P + 4
        per = -(-len(q) // 4)
        for j in range(4):
            d = acc(j, n)
            if t < 2: xr, yr = XS[t] + 4 * j, XS[t] + 4 * (j + 1)
            else: xr, yr = XS[2] + 8 * j, XS[2] + 8 * j + 4
            pr = [(xr, P), (yr, Q)]
            if (t == 2 or eorder == "b") and j % 2 == 1: pr = pr[::-1]
            for ar, br in pr:
                a(f"v_mfma_f32_16x16x32_bf16 v[{d}:{d+3}], v[{ar}:{ar+3}], v[{br}:{br+3}], v[{d}:{d+3}]")
            if barrier and j == 0:
                a("s_barrier")
                if itstamps:
                    a(f"s_mov_b32 m0, s61\ns_add_u32 s61, s61, 1\nv_writelane_b32 v{VST}, s96, m0\nv_writelane_b32 v{VST2}, s98, m0")
                    a("s_memrealtime s[96:97]\ns_memtime s[98:99]")
            for _ in range(per):
                if q: emit(q.pop(0))
        assert not q
    def Atags(t): return {("A", t, j) for j in range(8)}
    for op in bpair(("B", 0, 0), 0) + aset(0) + bpair(("B", 0, 1), 1): emit(op)
    lwait(Atags(0))
    lq[:] = [("B", 0, 0)] * 4 + [("B", 0, 1)] * 4
    init_state = (list(lq), bring[("B", 0, 0)], bring[("B", 0, 1)], bpos[0] % 3)
    def step(t):
        tn = (t + 1) % 3
        aq = aset(tn)
        for n in range(8):
            if n == 6: lwait(set(lq))
            else: lwait({("B", t, n)} | (Atags(t) if n == 0 else set()))
            q = bpair(("B", t, n + 2), n + 2) if n < 6 else bpair(("B", tn, n - 6), n - 6)
            for _ in range(2):
                if aq: q.append(aq.pop(0))
            if n == 5: q += badv()
            if t == 0 and n == 7:
                q += [f"s_add_u32 s59, s54, s55", f"s_sub_u32 s59, {3*A_SLOT}, s59", "s_sub_u32 s60, s59, s54"]
                q += [f"v_add_u32 v{r}, s60, v{r}" for r in (aE, aE + 1, aE4, aE4 + 1)]
            if t == 1 and n == 7:
                q += ["s_sub_u32 s60, s54, s55", "s_mov_b32 s55, s54", "s_mov_b32 s54, s59"]
                q += [f"v_add_u32 v{r}, s60, v{r}" for r in (aO, aO + 1)]
            if t == 2 and n == 7:
                q += ["s_sub_u32 s57, s57, 1", "s_cmp_lg_u32 s57, 0"]
            col(t, n, ("B", t, n), q, barrier=(n == 6))
        assert not aq
    a("L_cloop:")
    for t in range(3):
        a(f"; ---- step type {t}")
        step(t)
    end_state = (list(lq), bring[("B", 0, 0)], bring[("B", 0, 1)], bpos[0] % 3)
    assert end_state == init_state, (end_state, init_state)
    a("s_cbranch_scc1 L_cloop")
    stamp(11)
    T0 = 18
    def stats(h):
        for n in range(4 * h, 4 * h + 4):
            a(f"v_cndmask_b32 v{acc(1,n)+2}, 0, v{acc(1,n)+2}, s[64:65]")
            a(f"v_cndmask_b32 v{acc(2,n)+2}, 0, v{acc(2,n)+2}, s[66:67]")
            S, Q = T0 + 8, T0 + 10
            x0 = acc(0, n)
            a(f"v_pk_mul_f32 v[{Q}:{Q+1}], v[{x0}:{x0+1}], v[{x0}:{x0+1}]")
            a(f"v_pk_add_f32 v[{S}:{S+1}], v[{x0}:{x0+1}], v[{x0+2}:{x0+3}]")
            for x in range(x0 + 2, x0 + 16, 2):
                a(f"v_pk_fma_f32 v[{Q}:{Q+1}], v[{x}:{x+1}], v[{x}:{x+1}], v[{Q}:{Q+1}]")
                if x > x0 + 2: a(f"v_pk_add_f32 v[{S}:{S+1}], v[{S}:{S+1}], v[{x}:{x+1}]")
            a(f"v_add_f32 v{T0+(n&3)}, v{S}, v{S+1}")
            a(f"v_add_f32 v{T0+4+(n&3)}, v{Q}, v{Q+1}")
        S, Q = T0, T0 + 4
        a(f"""
        s_nop 0
        v_permlane32_swap_b32 v{S}, v{S+2}
        v_permlane32_swap_b32 v{S+1}, v{S+3}
        v_permlane32_swap_b32 v{Q}, v{Q+2}
        v_permlane32_swap_b32 v{Q+1}, v{Q+3}
        v_add_f32 v{S}, v{S}, v{S+2}
        v_add_f32 v{S+1}, v{S+1}, v{S+3}
        v_add_f32 v{Q}, v{Q}, v{Q+2}
        v_add_f32 v{Q+1}, v{Q+1}, v{Q+3}
        s_nop 0
        v_permlane16_swap_b32 v{S}, v{S+1}
        v_permlane16_swap_b32 v{Q}, v{Q+1}
        s_nop 0
        v_add_f32 v{S}, v{S}, v{S+1}
        v_add_f32 v{S+1}, v{Q}, v{Q+1}
        """)
        emit(("lds", "P", f"ds_write_b64 v30, v[{S}:{S+1}] offset:{512*h}"))
    def image_ops(h, tmp):
        ops = []
        for n in range(4 * h, 4 * h + 4):
            for f in range(2):
                ops.append(f"v_xor_b32 v{tmp[f]}, {((n&3)<<5) ^ (f<<7)}, v31")
                for j in (2 * f, 2 * f + 1):
                    for r in (0, 2):
                        x = acc(j, n) + r
                        ops.append(("lds", "I", f"ds_write2st64_b32 v{tmp[f]}, v{x}, v{x+1} offset0:{4*r+j} offset1:{4*(r+1)+j}"))
        return ops
    seq = [(h, t, n) for h in range(2) for t in range(3) for n in range(4 * h, 4 * h + 4)]
    for n in range(2): bring[("L", 0, 0, n)] = bring[("B", 0, n)]
    lq[:] = [("L", 0, 0, 0)] * 4 + [("L", 0, 0, 1)] * 4
    aq = []; iq = []
    for s, (h, t, n) in enumerate(seq):
        nn = n & 3
        if nn == 0: a(f"; ---- last chunk pass {h} step {t}")
        if h == 0 and nn == 0 and t < 2: aq = aset(t + 1)
        bar = (h == 0 and t < 2 and nn == 2)
        if h == 1 and t == 0 and nn == 0:
            a("s_nop 4")
            stats(0)
            stamp(5)
            iq = ["v_add_u32 v31, s50, v31"] + image_ops(0, (aE, aE + 1))
        if bar: lwait(set(lq))
        else: lwait({("L", h, t, n)} | (Atags(t) if nn == 0 and h == 0 else set()))
        q = []
        if s + 2 < len(seq):
            h2, t2, n2 = seq[s + 2]
            q += bpair(("L", h2, t2, n2), n2, extra=t2 * 16384)
        for _ in range(4):
            if aq: q.append(aq.pop(0))
        for _ in range(5):
            if iq: q.append(iq.pop(0))
        if s == len(seq) - 1:
            q += ["s_mov_b64 exec, 1", f"v_mov_b32 v{aO}, {FLAGS+32}", f"v_mov_b32 v{aO+1}, 1",
                  ("lds", "D", f"ds_add_u32 v{aO}, v{aO+1}"), "s_mov_b64 exec, -1"]
            per_fix = True
        if s == len(seq) - 1:
            for op in q: emit(op)
            a("s_nop 3")
            q = []
        col(t, n, ("L", h, t, n), q, barrier=bar)
    assert not aq and not iq
    stamp(2)
    a("s_nop 4")
    stats(1)
    stamp(3)
    a(f"""
    s_lshl_b32 s52, s49, 14
    s_add_u32 s52, s52, {W_BASE}
    s_sub_u32 s52, s52, s50
    v_add_u32 v31, s52, v31
    v_mov_b32 v4, {FLAGS+32}
    s_mov_b32 s59, {SPIN}
    L_done:
    ds_read_b32 v5, v4
    s_waitcnt lgkmcnt(0)
    v_readfirstlane_b32 s52, v5
    s_sub_u32 s59, s59, 1
    s_cmp_eq_u32 s59, 0
    s_cbranch_scc1 L_done_ok
    s_cmp_lt_u32 s52, 4
    s_cbranch_scc1 L_done
    L_done_ok:
    """)
    for op in image_ops(1, (aE, aE + 1)): emit(op)
    a(f"""
    s_lshl_b32 s52, s49, 2
    v_mov_b32 v4, s52
    v_mov_b32 v5, 1
    ds_write_b32 v4, v5 offset:{FLAGS+16}
    s_mov_b32 s51, 0                      ; half
    """)
    a(f"""
    L_final:
    s_mul_i32 s52, s43, {LROWS}
    s_add_u32 s52, s52, s45
    s_lshl_b32 s52, s52, 10
    s_add_u32 s16, s32, s52
    s_addc_u32 s17, s33, 0
    s_lshl_b32 s18, s47, 10
    s_mov_b32 s19, 0x20000
    v_and_b32 v1, 7, v0                   ; o
    v_lshrrev_b32 v4, 3, v0
    v_bfe_u32 v5, v0, 4, 1                ; f
    v_lshl_add_u32 v5, v5, 3, v1
    v_lshlrev_b32 v5, 4, v5
    v_lshl_add_u32 v5, v4, 8, v5
    v_add_u32 v8, s50, v5
    v_xor_b32 v9, 160, v8
    s_lshl_b32 s52, s49, 6
    v_add_u32 v4, s52, v4
    v_lshlrev_b32 v4, 10, v4
    v_lshl_add_u32 v10, v1, 4, v4
    s_lshl_b32 s52, s41, 8
    s_lshl_b32 s53, s51, 7
    s_add_u32 s52, s52, s53
    v_add_u32 v10, s52, v10
    s_lshl_b32 s53, s51, 8
    v_lshl_add_u32 v11, v1, 5, s53
    s_lshl_b32 s52, s51, 3
    v_lshl_add_u32 v14, v0, 2, s52
    s_lshl_b32 s52, s49, 2
    s_add_u32 s52, s52, 16
    v_mov_b32 v15, s52
    v_cmp_gt_u32 vcc, 2, v0
    s_mov_b32 s24, {f2u(C1)}
    s_mov_b32 s25, {f2u(C1)}
    v_cndmask_b32 v14, v15, v14, vcc
    s_mov_b32 s26, 0x3f800000
    s_mov_b32 s27, 0x3f800000
    v_mov_b32 v12, {f2u(C2)}
    v_mov_b32 v13, {f2u(C2)}
    s_mov_b32 s57, 4
    s_mov_b32 s59, {SPIN*4}
    L_fw:
    ds_read_b32 v15, v14 offset:{FLAGS}
    s_waitcnt lgkmcnt(0)
    v_cmp_eq_u32 vcc, 0, v15
    s_cbranch_vccz L_fw_ok
    s_sleep 1
    s_sub_u32 s59, s59, 1
    s_cmp_gt_i32 s59, 0
    s_cbranch_scc1 L_fw
    L_fw_ok:
    """)
    stamp(8)
    SC, SH, H, T, O = 16, 24, 64, 32, 40
    a(f"""
    ds_read_b128 v[{SC}:{SC+3}], v11 offset:{CONST}
    ds_read_b128 v[{SC+4}:{SC+7}], v11 offset:{CONST+16}
    ds_read_b128 v[{SH}:{SH+3}], v11 offset:{CONST+512}
    ds_read_b128 v[{SH+4}:{SH+7}], v11 offset:{CONST+528}
    """)
    def rd(i):
        return [f"ds_read_b128 v[{H+8*i}:{H+8*i+3}], v8 offset:{2048*i}",
                f"ds_read_b128 v[{H+8*i+4}:{H+8*i+7}], v9 offset:{2048*i}"]
    adv = "v_add_u32 v8, 4096, v8\nv_add_u32 v9, 4096, v9\nv_xor_b32 v8, 64, v8\nv_xor_b32 v9, 64, v9"
    for r in rd(0) + rd(1): a(r)
    a(adv)
    def p(x): return f"v[{x}:{x+1}]"
    a("L_gloop:")
    for i in range(2):
        h = H + 8 * i; Y = 48; o = O + 4 * i
        a("s_waitcnt lgkmcnt(2)")
        for j in range(0, 8, 2): a(f"v_pk_fma_f32 {p(Y+j)}, {p(h+j)}, {p(SC+j)}, {p(SH+j)}")
        for r in rd(i): a(r)
        for j in range(0, 8, 2): a(f"v_pk_mul_f32 {p(T+j)}, {p(Y+j)}, {p(Y+j)}")
        for j in range(0, 8, 2): a(f"v_pk_fma_f32 {p(T+j)}, {p(T+j)}, v[12:13], s[24:25]")
        for j in range(0, 8, 2): a(f"v_pk_mul_f32 {p(T+j)}, {p(T+j)}, {p(Y+j)}")
        for j in range(8): a(f"v_exp_f32 v{T+j}, v{T+j}")
        for j in range(0, 8, 2): a(f"v_pk_add_f32 {p(T+j)}, {p(T+j)}, s[26:27]")
        for j in range(8): a(f"v_rcp_f32 v{T+j}, v{T+j}")
        if i == 1: a(adv)
        for j in range(0, 8, 2): a(f"v_pk_mul_f32 {p(T+j)}, {p(T+j)}, {p(Y+j)}")
        if sthr is not None: a(f"s_waitcnt vmcnt({sthr})")
        for j in range(0, 8, 2): a(f"v_cvt_pk_bf16_f32 v{o+j//2}, v{T+j}, v{T+j+1}")
        a(f"buffer_store_dwordx4 v[{o}:{o+3}], v10, s[16:19], 0 offen{omod}")
        a("v_add_u32 v10, 8192, v10")
    a("s_sub_u32 s57, s57, 1\ns_cmp_lg_u32 s57, 0\ns_cbranch_scc1 L_gloop")
    if hold in (9, 10) and not stamps: stamp(hold)
    if stamps:
        stamp(9)
        a("s_waitcnt vmcnt(0)")
        stamp(10)
        a(f"""
        s_lshl_b32 s52, s2, 12
        s_lshl_b32 s53, s3, 9
        s_add_u32 s52, s52, s53
        s_add_u32 s52, s52, {STAMP_OFF}
        v_lshlrev_b32 v1, 3, v0
        v_add_u32 v1, s52, v1
        global_store_dwordx2 v1, v[{VST}:{VST2}], s[36:37]
        s_waitcnt vmcnt(0)
        """)
    a("L_end:\ns_endpgm")
    return wrap(a.text(), 256, 512, 163840, 256)

if __name__ == "__main__":
    out = sys.argv[1]
    kw = json.loads(sys.argv[2]) if len(sys.argv) > 2 else {}
    open(out, "w").write(gen(**kw))
```

```python
import sys, json, struct
from asmlib import *

def f2u(f): return struct.unpack("<I", struct.pack("<f", f))[0]

LROWS = 7999
C1 = -2.0 * 0.7978845608028654 * 1.4426950408889634
C2 = C1 * 0.044715
KS = (-C2) ** (1.0 / 3.0)
CP = -C1 / KS
SENT = 0xBF800000
A_SLOT = 32768
W_BASE = 98304
MISC = 32768
PART = MISC
CONST = MISC + 4096
FLAGS = MISC + 5120
STAMP_OFF = 1 << 20
SPIN = 0x20000

def gen(stamps=False, xmod="", wmod="", omod=" sc0 sc1", prio=0, codepf=True, itstamps=False,
        hold=None, holdus=40, parity=True, eorder="j", sthr=None, psleep=0, fsleep=1, rsleep=0, lprio=2, cprio=3):
    a = Asm()
    VST, VST2 = 2, 3
    def stamp(k):
        if hold == k:
            lb = a.label("L_hold")
            a(f"""s_waitcnt lgkmcnt(0)
            {lb}:
            s_memrealtime s[96:97]
            s_waitcnt lgkmcnt(0)
            s_sub_u32 s96, s96, s92
            s_cmp_lt_u32 s96, {holdus*100}
            s_cbranch_scc1 {lb}""")
        if not stamps: return
        a(f"s_memrealtime s[96:97]\ns_memtime s[98:99]\ns_waitcnt lgkmcnt(0)\nv_writelane_b32 v{VST}, s96, {k}\nv_writelane_b32 v{VST2}, s98, {k}")
    def final_setup(rowoff):
        a(f"""
        s_mul_i32 s52, s43, {LROWS}
        s_add_u32 s52, s52, s45
        s_lshl_b32 s52, s52, 10
        s_add_u32 s16, s32, s52
        s_addc_u32 s17, s33, 0
        s_lshl_b32 s18, s47, 10
        s_mov_b32 s19, 0x20000
        v_and_b32 v1, 7, v0                   ; o
        v_lshrrev_b32 v4, 3, v0
        v_add_u32 v4, {rowoff}, v4
        v_bfe_u32 v5, v0, 4, 1                ; f
        v_lshl_add_u32 v5, v5, 3, v1
        v_lshlrev_b32 v5, 4, v5
        v_lshl_add_u32 v5, v4, 8, v5
        v_add_u32 v8, s50, v5
        v_xor_b32 v9, 160, v8
        s_lshl_b32 s52, s49, 6
        v_add_u32 v4, s52, v4
        v_lshlrev_b32 v4, 10, v4
        v_lshl_add_u32 v10, v1, 4, v4
        s_lshl_b32 s52, s41, 8
        v_add_u32 v10, s52, v10
        v_lshlrev_b32 v11, 5, v1
        v_and_b32 v14, 1, v0
        v_lshlrev_b32 v14, 2, v14             ; constflag[lane&1]
        s_mov_b32 s24, {f2u(CP)}
        s_mov_b32 s25, {f2u(CP)}
        s_mov_b32 s26, {f2u(KS)}
        s_mov_b32 s27, {f2u(KS)}
        s_lshl_b32 s60, s49, 14
        s_add_u32 s60, s60, {W_BASE}
        s_sub_u32 s60, s60, s50
        s_lshl_b32 s52, s49, 2
        v_mov_b32 v12, s52
        v_mov_b32 v13, 1
        s_mov_b32 s58, 1
        """)
    def imgbase():
        a("""
        s_lshr_b32 s50, s49, 1
        s_lshl_b32 s50, s50, 16
        s_and_b32 s51, s49, 1
        s_lshl_b32 s51, s51, 14
        s_add_u32 s50, s50, s51
        """)
    a(f"""
    s_cmp_ge_u32 s2, 256
    s_cbranch_scc1 L_end
    s_load_dwordx4 s[4:7], s[0:1], 0      ; x, w
    s_load_dwordx4 s[28:31], s[0:1], 16
    s_load_dwordx4 s[32:35], s[0:1], 32
    s_load_dwordx2 s[36:37], s[0:1], 48   ; ws
    """)
    if stamps or hold is not None: a("s_memrealtime s[92:93]\ns_memtime s[94:95]")
    a(f"""
    v_lshrrev_b32 v1, 6, v0
    v_and_b32 v0, 63, v0
    v_readfirstlane_b32 s3, v1
    s_and_b32 s38, s2, 7
    s_bfe_u32 s40, s2, 0x30005
    s_bfe_u32 s41, s2, 0x20003
    s_lshl_b32 s42, s38, 3
    s_add_u32 s42, s42, s40               ; mt 0..63
    s_lshr_b32 s43, s42, 5                ; batch
    s_and_b32 s44, s42, 31
    s_mul_i32 s45, s44, 250
    s_mul_i32 s46, s43, 8000
    s_add_u32 s46, s46, s45
    s_cmp_eq_u32 s44, 31
    s_cselect_b32 s47, 1, 0
    s_sub_u32 s47, 250, s47               ; nvalid
    s_lshl_b32 s48, s43, 2
    s_add_u32 s48, s48, s41
    s_and_b32 s49, s3, 3
    s_cmp_lt_u32 s3, 4
    s_cbranch_scc1 L_compute
    """)
    VA, VW = 8, 12
    a(f"""
    v_lshrrev_b32 v4, 4, v0               ; l>>4
    v_and_b32 v7, 7, v0
    v_lshrrev_b32 v6, 3, v0               ; l>>3
    v_and_b32 v5, 2, v6                   ; ((l>>4)&1)<<1
    v_xor_b32 v5, v5, v7
    s_and_b32 s50, s49, 1
    s_lshr_b32 s62, s49, 1
    s_lshl_b32 s51, s50, 7
    s_lshl_b32 s52, s41, 8
    s_add_u32 s51, s51, s52
    v_lshlrev_b32 v5, 4, v5
    v_lshl_add_u32 v5, v6, 10, v5
    v_add_u32 v{VW}, s51, v5
    v_xor_b32 v{VW+1}, 64, v{VW}
    v_add_u32 v{VW+2}, 14336, v{VW}
    v_add_u32 v{VW+3}, 21504, v{VW+1}
    v_add_u32 v{VW+1}, 7168, v{VW+1}
    s_lshl_b32 s51, s50, 13
    s_lshl_b32 s52, s62, 12
    s_add_u32 s51, s51, s52
    s_add_u32 s51, s51, {W_BASE}
    s_lshl_b32 s54, s62, 20               ; sB0
    s_mov_b32 s14, 1572864
    s_mov_b32 s15, 0x20000
    s_mov_b32 m0, s51
    s_waitcnt lgkmcnt(0)
    s_mov_b32 s12, s6
    s_mov_b32 s13, s7
    """)
    if stamps: a(f"v_writelane_b32 v{VST}, s92, 0\nv_writelane_b32 v{VST2}, s94, 0")
    vq = []
    def issueA(slot_s, soff, tag):
        for half in range(2):
            if half == 0: a(f"s_add_u32 m0, s50, {slot_s}")
            else: a(f"s_xor_b32 m0, m0, 4096")
            a("s_nop 0")
            for n in range(4):
                vq.append(tag)
                a(f"buffer_load_dwordx4 v{VA+half*2+(n&1)}, s[8:11], {soff} offen offset:{n*1024}{xmod} lds")
    def issueW(slot_s, soff, tag, setm0=True):
        if setm0:
            a(f"s_add_u32 m0, s51, {slot_s}")
            a("s_nop 0")
        for n in range(4):
            vq.append(tag)
            a(f"buffer_load_dwordx4 v{VW+n}, s[12:15], {soff} offen offset:{n*1024}{wmod} lds")
    def vwait(tags):
        last = max([i for i, t in enumerate(vq) if t in tags], default=-1)
        n = len(vq) - 1 - last
        a(f"s_waitcnt vmcnt({n})")
        return n
    def Aname(k): return f"E{k//3}" if k % 3 < 2 else f"O{k//3}"
    issueW(0, "s54", "B0", setm0=False)
    a(f"""
    v_xor_b32 v5, v7, v4
    v_lshlrev_b32 v5, 4, v5
    v_lshl_add_u32 v5, v6, 13, v5         ; 4*(l>>3)*2048
    s_lshl_b32 s52, s49, 17               ; 64*lw*2048
    s_and_b32 s53, s41, {1 if parity else 0}
    s_lshl_b32 s53, s53, 12
    s_add_u32 s52, s52, s53
    v_add_u32 v{VA}, s52, v5
    v_xor_b32 v{VA+2}, 4096, v{VA}
    v_xor_b32 v{VA+1}, 64, v{VA}
    v_xor_b32 v{VA+3}, 64, v{VA+2}
    v_add_u32 v{VA+1}, {32*2048 - 1024}, v{VA+1}
    v_add_u32 v{VA+3}, {32*2048 - 1024}, v{VA+3}
    s_lshl_b32 s50, s49, 13
    s_add_u32 s50, s50, s53
    s_lshl_b32 s10, s47, 11
    s_add_u32 s10, s10, 1024
    s_mov_b32 s11, 0x20000
    s_lshl_b32 s57, s46, 11
    s_add_u32 s8, s4, s57
    s_addc_u32 s9, s5, 0
    s_mov_b32 s52, 0                      ; x k-offset (E)
    s_mov_b32 s53, 1024                   ; x k-offset (O)
    s_add_u32 s55, s54, 0x8000            ; sB1
    s_lshl_b32 s56, s62, 15
    s_add_u32 s56, s56, 0x80000           ; sB2
    """)
    issueA(0, "s52", "E0"); issueW(16384, "s55", "B1")
    a(f"""
    s_mov_b32 s20, s36
    s_mov_b32 s21, s37
    s_mov_b32 s22, 0x40000
    s_mov_b32 s23, 0x20000
    s_lshl_b32 s57, s48, 5
    s_add_u32 s57, s57, s44
    s_lshl_b32 s57, s57, 10
    s_lshl_b32 s58, s49, 8
    s_add_u32 s39, s57, s58
    v_lshl_add_u32 v1, v0, 2, s39
    v_mov_b32 v4, {SENT}
    buffer_store_dword v4, v1, s[20:23], 0 offen sc1
    s_mov_b32 s57, {2*A_SLOT}
    s_mov_b32 s58, {A_SLOT}
    s_mov_b32 s59, 32768
    """)
    vq.append("S")
    def iB(kb):
        sreg = ["s54", "s55", "s56"][kb % 3]
        if kb >= 3: a(f"s_add_u32 {sreg}, {sreg}, 0x10000")
        issueW("s59", sreg, f"B{kb}")
        a("s_add_u32 s59, s59, 16384\ns_and_b32 s59, s59, 0xffff")
    def iO(c):
        if c > 0: a("s_add_u32 s53, s53, 128")
        issueA("s58", "s53", f"O{c}")
    def iE(c):
        a("s_add_u32 s52, s52, 128")
        issueA("s57", "s52", f"E{c}")
        a(f"s_add_u32 s61, s57, s58\ns_mov_b32 s57, s58\ns_sub_u32 s58, {3*A_SLOT}, s61")
    stamp(6)
    vwait({"B0", "E0"}); stamp(7); a("s_barrier")
    stamp(1)
    ramp = {-1: [("O", 0), ("B", 2)], 0: [("E", 1), ("B", 3)], 1: [("B", 4), ("O", 1)], 2: [("B", 5), ("E", 2), ("B", 6)]}
    def lstep(k):
        c = k // 3
        if k in ramp: todo = list(ramp[k])
        else:
            todo = []
            if k + 4 <= 23: todo.append(("B", k + 4))
            if k % 3 == 0 and c + 1 <= 7: todo.append(("O", c + 1))
            if k % 3 == 1 and c + 2 <= 7: todo.append(("E", c + 2))
        for kind, i in todo: {"B": iB, "O": iO, "E": iE}[kind](i)
        return vwait({f"B{k+2}", Aname(k + 3)})
    for k in range(-1, 3):
        lstep(k); a("s_barrier")
    NL = 5
    a(f"s_mov_b32 s60, {NL}")
    a("L_lloop:")
    ns = []
    for k in range(3, 6):
        ns.append(lstep(k)); a("s_barrier")
    a("s_sub_u32 s60, s60, 1\ns_cmp_lg_u32 s60, 0\ns_cbranch_scc1 L_lloop")
    keep = len(a.lines)
    for k in range(6, 18):
        n = lstep(k); assert n >= ns[k % 3], (k, n, ns)
    del a.lines[keep:]
    lstep(18); a("s_barrier")
    iB(23)
    R = 80
    a(f"""
    v_mov_b32 v4, {SENT}
    v_mov_b32 v5, {SENT}
    v_mov_b32 v6, {SENT}
    v_mov_b32 v7, {SENT}
    s_lshl_b32 s52, s49, 10
    s_add_u32 s52, s52, {PART}
    v_lshl_add_u32 v1, v0, 4, s52
    ds_write_b128 v1, v[4:7]
    v_lshlrev_b32 v1, 2, v0
    v_mov_b32 v4, 0
    ds_write_b32 v1, v4 offset:{FLAGS}
    v_and_b32 v1, 15, v0
    v_lshrrev_b32 v4, 5, v0
    v_lshl_add_u32 v1, v1, 1, v4
    v_lshl_add_u32 v{R+5}, v1, 3, s39
    s_lshl_b32 s52, s49, 5
    v_add_u32 v{R}, s52, v1
    s_lshl_b32 s52, s41, 7
    v_add_u32 v1, s52, v{R}
    v_lshlrev_b32 v1, 1, v1
    global_load_ushort v{R+1}, v1, s[28:29]
    global_load_ushort v{R+2}, v1, s[30:31]
    s_lshl_b32 s52, s48, 5
    v_mov_b32 v{R+4}, s52
    s_cmp_lg_u32 s49, 0
    s_cbranch_scc1 L_noat
    v_mov_b32 v5, 1
    s_mov_b64 exec, 1
    global_atomic_add v{R+4}, v5, s[34:35]
    s_mov_b64 exec, -1
    L_noat:
    s_waitcnt lgkmcnt(0)
    """)
    vq.append("g"); vq.append("g")
    vwait({"B21", "E7"}); a("s_barrier")
    stamp(11)
    vwait({"B22", "O7"}); a("s_barrier")
    NG = 8; MK = 64; G = 96
    a(f"""
    v_lshrrev_b32 v1, 4, v0
    v_and_b32 v4, 15, v0
    v_lshlrev_b32 v4, 4, v4
    v_lshl_add_u32 v1, v1, 10, v4
    s_lshl_b32 s53, s49, 8
    v_add_u32 v{R+6}, s53, v1
    s_lshl_b32 s52, s48, 15
    v_add_u32 v{R+3}, s52, v{R+6}
    v_lshlrev_b32 v{R}, 2, v{R}
    """)
    for i in range(NG): a(f"s_mov_b64 s[{MK+2*i}:{MK+2*i+1}], -1")
    for i in range(1, NG): a(f"s_mov_b32 s{80+i}, {i*4096}")
    imgbase()
    final_setup(0)
    vwait({"B23"}); a("s_barrier")
    stamp(2)
    def red4(x):
        a(f"""
        v_permlane32_swap_b32 v{x}, v{x+2}
        v_permlane32_swap_b32 v{x+1}, v{x+3}
        s_nop 1
        v_add_f32 v{x}, v{x}, v{x+2}
        v_add_f32 v{x+1}, v{x+1}, v{x+3}
        v_mov_b32 v{x+2}, v{x}
        v_mov_b32 v{x+3}, v{x+1}
        s_nop 1
        v_permlane16_swap_b32 v{x}, v{x+2}
        v_permlane16_swap_b32 v{x+1}, v{x+3}
        s_nop 1
        v_add_f32 v{x}, v{x}, v{x+2}
        v_add_f32 v{x+1}, v{x+1}, v{x+3}
        """)
    if lprio: a(f"s_setprio {lprio}")
    a(f"""
    s_mov_b32 s59, {SPIN}
    L_cnt:
    global_load_dword v1, v{R+4}, s[34:35] sc1
    s_waitcnt vmcnt(0)
    v_readfirstlane_b32 s52, v1
    s_cmp_ge_u32 s52, 32
    s_cbranch_scc1 L_cnt_ok
    s_sub_u32 s59, s59, 1
    s_cmp_gt_i32 s59, 0
    s_cbranch_scc1 L_cnt
    L_cnt_ok:
    s_mov_b32 s52, {f2u(KS)}
    v_lshlrev_b32 v{R+1}, 16, v{R+1}
    v_lshlrev_b32 v{R+2}, 16, v{R+2}
    v_mul_f32 v{R+1}, s52, v{R+1}
    v_mul_f32 v{R+2}, s52, v{R+2}
    s_cmp_ge_u32 s49, 2
    s_cbranch_scc1 L_imgwait
    L_part:
    ds_read_b128 v[4:7], v{R+6} offset:{PART}
    s_waitcnt lgkmcnt(0)
    v_min_f32 v1, v5, v7
    v_cmp_gt_f32 vcc, 0, v1
    s_cbranch_vccz L_part_ok
    {"s_sleep %d" % psleep if psleep else ""}
    s_sub_u32 s59, s59, 1
    s_cmp_gt_i32 s59, 0
    s_cbranch_scc1 L_part
    L_part_ok:
    """)
    red4(4)
    a(f"""
    s_mov_b32 s52, 0xffff
    s_mov_b32 s53, 0xffff
    s_mov_b64 exec, s[52:53]
    buffer_store_dwordx2 v[4:5], v{R+5}, s[20:23], 0 offen sc1
    s_mov_b64 exec, -1
    """)
    stamp(3)
    a("s_waitcnt vmcnt(0)")
    a("L_gather:")
    if stamps: a("s_mov_b32 s90, 0")
    a(f"s_mov_b32 s59, {SPIN}\nL_poll:")
    if stamps: a("s_add_u32 s90, s90, 1")
    for i in range(NG):
        a(f"s_or_b64 exec, s[{MK+2*i}:{MK+2*i+1}], 1")
        a(f"buffer_load_dwordx4 v[{G+4*i}:{G+4*i+3}], v{R+3}, s[20:23], {'s%d' % (80+i) if i else 0} offen sc1")
    a("s_mov_b64 exec, -1\ns_waitcnt vmcnt(0)")
    for i in range(NG):
        a(f"v_min_f32 v1, v{G+4*i+1}, v{G+4*i+3}")
        a(f"v_cmp_gt_f32 s[{MK+2*i}:{MK+2*i+1}], 0, v1")
    a(f"s_or_b64 s[52:53], s[{MK}:{MK+1}], s[{MK+2}:{MK+3}]")
    for i in range(2, NG):
        a(f"s_or_b64 s[52:53], s[52:53], s[{MK+2*i}:{MK+2*i+1}]")
    a(f"""
    s_cbranch_scc0 L_poll_done
    {"s_sleep %d" % rsleep if rsleep else ""}
    s_sub_u32 s59, s59, 1
    s_cmp_gt_i32 s59, 0
    s_cbranch_scc1 L_poll
    L_poll_done:
    """)
    if stamps: a(f"v_writelane_b32 v{VST2}, s90, 63")
    stamp(4)
    for step_ in (4, 2, 1):
        for i in range(step_):
            for h in range(4):
                x = G + 4 * i + h; y = G + 4 * (i + step_) + h
                a(f"v_add_f32 v{x}, v{x}, v{y}")
    a(f"s_mov_b32 s52, {f2u(1.0/LROWS)}\ns_nop 0")
    red4(G)
    a(f"""
    v_mul_f32 v{G}, s52, v{G}             ; mean
    v_mul_f32 v{G+1}, s52, v{G+1}         ; E[h^2]
    v_fma_f32 v{G+1}, -v{G}, v{G}, v{G+1} ; var
    v_max_f32 v{G+1}, 0, v{G+1}
    v_add_f32 v{G+1}, {f2u(1e-5)}, v{G+1}
    v_rsq_f32 v{G+1}, v{G+1}
    s_lshl_b32 s52, s49, 2
    v_mul_f32 v{G+1}, v{G+1}, v{R+1}      ; KS*scale
    v_mov_b32 v1, s52
    v_fma_f32 v{G}, -v{G}, v{G+1}, v{R+2} ; KS*shift
    ds_write_b32 v{R}, v{G+1} offset:{CONST}
    ds_write_b32 v{R}, v{G} offset:{CONST+512}
    ds_write_b32 v1, v13 offset:{FLAGS}
    s_branch L_imgwait
    """)

    ACC = 128
    def acc(j, n): return ACC + (n * 4 + j) * 4
    XS = [32, 52, 72]
    BR = 104
    aE, aE4, aO, bB = 8, 10, 12, 14
    a("L_compute:")
    if prio: a(f"s_setprio {prio}")
    if codepf:
        a(f"""
        s_cmp_lg_u32 s3, 1
        s_cbranch_scc1 L_nopf
        s_getpc_b64 s[52:53]
        L_pfbase:
        s_sub_u32 s52, s52, L_pfbase-{NAME}_kernel
        s_subb_u32 s53, s53, 0
        v_lshlrev_b32 v1, 7, v0
        v_min_u32 v4, L_end-{NAME}_kernel, v1
        global_load_dword v5, v4, s[52:53]
        v_add_u32 v1, 8192, v1
        v_min_u32 v4, L_end-{NAME}_kernel, v1
        global_load_dword v6, v4, s[52:53]
        L_nopf:
        """)
    a(f"""
    v_and_b32 v18, 15, v0                 ; i
    v_lshrrev_b32 v19, 4, v0              ; g
    s_lshl_b32 s51, s49, 13               ; w*64 rows*128B
    v_bfe_u32 v20, v18, 1, 3
    v_xor_b32 v20, v20, v19
    v_lshlrev_b32 v20, 4, v20
    v_lshl_add_u32 v20, v18, 7, v20
    v_add_u32 v{aE}, s51, v20
    v_xor_b32 v{aE+1}, 64, v{aE}
    v_add_u32 v{aO}, {A_SLOT}, v{aE}
    v_add_u32 v{aO+1}, {A_SLOT}, v{aE+1}
    s_lshl_b32 s53, s49, 6
    s_add_u32 s52, s53, 64
    s_min_u32 s52, s52, 255
    v_add_u32 v21, 1, v18
    v_add_u32 v21, s53, v21
    v_mov_b32 v22, s52
    v_cmp_eq_u32 vcc, 15, v18
    s_nop 1
    v_cndmask_b32 v21, v21, v22, vcc
    v_bfe_u32 v20, v21, 1, 3
    v_xor_b32 v20, v20, v19
    v_lshlrev_b32 v20, 4, v20
    v_lshl_add_u32 v{aE4}, v21, 7, v20
    v_xor_b32 v{aE4+1}, 64, v{aE4}
    v_bfe_u32 v20, v0, 2, 2               ; r
    v_lshl_add_u32 v21, v19, 3, v20       ; row
    v_bfe_u32 v20, v0, 3, 2               ; (r>>1) | ((g&1)<<1)
    v_lshlrev_b32 v20, 5, v20
    v_and_b32 v22, 3, v0
    v_lshl_add_u32 v20, v22, 3, v20
    v_lshl_add_u32 v20, v21, 7, v20
    v_add_u32 v{bB}, {W_BASE}, v20
    v_xor_b32 v{bB+1}, 32, v{bB}
    v_xor_b32 v{bB+2}, 64, v{bB}
    v_xor_b32 v{bB+3}, 96, v{bB}
    s_mov_b64 s[64:65], -1
    s_mov_b64 s[66:67], -1
    s_cmp_lg_u32 s49, 3
    s_cbranch_scc1 L_nomask
    s_cmp_eq_u32 s47, 249
    s_cselect_b32 s65, 0xffff, -1
    s_cselect_b32 s67, -1, 0xffff
    L_nomask:
    v_bfe_u32 v20, v18, 2, 1
    v_mul_u32_u24 v20, 10, v20
    v_lshrrev_b32 v21, 3, v18
    v_or_b32 v20, v20, v21
    v_and_b32 v21, 1, v19
    v_lshl_add_u32 v20, v21, 2, v20
    v_lshlrev_b32 v20, 4, v20
    v_and_b32 v21, 3, v18
    v_lshl_add_u32 v20, v21, 2, v20
    v_lshl_add_u32 v31, v19, 12, v20
    s_lshl_b32 s51, s49, 10
    s_add_u32 s51, s51, {PART}
    v_lshl_add_u32 v30, v0, 3, s51
    """)
    imgbase()
    for i in range(0, 128, 2): a(f"v_mov_b64 v[{ACC+i}:{ACC+i+1}], 0")
    if stamps: a(f"s_waitcnt lgkmcnt(0)\nv_writelane_b32 v{VST}, s92, 0\nv_writelane_b32 v{VST2}, s94, 0")
    a(f"""
    s_mov_b32 s54, 0                      ; sE
    s_mov_b32 s55, {A_SLOT}               ; sO
    s_mov_b32 s56, 0
    s_mov_b32 s57, 7
    s_mov_b32 s63, 16384
    s_mov_b32 s61, 16
    s_waitcnt lgkmcnt(0)
    """)
    stamp(7)
    a("s_barrier")
    stamp(1)
    lq = []; bpos = [0]; bring = {}
    def aset(t):
        r = []
        if t < 2:
            for j in range(5):
                d = XS[t] + 4 * j
                s = f"ds_read_b128 v[{d}:{d+3}], v{aE+t} offset:{j*2048}" if j < 4 else f"ds_read_b128 v[{d}:{d+3}], v{aE4+t}"
                r.append(("lds", ("A", t, j), s))
        else:
            for j in range(4):
                for kk in range(2):
                    d = XS[2] + 8 * j + 4 * kk
                    r.append(("lds", ("A", 2, 2 * j + kk), f"ds_read_b128 v[{d}:{d+3}], v{aO+kk} offset:{j*2048}"))
        return r
    def bpair(tag, n, extra=0):
        idx = bpos[0] % 3; bpos[0] += 1
        bring[tag] = idx
        r = []
        for pq in range(2):
            for h in range(2):
                d = BR + idx * 8 + pq * 4 + h * 2
                off = extra + (n >> 2) * 8192 + pq * 4096 + h * 512
                r.append(("lds", tag, f"ds_read_b64_tr_b16 v[{d}:{d+1}], v{bB+(n&3)} offset:{off}"))
        return r
    def emit(op):
        if isinstance(op, tuple):
            lq.append(op[1]); a(op[2])
        else: a(op)
    def lwait(tags):
        last = max([i for i, t in enumerate(lq) if t in tags], default=-1)
        if last < 0: return
        n = min(15, len(lq) - 1 - last)
        a(f"s_waitcnt lgkmcnt({n})")
        del lq[:len(lq) - n]
    def badv():
        return ["s_add_u32 s56, s56, 16384", "s_cmp_eq_u32 s56, 0x10000", "s_cselect_b32 s58, 0xffff4000, s63", "s_and_b32 s56, s56, 0xffff"] + \
               [f"v_add_u32 v{bB+n}, s58, v{bB+n}" for n in range(4)]
    def col(t, n, tag, q, barrier=False):
        P = BR + bring[tag] * 8; Q = P + 4
        per = -(-len(q) // 4)
        for j in range(4):
            d = acc(j, n)
            if t < 2: xr, yr = XS[t] + 4 * j, XS[t] + 4 * (j + 1)
            else: xr, yr = XS[2] + 8 * j, XS[2] + 8 * j + 4
            pr = [(xr, P), (yr, Q)]
            if (t == 2 or eorder == "b") and j % 2 == 1: pr = pr[::-1]
            for ar, br in pr:
                a(f"v_mfma_f32_16x16x32_bf16 v[{d}:{d+3}], v[{ar}:{ar+3}], v[{br}:{br+3}], v[{d}:{d+3}]")
            if barrier and j == 0:
                a("s_barrier")
                if itstamps:
                    a(f"s_mov_b32 m0, s61\ns_add_u32 s61, s61, 1\nv_writelane_b32 v{VST}, s96, m0\nv_writelane_b32 v{VST2}, s98, m0")
                    a("s_memrealtime s[96:97]\ns_memtime s[98:99]")
            for _ in range(per):
                if q: emit(q.pop(0))
        assert not q
    def Atags(t): return {("A", t, j) for j in range(8)}
    for op in bpair(("B", 0, 0), 0) + aset(0) + bpair(("B", 0, 1), 1): emit(op)
    lwait(Atags(0))
    lq[:] = [("B", 0, 0)] * 4 + [("B", 0, 1)] * 4
    init_state = (list(lq), bring[("B", 0, 0)], bring[("B", 0, 1)], bpos[0] % 3)
    def step(t):
        tn = (t + 1) % 3
        aq = aset(tn)
        for n in range(8):
            if n == 6: lwait(set(lq))
            else: lwait({("B", t, n)} | (Atags(t) if n == 0 else set()))
            q = bpair(("B", t, n + 2), n + 2) if n < 6 else bpair(("B", tn, n - 6), n - 6)
            for _ in range(2):
                if aq: q.append(aq.pop(0))
            if n == 5: q += badv()
            if t == 0 and n == 7:
                q += [f"s_add_u32 s59, s54, s55", f"s_sub_u32 s59, {3*A_SLOT}, s59", "s_sub_u32 s60, s59, s54"]
                q += [f"v_add_u32 v{r}, s60, v{r}" for r in (aE, aE + 1, aE4, aE4 + 1)]
            if t == 1 and n == 7:
                q += ["s_sub_u32 s60, s54, s55", "s_mov_b32 s55, s54", "s_mov_b32 s54, s59"]
                q += [f"v_add_u32 v{r}, s60, v{r}" for r in (aO, aO + 1)]
            if t == 2 and n == 7:
                q += ["s_sub_u32 s57, s57, 1", "s_cmp_lg_u32 s57, 0"]
            col(t, n, ("B", t, n), q, barrier=(n == 6))
        assert not aq
    a("L_cloop:")
    for t in range(3):
        a(f"; ---- step type {t}")
        step(t)
    end_state = (list(lq), bring[("B", 0, 0)], bring[("B", 0, 1)], bpos[0] % 3)
    assert end_state == init_state, (end_state, init_state)
    a("s_cbranch_scc1 L_cloop")
    if cprio: a(f"s_setprio {cprio}")
    stamp(11)
    T0 = 18
    def stats(h):
        for n in range(4 * h, 4 * h + 4):
            a(f"v_cndmask_b32 v{acc(1,n)+2}, 0, v{acc(1,n)+2}, s[64:65]")
            a(f"v_cndmask_b32 v{acc(2,n)+2}, 0, v{acc(2,n)+2}, s[66:67]")
            S, Q = T0 + 8, T0 + 10
            x0 = acc(0, n)
            a(f"v_pk_mul_f32 v[{Q}:{Q+1}], v[{x0}:{x0+1}], v[{x0}:{x0+1}]")
            a(f"v_pk_add_f32 v[{S}:{S+1}], v[{x0}:{x0+1}], v[{x0+2}:{x0+3}]")
            for x in range(x0 + 2, x0 + 16, 2):
                a(f"v_pk_fma_f32 v[{Q}:{Q+1}], v[{x}:{x+1}], v[{x}:{x+1}], v[{Q}:{Q+1}]")
                if x > x0 + 2: a(f"v_pk_add_f32 v[{S}:{S+1}], v[{S}:{S+1}], v[{x}:{x+1}]")
            a(f"v_add_f32 v{T0+(n&3)}, v{S}, v{S+1}")
            a(f"v_add_f32 v{T0+4+(n&3)}, v{Q}, v{Q+1}")
        S, Q = T0, T0 + 4
        a(f"""
        s_nop 0
        v_permlane32_swap_b32 v{S}, v{S+2}
        v_permlane32_swap_b32 v{S+1}, v{S+3}
        v_permlane32_swap_b32 v{Q}, v{Q+2}
        v_permlane32_swap_b32 v{Q+1}, v{Q+3}
        v_add_f32 v{S}, v{S}, v{S+2}
        v_add_f32 v{S+1}, v{S+1}, v{S+3}
        v_add_f32 v{Q}, v{Q}, v{Q+2}
        v_add_f32 v{Q+1}, v{Q+1}, v{Q+3}
        s_nop 0
        v_permlane16_swap_b32 v{S}, v{S+1}
        v_permlane16_swap_b32 v{Q}, v{Q+1}
        s_nop 0
        v_add_f32 v{S}, v{S}, v{S+1}
        v_add_f32 v{S+1}, v{Q}, v{Q+1}
        """)
        emit(("lds", "P", f"ds_write_b64 v30, v[{S}:{S+1}] offset:{512*h}"))
    def image_ops(h, tmp):
        ops = []
        for n in range(4 * h, 4 * h + 4):
            for f in range(2):
                ops.append(f"v_xor_b32 v{tmp[f]}, {((n&3)<<5) ^ (f<<7)}, v31")
                for j in (2 * f, 2 * f + 1):
                    for r in (0, 2):
                        x = acc(j, n) + r
                        ops.append(("lds", "I", f"ds_write2st64_b32 v{tmp[f]}, v{x}, v{x+1} offset0:{4*r+j} offset1:{4*(r+1)+j}"))
        return ops
    seq = [(h, t, n) for h in range(2) for t in range(3) for n in range(4 * h, 4 * h + 4)]
    for n in range(2): bring[("L", 0, 0, n)] = bring[("B", 0, n)]
    lq[:] = [("L", 0, 0, 0)] * 4 + [("L", 0, 0, 1)] * 4
    aq = []; iq = []
    for s, (h, t, n) in enumerate(seq):
        nn = n & 3
        if nn == 0: a(f"; ---- last chunk pass {h} step {t}")
        if h == 0 and nn == 0 and t < 2: aq = aset(t + 1)
        bar = (h == 0 and t < 2 and nn == 2)
        if h == 1 and t == 0 and nn == 0:
            a("s_nop 4")
            stats(0)
            stamp(5)
            iq = ["v_add_u32 v31, s50, v31"] + image_ops(0, (aE, aE + 1))
            iq += ["s_lshl_b32 s52, s49, 2", f"v_mov_b32 v{aO}, s52", f"v_mov_b32 v{aO+1}, 1", ("lds", "F", f"ds_write_b32 v{aO}, v{aO+1} offset:{FLAGS+16}")]
            iq += ["v_lshrrev_b32 v6, 4, v0", "v_and_b32 v7, 15, v0", "s_lshl_b32 s52, s49, 7", "s_add_u32 s52, s52, 512",
                   "v_lshl_add_u32 v7, v7, 3, s52", "v_lshl_add_u32 v4, v6, 10, v7",
                   "s_lshl_b32 s52, s48, 5", "s_add_u32 s52, s52, s44", "s_lshl_b32 s52, s52, 10", "v_add_u32 v5, s52, v7",
                   "s_mov_b32 s20, s36", "s_mov_b32 s21, s37", "s_mov_b32 s22, 0x40000", "s_mov_b32 s23, 0x20000", f"s_mov_b32 s59, {SPIN}"]
        if bar: lwait(set(lq))
        else: lwait({("L", h, t, n)} | (Atags(t) if nn == 0 and h == 0 else set()))
        q = []
        if s + 2 < len(seq):
            h2, t2, n2 = seq[s + 2]
            q += bpair(("L", h2, t2, n2), n2, extra=t2 * 16384)
        for _ in range(4):
            if aq: q.append(aq.pop(0))
        for _ in range(5):
            if iq: q.append(iq.pop(0))
        col(t, n, ("L", h, t, n), q, barrier=bar)
    assert not aq and not iq
    stamp(2)
    a("s_nop 4")
    stats(1)
    stamp(13)
    a(f"""
    L_cpart:
    ds_read_b64 v[20:21], v4 offset:{PART}
    s_waitcnt lgkmcnt(0)
    v_cmp_gt_f32 vcc, 0, v21
    s_cbranch_vccz L_cpart_ok
    s_sub_u32 s59, s59, 1
    s_cmp_gt_i32 s59, 0
    s_cbranch_scc1 L_cpart
    L_cpart_ok:
    v_mov_b32 v22, v20
    v_mov_b32 v23, v21
    s_nop 1
    v_permlane32_swap_b32 v20, v22
    v_permlane32_swap_b32 v21, v23
    s_nop 1
    v_add_f32 v20, v20, v22
    v_add_f32 v21, v21, v23
    v_mov_b32 v22, v20
    v_mov_b32 v23, v21
    s_nop 1
    v_permlane16_swap_b32 v20, v22
    v_permlane16_swap_b32 v21, v23
    s_nop 1
    v_add_f32 v20, v20, v22
    v_add_f32 v21, v21, v23
    s_mov_b64 exec, 0xffff
    buffer_store_dwordx2 v[20:21], v5, s[20:23], 0 offen sc1
    s_mov_b64 exec, -1
    s_setprio 0
    """)
    stamp(3)
    final_setup(32)
    a("v_add_u32 v31, s60, v31")
    for op in image_ops(1, (6, 7)): emit(op)
    a(f"ds_write_b32 v12, v13 offset:{FLAGS+32}")
    SC, SH, H, T, O = 16, 24, 64, 32, 40
    def rd(i):
        return [f"ds_read_b128 v[{H+8*i}:{H+8*i+3}], v8 offset:{2048*i}",
                f"ds_read_b128 v[{H+8*i+4}:{H+8*i+7}], v9 offset:{2048*i}"]
    adv = "v_add_u32 v8, 4096, v8\nv_add_u32 v9, 4096, v9\nv_xor_b32 v8, 64, v8\nv_xor_b32 v9, 64, v9"
    a(f"""
    s_branch L_job
    L_imgwait:
    s_mov_b32 s59, {SPIN*4}
    L_img:
    ds_read_b32 v15, v12 offset:{FLAGS+16}
    s_waitcnt lgkmcnt(0)
    v_cmp_eq_u32 vcc, 0, v15
    s_cbranch_vccz L_job
    s_sleep 2
    s_sub_u32 s59, s59, 1
    s_cmp_gt_i32 s59, 0
    s_cbranch_scc1 L_img
    L_job:
    """)
    for r in rd(0) + rd(1): a(r)
    a(adv)
    a(f"""
    s_mov_b32 s57, 2
    s_mov_b32 s59, {SPIN*4}
    L_fw:
    ds_read_b32 v15, v14 offset:{FLAGS}
    ds_read_b128 v[{SC}:{SC+3}], v11 offset:{CONST}
    ds_read_b128 v[{SC+4}:{SC+7}], v11 offset:{CONST+16}
    ds_read_b128 v[{SH}:{SH+3}], v11 offset:{CONST+512}
    ds_read_b128 v[{SH+4}:{SH+7}], v11 offset:{CONST+528}
    s_waitcnt lgkmcnt(0)
    v_cmp_eq_u32 vcc, 0, v15
    s_cbranch_vccz L_fw_ok
    {"s_sleep %d" % fsleep if fsleep else ""}
    s_sub_u32 s59, s59, 1
    s_cmp_gt_i32 s59, 0
    s_cbranch_scc1 L_fw
    L_fw_ok:
    """)
    if stamps:
        a("s_cmp_eq_u32 s58, 0\ns_cbranch_scc1 L_st8")
        stamp(14)
        a("L_st8:")
    stamp(8)
    def p(x): return f"v[{x}:{x+1}]"
    a("L_gloop:")
    for i in range(2):
        h = H + 8 * i; Y = 48; o = O + 4 * i
        a("s_waitcnt lgkmcnt(2)")
        for j in range(0, 8, 2): a(f"v_pk_fma_f32 {p(Y+j)}, {p(h+j)}, {p(SC+j)}, {p(SH+j)}")
        for r in rd(i): a(r)
        for j in range(0, 8, 2): a(f"v_pk_fma_f32 {p(T+j)}, {p(Y+j)}, {p(Y+j)}, s[24:25]")
        for j in range(0, 8, 2): a(f"v_pk_mul_f32 {p(T+j)}, {p(T+j)}, {p(Y+j)} neg_lo:[1,0] neg_hi:[1,0]")
        for j in range(8): a(f"v_exp_f32 v{T+j}, v{T+j}")
        for j in range(0, 8, 2): a(f"v_pk_fma_f32 {p(T+j)}, {p(T+j)}, s[26:27], s[26:27]")
        for j in range(8): a(f"v_rcp_f32 v{T+j}, v{T+j}")
        if i == 1: a(adv)
        for j in range(0, 8, 2): a(f"v_pk_mul_f32 {p(T+j)}, {p(T+j)}, {p(Y+j)}")
        if sthr is not None: a(f"s_waitcnt vmcnt({sthr})")
        for j in range(0, 8, 2): a(f"v_cvt_pk_bf16_f32 v{o+j//2}, v{T+j}, v{T+j+1}")
        a(f"buffer_store_dwordx4 v[{o}:{o+3}], v10, s[16:19], 0 offen{omod}")
        a("v_add_u32 v10, 8192, v10")
    a("s_sub_u32 s57, s57, 1\ns_cmp_lg_u32 s57, 0\ns_cbranch_scc1 L_gloop")
    a("s_cmp_eq_u32 s58, 0\ns_cbranch_scc1 L_fin")
    stamp(12)
    a(f"""
    s_mov_b32 s58, 0
    s_sub_u32 s60, s60, 12288
    v_xor_b32 v8, 64, v8
    v_xor_b32 v9, 64, v9
    v_add_u32 v8, s60, v8
    v_add_u32 v9, s60, v9
    v_subrev_u32 v10, {32768-128}, v10
    v_add_u32 v11, 256, v11
    v_add_u32 v14, 8, v14
    v_add_u32 v12, 16, v12
    s_waitcnt lgkmcnt(0)
    s_cmp_ge_u32 s3, 6
    s_cbranch_scc1 L_gather
    s_branch L_imgwait
    L_fin:
    """)
    if hold in (9, 10) and not stamps: stamp(hold)
    if stamps:
        stamp(9)
        a("s_waitcnt vmcnt(0)")
        stamp(10)
        a(f"""
        s_lshl_b32 s52, s2, 12
        s_lshl_b32 s53, s3, 9
        s_add_u32 s52, s52, s53
        s_add_u32 s52, s52, {STAMP_OFF}
        v_lshlrev_b32 v1, 3, v0
        v_add_u32 v1, s52, v1
        global_store_dwordx2 v1, v[{VST}:{VST2}], s[36:37]
        s_waitcnt vmcnt(0)
        """)
    a("L_end:\ns_endpgm")
    return wrap(a.text(), 256, 512, 163840, 256)

if __name__ == "__main__":
    out = sys.argv[1]
    kw = json.loads(sys.argv[2]) if len(sys.argv) > 2 else {}
    open(out, "w").write(gen(**kw))
```

```python
import sys, json, struct
from asmlib import *

def f2u(f): return struct.unpack("<I", struct.pack("<f", f))[0]

LROWS = 7999
C1 = -2.0 * 0.7978845608028654 * 1.4426950408889634
C2 = C1 * 0.044715
KS = (-C2) ** (1.0 / 3.0)
CP = -C1 / KS
SENT = 0xBF800000
A_SLOT = 32768
W_BASE = 98304
MISC = 32768
PART = MISC
CONST = MISC + 2048
FLAGS = MISC + 3072
STAMP_OFF = 1 << 20
SPIN = 0x20000

def gen(stamps=False, xmod="", wmod="", omod=" sc0 sc1", codepf=True, itstamps=False, hold=None, holdus=40,
        parity=True, psleep=0, fsleep=1, rsleep=0, lprio=2, cprio=3, LA=2, LB=3, only=None, wpar=True, jouter=False, ded=False, onebar=True, align8=False, shift=0, pf2=False, isleep=2, probes=False, ilv=True):
    a = Asm()
    VST, VST2 = 2, 3
    def stamp(k):
        if hold == k:
            lb = a.label("L_hold")
            a(f"""s_waitcnt lgkmcnt(0)
            {lb}:
            s_memrealtime s[96:97]
            s_waitcnt lgkmcnt(0)
            s_sub_u32 s96, s96, s92
            s_cmp_lt_u32 s96, {holdus*100}
            s_cbranch_scc1 {lb}""")
        if not stamps or (only is not None and k not in only): return
        a(f"s_memrealtime s[100:101]\ns_waitcnt lgkmcnt(0)\nv_writelane_b32 v{VST}, s100, {k}")
        if k in (1, 2): a(f"s_memtime s[100:101]\ns_waitcnt lgkmcnt(0)\nv_writelane_b32 v{VST2}, s100, {k}")
    def final_setup(role):
        a(f"""
        s_mul_i32 s38, s43, {LROWS}
        s_add_u32 s38, s38, s45
        s_lshl_b32 s38, s38, 10
        s_add_u32 s16, s32, s38
        s_addc_u32 s17, s33, 0
        s_lshl_b32 s18, s47, 10
        s_mov_b32 s19, 0x20000
        v_and_b32 v1, 7, v0                   ; o
        v_lshrrev_b32 v4, 3, v0
        s_and_b32 s38, s49, 1
        s_lshl_b32 s40, s38, 5
        s_add_u32 s40, s40, {64 if role == "c" else 0}
        v_add_u32 v4, s40, v4
        s_lshl_b32 s38, s38, 2
        v_xor_b32 v5, s38, v1                 ; o ^ 4*((row>>5)&1)
        v_bfe_u32 v6, v0, 4, 1                ; f
        v_lshl_add_u32 v5, v6, 3, v5
        v_lshlrev_b32 v5, 4, v5
        v_lshl_add_u32 v5, v4, 8, v5
        s_lshr_b32 s38, s49, 1
        s_lshl_b32 s40, s38, 15
        s_add_u32 s42, s40, {W_BASE}
        v_add_u32 v8, s42, v5
        v_xor_b32 v9, 160, v8
        s_sub_u32 s40, s40, {W_BASE + 12288}
        s_lshl_b32 s42, s38, 7
        v_add_u32 v4, s42, v4
        v_lshlrev_b32 v4, 10, v4
        v_lshl_add_u32 v10, v1, 4, v4
        s_lshl_b32 s42, s41, 8
        v_add_u32 v10, s42, v10
        v_lshlrev_b32 v11, 5, v1
        v_and_b32 v14, 1, v0
        v_lshlrev_b32 v14, 2, v14             ; constflag[lane&1]
        s_lshl_b32 s38, s38, 3
        v_add_u32 v12, s38, v14
        v_mov_b32 v13, 1
        s_mov_b32 s24, {f2u(CP)}
        s_mov_b32 s25, {f2u(CP)}
        s_mov_b32 s26, {f2u(KS)}
        s_mov_b32 s27, {f2u(KS)}
        s_mov_b32 s42, 1
        """)
    def part_publish(lbl, vaddr, half, x, vrec, maskreg, sleep):
        a(f"""
        {lbl}:
        ds_read_b128 v[{x}:{x+3}], v{vaddr} offset:{PART + 1024*half}
        s_waitcnt lgkmcnt(0)
        v_min_f32 v1, v{x+1}, v{x+3}
        v_cmp_gt_f32 vcc, 0, v1
        s_cbranch_vccz {lbl}_ok
        {"s_sleep %d" % sleep if sleep else ""}
        s_sub_u32 s59, s59, 1
        s_cmp_gt_i32 s59, 0
        s_cbranch_scc1 {lbl}
        {lbl}_ok:
        """)
        for i in range(4): a(f"v_mov_b32 v{x+4+i}, v{x+i}")
        for i in range(4): a(f"v_permlane32_swap_b32 v{x+i}, v{x+4+i}")
        for i in range(4): a(f"v_add_f32 v{x+i}, v{x+i}, v{x+4+i}")
        a(f"""
        s_mov_b64 exec, {maskreg}
        buffer_store_dwordx4 v[{x}:{x+3}], v{vrec}, s[20:23], 0 offen sc1
        s_mov_b64 exec, -1
        """)
    a(f"""
    s_cmp_ge_u32 s2, 256
    s_cbranch_scc1 L_end
    s_load_dwordx4 s[4:7], s[0:1], 0      ; x, w
    s_load_dwordx4 s[28:31], s[0:1], 16
    s_load_dwordx4 s[32:35], s[0:1], 32
    s_load_dwordx2 s[36:37], s[0:1], 48   ; ws
    """)
    if stamps or hold is not None: a("s_memrealtime s[92:93]")
    a(f"""
    v_lshrrev_b32 v1, 6, v0
    v_and_b32 v0, 63, v0
    v_readfirstlane_b32 s3, v1
    s_and_b32 s38, s2, 7
    s_bfe_u32 s40, s2, 0x30005
    s_bfe_u32 s41, s2, 0x20003
    s_lshl_b32 s42, s38, 3
    s_add_u32 s42, s42, s40               ; mt 0..63
    s_lshr_b32 s43, s42, 5                ; batch
    s_and_b32 s44, s42, 31
    s_mul_i32 s45, s44, 250
    s_mul_i32 s46, s43, 8000
    s_add_u32 s46, s46, s45
    s_cmp_eq_u32 s44, 31
    s_cselect_b32 s47, 1, 0
    s_sub_u32 s47, 250, s47               ; nvalid
    s_lshl_b32 s48, s43, 2
    s_add_u32 s48, s48, s41
    s_and_b32 s49, s3, 3
    s_cmp_lt_u32 s3, 4
    s_cbranch_scc1 L_compute
    """)
    VA, VW = 56, 60
    a(f"""
    v_lshrrev_b32 v4, 4, v0               ; l>>4
    v_and_b32 v5, 15, v0
    v_lshlrev_b32 v6, 1, v4
    v_xor_b32 v5, v5, v6                  ; W chunk (n<2)
    s_and_b32 s50, s49, 1
    s_lshl_b32 s51, s50, 14
    s_lshl_b32 s52, s41, 8
    s_add_u32 s51, s51, s52
    v_lshlrev_b32 v5, 4, v5
    v_lshl_add_u32 v5, v4, 10, v5
    s_and_b32 s53, s40, {1 if wpar else 0}
    s_mul_i32 s52, s53, {8192 + 128}
    v_add_u32 v5, s51, v5
    v_xor_b32 v{VW}, s52, v5
    v_xor_b32 v{VW+2}, {8192 + 128}, v{VW}
    v_add_u32 v{VW+1}, 3072, v{VW}
    v_add_u32 v{VW+3}, 3072, v{VW+2}
    s_lshl_b32 s51, s49, 12
    s_lshl_b32 s53, s53, 11
    s_add_u32 s51, s51, s53
    s_add_u32 s51, s51, {W_BASE}
    s_lshr_b32 s62, s49, 1                ; lw>=2
    s_lshl_b32 s54, s62, 20               ; sB0
    s_mov_b32 s14, 1572864
    s_mov_b32 s15, 0x20000
    s_mov_b32 m0, s51
    s_waitcnt lgkmcnt(0)
    s_mov_b32 s12, s6
    s_mov_b32 s13, s7
    """)
    if stamps: a(f"v_writelane_b32 v{VST}, s92, 0")
    vq = []
    def issueA(slot_s, soff, tag, halves=(0, 1)):
        for half in halves:
            if half == halves[0]: a(f"s_add_u32 m0, s50, {slot_s}")
            if half == 1: a(f"s_xor_b32 m0, m0, 4096")
            a("s_nop 0")
            for n in range(4):
                vq.append(tag)
                a(f"buffer_load_dwordx4 v{VA+half*2+(n&1)}, s[8:11], {soff} offen offset:{n*1024}{xmod} lds")
    def issueW(slot_s, soff, tag, setm0=True, halves=(0, 1)):
        for half in halves:
            if half == halves[0] and setm0: a(f"s_add_u32 m0, s51, {slot_s}")
            if half == 1: a("s_xor_b32 m0, m0, 2048")
            if setm0 or half == 1: a("s_nop 0")
            for n in range(2):
                vq.append(tag)
                a(f"buffer_load_dwordx4 v{VW+2*half+n}, s[12:15], {soff} offen offset:{n*1024}{wmod} lds")
    def vwait(tags):
        last = max([i for i, t in enumerate(vq) if t in tags], default=-1)
        n = len(vq) - 1 - last
        a(f"s_waitcnt vmcnt({n})")
        return n
    def Aname(k): return f"E{k//3}" if k % 3 < 2 else f"O{k//3}"
    issueW(0, "s54", "B0", setm0=False, halves=(0,) if wpar else (0, 1))
    a(f"""
    v_and_b32 v5, 7, v0
    v_xor_b32 v5, v5, v4
    v_lshlrev_b32 v5, 4, v5
    v_lshrrev_b32 v6, 3, v0
    v_lshl_add_u32 v5, v6, 14, v5
    s_lshl_b32 s52, s62, 18
    s_lshl_b32 s53, s50, 13
    s_add_u32 s52, s52, s53
    s_and_b32 s53, s41, {1 if parity else 0}
    s_lshl_b32 s53, s53, 12
    s_add_u32 s52, s52, s53
    v_add_u32 v{VA}, s52, v5
    v_xor_b32 v{VA+2}, 4096, v{VA}
    v_xor_b32 v{VA+1}, 64, v{VA}
    v_xor_b32 v{VA+3}, 64, v{VA+2}
    v_add_u32 v{VA+1}, {64*2048 - 1024}, v{VA+1}
    v_add_u32 v{VA+3}, {64*2048 - 1024}, v{VA+3}
    s_lshl_b32 s50, s49, 13
    s_add_u32 s50, s50, s53
    s_lshl_b32 s10, s47, 11
    s_add_u32 s10, s10, 1024
    s_mov_b32 s11, 0x20000
    s_lshl_b32 s57, s46, 11
    s_add_u32 s8, s4, s57
    s_addc_u32 s9, s5, 0
    s_mov_b32 s52, 0                      ; x k-offset (E)
    s_mov_b32 s53, 1024                   ; x k-offset (O)
    s_add_u32 s55, s54, 0x8000            ; sB1
    s_lshl_b32 s56, s62, 15
    s_add_u32 s56, s56, 0x80000           ; sB2
    """)
    issueA(0, "s52", "E0", halves=(0,))
    if wpar: issueW(16384, "s55", "B1", halves=(0,))
    R = 80
    NG = 8; MK = 64; G = 96
    a(f"""
    s_mov_b32 s20, s36
    s_mov_b32 s21, s37
    s_mov_b32 s22, 0x40000
    s_mov_b32 s23, 0x20000
    s_lshl_b32 s39, s48, 5
    s_add_u32 s39, s39, s44
    s_lshl_b32 s39, s39, 10
    v_lshlrev_b32 v{R+6}, 4, v0
    v_add_u32 v{R+5}, s39, v{R+6}
    v_and_b32 v1, 15, v0
    v_lshrrev_b32 v5, 5, v0
    v_lshl_add_u32 v5, v1, 1, v5
    s_lshl_b32 s57, s49, 5
    v_add_u32 v{R}, s57, v5
    s_lshl_b32 s57, s41, 7
    v_add_u32 v{R+7}, s57, v{R}
    v_lshlrev_b32 v{R+7}, 1, v{R+7}
    v_lshlrev_b32 v{R}, 2, v{R}
    v_lshlrev_b32 v1, 4, v1
    v_lshl_add_u32 v1, v4, 10, v1
    s_lshl_b32 s57, s48, 15
    s_lshl_b32 s58, s49, 8
    s_add_u32 s57, s57, s58
    v_add_u32 v{R+3}, s57, v1
    s_lshl_b32 s57, s48, 5
    v_mov_b32 v{R+4}, s57
    s_add_u32 s57, s39, s58
    v_lshl_add_u32 v{R+8}, v0, 2, s57
    v_mov_b32 v{R+10}, {SENT}
    v_mov_b32 v{R+11}, {SENT}
    s_lshl_b32 s57, s49, 4
    s_lshl_b64 s[90:91], 0xffff, s57
    """)
    for i in range(NG): a(f"s_mov_b64 s[{MK+2*i}:{MK+2*i+1}], -1")
    for i in range(1, NG): a(f"s_mov_b32 s{80+i}, {i*4096}")
    final_setup("l")
    if wpar: issueW(0, "s54", "B0", halves=(1,))
    issueA(0, "s52", "E0", halves=(1,))
    if wpar: issueW(16384, "s55", "B1", halves=(1,))
    if onebar:
        if not wpar: issueW(16384, "s55", "B1")
        issueW(32768, "s56", "B2")
        stamp(6)
        vwait({"B0", "E0", "B1"}); a("s_barrier")
        stamp(1)
    else:
        vwait({"B0"}); a("s_barrier")
        if not wpar: issueW(16384, "s55", "B1")
    a(f"""
    buffer_store_dword v{R+10}, v{R+8}, s[20:23], 0 offen sc1
    global_load_ushort v{R+1}, v{R+7}, s[28:29]
    global_load_ushort v{R+2}, v{R+7}, s[30:31]
    s_lshl_b32 s57, s49, 9
    v_lshl_add_u32 v{R+7}, v0, 3, s57
    v_lshlrev_b32 v{R+8}, 2, v0
    v_mov_b32 v{R+9}, 0
    """)
    vq += ["S", "g", "g"]
    if not onebar: issueW(32768, "s56", "B2")
    a(f"""
    s_mov_b32 s57, {2*A_SLOT}
    s_mov_b32 s58, {A_SLOT}
    s_mov_b32 s59, 49152
    """)
    if not onebar:
        stamp(6)
        vwait({"E0", "B1"}); a("s_barrier")
        stamp(1)
    def iB(kb, ph, nth=0):
        sreg = ["s54", "s55", "s56"][kb % 3]
        if ph in (0, None): a(f"s_add_u32 {sreg}, {sreg}, 0x10000")
        issueW("s59", sreg, f"B{kb}", halves=(0, 1) if ph is None else (ph,))
        if ph in (1, None): a("s_add_u32 s59, s59, 16384\ns_and_b32 s59, s59, 0xffff")
    def iO(c, ph):
        if c > 0 and ph in (0, None): a("s_add_u32 s53, s53, 128")
        issueA("s58", "s53", f"O{c}", halves=(0, 1) if ph is None else (ph,))
    def iE(c, ph):
        if ph in (0, None): a("s_add_u32 s52, s52, 128")
        issueA("s57", "s52", f"E{c}", halves=(0, 1) if ph is None else (ph,))
        if ph in (1, None): a(f"s_add_u32 s61, s57, s58\ns_mov_b32 s57, s58\ns_sub_u32 s58, {3*A_SLOT}, s61")
    ramp = {-1: [("O", 0), ("B", 3)], 0: [("E", 1), ("B", 4)], 1: [("B", 5), ("O", 1)], 2: [("B", 6), ("E", 2)], 3: [("B", 7), ("B", 8)]}
    def lstep(k):
        c = k // 3
        if k in ramp: todo = list(ramp[k])
        else:
            todo = []
            if k + 5 <= 23: todo.append(("B", k + 5))
            if k % 3 == 1 and c + 1 <= 7: todo.append(("O", c + 1))
            if k % 3 == 2 and c + 2 <= 7: todo.append(("E", c + 2))
        two = ilv and len(todo) == 2 and todo[0][0] != todo[1][0]
        for ph in ((0, 1) if two else (None,)):
            for kind, i in todo: {"B": iB, "O": iO, "E": iE}[kind](i, ph)
        return vwait({Aname(k + 2), f"B{k+3}"})
    for k in range(-1, 4):
        lstep(k); a("s_barrier")
    a("""
    s_mov_b32 s60, 5
    s_and_b32 s62, s44, 3
    s_add_u32 s62, s62, 2
    s_cmp_lg_u32 s49, 0
    s_cselect_b32 s62, 0, s62
    L_lloop:
    """)
    ns = []
    for k in range(4, 7):
        ns.append(lstep(k))
        if k == 6:
            a(f"""
            s_cmp_lg_u32 s60, s62
            s_cbranch_scc1 L_noat
            s_mov_b64 exec, 1
            global_atomic_add v{R+4}, v13, s[34:35]
            s_mov_b64 exec, -1
            L_noat:
            """)
        a("s_barrier")
    a("s_sub_u32 s60, s60, 1\ns_cmp_lg_u32 s60, 0\ns_cbranch_scc1 L_lloop")
    keep = len(a.lines)
    for k in range(7, 19):
        n = lstep(k); assert n >= ns[(k - 4) % 3], (k, n, ns)
    del a.lines[keep:]
    if pf2:
        a(f"""
        s_getpc_b64 s[88:89]
        L_pfbase2:
        s_sub_u32 s88, s88, L_pfbase2-{NAME}_kernel
        s_subb_u32 s89, s89, 0
        s_lshl_b32 s61, s49, 12
        v_and_b32 v1, 31, v0
        v_lshl_add_u32 v1, v1, 7, s61
        v_min_u32 v1, L_end-{NAME}_kernel, v1
        global_load_dword v16, v1, s[88:89]
        """)
        vq.append("c")
    lstep(19); a("s_barrier")
    stamp(11)
    a(f"""
    ds_write_b64 v{R+7}, v[{R+10}:{R+11}] offset:{PART}
    ds_write_b32 v{R+8}, v{R+9} offset:{FLAGS}
    s_waitcnt lgkmcnt(0)
    """)
    vwait({"B23"}); a("s_barrier")
    a(f"""
    s_waitcnt vmcnt(0)
    s_barrier
    global_load_dword v{R+9}, v{R+4}, s[34:35] sc1
    s_mov_b32 s52, {f2u(KS)}
    v_lshlrev_b32 v{R+1}, 16, v{R+1}
    v_lshlrev_b32 v{R+2}, 16, v{R+2}
    v_mul_f32 v{R+1}, s52, v{R+1}
    v_mul_f32 v{R+2}, s52, v{R+2}
    s_mov_b32 s59, {SPIN}
    s_barrier
    """)
    stamp(2)
    if lprio: a(f"s_setprio {lprio}")
    def nextjob_regs():
        a(f"""
        v_add_u32 v8, s40, v8
        v_add_u32 v9, s40, v9
        v_subrev_u32 v10, {32768-128}, v10
        v_add_u32 v11, 256, v11
        v_add_u32 v14, 8, v14
        v_add_u32 v12, 16, v12
        """)
    a("s_cmp_ge_u32 s49, 2\ns_cbranch_scc1 L_nopub")
    part_publish("L_part", R + 6, 0, G, R + 5, "s[90:91]", psleep)
    stamp(3)
    a(f"""
    L_nopub:
    L_cnt:
    s_waitcnt vmcnt(0)
    v_readfirstlane_b32 s52, v{R+9}
    s_cmp_ge_u32 s52, 32
    s_cbranch_scc1 L_cnt_ok
    s_sleep 32
    global_load_dword v{R+9}, v{R+4}, s[34:35] sc1
    s_sub_u32 s59, s59, 1
    s_cmp_gt_i32 s59, 0
    s_cbranch_scc1 L_cnt
    L_cnt_ok:
    s_cmp_lt_u32 s49, 2
    s_cbranch_scc1 L_gather
    """)
    if ded:
        a(f"""
        s_mov_b32 s42, 0
        v_add_u32 v8, 12288, v8
        v_add_u32 v9, 12288, v9
        v_add_u32 v10, 32768, v10
        """)
        nextjob_regs()
        a(f"""
        s_mov_b32 s59, {SPIN}
        L_img2:
        ds_read_b32 v15, v12 offset:{FLAGS+16}
        s_waitcnt lgkmcnt(0)
        v_cmp_eq_u32 vcc, 0, v15
        s_cbranch_vccz L_img2_ok
        s_sleep 1
        s_sub_u32 s59, s59, 1
        s_cmp_gt_i32 s59, 0
        s_cbranch_scc1 L_img2
        L_img2_ok:
        ds_read_b128 v[64:67], v8
        ds_read_b128 v[68:71], v9
        ds_read_b128 v[72:75], v8 offset:2048
        ds_read_b128 v[76:79], v9 offset:2048
        v_add_u32 v8, 4096, v8
        v_add_u32 v9, 4096, v9
        s_mov_b32 s57, 2
        """)
    else:
        a("s_branch L_imgwait")
    a("L_gather:")
    if stamps: a("s_mov_b32 s94, 0")
    a(f"s_mov_b32 s59, {SPIN}\nL_poll:")
    if stamps: a("s_add_u32 s94, s94, 1")
    for i in range(NG):
        a(f"s_or_b64 exec, s[{MK+2*i}:{MK+2*i+1}], 1")
        a(f"buffer_load_dwordx4 v[{G+4*i}:{G+4*i+3}], v{R+3}, s[20:23], {'s%d' % (80+i) if i else 0} offen sc1")
    a("s_mov_b64 exec, -1\ns_waitcnt vmcnt(0)")
    for i in range(NG):
        a(f"v_min_f32 v1, v{G+4*i+1}, v{G+4*i+3}")
        a(f"v_cmp_gt_f32 s[{MK+2*i}:{MK+2*i+1}], 0, v1")
    a(f"s_or_b64 s[52:53], s[{MK}:{MK+1}], s[{MK+2}:{MK+3}]")
    for i in range(2, NG):
        a(f"s_or_b64 s[52:53], s[52:53], s[{MK+2*i}:{MK+2*i+1}]")
    a(f"""
    s_cbranch_scc0 L_poll_done
    {"s_sleep %d" % rsleep if rsleep else ""}
    s_sub_u32 s59, s59, 1
    s_cmp_gt_i32 s59, 0
    s_cbranch_scc1 L_poll
    L_poll_done:
    """)
    if stamps: a(f"v_writelane_b32 v{VST2}, s94, 63")
    stamp(4)
    for step_ in (4, 2, 1):
        for i in range(step_):
            for h in range(4):
                x = G + 4 * i + h; y = G + 4 * (i + step_) + h
                a(f"v_add_f32 v{x}, v{x}, v{y}")
    x = G
    a(f"""
    s_mov_b32 s52, {f2u(1.0/LROWS)}
    s_nop 0
    v_permlane32_swap_b32 v{x}, v{x+2}
    v_permlane32_swap_b32 v{x+1}, v{x+3}
    s_nop 1
    v_add_f32 v{x}, v{x}, v{x+2}
    v_add_f32 v{x+1}, v{x+1}, v{x+3}
    v_mov_b32 v{x+2}, v{x}
    v_mov_b32 v{x+3}, v{x+1}
    s_nop 1
    v_permlane16_swap_b32 v{x}, v{x+2}
    v_permlane16_swap_b32 v{x+1}, v{x+3}
    s_nop 1
    v_add_f32 v{x}, v{x}, v{x+2}
    v_add_f32 v{x+1}, v{x+1}, v{x+3}
    v_mul_f32 v{G}, s52, v{G}             ; mean
    v_mul_f32 v{G+1}, s52, v{G+1}         ; E[h^2]
    v_fma_f32 v{G+1}, -v{G}, v{G}, v{G+1} ; var
    v_max_f32 v{G+1}, 0, v{G+1}
    v_add_f32 v{G+1}, {f2u(1e-5)}, v{G+1}
    v_rsq_f32 v{G+1}, v{G+1}
    s_lshl_b32 s52, s49, 2
    v_mul_f32 v{G+1}, v{G+1}, v{R+1}      ; KS*scale
    v_mov_b32 v1, s52
    v_fma_f32 v{G}, -v{G}, v{G+1}, v{R+2} ; KS*shift
    ds_write_b32 v{R}, v{G+1} offset:{CONST}
    ds_write_b32 v{R}, v{G} offset:{CONST+512}
    ds_write_b32 v1, v13 offset:{FLAGS}
    s_mov_b32 s59, {SPIN*4}
    """)
    if ded: a("s_cmp_ge_u32 s49, 2\ns_cbranch_scc1 L_fw")
    a("s_branch L_imgwait")

    ACC = 128
    def acc(j, n): return ACC + (j * 4 + n) * 4
    BF = 64; AF = 32; NRING = 8
    aE, aE8, aO, bB = 16, 18, 20, 22
    VIMG, VPART, VPRD, VREC = 26, 27, 28, 29
    a("L_compute:")
    if codepf:
        a(f"""
        s_cmp_lg_u32 s3, 1
        s_cbranch_scc1 L_nopf
        s_getpc_b64 s[52:53]
        L_pfbase:
        s_sub_u32 s52, s52, L_pfbase-{NAME}_kernel
        s_subb_u32 s53, s53, 0
        v_lshlrev_b32 v1, 7, v0
        v_min_u32 v4, L_end-{NAME}_kernel, v1
        global_load_dword v30, v4, s[52:53]
        v_add_u32 v1, 8192, v1
        v_min_u32 v4, L_end-{NAME}_kernel, v1
        global_load_dword v31, v4, s[52:53]
        L_nopf:
        """)
    a(f"""
    s_lshr_b32 s50, s49, 1                ; wm
    s_and_b32 s51, s49, 1                 ; wn
    v_and_b32 v32, 15, v0                 ; i
    v_lshrrev_b32 v33, 4, v0              ; g
    s_lshl_b32 s52, s50, 14
    v_bfe_u32 v34, v32, 1, 3
    v_xor_b32 v34, v34, v33
    v_lshlrev_b32 v34, 4, v34
    v_lshl_add_u32 v34, v32, 7, v34
    v_add_u32 v{aE}, s52, v34
    v_xor_b32 v{aE+1}, 64, v{aE}
    v_add_u32 v{aO}, {A_SLOT}, v{aE}
    v_add_u32 v{aO+1}, {A_SLOT}, v{aE+1}
    v_add_u32 v35, 1, v32
    s_mul_i32 s52, s50, 127
    s_add_u32 s52, s52, 128
    s_lshl_b32 s53, s50, 7
    v_add_u32 v35, s53, v35
    v_mov_b32 v36, s52
    v_cmp_eq_u32 vcc, 15, v32
    s_nop 1
    v_cndmask_b32 v35, v35, v36, vcc
    v_bfe_u32 v34, v35, 1, 3
    v_xor_b32 v34, v34, v33
    v_lshlrev_b32 v34, 4, v34
    v_lshl_add_u32 v{aE8}, v35, 7, v34
    v_xor_b32 v{aE8+1}, 64, v{aE8}
    v_bfe_u32 v34, v0, 2, 2
    v_lshl_add_u32 v35, v33, 3, v34
    v_bfe_u32 v34, v0, 2, 3
    v_lshlrev_b32 v34, 5, v34
    s_lshl_b32 s52, s51, 6
    v_xor_b32 v34, s52, v34
    v_and_b32 v36, 3, v0
    v_lshl_add_u32 v34, v36, 3, v34
    v_lshl_add_u32 v34, v35, 8, v34
    v_add_u32 v{bB}, {W_BASE}, v34
    v_xor_b32 v{bB+1}, 32, v{bB}
    v_xor_b32 v{bB+2}, 128, v{bB}
    v_xor_b32 v{bB+3}, 160, v{bB}
    s_mov_b64 s[64:65], -1
    s_mov_b64 s[66:67], -1
    s_cmp_eq_u32 s50, 0
    s_cbranch_scc1 L_nomask
    s_cmp_eq_u32 s47, 249
    s_cselect_b32 s65, 0xffff, -1
    s_cselect_b32 s67, -1, 0xffff
    L_nomask:
    v_bfe_u32 v34, v32, 2, 1
    v_mul_u32_u24 v34, 10, v34
    v_lshrrev_b32 v35, 3, v32
    v_or_b32 v34, v34, v35
    v_and_b32 v35, 1, v33
    v_xor_b32 v35, s51, v35
    v_lshl_add_u32 v34, v35, 2, v34
    v_lshlrev_b32 v34, 4, v34
    v_and_b32 v35, 3, v32
    v_lshl_add_u32 v34, v35, 2, v34
    v_lshl_add_u32 v34, v33, 13, v34
    s_lshl_b32 s52, s50, 15
    s_add_u32 s52, s52, {W_BASE}
    v_add_u32 v{VIMG}, s52, v34
    v_lshrrev_b32 v34, 5, v0
    v_lshl_add_u32 v34, v34, 4, v32
    s_lshl_b32 s52, s49, 8
    v_lshl_add_u32 v{VPART}, v34, 3, s52
    v_lshlrev_b32 v{VPRD}, 4, v0
    s_lshl_b32 s39, s48, 5
    s_add_u32 s39, s39, s44
    s_lshl_b32 s39, s39, 10
    s_add_u32 s39, s39, 512
    v_add_u32 v{VREC}, s39, v{VPRD}
    s_lshl_b32 s52, s49, 3
    s_lshl_b64 s[90:91], 0xff, s52
    s_lshl_b32 s52, s49, 2
    v_mov_b32 v15, s52
    s_waitcnt lgkmcnt(0)
    s_mov_b32 s20, s36
    s_mov_b32 s21, s37
    s_mov_b32 s22, 0x40000
    s_mov_b32 s23, 0x20000
    """)
    final_setup("c")
    if ded:
        a("""
        s_cmp_lt_u32 s49, 2
        s_cbranch_scc1 L_nolo
        s_mov_b32 s42, 2
        v_subrev_u32 v8, 16384, v8
        v_subrev_u32 v9, 16384, v9
        v_subrev_u32 v10, 65536, v10
        L_nolo:
        """)
    for i in range(0, 128, 2): a(f"v_mov_b64 v[{ACC+i}:{ACC+i+1}], 0")
    if stamps: a(f"v_writelane_b32 v{VST}, s92, 0")
    a(f"""
    s_mov_b32 s54, 0                      ; sE
    s_mov_b32 s55, {A_SLOT}               ; sO
    s_mov_b32 s56, 0
    s_mov_b32 s57, 4
    s_mov_b32 s63, 16384
    s_mov_b32 s61, 16
    """)
    stamp(7)
    a("s_barrier")
    lq = []; ring = {}; rpos = [0]; occ = {}; dead = set()
    def afrags(t, j):
        if t < 2:
            return [("F", t, 0), ("F", t, 1)] if j == 0 else [("F", t, j + 1)]
        return [("G", 0, j), ("G", 1, j)]
    def atext(tag, d):
        kind, x, j = tag[:3]
        if kind == "F":
            if j < 8: return f"ds_read_b128 v[{d}:{d+3}], v{aE+x} offset:{j*2048}"
            return f"ds_read_b128 v[{d}:{d+3}], v{aE8+x}"
        return f"ds_read_b128 v[{d}:{d+3}], v{aO+x} offset:{j*2048}"
    def aread(tag):
        idx = rpos[0] % NRING; rpos[0] += 1
        if tag[0] == "F" and tag[2] == 8: rpos[0] += 1
        if idx in occ: assert occ[idx] in dead, (tag, idx, occ[idx])
        occ[idx] = tag; dead.discard(tag)
        ring[tag] = idx
        return ("lds", tag, atext(tag, AF + idx * 4))
    def bfrag(tag, d, n, pq, extra=0):
        return [("lds", tag, f"ds_read_b64_tr_b16 v[{d+2*h}:{d+2*h+1}], v{bB+n} offset:{extra + pq*8192 + h*1024}") for h in range(2)]
    def breg(buf, pq, n): return BF + buf * 32 + (pq * 4 + n) * 4
    def breads(buf):
        r = []
        for n in range(4):
            for pq in range(2): r += bfrag(("B", buf), breg(buf, pq, n), n, pq)
        return r
    def emit(op):
        if isinstance(op, tuple):
            lq.append(op[1]); a(op[2])
        else: a(op)
    def lwait(tags):
        last = max([i for i, t in enumerate(lq) if t in tags], default=-1)
        if last < 0: return
        n = min(15, len(lq) - 1 - last)
        a(f"s_waitcnt lgkmcnt({n})")
        del lq[:len(lq) - n]
    def badv():
        return ["s_add_u32 s56, s56, 16384", "s_cmp_eq_u32 s56, 0x10000", "s_cselect_b32 s58, 0xffff4000, s63", "s_and_b32 s56, s56, 0xffff"] + \
               [f"v_add_u32 v{bB+n}, s58, v{bB+n}" for n in range(4)]
    def mfma(d, ar, br): a(f"v_mfma_f32_16x16x32_bf16 v[{d}:{d+3}], v[{ar}:{ar+3}], v[{br}:{br+3}], v[{d}:{d+3}]")
    def bar():
        a("s_barrier")
        if itstamps:
            a(f"s_mov_b32 m0, s61\ns_add_u32 s61, s61, 1\nv_writelane_b32 v{VST}, s96, m0\nv_writelane_b32 v{VST2}, s98, m0")
            a("s_memrealtime s[96:97]\ns_memtime s[98:99]")
    if onebar: stamp(1)
    for op in breads(0): emit(op)
    for op in badv(): a(op)
    if not onebar:
        a("s_waitcnt lgkmcnt(0)")
        a("s_barrier")
        stamp(1)
    lq[:] = []
    if itstamps: a("s_memrealtime s[96:97]\ns_memtime s[98:99]")
    for j in range(LA):
        for tg in afrags(0, j): emit(aread(tg))
    for _ in range(shift): a("s_nop 0")
    init_state = (list(lq), dict(ring), rpos[0] % NRING)
    def step(k):
        t = k % 3; buf = k & 1
        tn = (t + 1) % 3
        bq = breads(buf ^ 1)
        JB = 8 - LA
        nb_per = -(-16 // (JB - 1))
        for j in range(8):
            X, Y = (("F", t, j), ("F", t, j + 1)) if t < 2 else (("G", 0, j), ("G", 1, j))
            need = {X, Y}
            if j == 0: need.add(("B", buf))
            q = []
            if j == JB: lwait(set(lq))
            else: lwait(need)
            if j + LA < 8: q += [("A", tg) for tg in afrags(t, j + LA)]
            else: q += [("A", tg) for tg in afrags(tn, j + LA - 8)]
            for _ in range(nb_per):
                if bq: q.append(bq.pop(0))
            if j == JB - 1: q += badv()
            if t == 1 and j == 7:
                q += [f"s_add_u32 s59, s54, s55", f"s_sub_u32 s59, {3*A_SLOT}, s59", "s_sub_u32 s60, s59, s54"]
                q += [f"v_add_u32 v{r}, s60, v{r}" for r in (aE, aE + 1, aE8, aE8 + 1)]
            if t == 2 and j == 7:
                q += ["s_sub_u32 s60, s54, s55", "s_mov_b32 s55, s54", "s_mov_b32 s54, s59"]
                q += [f"v_add_u32 v{r}, s60, v{r}" for r in (aO, aO + 1)]
                if k == 2: q += ["s_sub_u32 s57, s57, 1", "s_cmp_eq_u32 s57, 0"]
            xr = AF + ring[X] * 4; yr = AF + ring[Y] * 4
            per = -(-len(q) // 4)
            for n in range(4):
                pr = [(xr, breg(buf, 0, n)), (yr, breg(buf, 1, n))]
                if n % 2 == 1: pr = pr[::-1]
                for ar, br in pr: mfma(acc(j, n), ar, br)
                if j == JB and n == 0: bar()
                for _ in range(per):
                    if q:
                        op = q.pop(0)
                        if isinstance(op, tuple) and op[0] == "A": op = aread(op[1])
                        emit(op)
            assert not q
            dead.add(X)
            if t == 2 or j == 7: dead.add(Y)
        assert not bq
    a("L_cloop:")
    for k in range(6):
        a(f"; ---- step {k}")
        step(k)
        if k == 2:
            saved = (list(lq), dict(ring))
            a("s_cbranch_scc1 L_clast")
    end_state = (list(lq), {k_: v for k_, v in ring.items() if k_ in init_state[1]}, rpos[0] % NRING)
    assert end_state == init_state, (end_state, init_state)
    a("s_branch L_cloop")
    a("L_clast:")
    if cprio: a(f"s_setprio {cprio}")
    stamp(11)
    lq[:] = [t + (0,) for t in saved[0]]
    loc = {t + (0,): AF + saved[1][t] * 4 for t in saved[0]}
    free = [AF + 4 * i for i in range(NRING) if AF + 4 * i not in loc.values()]
    bloc = {}
    for n in range(4):
        for pq in range(2):
            bloc[(0, pq, n)] = breg(1, pq, n); bloc[(1, pq, n)] = breg(0, pq, n)
            bloc[(2, pq, n)] = breg(1, pq, n) if n < 2 else breg(0, pq, n - 2)
    T0 = breg(1, 0, 0)
    def stats(h):
        for n in (2 * h, 2 * h + 1):
            a(f"v_cndmask_b32 v{acc(1,n)+3}, 0, v{acc(1,n)+3}, s[64:65]")
            a(f"v_cndmask_b32 v{acc(2,n)+3}, 0, v{acc(2,n)+3}, s[66:67]")
        for j in range(8):
            for hh in range(2):
                for n in (2 * h, 2 * h + 1):
                    x = acc(j, n) + 2 * hh; S = T0 + 4 * (n & 1); Q = S + 2
                    if j == 0 and hh == 0:
                        a(f"v_pk_mul_f32 v[{Q}:{Q+1}], v[{x}:{x+1}], v[{x}:{x+1}]")
                    else:
                        a(f"v_pk_fma_f32 v[{Q}:{Q+1}], v[{x}:{x+1}], v[{x}:{x+1}], v[{Q}:{Q+1}]")
                        src = f"v[{x-2}:{x-1}]" if j == 0 else f"v[{S}:{S+1}]"
                        a(f"v_pk_add_f32 v[{S}:{S+1}], {src}, v[{x}:{x+1}]")
        a(f"""
        v_add_f32 v{T0}, v{T0}, v{T0+1}
        v_add_f32 v{T0+4}, v{T0+4}, v{T0+5}
        v_add_f32 v{T0+1}, v{T0+2}, v{T0+3}
        v_add_f32 v{T0+5}, v{T0+6}, v{T0+7}
        s_nop 0
        v_permlane32_swap_b32 v{T0}, v{T0+4}
        v_permlane32_swap_b32 v{T0+1}, v{T0+5}
        s_nop 0
        v_add_f32 v{T0}, v{T0}, v{T0+4}
        v_add_f32 v{T0+1}, v{T0+1}, v{T0+5}
        v_mov_b32 v{T0+4}, v{T0}
        v_mov_b32 v{T0+5}, v{T0+1}
        s_nop 1
        v_permlane16_swap_b32 v{T0}, v{T0+4}
        v_permlane16_swap_b32 v{T0+1}, v{T0+5}
        s_nop 0
        v_add_f32 v{T0}, v{T0}, v{T0+4}
        v_add_f32 v{T0+1}, v{T0+1}, v{T0+5}
        """)
        emit(("lds", "P", f"ds_write_b64 v{VPART}, v[{T0}:{T0+1}] offset:{PART + 1024*h}"))
    def image_ops(h):
        ops = []
        for n in (2 * h, 2 * h + 1):
            for f in range(2):
                ops.append(f"v_xor_b32 v{4+f}, {((n&1)<<5) ^ (f<<7)}, v{VIMG}")
                for j in range(8):
                    if (j >> 1) & 1 != f: continue
                    for r in (0, 2):
                        x = acc(j, n) + r
                        ops.append(("lds", "I", f"ds_write2st64_b32 v{4+f}, v{x}, v{x+1} offset0:{8*r+j} offset1:{8*(r+1)+j}"))
        ops.append(("lds", "F", f"ds_write_b32 v15, v13 offset:{FLAGS + 16 + 16*h}"))
        return ops
    seq = [(0, t, j) for t in range(3) for j in range(8)]
    if jouter: seq += [(1, t, j) for j in range(8) for t in range(3)]
    else: seq += [(1, t, j) for t in range(3) for j in range(8)]
    aorder = []
    for s, (h, t, j) in enumerate(seq):
        for tg in afrags(t, j):
            if tg + (h,) not in loc: aorder.append((s, tg + (h,)))
    s_a0, s_a1, s_a2 = 7, 16 - LB, 16 + 5
    bq = []; iq = []; sq = []
    def plain_stats(j):
        ops = []
        for n in (2, 3):
            if j in (1, 2): ops.append(f"v_cndmask_b32 v{acc(j,n)+3}, 0, v{acc(j,n)+3}, s[{62+2*j}:{63+2*j}]")
        for r in range(4):
            for n in (2, 3):
                x = acc(j, n) + r; S = T0 + 4 * (n & 1) + 2; Q = S + 1
                if j == 0 and r == 0: ops.append(f"v_mul_f32 v{Q}, v{x}, v{x}")
                else:
                    ops.append(f"v_fmac_f32 v{Q}, v{x}, v{x}")
                    ops.append(f"v_add_f32 v{S}, v{x-1 if (j == 0 and r == 1) else S}, v{x}")
        return ops
    def pairs_of(h, t, j):
        X, Y = (("F", t, j, h), ("F", t, j + 1, h)) if t < 2 else (("G", 0, j, h), ("G", 1, j, h))
        return X, Y
    s = 0
    while s < len(seq):
        h, t, j = seq[s]
        grp = [seq[s]] if not (jouter and h == 1) else seq[s:s + 3]
        if h == 0 and j == 0:
            a(f"; ---- last chunk pass A step {t}")
            bq = []
            ns_ = range(4) if t == 0 else (range(2) if t == 1 else range(2, 4))
            for n in ns_:
                for pq in range(2):
                    tb = 1 if t == 0 else 2
                    bq += bfrag(("LB", tb, n >> 1), bloc[(tb, pq, n)], n, pq, extra=(tb - 1) * 16384)
        if s == 24:
            a("; ---- last chunk pass B")
            a("s_nop 4")
            stats(0)
            stamp(5)
            iq = image_ops(0)
            free += [breg(1, 1, 0), breg(1, 1, 1)]
        if probes and s >= 18 and (s - 18) % 3 == 0:
            pi = (s - 18) // 3
            a(f"L_probe{pi}:\ns_memrealtime s[{68+2*pi}:{69+2*pi}]")
        if jouter and h == 1 and j >= 1: sq += plain_stats(j - 1)
        slots = [(tt, n) for n in (2 * h, 2 * h + 1) for (_, tt, _) in grp]
        nslot = len(slots)
        for si, (tt, n) in enumerate(slots):
            X, Y = pairs_of(h, tt, j)
            need = {X, Y} | ({("LB", tt, h)} if j == 0 else set())
            if s == s_a2: need |= {("LB", 2, 1)}
            lwait(need)
            pr = [(loc[X], bloc[(tt, 0, n)]), (loc[Y], bloc[(tt, 1, n)])]
            if n % 2 == 1 and len(grp) == 1: pr = pr[::-1]
            for ar, br in pr: mfma(acc(j, n), ar, br)
            if s in (s_a0, s_a1, s_a2) and si == 0: bar()
            cur = s + (si * len(grp)) // nslot
            nq = 0
            while aorder and aorder[0][0] <= cur + LB + (2 if len(grp) > 1 else 0) and free and nq < 2 and not (aorder[0][1][0] == "G" and s < s_a1):
                _, tg = aorder.pop(0)
                d = free.pop(0); loc[tg] = d
                emit(("lds", tg, atext(tg, d))); nq += 1
            for _ in range(2 if (t == 0 and si == 1) else 1):
                if bq: emit(bq.pop(0))
            if iq: emit(iq.pop(0))
            if si >= 2:
                for _ in range(5):
                    if sq: a(sq.pop(0))
            if n % 2 == 1:
                free.append(loc[X])
                if tt == 2 or j == 7: free.append(loc[Y])
        if h == 0 and (j == 7 or s == s_a2 - 1): assert not bq
        assert not sq
        s += len(grp)
    assert not aorder and not iq
    stamp(2)
    if probes:
        for pi in range(10):
            a(f"v_writelane_b32 v{VST}, s{68+2*pi}, {40+pi}")
            a(f"s_mov_b32 s100, L_probe{pi}-{NAME}_kernel\nv_writelane_b32 v{VST2}, s100, {40+pi}")
        a(f"s_getpc_b64 s[100:101]\nL_pq:\ns_sub_u32 s100, s100, L_pq-{NAME}_kernel\nv_writelane_b32 v{VST2}, s100, 50")
    a(f"s_nop 7\ns_mov_b32 s59, {SPIN}")
    if jouter:
        for op in plain_stats(7): a(op)
        a(f"""
        s_nop 0
        v_permlane32_swap_b32 v{T0+3}, v{T0+7}
        v_permlane32_swap_b32 v{T0+2}, v{T0+6}
        s_nop 0
        v_add_f32 v{T0+3}, v{T0+3}, v{T0+7}
        v_add_f32 v{T0+2}, v{T0+2}, v{T0+6}
        v_mov_b32 v{T0+7}, v{T0+3}
        v_mov_b32 v{T0+6}, v{T0+2}
        s_nop 1
        v_permlane16_swap_b32 v{T0+3}, v{T0+7}
        v_permlane16_swap_b32 v{T0+2}, v{T0+6}
        s_nop 0
        v_add_f32 v{T0+3}, v{T0+3}, v{T0+7}
        v_add_f32 v{T0+2}, v{T0+2}, v{T0+6}
        ds_write_b64 v{VPART}, v[{T0+2}:{T0+3}] offset:{PART + 1024}
        """)
    else:
        stats(1)
    stamp(13)
    part_publish("L_cpart", VPRD, 1, 32, VREC, "s[90:91]", 0)
    a("s_setprio 0")
    stamp(3)
    a(f"s_add_u32 s52, s40, 12288\nv_add_u32 v{VIMG}, s52, v{VIMG}")
    for op in image_ops(1): emit(op)
    SC, SH, H, T, O = 16, 24, 64, 32, 40
    def rd(i):
        return [f"ds_read_b128 v[{H+8*i}:{H+8*i+3}], v8 offset:{2048*i}",
                f"ds_read_b128 v[{H+8*i+4}:{H+8*i+7}], v9 offset:{2048*i}"]
    adv = "v_add_u32 v8, 4096, v8\nv_add_u32 v9, 4096, v9"
    a(f"""
    L_imgwait:
    s_mov_b32 s59, {SPIN*4}
    L_img:
    ds_read_b32 v15, v12 offset:{FLAGS+16}
    s_waitcnt lgkmcnt(0)
    v_cmp_eq_u32 vcc, 0, v15
    s_cbranch_vccz L_job
    s_sleep {isleep}
    s_sub_u32 s59, s59, 1
    s_cmp_gt_i32 s59, 0
    s_cbranch_scc1 L_img
    L_job:
    """)
    for r in rd(0) + rd(1): a(r)
    a(adv)
    a(f"""
    s_mov_b32 s57, 2
    L_fw:
    ds_read_b32 v15, v14 offset:{FLAGS}
    ds_read_b128 v[{SC}:{SC+3}], v11 offset:{CONST}
    ds_read_b128 v[{SC+4}:{SC+7}], v11 offset:{CONST+16}
    ds_read_b128 v[{SH}:{SH+3}], v11 offset:{CONST+512}
    ds_read_b128 v[{SH+4}:{SH+7}], v11 offset:{CONST+528}
    s_waitcnt lgkmcnt(0)
    v_cmp_eq_u32 vcc, 0, v15
    s_cbranch_vccz L_fw_ok
    {"s_sleep %d" % fsleep if fsleep else ""}
    s_sub_u32 s59, s59, 1
    s_cmp_gt_i32 s59, 0
    s_cbranch_scc1 L_fw
    L_fw_ok:
    """)
    if stamps:
        a("s_cmp_eq_u32 s42, 0\ns_cbranch_scc1 L_st8")
        stamp(14)
        a("L_st8:")
    stamp(8)
    def p(x): return f"v[{x}:{x+1}]"
    a("L_gloop:")
    for i in range(2):
        h = H + 8 * i; Y = 48; o = O + 4 * i
        a("s_waitcnt lgkmcnt(2)")
        for j in range(0, 8, 2): a(f"v_pk_fma_f32 {p(Y+j)}, {p(h+j)}, {p(SC+j)}, {p(SH+j)}")
        for r in rd(i): a(r)
        for j in range(0, 8, 2): a(f"v_pk_fma_f32 {p(T+j)}, {p(Y+j)}, {p(Y+j)}, s[24:25]")
        for j in range(0, 8, 2): a(f"v_pk_mul_f32 {p(T+j)}, {p(T+j)}, {p(Y+j)} neg_lo:[1,0] neg_hi:[1,0]")
        for j in range(8): a(f"v_exp_f32 v{T+j}, v{T+j}")
        for j in range(0, 8, 2): a(f"v_pk_fma_f32 {p(T+j)}, {p(T+j)}, s[26:27], s[26:27]")
        for j in range(8): a(f"v_rcp_f32 v{T+j}, v{T+j}")
        if i == 1: a(adv)
        for j in range(0, 8, 2): a(f"v_pk_mul_f32 {p(T+j)}, {p(T+j)}, {p(Y+j)}")
        for j in range(0, 8, 2): a(f"v_cvt_pk_bf16_f32 v{o+j//2}, v{T+j}, v{T+j+1}")
        a(f"buffer_store_dwordx4 v[{o}:{o+3}], v10, s[16:19], 0 offen{omod}")
        a("v_add_u32 v10, 8192, v10")
    a("s_sub_u32 s57, s57, 1\ns_cmp_lg_u32 s57, 0\ns_cbranch_scc1 L_gloop")
    a("s_cmp_eq_u32 s42, 0\ns_cbranch_scc1 L_fin")
    stamp(12)
    a("s_waitcnt lgkmcnt(0)\ns_sub_u32 s42, s42, 1\ns_cmp_eq_u32 s42, 0\ns_cbranch_scc1 L_toB")
    a(f"""
    v_add_u32 v8, 4096, v8
    v_add_u32 v9, 4096, v9
    v_add_u32 v10, 32768, v10
    s_branch L_job
    L_toB:
    """)
    nextjob_regs()
    if not ded: a("s_cmp_ge_u32 s3, 6\ns_cbranch_scc1 L_gather")
    a("s_branch L_imgwait\nL_fin:")
    if hold in (9, 10) and not stamps: stamp(hold)
    if stamps:
        stamp(9)
        a("s_waitcnt vmcnt(0)")
        stamp(10)
        a(f"""
        s_lshl_b32 s52, s2, 12
        s_lshl_b32 s53, s3, 9
        s_add_u32 s52, s52, s53
        s_add_u32 s52, s52, {STAMP_OFF}
        v_lshlrev_b32 v1, 3, v0
        v_add_u32 v1, s52, v1
        global_store_dwordx2 v1, v[{VST}:{VST2}], s[36:37]
        s_waitcnt vmcnt(0)
        """)
    a("L_end:\ns_endpgm")
    if align8: a.lines = pad8(a.lines, "L_cloop:", "L_cpart:")
    hazcheck(a.lines)
    return wrap(a.text(), 256, 512, 163840, 256)

if __name__ == "__main__":
    out = sys.argv[1]
    kw = json.loads(sys.argv[2]) if len(sys.argv) > 2 else {}
    open(out, "w").write(gen(**kw))
```

```python
import sys, json, struct
from asmlib import *

def f2u(f): return struct.unpack("<I", struct.pack("<f", f))[0]

LROWS = 7999
C1 = -2.0 * 0.7978845608028654 * 1.4426950408889634
C2 = C1 * 0.044715
KS = (-C2) ** (1.0 / 3.0)
CP = -C1 / KS
SENT = 0xBF800000
A_SLOT = 32768
W_BASE = 98304
MISC = 32768
PART = MISC
CONST = MISC + 2048
FLAGS = MISC + 3072
STAMP_OFF = 1 << 20
SPIN = 0x20000

def gen(stamps=False, xmod="", wmod="", omod=" sc0 sc1", codepf=True, itstamps=False, hold=None, holdus=40,
        parity=True, psleep=0, fsleep=1, rsleep=0, lprio=2, cprio=3, LA=2, LB=3, only=None, wpar=True, jouter=False, ded=False, onebar=False, align8=False, shift=0, pf2=False, isleep=2, probes=False, ilv=True, hop=640):
    a = Asm()
    VST, VST2 = 2, 3
    def stamp(k):
        if hold == k:
            lb = a.label("L_hold")
            a(f"""s_waitcnt lgkmcnt(0)
            {lb}:
            s_memrealtime s[96:97]
            s_waitcnt lgkmcnt(0)
            s_sub_u32 s96, s96, s92
            s_cmp_lt_u32 s96, {holdus*100}
            s_cbranch_scc1 {lb}""")
        if not stamps or (only is not None and k not in only): return
        a(f"s_memrealtime s[100:101]\ns_waitcnt lgkmcnt(0)\nv_writelane_b32 v{VST}, s100, {k}")
        if k in (1, 2): a(f"s_memtime s[100:101]\ns_waitcnt lgkmcnt(0)\nv_writelane_b32 v{VST2}, s100, {k}")
    def final_setup(role):
        a(f"""
        s_mul_i32 s38, s43, {LROWS}
        s_add_u32 s38, s38, s45
        s_lshl_b32 s38, s38, 10
        s_add_u32 s16, s32, s38
        s_addc_u32 s17, s33, 0
        s_lshl_b32 s18, s47, 10
        s_mov_b32 s19, 0x20000
        v_and_b32 v1, 7, v0                   ; o
        v_lshrrev_b32 v4, 3, v0
        s_and_b32 s38, s49, 1
        s_lshl_b32 s40, s38, 5
        s_add_u32 s40, s40, {64 if role == "c" else 0}
        v_add_u32 v4, s40, v4
        s_lshl_b32 s38, s38, 2
        v_xor_b32 v5, s38, v1                 ; o ^ 4*((row>>5)&1)
        v_bfe_u32 v6, v0, 4, 1                ; f
        v_lshl_add_u32 v5, v6, 3, v5
        v_lshlrev_b32 v5, 4, v5
        v_lshl_add_u32 v5, v4, 8, v5
        s_lshr_b32 s38, s49, 1
        s_lshl_b32 s40, s38, 15
        s_add_u32 s42, s40, {W_BASE}
        v_add_u32 v8, s42, v5
        v_xor_b32 v9, 160, v8
        s_sub_u32 s40, s40, {W_BASE + 12288}
        s_lshl_b32 s42, s38, 7
        v_add_u32 v4, s42, v4
        v_lshlrev_b32 v4, 10, v4
        v_lshl_add_u32 v10, v1, 4, v4
        s_lshl_b32 s42, s41, 8
        v_add_u32 v10, s42, v10
        v_lshlrev_b32 v11, 5, v1
        v_and_b32 v14, 1, v0
        v_lshlrev_b32 v14, 2, v14             ; constflag[lane&1]
        s_lshl_b32 s38, s38, 3
        v_add_u32 v12, s38, v14
        v_mov_b32 v13, 1
        s_mov_b32 s24, {f2u(CP)}
        s_mov_b32 s25, {f2u(CP)}
        s_mov_b32 s26, {f2u(KS)}
        s_mov_b32 s27, {f2u(KS)}
        s_mov_b32 s42, 1
        """)
    def part_publish(lbl, vaddr, half, x, vrec, maskreg, sleep):
        a(f"""
        {lbl}:
        ds_read_b128 v[{x}:{x+3}], v{vaddr} offset:{PART + 1024*half}
        s_waitcnt lgkmcnt(0)
        v_min_f32 v1, v{x+1}, v{x+3}
        v_cmp_gt_f32 vcc, 0, v1
        s_cbranch_vccz {lbl}_ok
        {"s_sleep %d" % sleep if sleep else ""}
        s_sub_u32 s59, s59, 1
        s_cmp_gt_i32 s59, 0
        s_cbranch_scc1 {lbl}
        {lbl}_ok:
        """)
        for i in range(4): a(f"v_mov_b32 v{x+4+i}, v{x+i}")
        for i in range(4): a(f"v_permlane32_swap_b32 v{x+i}, v{x+4+i}")
        for i in range(4): a(f"v_add_f32 v{x+i}, v{x+i}, v{x+4+i}")
        a(f"""
        s_mov_b64 exec, {maskreg}
        buffer_store_dwordx4 v[{x}:{x+3}], v{vrec}, s[20:23], 0 offen sc1
        s_mov_b64 exec, -1
        """)
    a(f"""
    s_cmp_ge_u32 s2, 256
    s_cbranch_scc1 L_end
    s_load_dwordx4 s[4:7], s[0:1], 0      ; x, w
    s_load_dwordx4 s[28:31], s[0:1], 16
    s_load_dwordx4 s[32:35], s[0:1], 32
    s_load_dwordx2 s[36:37], s[0:1], 48   ; ws
    """)
    if stamps or hold is not None: a("s_memrealtime s[92:93]")
    a(f"""
    v_lshrrev_b32 v1, 6, v0
    v_and_b32 v0, 63, v0
    v_readfirstlane_b32 s3, v1
    s_and_b32 s38, s2, 7
    s_bfe_u32 s40, s2, 0x30005
    s_bfe_u32 s41, s2, 0x20003
    s_lshl_b32 s42, s38, 3
    s_add_u32 s42, s42, s40               ; mt 0..63
    s_lshr_b32 s43, s42, 5                ; batch
    s_and_b32 s44, s42, 31
    s_mul_i32 s45, s44, 250
    s_mul_i32 s46, s43, 8000
    s_add_u32 s46, s46, s45
    s_cmp_eq_u32 s44, 31
    s_cselect_b32 s47, 1, 0
    s_sub_u32 s47, 250, s47               ; nvalid
    s_lshl_b32 s48, s43, 2
    s_add_u32 s48, s48, s41
    s_and_b32 s49, s3, 3
    s_cmp_lt_u32 s3, 4
    s_cbranch_scc1 L_compute
    """)
    VA, VW = 56, 60
    a(f"""
    v_lshrrev_b32 v4, 4, v0               ; l>>4
    v_and_b32 v5, 15, v0
    v_lshlrev_b32 v6, 1, v4
    v_xor_b32 v5, v5, v6                  ; W chunk (n<2)
    s_and_b32 s50, s49, 1
    s_lshl_b32 s51, s50, 14
    s_lshl_b32 s52, s41, 8
    s_add_u32 s51, s51, s52
    v_lshlrev_b32 v5, 4, v5
    v_lshl_add_u32 v5, v4, 10, v5
    s_and_b32 s53, s40, {1 if wpar else 0}
    s_mul_i32 s52, s53, {8192 + 128}
    v_add_u32 v5, s51, v5
    v_xor_b32 v{VW}, s52, v5
    v_xor_b32 v{VW+2}, {8192 + 128}, v{VW}
    v_add_u32 v{VW+1}, 3072, v{VW}
    v_add_u32 v{VW+3}, 3072, v{VW+2}
    s_lshl_b32 s51, s49, 12
    s_lshl_b32 s53, s53, 11
    s_add_u32 s51, s51, s53
    s_add_u32 s51, s51, {W_BASE}
    s_lshr_b32 s62, s49, 1                ; lw>=2
    s_lshl_b32 s54, s62, 20               ; sB0
    s_mov_b32 s14, 1572864
    s_mov_b32 s15, 0x20000
    s_mov_b32 m0, s51
    s_waitcnt lgkmcnt(0)
    s_mov_b32 s12, s6
    s_mov_b32 s13, s7
    """)
    if stamps: a(f"v_writelane_b32 v{VST}, s92, 0")
    vq = []
    def issueA(slot_s, soff, tag, halves=(0, 1)):
        for half in halves:
            if half == halves[0]: a(f"s_add_u32 m0, s50, {slot_s}")
            if half == 1: a(f"s_xor_b32 m0, m0, 4096")
            a("s_nop 0")
            for n in range(4):
                vq.append(tag)
                a(f"buffer_load_dwordx4 v{VA+half*2+(n&1)}, s[8:11], {soff} offen offset:{n*1024}{xmod} lds")
    def issueW(slot_s, soff, tag, setm0=True, halves=(0, 1)):
        for half in halves:
            if half == halves[0] and setm0: a(f"s_add_u32 m0, s51, {slot_s}")
            if half == 1: a("s_xor_b32 m0, m0, 2048")
            if setm0 or half == 1: a("s_nop 0")
            for n in range(2):
                vq.append(tag)
                a(f"buffer_load_dwordx4 v{VW+2*half+n}, s[12:15], {soff} offen offset:{n*1024}{wmod} lds")
    def vwait(tags):
        last = max([i for i, t in enumerate(vq) if t in tags], default=-1)
        n = len(vq) - 1 - last
        a(f"s_waitcnt vmcnt({n})")
        return n
    def Aname(k): return f"E{k//3}" if k % 3 < 2 else f"O{k//3}"
    issueW(0, "s54", "B0", setm0=False, halves=(0,) if wpar else (0, 1))
    a(f"""
    v_and_b32 v5, 7, v0
    v_xor_b32 v5, v5, v4
    v_lshlrev_b32 v5, 4, v5
    v_lshrrev_b32 v6, 3, v0
    v_lshl_add_u32 v5, v6, 14, v5
    s_lshl_b32 s52, s62, 18
    s_lshl_b32 s53, s50, 13
    s_add_u32 s52, s52, s53
    s_and_b32 s53, s41, {1 if parity else 0}
    s_lshl_b32 s53, s53, 12
    s_add_u32 s52, s52, s53
    v_add_u32 v{VA}, s52, v5
    v_xor_b32 v{VA+2}, 4096, v{VA}
    v_xor_b32 v{VA+1}, 64, v{VA}
    v_xor_b32 v{VA+3}, 64, v{VA+2}
    v_add_u32 v{VA+1}, {64*2048 - 1024}, v{VA+1}
    v_add_u32 v{VA+3}, {64*2048 - 1024}, v{VA+3}
    s_lshl_b32 s50, s49, 13
    s_add_u32 s50, s50, s53
    s_lshl_b32 s10, s47, 11
    s_add_u32 s10, s10, 1024
    s_mov_b32 s11, 0x20000
    s_lshl_b32 s57, s46, 11
    s_add_u32 s8, s4, s57
    s_addc_u32 s9, s5, 0
    s_mov_b32 s52, 0                      ; x k-offset (E)
    s_mov_b32 s53, 1024                   ; x k-offset (O)
    s_add_u32 s55, s54, 0x8000            ; sB1
    s_lshl_b32 s56, s62, 15
    s_add_u32 s56, s56, 0x80000           ; sB2
    """)
    issueA(0, "s52", "E0", halves=(0,))
    if wpar: issueW(16384, "s55", "B1", halves=(0,))
    R = 80
    NG = 8; MK = 64; G = 96
    a(f"""
    s_mov_b32 s20, s36
    s_mov_b32 s21, s37
    s_mov_b32 s22, 0x40000
    s_mov_b32 s23, 0x20000
    s_lshl_b32 s39, s48, 5
    s_add_u32 s39, s39, s44
    s_lshl_b32 s39, s39, 10
    v_lshlrev_b32 v{R+6}, 4, v0
    v_add_u32 v{R+5}, s39, v{R+6}
    v_and_b32 v1, 15, v0
    v_lshrrev_b32 v5, 5, v0
    v_lshl_add_u32 v5, v1, 1, v5
    s_lshl_b32 s57, s49, 5
    v_add_u32 v{R}, s57, v5
    s_lshl_b32 s57, s41, 7
    v_add_u32 v{R+7}, s57, v{R}
    v_lshlrev_b32 v{R+7}, 1, v{R+7}
    v_lshlrev_b32 v{R}, 2, v{R}
    v_lshlrev_b32 v1, 4, v1
    v_lshl_add_u32 v1, v4, 10, v1
    s_lshl_b32 s57, s48, 15
    s_lshl_b32 s58, s49, 8
    s_add_u32 s57, s57, s58
    v_add_u32 v{R+3}, s57, v1
    s_lshl_b32 s57, s48, 5
    v_mov_b32 v{R+4}, s57
    s_add_u32 s57, s39, s58
    v_lshl_add_u32 v{R+8}, v0, 2, s57
    v_mov_b32 v{R+10}, {SENT}
    v_mov_b32 v{R+11}, {SENT}
    s_lshl_b32 s57, s49, 4
    s_lshl_b64 s[90:91], 0xffff, s57
    """)
    for i in range(NG): a(f"s_mov_b64 s[{MK+2*i}:{MK+2*i+1}], -1")
    for i in range(1, NG): a(f"s_mov_b32 s{80+i}, {i*4096}")
    final_setup("l")
    if wpar: issueW(0, "s54", "B0", halves=(1,))
    issueA(0, "s52", "E0", halves=(1,))
    if wpar: issueW(16384, "s55", "B1", halves=(1,))
    if onebar:
        if not wpar: issueW(16384, "s55", "B1")
        issueW(32768, "s56", "B2")
        stamp(6)
        vwait({"B0", "E0", "B1"}); a("s_barrier")
        stamp(1)
    else:
        vwait({"B0"}); a("s_barrier")
        if not wpar: issueW(16384, "s55", "B1")
    a(f"""
    buffer_store_dword v{R+10}, v{R+8}, s[20:23], 0 offen sc1
    global_load_ushort v{R+1}, v{R+7}, s[28:29]
    global_load_ushort v{R+2}, v{R+7}, s[30:31]
    s_lshl_b32 s57, s49, 9
    v_lshl_add_u32 v{R+7}, v0, 3, s57
    v_lshlrev_b32 v{R+8}, 2, v0
    v_mov_b32 v{R+9}, 0
    """)
    vq += ["S", "g", "g"]
    if not onebar: issueW(32768, "s56", "B2")
    a(f"""
    s_mov_b32 s57, {2*A_SLOT}
    s_mov_b32 s58, {A_SLOT}
    s_mov_b32 s59, 49152
    """)
    if not onebar:
        stamp(6)
        vwait({"E0", "B1"}); a("s_barrier")
        stamp(1)
    def iB(kb, ph, nth=0):
        sreg = ["s54", "s55", "s56"][kb % 3]
        if ph in (0, None): a(f"s_add_u32 {sreg}, {sreg}, 0x10000")
        issueW("s59", sreg, f"B{kb}", halves=(0, 1) if ph is None else (ph,))
        if ph in (1, None): a("s_add_u32 s59, s59, 16384\ns_and_b32 s59, s59, 0xffff")
    def iO(c, ph):
        if c > 0 and ph in (0, None): a("s_add_u32 s53, s53, 128")
        issueA("s58", "s53", f"O{c}", halves=(0, 1) if ph is None else (ph,))
    def iE(c, ph):
        if ph in (0, None): a("s_add_u32 s52, s52, 128")
        issueA("s57", "s52", f"E{c}", halves=(0, 1) if ph is None else (ph,))
        if ph in (1, None): a(f"s_add_u32 s61, s57, s58\ns_mov_b32 s57, s58\ns_sub_u32 s58, {3*A_SLOT}, s61")
    ramp = {-1: [("O", 0), ("B", 3)], 0: [("E", 1), ("B", 4)], 1: [("B", 5), ("O", 1)], 2: [("B", 6), ("E", 2)], 3: [("B", 7), ("B", 8)]}
    def lstep(k):
        c = k // 3
        if k in ramp: todo = list(ramp[k])
        else:
            todo = []
            if k + 5 <= 23: todo.append(("B", k + 5))
            if k % 3 == 1 and c + 1 <= 7: todo.append(("O", c + 1))
            if k % 3 == 2 and c + 2 <= 7: todo.append(("E", c + 2))
        two = ilv and len(todo) == 2 and todo[0][0] != todo[1][0]
        for ph in ((0, 1) if two else (None,)):
            for kind, i in todo: {"B": iB, "O": iO, "E": iE}[kind](i, ph)
        return vwait({Aname(k + 2), f"B{k+3}"})
    for k in range(-1, 4):
        lstep(k); a("s_barrier")
    a("""
    s_mov_b32 s60, 5
    s_and_b32 s62, s44, 3
    s_add_u32 s62, s62, 2
    s_cmp_lg_u32 s49, 0
    s_cselect_b32 s62, 0, s62
    L_lloop:
    """)
    ns = []
    for k in range(4, 7):
        ns.append(lstep(k))
        if k == 6:
            a(f"""
            s_cmp_lg_u32 s60, s62
            s_cbranch_scc1 L_noat
            s_mov_b64 exec, 1
            global_atomic_add v{R+4}, v13, s[34:35]
            s_mov_b64 exec, -1
            L_noat:
            """)
        a("s_barrier")
    a("s_sub_u32 s60, s60, 1\ns_cmp_lg_u32 s60, 0\ns_cbranch_scc1 L_lloop")
    keep = len(a.lines)
    for k in range(7, 19):
        n = lstep(k); assert n >= ns[(k - 4) % 3], (k, n, ns)
    del a.lines[keep:]
    if pf2:
        a(f"""
        s_getpc_b64 s[88:89]
        L_pfbase2:
        s_sub_u32 s88, s88, L_pfbase2-{NAME}_kernel
        s_subb_u32 s89, s89, 0
        s_lshl_b32 s61, s49, 12
        v_and_b32 v1, 31, v0
        v_lshl_add_u32 v1, v1, 7, s61
        v_min_u32 v1, L_end-{NAME}_kernel, v1
        global_load_dword v16, v1, s[88:89]
        """)
        vq.append("c")
    lstep(19); a("s_barrier")
    stamp(11)
    a(f"""
    ds_write_b64 v{R+7}, v[{R+10}:{R+11}] offset:{PART}
    ds_write_b32 v{R+8}, v{R+9} offset:{FLAGS}
    s_waitcnt lgkmcnt(0)
    """)
    vwait({"B23"}); a("s_barrier")
    a(f"""
    s_waitcnt vmcnt(0)
    s_barrier
    global_load_dword v{R+9}, v{R+4}, s[34:35] sc1
    s_mov_b32 s52, {f2u(KS)}
    v_lshlrev_b32 v{R+1}, 16, v{R+1}
    v_lshlrev_b32 v{R+2}, 16, v{R+2}
    v_mul_f32 v{R+1}, s52, v{R+1}
    v_mul_f32 v{R+2}, s52, v{R+2}
    s_mov_b32 s59, {SPIN}
    s_barrier
    """)
    stamp(2)
    if lprio: a(f"s_setprio {lprio}")
    def nextjob_regs():
        a(f"""
        v_add_u32 v8, s40, v8
        v_add_u32 v9, s40, v9
        v_subrev_u32 v10, {32768-128}, v10
        v_add_u32 v11, 256, v11
        v_add_u32 v14, 8, v14
        v_add_u32 v12, 16, v12
        """)
    a("s_cmp_ge_u32 s49, 2\ns_cbranch_scc1 L_nopub")
    part_publish("L_part", R + 6, 0, G, R + 5, "s[90:91]", psleep)
    stamp(3)
    a(f"""
    L_nopub:
    L_cnt:
    s_waitcnt vmcnt(0)
    v_readfirstlane_b32 s52, v{R+9}
    s_cmp_ge_u32 s52, 32
    s_cbranch_scc1 L_cnt_ok
    s_sleep 32
    global_load_dword v{R+9}, v{R+4}, s[34:35] sc1
    s_sub_u32 s59, s59, 1
    s_cmp_gt_i32 s59, 0
    s_cbranch_scc1 L_cnt
    L_cnt_ok:
    s_cmp_lt_u32 s49, 2
    s_cbranch_scc1 L_gather
    """)
    if ded:
        a(f"""
        s_mov_b32 s42, 0
        v_add_u32 v8, 12288, v8
        v_add_u32 v9, 12288, v9
        v_add_u32 v10, 32768, v10
        """)
        nextjob_regs()
        a(f"""
        s_mov_b32 s59, {SPIN}
        L_img2:
        ds_read_b32 v15, v12 offset:{FLAGS+16}
        s_waitcnt lgkmcnt(0)
        v_cmp_eq_u32 vcc, 0, v15
        s_cbranch_vccz L_img2_ok
        s_sleep 1
        s_sub_u32 s59, s59, 1
        s_cmp_gt_i32 s59, 0
        s_cbranch_scc1 L_img2
        L_img2_ok:
        ds_read_b128 v[64:67], v8
        ds_read_b128 v[68:71], v9
        ds_read_b128 v[72:75], v8 offset:2048
        ds_read_b128 v[76:79], v9 offset:2048
        v_add_u32 v8, 4096, v8
        v_add_u32 v9, 4096, v9
        s_mov_b32 s57, 2
        """)
    else:
        a("s_branch L_imgwait")
    a("L_gather:")
    if stamps: a("s_mov_b32 s94, 0")
    a(f"s_mov_b32 s59, {SPIN}\nL_poll:")
    if stamps: a("s_add_u32 s94, s94, 1")
    for i in range(NG):
        a(f"s_or_b64 exec, s[{MK+2*i}:{MK+2*i+1}], 1")
        a(f"buffer_load_dwordx4 v[{G+4*i}:{G+4*i+3}], v{R+3}, s[20:23], {'s%d' % (80+i) if i else 0} offen sc1")
    a("s_mov_b64 exec, -1\ns_waitcnt vmcnt(0)")
    for i in range(NG):
        a(f"v_min_f32 v1, v{G+4*i+1}, v{G+4*i+3}")
        a(f"v_cmp_gt_f32 s[{MK+2*i}:{MK+2*i+1}], 0, v1")
    a(f"s_or_b64 s[52:53], s[{MK}:{MK+1}], s[{MK+2}:{MK+3}]")
    for i in range(2, NG):
        a(f"s_or_b64 s[52:53], s[52:53], s[{MK+2*i}:{MK+2*i+1}]")
    a(f"""
    s_cbranch_scc0 L_poll_done
    {"s_sleep %d" % rsleep if rsleep else ""}
    s_sub_u32 s59, s59, 1
    s_cmp_gt_i32 s59, 0
    s_cbranch_scc1 L_poll
    L_poll_done:
    """)
    if stamps: a(f"v_writelane_b32 v{VST2}, s94, 63")
    stamp(4)
    for step_ in (4, 2, 1):
        for i in range(step_):
            for h in range(4):
                x = G + 4 * i + h; y = G + 4 * (i + step_) + h
                a(f"v_add_f32 v{x}, v{x}, v{y}")
    x = G
    a(f"""
    s_mov_b32 s52, {f2u(1.0/LROWS)}
    s_nop 0
    v_permlane32_swap_b32 v{x}, v{x+2}
    v_permlane32_swap_b32 v{x+1}, v{x+3}
    s_nop 1
    v_add_f32 v{x}, v{x}, v{x+2}
    v_add_f32 v{x+1}, v{x+1}, v{x+3}
    v_mov_b32 v{x+2}, v{x}
    v_mov_b32 v{x+3}, v{x+1}
    s_nop 1
    v_permlane16_swap_b32 v{x}, v{x+2}
    v_permlane16_swap_b32 v{x+1}, v{x+3}
    s_nop 1
    v_add_f32 v{x}, v{x}, v{x+2}
    v_add_f32 v{x+1}, v{x+1}, v{x+3}
    v_mul_f32 v{G}, s52, v{G}             ; mean
    v_mul_f32 v{G+1}, s52, v{G+1}         ; E[h^2]
    v_fma_f32 v{G+1}, -v{G}, v{G}, v{G+1} ; var
    v_max_f32 v{G+1}, 0, v{G+1}
    v_add_f32 v{G+1}, {f2u(1e-5)}, v{G+1}
    v_rsq_f32 v{G+1}, v{G+1}
    s_lshl_b32 s52, s49, 2
    v_mul_f32 v{G+1}, v{G+1}, v{R+1}      ; KS*scale
    v_mov_b32 v1, s52
    v_fma_f32 v{G}, -v{G}, v{G+1}, v{R+2} ; KS*shift
    ds_write_b32 v{R}, v{G+1} offset:{CONST}
    ds_write_b32 v{R}, v{G} offset:{CONST+512}
    ds_write_b32 v1, v13 offset:{FLAGS}
    s_mov_b32 s59, {SPIN*4}
    """)
    if ded: a("s_cmp_ge_u32 s49, 2\ns_cbranch_scc1 L_fw")
    a("s_branch L_imgwait")

    ACC = 128
    def acc(j, n): return ACC + (j * 4 + n) * 4
    BF = 64; AF = 32; NRING = 8
    aE, aE8, aO, bB = 16, 18, 20, 22
    VIMG, VPART, VPRD, VREC = 26, 27, 28, 29
    a("L_compute:")
    if codepf:
        a(f"""
        s_getpc_b64 s[52:53]
        L_pfbase:
        s_sub_u32 s52, s52, L_pfbase-{NAME}_kernel
        s_subb_u32 s53, s53, 0
        s_lshl_b32 s50, s49, 5
        s_add_u32 s50, s50, s40
        s_lshl_b32 s50, s50, 7
        v_lshl_add_u32 v1, v0, 10, s50
        v_min_u32 v1, L_end-{NAME}_kernel, v1
        s_mov_b64 exec, 15
        global_load_dword v30, v1, s[52:53]
        s_mov_b64 exec, -1
        """)
    a(f"""
    s_lshr_b32 s50, s49, 1                ; wm
    s_and_b32 s51, s49, 1                 ; wn
    v_and_b32 v32, 15, v0                 ; i
    v_lshrrev_b32 v33, 4, v0              ; g
    s_lshl_b32 s52, s50, 14
    v_bfe_u32 v34, v32, 1, 3
    v_xor_b32 v34, v34, v33
    v_lshlrev_b32 v34, 4, v34
    v_lshl_add_u32 v34, v32, 7, v34
    v_add_u32 v{aE}, s52, v34
    v_xor_b32 v{aE+1}, 64, v{aE}
    v_add_u32 v{aO}, {A_SLOT}, v{aE}
    v_add_u32 v{aO+1}, {A_SLOT}, v{aE+1}
    v_add_u32 v35, 1, v32
    s_mul_i32 s52, s50, 127
    s_add_u32 s52, s52, 128
    s_lshl_b32 s53, s50, 7
    v_add_u32 v35, s53, v35
    v_mov_b32 v36, s52
    v_cmp_eq_u32 vcc, 15, v32
    s_nop 1
    v_cndmask_b32 v35, v35, v36, vcc
    v_bfe_u32 v34, v35, 1, 3
    v_xor_b32 v34, v34, v33
    v_lshlrev_b32 v34, 4, v34
    v_lshl_add_u32 v{aE8}, v35, 7, v34
    v_xor_b32 v{aE8+1}, 64, v{aE8}
    v_bfe_u32 v34, v0, 2, 2
    v_lshl_add_u32 v35, v33, 3, v34
    v_bfe_u32 v34, v0, 2, 3
    v_lshlrev_b32 v34, 5, v34
    s_lshl_b32 s52, s51, 6
    v_xor_b32 v34, s52, v34
    v_and_b32 v36, 3, v0
    v_lshl_add_u32 v34, v36, 3, v34
    v_lshl_add_u32 v34, v35, 8, v34
    v_add_u32 v{bB}, {W_BASE}, v34
    v_xor_b32 v{bB+1}, 32, v{bB}
    v_xor_b32 v{bB+2}, 128, v{bB}
    v_xor_b32 v{bB+3}, 160, v{bB}
    s_mov_b64 s[64:65], -1
    s_mov_b64 s[66:67], -1
    s_cmp_eq_u32 s50, 0
    s_cbranch_scc1 L_nomask
    s_cmp_eq_u32 s47, 249
    s_cselect_b32 s65, 0xffff, -1
    s_cselect_b32 s67, -1, 0xffff
    L_nomask:
    v_bfe_u32 v34, v32, 2, 1
    v_mul_u32_u24 v34, 10, v34
    v_lshrrev_b32 v35, 3, v32
    v_or_b32 v34, v34, v35
    v_and_b32 v35, 1, v33
    v_xor_b32 v35, s51, v35
    v_lshl_add_u32 v34, v35, 2, v34
    v_lshlrev_b32 v34, 4, v34
    v_and_b32 v35, 3, v32
    v_lshl_add_u32 v34, v35, 2, v34
    v_lshl_add_u32 v34, v33, 13, v34
    s_lshl_b32 s52, s50, 15
    s_add_u32 s52, s52, {W_BASE}
    v_add_u32 v{VIMG}, s52, v34
    v_lshrrev_b32 v34, 5, v0
    v_lshl_add_u32 v34, v34, 4, v32
    s_lshl_b32 s52, s49, 8
    v_lshl_add_u32 v{VPART}, v34, 3, s52
    v_lshlrev_b32 v{VPRD}, 4, v0
    s_lshl_b32 s39, s48, 5
    s_add_u32 s39, s39, s44
    s_lshl_b32 s39, s39, 10
    s_add_u32 s39, s39, 512
    v_add_u32 v{VREC}, s39, v{VPRD}
    s_lshl_b32 s52, s49, 3
    s_lshl_b64 s[90:91], 0xff, s52
    s_lshl_b32 s52, s49, 2
    v_mov_b32 v15, s52
    s_waitcnt lgkmcnt(0)
    s_mov_b32 s20, s36
    s_mov_b32 s21, s37
    s_mov_b32 s22, 0x40000
    s_mov_b32 s23, 0x20000
    """)
    final_setup("c")
    if ded:
        a("""
        s_cmp_lt_u32 s49, 2
        s_cbranch_scc1 L_nolo
        s_mov_b32 s42, 2
        v_subrev_u32 v8, 16384, v8
        v_subrev_u32 v9, 16384, v9
        v_subrev_u32 v10, 65536, v10
        L_nolo:
        """)
    for i in range(0, 128, 2): a(f"v_mov_b64 v[{ACC+i}:{ACC+i+1}], 0")
    if stamps: a(f"v_writelane_b32 v{VST}, s92, 0")
    a(f"""
    s_mov_b32 s54, 0                      ; sE
    s_mov_b32 s55, {A_SLOT}               ; sO
    s_mov_b32 s56, 0
    s_mov_b32 s57, 4
    s_mov_b32 s63, 16384
    s_mov_b32 s61, 16
    """)
    if hop:
        a("""
        s_waitcnt vmcnt(0)
        s_mov_b64 exec, 0
        s_cmp_eq_u32 s49, 0
        s_cbranch_scc1 L_hopg0
        s_cmp_eq_u32 s49, 1
        s_cbranch_scc1 L_hopg1
        s_cmp_eq_u32 s49, 2
        s_cbranch_scc1 L_hopg2
        s_branch L_hopg3
        L_hopret:
        s_mov_b64 exec, -1
        """)
    stamp(7)
    a("s_barrier")
    lq = []; ring = {}; rpos = [0]; occ = {}; dead = set()
    def afrags(t, j):
        if t < 2:
            return [("F", t, 0), ("F", t, 1)] if j == 0 else [("F", t, j + 1)]
        return [("G", 0, j), ("G", 1, j)]
    def atext(tag, d):
        kind, x, j = tag[:3]
        if kind == "F":
            if j < 8: return f"ds_read_b128 v[{d}:{d+3}], v{aE+x} offset:{j*2048}"
            return f"ds_read_b128 v[{d}:{d+3}], v{aE8+x}"
        return f"ds_read_b128 v[{d}:{d+3}], v{aO+x} offset:{j*2048}"
    def aread(tag):
        idx = rpos[0] % NRING; rpos[0] += 1
        if tag[0] == "F" and tag[2] == 8: rpos[0] += 1
        if idx in occ: assert occ[idx] in dead, (tag, idx, occ[idx])
        occ[idx] = tag; dead.discard(tag)
        ring[tag] = idx
        return ("lds", tag, atext(tag, AF + idx * 4))
    def bfrag(tag, d, n, pq, extra=0):
        return [("lds", tag, f"ds_read_b64_tr_b16 v[{d+2*h}:{d+2*h+1}], v{bB+n} offset:{extra + pq*8192 + h*1024}") for h in range(2)]
    def breg(buf, pq, n): return BF + buf * 32 + (pq * 4 + n) * 4
    def breads(buf):
        r = []
        for n in range(4):
            for pq in range(2): r += bfrag(("B", buf), breg(buf, pq, n), n, pq)
        return r
    def emit(op):
        if isinstance(op, tuple):
            lq.append(op[1]); a(op[2])
        else: a(op)
    def lwait(tags):
        last = max([i for i, t in enumerate(lq) if t in tags], default=-1)
        if last < 0: return
        n = min(15, len(lq) - 1 - last)
        a(f"s_waitcnt lgkmcnt({n})")
        del lq[:len(lq) - n]
    def badv():
        return ["s_add_u32 s56, s56, 16384", "s_cmp_eq_u32 s56, 0x10000", "s_cselect_b32 s58, 0xffff4000, s63", "s_and_b32 s56, s56, 0xffff"] + \
               [f"v_add_u32 v{bB+n}, s58, v{bB+n}" for n in range(4)]
    def mfma(d, ar, br): a(f"v_mfma_f32_16x16x32_bf16 v[{d}:{d+3}], v[{ar}:{ar+3}], v[{br}:{br+3}], v[{d}:{d+3}]")
    def bar():
        a("s_barrier")
        if itstamps:
            a(f"s_mov_b32 m0, s61\ns_add_u32 s61, s61, 1\nv_writelane_b32 v{VST}, s96, m0\nv_writelane_b32 v{VST2}, s98, m0")
            a("s_memrealtime s[96:97]\ns_memtime s[98:99]")
    if onebar: stamp(1)
    for op in breads(0): emit(op)
    for op in badv(): a(op)
    if not onebar:
        a("s_waitcnt lgkmcnt(0)")
        a("s_barrier")
        stamp(1)
    lq[:] = []
    if itstamps: a("s_memrealtime s[96:97]\ns_memtime s[98:99]")
    for j in range(LA):
        for tg in afrags(0, j): emit(aread(tg))
    for _ in range(shift): a("s_nop 0")
    init_state = (list(lq), dict(ring), rpos[0] % NRING)
    def step(k):
        t = k % 3; buf = k & 1
        tn = (t + 1) % 3
        bq = breads(buf ^ 1)
        JB = 8 - LA
        nb_per = -(-16 // (JB - 1))
        for j in range(8):
            X, Y = (("F", t, j), ("F", t, j + 1)) if t < 2 else (("G", 0, j), ("G", 1, j))
            need = {X, Y}
            if j == 0: need.add(("B", buf))
            q = []
            if j == JB: lwait(set(lq))
            else: lwait(need)
            if j + LA < 8: q += [("A", tg) for tg in afrags(t, j + LA)]
            else: q += [("A", tg) for tg in afrags(tn, j + LA - 8)]
            for _ in range(nb_per):
                if bq: q.append(bq.pop(0))
            if j == JB - 1: q += badv()
            if t == 1 and j == 7:
                q += [f"s_add_u32 s59, s54, s55", f"s_sub_u32 s59, {3*A_SLOT}, s59", "s_sub_u32 s60, s59, s54"]
                q += [f"v_add_u32 v{r}, s60, v{r}" for r in (aE, aE + 1, aE8, aE8 + 1)]
            if t == 2 and j == 7:
                q += ["s_sub_u32 s60, s54, s55", "s_mov_b32 s55, s54", "s_mov_b32 s54, s59"]
                q += [f"v_add_u32 v{r}, s60, v{r}" for r in (aO, aO + 1)]
                if k == 2: q += ["s_sub_u32 s57, s57, 1", "s_cmp_eq_u32 s57, 0"]
            xr = AF + ring[X] * 4; yr = AF + ring[Y] * 4
            per = -(-len(q) // 4)
            for n in range(4):
                pr = [(xr, breg(buf, 0, n)), (yr, breg(buf, 1, n))]
                if n % 2 == 1: pr = pr[::-1]
                for ar, br in pr: mfma(acc(j, n), ar, br)
                if j == JB and n == 0: bar()
                for _ in range(per):
                    if q:
                        op = q.pop(0)
                        if isinstance(op, tuple) and op[0] == "A": op = aread(op[1])
                        emit(op)
            assert not q
            dead.add(X)
            if t == 2 or j == 7: dead.add(Y)
        assert not bq
    a("L_cloop:")
    for k in range(6):
        a(f"; ---- step {k}")
        step(k)
        if k == 2:
            saved = (list(lq), dict(ring))
            a("s_cbranch_scc1 L_clast")
    end_state = (list(lq), {k_: v for k_, v in ring.items() if k_ in init_state[1]}, rpos[0] % NRING)
    assert end_state == init_state, (end_state, init_state)
    a("s_branch L_cloop")
    a("L_clast:")
    if cprio: a(f"s_setprio {cprio}")
    stamp(11)
    lq[:] = [t + (0,) for t in saved[0]]
    loc = {t + (0,): AF + saved[1][t] * 4 for t in saved[0]}
    free = [AF + 4 * i for i in range(NRING) if AF + 4 * i not in loc.values()]
    bloc = {}
    for n in range(4):
        for pq in range(2):
            bloc[(0, pq, n)] = breg(1, pq, n); bloc[(1, pq, n)] = breg(0, pq, n)
            bloc[(2, pq, n)] = breg(1, pq, n) if n < 2 else breg(0, pq, n - 2)
    T0 = breg(1, 0, 0)
    def stats(h):
        for n in (2 * h, 2 * h + 1):
            a(f"v_cndmask_b32 v{acc(1,n)+3}, 0, v{acc(1,n)+3}, s[64:65]")
            a(f"v_cndmask_b32 v{acc(2,n)+3}, 0, v{acc(2,n)+3}, s[66:67]")
        for j in range(8):
            for hh in range(2):
                for n in (2 * h, 2 * h + 1):
                    x = acc(j, n) + 2 * hh; S = T0 + 4 * (n & 1); Q = S + 2
                    if j == 0 and hh == 0:
                        a(f"v_pk_mul_f32 v[{Q}:{Q+1}], v[{x}:{x+1}], v[{x}:{x+1}]")
                    else:
                        a(f"v_pk_fma_f32 v[{Q}:{Q+1}], v[{x}:{x+1}], v[{x}:{x+1}], v[{Q}:{Q+1}]")
                        src = f"v[{x-2}:{x-1}]" if j == 0 else f"v[{S}:{S+1}]"
                        a(f"v_pk_add_f32 v[{S}:{S+1}], {src}, v[{x}:{x+1}]")
        a(f"""
        v_add_f32 v{T0}, v{T0}, v{T0+1}
        v_add_f32 v{T0+4}, v{T0+4}, v{T0+5}
        v_add_f32 v{T0+1}, v{T0+2}, v{T0+3}
        v_add_f32 v{T0+5}, v{T0+6}, v{T0+7}
        s_nop 0
        v_permlane32_swap_b32 v{T0}, v{T0+4}
        v_permlane32_swap_b32 v{T0+1}, v{T0+5}
        s_nop 0
        v_add_f32 v{T0}, v{T0}, v{T0+4}
        v_add_f32 v{T0+1}, v{T0+1}, v{T0+5}
        v_mov_b32 v{T0+4}, v{T0}
        v_mov_b32 v{T0+5}, v{T0+1}
        s_nop 1
        v_permlane16_swap_b32 v{T0}, v{T0+4}
        v_permlane16_swap_b32 v{T0+1}, v{T0+5}
        s_nop 0
        v_add_f32 v{T0}, v{T0}, v{T0+4}
        v_add_f32 v{T0+1}, v{T0+1}, v{T0+5}
        """)
        emit(("lds", "P", f"ds_write_b64 v{VPART}, v[{T0}:{T0+1}] offset:{PART + 1024*h}"))
    def image_ops(h):
        ops = []
        for n in (2 * h, 2 * h + 1):
            for f in range(2):
                ops.append(f"v_xor_b32 v{4+f}, {((n&1)<<5) ^ (f<<7)}, v{VIMG}")
                for j in range(8):
                    if (j >> 1) & 1 != f: continue
                    for r in (0, 2):
                        x = acc(j, n) + r
                        ops.append(("lds", "I", f"ds_write2st64_b32 v{4+f}, v{x}, v{x+1} offset0:{8*r+j} offset1:{8*(r+1)+j}"))
        ops.append(("lds", "F", f"ds_write_b32 v15, v13 offset:{FLAGS + 16 + 16*h}"))
        return ops
    seq = [(0, t, j) for t in range(3) for j in range(8)]
    if jouter: seq += [(1, t, j) for j in range(8) for t in range(3)]
    else: seq += [(1, t, j) for t in range(3) for j in range(8)]
    aorder = []
    for s, (h, t, j) in enumerate(seq):
        for tg in afrags(t, j):
            if tg + (h,) not in loc: aorder.append((s, tg + (h,)))
    s_a0, s_a1, s_a2 = 7, 16 - LB, 16 + 5
    bq = []; iq = []; sq = []
    def plain_stats(j):
        ops = []
        for n in (2, 3):
            if j in (1, 2): ops.append(f"v_cndmask_b32 v{acc(j,n)+3}, 0, v{acc(j,n)+3}, s[{62+2*j}:{63+2*j}]")
        for r in range(4):
            for n in (2, 3):
                x = acc(j, n) + r; S = T0 + 4 * (n & 1) + 2; Q = S + 1
                if j == 0 and r == 0: ops.append(f"v_mul_f32 v{Q}, v{x}, v{x}")
                else:
                    ops.append(f"v_fmac_f32 v{Q}, v{x}, v{x}")
                    ops.append(f"v_add_f32 v{S}, v{x-1 if (j == 0 and r == 1) else S}, v{x}")
        return ops
    def pairs_of(h, t, j):
        X, Y = (("F", t, j, h), ("F", t, j + 1, h)) if t < 2 else (("G", 0, j, h), ("G", 1, j, h))
        return X, Y
    s = 0
    while s < len(seq):
        h, t, j = seq[s]
        grp = [seq[s]] if not (jouter and h == 1) else seq[s:s + 3]
        if h == 0 and j == 0:
            a(f"; ---- last chunk pass A step {t}")
            bq = []
            ns_ = range(4) if t == 0 else (range(2) if t == 1 else range(2, 4))
            for n in ns_:
                for pq in range(2):
                    tb = 1 if t == 0 else 2
                    bq += bfrag(("LB", tb, n >> 1), bloc[(tb, pq, n)], n, pq, extra=(tb - 1) * 16384)
        if s == 24:
            a("; ---- last chunk pass B")
            a("s_nop 4")
            stats(0)
            stamp(5)
            iq = image_ops(0)
            free += [breg(1, 1, 0), breg(1, 1, 1)]
        if probes and s >= 18 and (s - 18) % 3 == 0:
            pi = (s - 18) // 3
            a(f"L_probe{pi}:\ns_memrealtime s[{68+2*pi}:{69+2*pi}]")
        if jouter and h == 1 and j >= 1: sq += plain_stats(j - 1)
        slots = [(tt, n) for n in (2 * h, 2 * h + 1) for (_, tt, _) in grp]
        nslot = len(slots)
        for si, (tt, n) in enumerate(slots):
            X, Y = pairs_of(h, tt, j)
            need = {X, Y} | ({("LB", tt, h)} if j == 0 else set())
            if s == s_a2: need |= {("LB", 2, 1)}
            lwait(need)
            pr = [(loc[X], bloc[(tt, 0, n)]), (loc[Y], bloc[(tt, 1, n)])]
            if n % 2 == 1 and len(grp) == 1: pr = pr[::-1]
            for ar, br in pr: mfma(acc(j, n), ar, br)
            if s in (s_a0, s_a1, s_a2) and si == 0: bar()
            cur = s + (si * len(grp)) // nslot
            nq = 0
            while aorder and aorder[0][0] <= cur + LB + (2 if len(grp) > 1 else 0) and free and nq < 2 and not (aorder[0][1][0] == "G" and s < s_a1):
                _, tg = aorder.pop(0)
                d = free.pop(0); loc[tg] = d
                emit(("lds", tg, atext(tg, d))); nq += 1
            for _ in range(2 if (t == 0 and si == 1) else 1):
                if bq: emit(bq.pop(0))
            if iq: emit(iq.pop(0))
            if si >= 2:
                for _ in range(5):
                    if sq: a(sq.pop(0))
            if n % 2 == 1:
                free.append(loc[X])
                if tt == 2 or j == 7: free.append(loc[Y])
        if h == 0 and (j == 7 or s == s_a2 - 1): assert not bq
        assert not sq
        s += len(grp)
    assert not aorder and not iq
    stamp(2)
    if probes:
        for pi in range(10):
            a(f"v_writelane_b32 v{VST}, s{68+2*pi}, {40+pi}")
            a(f"s_mov_b32 s100, L_probe{pi}-{NAME}_kernel\nv_writelane_b32 v{VST2}, s100, {40+pi}")
        a(f"s_getpc_b64 s[100:101]\nL_pq:\ns_sub_u32 s100, s100, L_pq-{NAME}_kernel\nv_writelane_b32 v{VST2}, s100, 50")
    a(f"s_nop 7\ns_mov_b32 s59, {SPIN}")
    if jouter:
        for op in plain_stats(7): a(op)
        a(f"""
        s_nop 0
        v_permlane32_swap_b32 v{T0+3}, v{T0+7}
        v_permlane32_swap_b32 v{T0+2}, v{T0+6}
        s_nop 0
        v_add_f32 v{T0+3}, v{T0+3}, v{T0+7}
        v_add_f32 v{T0+2}, v{T0+2}, v{T0+6}
        v_mov_b32 v{T0+7}, v{T0+3}
        v_mov_b32 v{T0+6}, v{T0+2}
        s_nop 1
        v_permlane16_swap_b32 v{T0+3}, v{T0+7}
        v_permlane16_swap_b32 v{T0+2}, v{T0+6}
        s_nop 0
        v_add_f32 v{T0+3}, v{T0+3}, v{T0+7}
        v_add_f32 v{T0+2}, v{T0+2}, v{T0+6}
        ds_write_b64 v{VPART}, v[{T0+2}:{T0+3}] offset:{PART + 1024}
        """)
    else:
        stats(1)
    stamp(13)
    part_publish("L_cpart", VPRD, 1, 32, VREC, "s[90:91]", 0)
    a("s_setprio 0")
    stamp(3)
    a(f"s_add_u32 s52, s40, 12288\nv_add_u32 v{VIMG}, s52, v{VIMG}")
    for op in image_ops(1): emit(op)
    SC, SH, H, T, O = 16, 24, 64, 32, 40
    def rd(i):
        return [f"ds_read_b128 v[{H+8*i}:{H+8*i+3}], v8 offset:{2048*i}",
                f"ds_read_b128 v[{H+8*i+4}:{H+8*i+7}], v9 offset:{2048*i}"]
    adv = "v_add_u32 v8, 4096, v8\nv_add_u32 v9, 4096, v9"
    a(f"""
    L_imgwait:
    s_mov_b32 s59, {SPIN*4}
    L_img:
    ds_read_b32 v15, v12 offset:{FLAGS+16}
    s_waitcnt lgkmcnt(0)
    v_cmp_eq_u32 vcc, 0, v15
    s_cbranch_vccz L_job
    s_sleep {isleep}
    s_sub_u32 s59, s59, 1
    s_cmp_gt_i32 s59, 0
    s_cbranch_scc1 L_img
    L_job:
    """)
    for r in rd(0) + rd(1): a(r)
    a(adv)
    a(f"""
    s_mov_b32 s57, 2
    L_fw:
    ds_read_b32 v15, v14 offset:{FLAGS}
    ds_read_b128 v[{SC}:{SC+3}], v11 offset:{CONST}
    ds_read_b128 v[{SC+4}:{SC+7}], v11 offset:{CONST+16}
    ds_read_b128 v[{SH}:{SH+3}], v11 offset:{CONST+512}
    ds_read_b128 v[{SH+4}:{SH+7}], v11 offset:{CONST+528}
    s_waitcnt lgkmcnt(0)
    v_cmp_eq_u32 vcc, 0, v15
    s_cbranch_vccz L_fw_ok
    {"s_sleep %d" % fsleep if fsleep else ""}
    s_sub_u32 s59, s59, 1
    s_cmp_gt_i32 s59, 0
    s_cbranch_scc1 L_fw
    L_fw_ok:
    """)
    if stamps:
        a("s_cmp_eq_u32 s42, 0\ns_cbranch_scc1 L_st8")
        stamp(14)
        a("L_st8:")
    stamp(8)
    def p(x): return f"v[{x}:{x+1}]"
    a("L_gloop:")
    for i in range(2):
        h = H + 8 * i; Y = 48; o = O + 4 * i
        a("s_waitcnt lgkmcnt(2)")
        for j in range(0, 8, 2): a(f"v_pk_fma_f32 {p(Y+j)}, {p(h+j)}, {p(SC+j)}, {p(SH+j)}")
        for r in rd(i): a(r)
        for j in range(0, 8, 2): a(f"v_pk_fma_f32 {p(T+j)}, {p(Y+j)}, {p(Y+j)}, s[24:25]")
        for j in range(0, 8, 2): a(f"v_pk_mul_f32 {p(T+j)}, {p(T+j)}, {p(Y+j)} neg_lo:[1,0] neg_hi:[1,0]")
        for j in range(8): a(f"v_exp_f32 v{T+j}, v{T+j}")
        for j in range(0, 8, 2): a(f"v_pk_fma_f32 {p(T+j)}, {p(T+j)}, s[26:27], s[26:27]")
        for j in range(8): a(f"v_rcp_f32 v{T+j}, v{T+j}")
        if i == 1: a(adv)
        for j in range(0, 8, 2): a(f"v_pk_mul_f32 {p(T+j)}, {p(T+j)}, {p(Y+j)}")
        for j in range(0, 8, 2): a(f"v_cvt_pk_bf16_f32 v{o+j//2}, v{T+j}, v{T+j+1}")
        a(f"buffer_store_dwordx4 v[{o}:{o+3}], v10, s[16:19], 0 offen{omod}")
        a("v_add_u32 v10, 8192, v10")
    a("s_sub_u32 s57, s57, 1\ns_cmp_lg_u32 s57, 0\ns_cbranch_scc1 L_gloop")
    a("s_cmp_eq_u32 s42, 0\ns_cbranch_scc1 L_fin")
    stamp(12)
    a("s_waitcnt lgkmcnt(0)\ns_sub_u32 s42, s42, 1\ns_cmp_eq_u32 s42, 0\ns_cbranch_scc1 L_toB")
    a(f"""
    v_add_u32 v8, 4096, v8
    v_add_u32 v9, 4096, v9
    v_add_u32 v10, 32768, v10
    s_branch L_job
    L_toB:
    """)
    nextjob_regs()
    if not ded: a("s_cmp_ge_u32 s3, 6\ns_cbranch_scc1 L_gather")
    a("s_branch L_imgwait\nL_fin:")
    if hold in (9, 10) and not stamps: stamp(hold)
    if stamps:
        stamp(9)
        a("s_waitcnt vmcnt(0)")
        stamp(10)
        a(f"""
        s_lshl_b32 s52, s2, 12
        s_lshl_b32 s53, s3, 9
        s_add_u32 s52, s52, s53
        s_add_u32 s52, s52, {STAMP_OFF}
        v_lshlrev_b32 v1, 3, v0
        v_add_u32 v1, s52, v1
        global_store_dwordx2 v1, v[{VST}:{VST2}], s[36:37]
        s_waitcnt vmcnt(0)
        """)
    a("L_end:\ns_endpgm")
    if hop: a.lines = add_hops(a.lines, [("L_lloop:", "L_compute:"), ("L_cloop:", "L_end:")], hop)
    if align8: a.lines = pad8(a.lines, "L_cloop:", "L_cpart:")
    hazcheck(a.lines)
    return wrap(a.text(), 256, 512, 163840, 256)

if __name__ == "__main__":
    out = sys.argv[1]
    kw = json.loads(sys.argv[2]) if len(sys.argv) > 2 else {}
    open(out, "w").write(gen(**kw))
```

```python
import sys, json, struct
from asmlib import *

def f2u(f): return struct.unpack("<I", struct.pack("<f", f))[0]

LROWS = 7999
C1 = -2.0 * 0.7978845608028654 * 1.4426950408889634
C2 = C1 * 0.044715
KS = (-C2) ** (1.0 / 3.0)
CP = -C1 / KS
SENT = 0xBF800000
A_SLOT = 32768
W_BASE = 98304
MISC = 32768
PART = MISC
CONST = MISC + 2048
FLAGS = MISC + 3072
STAMP_OFF = 1 << 20
SPIN = 0x20000

def gen(stamps=False, xmod="", wmod="", omod=" sc0 sc1", codepf=True, itstamps=False, hold=None, holdus=40,
        parity=True, psleep=0, fsleep=1, rsleep=0, lprio=2, cprio=3, LA=2, LB=3, only=None, wpar=True, jouter=False, ded=False, onebar=False, align8=False, shift=0, pf2=False, isleep=2, probes=False, ilv=True, hop=4096, acc0=None, relayout=True, hopwait=False, nostore=False, gprio=None, hk=False, sthr=None, alt=1, snake=False):
    a = Asm()
    VST, VST2 = 2, 3
    def stamp(k):
        if hold == k:
            lb = a.label("L_hold")
            a(f"""s_waitcnt lgkmcnt(0)
            {lb}:
            s_memrealtime s[96:97]
            s_waitcnt lgkmcnt(0)
            s_sub_u32 s96, s96, s92
            s_cmp_lt_u32 s96, {holdus*100}
            s_cbranch_scc1 {lb}""")
        if not stamps or (only is not None and k not in only): return
        a(f"s_memrealtime s[100:101]\ns_waitcnt lgkmcnt(0)\nv_writelane_b32 v{VST}, s100, {k}")
        if k in (1, 2, 8, 9): a(f"s_memtime s[100:101]\ns_waitcnt lgkmcnt(0)\nv_writelane_b32 v{VST2}, s100, {k}")
    def final_setup(role):
        a(f"""
        s_mul_i32 s38, s43, {LROWS}
        s_add_u32 s38, s38, s45
        s_lshl_b32 s38, s38, 10
        s_add_u32 s16, s32, s38
        s_addc_u32 s17, s33, 0
        s_lshl_b32 s18, s47, 10
        s_mov_b32 s19, 0x20000
        v_and_b32 v1, 7, v0                   ; o
        v_lshrrev_b32 v8, 3, v0
        s_and_b32 s38, s49, 1
        s_lshl_b32 s40, s38, 5
        s_add_u32 s40, s40, {64 if role == "c" else 0}
        v_add_u32 v8, s40, v8
        s_lshl_b32 s38, s38, 2
        v_xor_b32 v9, s38, v1                 ; o ^ 4*((row>>5)&1)
        v_bfe_u32 v10, v0, 4, 1               ; f
        v_lshl_add_u32 v9, v10, 3, v9
        v_lshlrev_b32 v9, 4, v9
        v_lshl_add_u32 v9, v8, 8, v9
        s_lshr_b32 s38, s49, 1
        s_lshl_b32 s40, s38, 15
        s_add_u32 s42, s40, {W_BASE}
        v_add_u32 v6, s42, v9
        s_sub_u32 s40, s40, {W_BASE}
        s_lshl_b32 s42, s38, 7
        v_add_u32 v8, s42, v8
        v_lshlrev_b32 v8, 10, v8
        v_lshl_add_u32 v7, v1, 4, v8
        s_lshl_b32 s42, s41, 8
        v_add_u32 v7, s42, v7
        v_lshlrev_b32 v11, 5, v1
        v_and_b32 v14, 1, v0
        v_lshlrev_b32 v14, 2, v14             ; constflag[lane&1]
        v_and_b32 v12, 3, v0
        v_lshlrev_b32 v12, 2, v12             ; imgflag[lane&3]
        v_mov_b32 v13, 1
        v_mov_b32 v8, v6
        v_xor_b32 v9, 160, v6
        v_mov_b32 v10, v7
        s_mov_b32 s24, {f2u(CP)}
        s_mov_b32 s25, {f2u(CP)}
        s_mov_b32 s26, {f2u(KS)}
        s_mov_b32 s27, {f2u(KS)}
        """)
        if not ded: a("s_mov_b32 s42, 1")
        elif role == "l": a("s_mov_b32 s42, 2\ns_mov_b32 s0, 32768\ns_mov_b32 s1, 131072")
        else: a(f"s_add_u32 s42, s38, 1\ns_mov_b32 s0, {(-48*256) & 0xffffffff}\ns_mov_b32 s1, {(-48*1024) & 0xffffffff}")
    HH, VO = 160, 60
    def preread(n):
        for i in range(n - 1, -1, -1):
            a(f"ds_read_b128 v[{HH+8*i}:{HH+8*i+3}], v8 offset:{2048*i}\nds_read_b128 v[{HH+8*i+4}:{HH+8*i+7}], v9 offset:{2048*i}")
        for i in range(1, n): a(f"v_add_u32 v{VO+i}, {8192*i}, v10")
    def part_publish(lbl, vaddr, half, x, vrec, maskreg, sleep):
        a(f"""
        {lbl}:
        ds_read_b128 v[{x}:{x+3}], v{vaddr} offset:{PART + 1024*half}
        s_waitcnt lgkmcnt(0)
        v_min_f32 v1, v{x+1}, v{x+3}
        v_cmp_gt_f32 vcc, 0, v1
        s_cbranch_vccz {lbl}_ok
        {"s_sleep %d" % sleep if sleep else ""}
        s_sub_u32 s59, s59, 1
        s_cmp_gt_i32 s59, 0
        s_cbranch_scc1 {lbl}
        {lbl}_ok:
        """)
        for i in range(4): a(f"v_mov_b32 v{x+4+i}, v{x+i}")
        for i in range(4): a(f"v_permlane32_swap_b32 v{x+i}, v{x+4+i}")
        for i in range(4): a(f"v_add_f32 v{x+i}, v{x+i}, v{x+4+i}")
        a(f"""
        s_mov_b64 exec, {maskreg}
        buffer_store_dwordx4 v[{x}:{x+3}], v{vrec}, s[20:23], 0 offen sc1
        s_mov_b64 exec, -1
        """)
    a(f"""
    s_cmp_ge_u32 s2, 256
    s_cbranch_scc1 L_end
    s_load_dwordx4 s[4:7], s[0:1], 0      ; x, w
    s_load_dwordx4 s[28:31], s[0:1], 16
    s_load_dwordx4 s[32:35], s[0:1], 32
    s_load_dwordx2 s[36:37], s[0:1], 48   ; ws
    """)
    if stamps or hold is not None: a("s_memrealtime s[92:93]")
    a(f"""
    v_lshrrev_b32 v1, 6, v0
    v_and_b32 v0, 63, v0
    v_readfirstlane_b32 s3, v1
    s_and_b32 s38, s2, 7
    s_bfe_u32 s40, s2, 0x30005
    s_bfe_u32 s41, s2, 0x20003
    s_lshl_b32 s42, s38, 3
    s_add_u32 s42, s42, s40               ; mt 0..63
    s_lshr_b32 s43, s42, 5                ; batch
    s_and_b32 s44, s42, 31
    s_mul_i32 s45, s44, 250
    s_mul_i32 s46, s43, 8000
    s_add_u32 s46, s46, s45
    s_cmp_eq_u32 s44, 31
    s_cselect_b32 s47, 1, 0
    s_sub_u32 s47, 250, s47               ; nvalid
    s_lshl_b32 s48, s43, 2
    s_add_u32 s48, s48, s41
    s_and_b32 s49, s3, 3
    s_cmp_lt_u32 s3, 4
    s_cbranch_scc1 L_compute
    """)
    VA, VW = 56, 60
    a(f"""
    v_lshrrev_b32 v4, 4, v0               ; l>>4
    v_and_b32 v5, 15, v0
    v_lshlrev_b32 v6, 1, v4
    v_xor_b32 v5, v5, v6                  ; W chunk (n<2)
    s_and_b32 s50, s49, 1
    s_lshl_b32 s51, s50, 14
    s_lshl_b32 s52, s41, 8
    s_add_u32 s51, s51, s52
    v_lshlrev_b32 v5, 4, v5
    v_lshl_add_u32 v5, v4, 10, v5
    s_and_b32 s53, s40, {1 if wpar else 0}
    s_mul_i32 s52, s53, {8192 + 128}
    v_add_u32 v5, s51, v5
    v_xor_b32 v{VW}, s52, v5
    v_xor_b32 v{VW+2}, {8192 + 128}, v{VW}
    v_add_u32 v{VW+1}, 3072, v{VW}
    v_add_u32 v{VW+3}, 3072, v{VW+2}
    s_lshl_b32 s51, s49, 12
    s_lshl_b32 s53, s53, 11
    s_add_u32 s51, s51, s53
    s_add_u32 s51, s51, {W_BASE}
    s_lshr_b32 s62, s49, 1                ; lw>=2
    s_lshl_b32 s54, s62, 20               ; sB0
    s_mov_b32 s14, 1572864
    s_mov_b32 s15, 0x20000
    s_mov_b32 m0, s51
    s_waitcnt lgkmcnt(0)
    s_mov_b32 s12, s6
    s_mov_b32 s13, s7
    """)
    if stamps: a(f"v_writelane_b32 v{VST}, s92, 0")
    vq = []
    def issueA(slot_s, soff, tag, halves=(0, 1)):
        for half in halves:
            if half == halves[0]: a(f"s_add_u32 m0, s50, {slot_s}")
            if half == 1: a(f"s_xor_b32 m0, m0, 4096")
            a("s_nop 0")
            for n in range(4):
                vq.append(tag)
                a(f"buffer_load_dwordx4 v{VA+half*2+(n&1)}, s[8:11], {soff} offen offset:{n*1024}{xmod} lds")
    def issueW(slot_s, soff, tag, setm0=True, halves=(0, 1)):
        for half in halves:
            if half == halves[0] and setm0: a(f"s_add_u32 m0, s51, {slot_s}")
            if half == 1: a("s_xor_b32 m0, m0, 2048")
            if setm0 or half == 1: a("s_nop 0")
            for n in range(2):
                vq.append(tag)
                a(f"buffer_load_dwordx4 v{VW+2*half+n}, s[12:15], {soff} offen offset:{n*1024}{wmod} lds")
    def vwait(tags):
        last = max([i for i, t in enumerate(vq) if t in tags], default=-1)
        n = len(vq) - 1 - last
        a(f"s_waitcnt vmcnt({n})")
        return n
    def Aname(k): return f"E{k//3}" if k % 3 < 2 else f"O{k//3}"
    issueW(0, "s54", "B0", setm0=False, halves=(0,) if wpar else (0, 1))
    a(f"""
    v_and_b32 v5, 7, v0
    v_xor_b32 v5, v5, v4
    v_lshlrev_b32 v5, 4, v5
    v_lshrrev_b32 v6, 3, v0
    v_lshl_add_u32 v5, v6, 14, v5
    s_lshl_b32 s52, s62, 18
    s_lshl_b32 s53, s50, 13
    s_add_u32 s52, s52, s53
    s_and_b32 s53, s41, {1 if parity else 0}
    s_lshl_b32 s53, s53, 12
    s_add_u32 s52, s52, s53
    v_add_u32 v{VA}, s52, v5
    v_xor_b32 v{VA+2}, 4096, v{VA}
    v_xor_b32 v{VA+1}, 64, v{VA}
    v_xor_b32 v{VA+3}, 64, v{VA+2}
    v_add_u32 v{VA+1}, {64*2048 - 1024}, v{VA+1}
    v_add_u32 v{VA+3}, {64*2048 - 1024}, v{VA+3}
    s_lshl_b32 s50, s49, 13
    s_add_u32 s50, s50, s53
    s_lshl_b32 s10, s47, 11
    s_add_u32 s10, s10, 1024
    s_mov_b32 s11, 0x20000
    s_lshl_b32 s57, s46, 11
    s_add_u32 s8, s4, s57
    s_addc_u32 s9, s5, 0
    s_mov_b32 s52, 0                      ; x k-offset (E)
    s_mov_b32 s53, 1024                   ; x k-offset (O)
    s_add_u32 s55, s54, 0x8000            ; sB1
    s_lshl_b32 s56, s62, 15
    s_add_u32 s56, s56, 0x80000           ; sB2
    """)
    issueA(0, "s52", "E0", halves=(0,))
    if wpar: issueW(16384, "s55", "B1", halves=(0,))
    R = 80
    NG = 8; MK = 64; G = 96
    a(f"""
    s_mov_b32 s20, s36
    s_mov_b32 s21, s37
    s_mov_b32 s22, 0x40000
    s_mov_b32 s23, 0x20000
    s_lshl_b32 s39, s48, 5
    s_add_u32 s39, s39, s44
    s_lshl_b32 s39, s39, 10
    v_lshlrev_b32 v{R+6}, 4, v0
    v_add_u32 v{R+5}, s39, v{R+6}
    v_and_b32 v1, 15, v0
    v_lshrrev_b32 v5, 5, v0
    v_lshl_add_u32 v5, v1, 1, v5
    s_lshl_b32 s57, s49, 5
    v_add_u32 v{R}, s57, v5
    s_lshl_b32 s57, s41, 7
    v_add_u32 v{R+7}, s57, v{R}
    v_lshlrev_b32 v{R+7}, 1, v{R+7}
    v_lshlrev_b32 v{R}, 2, v{R}
    v_lshlrev_b32 v1, 4, v1
    v_lshl_add_u32 v1, v4, 10, v1
    s_lshl_b32 s57, s48, 15
    s_lshl_b32 s58, s49, 8
    s_add_u32 s57, s57, s58
    v_add_u32 v{R+3}, s57, v1
    s_lshl_b32 s57, s48, 5
    v_mov_b32 v{R+4}, s57
    s_add_u32 s57, s39, s58
    v_lshl_add_u32 v{R+8}, v0, 2, s57
    v_mov_b32 v29, 0
    v_mov_b32 v{R+10}, {SENT}
    v_mov_b32 v{R+11}, {SENT}
    s_lshl_b32 s57, s49, 4
    s_lshl_b64 s[90:91], 0xffff, s57
    """)
    for i in range(NG): a(f"s_mov_b64 s[{MK+2*i}:{MK+2*i+1}], -1")
    for i in range(1, NG): a(f"s_mov_b32 s{80+i}, {i*4096}")
    final_setup("l")
    if wpar: issueW(0, "s54", "B0", halves=(1,))
    issueA(0, "s52", "E0", halves=(1,))
    if wpar: issueW(16384, "s55", "B1", halves=(1,))
    if onebar:
        if not wpar: issueW(16384, "s55", "B1")
        issueW(32768, "s56", "B2")
        stamp(6)
        vwait({"B0", "E0", "B1"}); a("s_barrier")
        stamp(1)
    else:
        vwait({"B0"}); a("s_barrier")
        if not wpar: issueW(16384, "s55", "B1")
    a(f"""
    buffer_store_dword v{R+10}, v{R+8}, s[20:23], 0 offen sc1
    global_load_ushort v{R+1}, v{R+7}, s[28:29]
    global_load_ushort v{R+2}, v{R+7}, s[30:31]
    s_lshl_b32 s57, s49, 9
    v_lshl_add_u32 v{R+7}, v0, 3, s57
    v_lshlrev_b32 v{R+8}, 2, v0
    v_mov_b32 v{R+9}, 0
    """)
    vq += ["S", "g", "g"]
    if not onebar: issueW(32768, "s56", "B2")
    a(f"""
    s_mov_b32 s57, {2*A_SLOT}
    s_mov_b32 s58, {A_SLOT}
    s_mov_b32 s59, 49152
    """)
    if not onebar:
        stamp(6)
        vwait({"E0", "B1"}); a("s_barrier")
        stamp(1)
    def iB(kb, ph, nth=0):
        sreg = ["s54", "s55", "s56"][kb % 3]
        if ph in (0, None): a(f"s_add_u32 {sreg}, {sreg}, 0x10000")
        issueW("s59", sreg, f"B{kb}", halves=(0, 1) if ph is None else (ph,))
        if ph in (1, None): a("s_add_u32 s59, s59, 16384\ns_and_b32 s59, s59, 0xffff")
    def iO(c, ph):
        if c > 0 and ph in (0, None): a("s_add_u32 s53, s53, 128")
        issueA("s58", "s53", f"O{c}", halves=(0, 1) if ph is None else (ph,))
    def iE(c, ph):
        if ph in (0, None): a("s_add_u32 s52, s52, 128")
        issueA("s57", "s52", f"E{c}", halves=(0, 1) if ph is None else (ph,))
        if ph in (1, None): a(f"s_add_u32 s61, s57, s58\ns_mov_b32 s57, s58\ns_sub_u32 s58, {3*A_SLOT}, s61")
    ramp = {-1: [("O", 0), ("B", 3)], 0: [("E", 1), ("B", 4)], 1: [("B", 5), ("O", 1)], 2: [("B", 6), ("E", 2)], 3: [("B", 7), ("B", 8)]}
    def lstep(k):
        c = k // 3
        if k in ramp: todo = list(ramp[k])
        else:
            todo = []
            if k + 5 <= 23: todo.append(("B", k + 5))
            if k % 3 == 1 and c + 1 <= 7: todo.append(("O", c + 1))
            if k % 3 == 2 and c + 2 <= 7: todo.append(("E", c + 2))
        two = ilv and len(todo) == 2 and todo[0][0] != todo[1][0]
        for ph in ((0, 1) if two else (None,)):
            for kind, i in todo: {"B": iB, "O": iO, "E": iE}[kind](i, ph)
        return vwait({Aname(k + 2), f"B{k+3}"})
    for k in range(-1, 4):
        lstep(k); a("s_barrier")
    a("""
    s_mov_b32 s60, 5
    s_and_b32 s62, s44, 3
    s_add_u32 s62, s62, 2
    s_cmp_lg_u32 s49, 0
    s_cselect_b32 s62, 0, s62
    L_lloop:
    """)
    ns = []
    for k in range(4, 7):
        ns.append(lstep(k))
        if k == 6:
            a(f"""
            s_cmp_lg_u32 s60, s62
            s_cbranch_scc1 L_noat
            s_mov_b64 exec, 1
            global_atomic_add v{R+4}, v13, s[34:35]
            s_mov_b64 exec, -1
            L_noat:
            """)
        a("s_barrier")
    a("s_sub_u32 s60, s60, 1\ns_cmp_lg_u32 s60, 0\ns_cbranch_scc1 L_lloop")
    keep = len(a.lines)
    for k in range(7, 19):
        n = lstep(k); assert n >= ns[(k - 4) % 3], (k, n, ns)
    del a.lines[keep:]
    if pf2:
        a(f"""
        s_getpc_b64 s[88:89]
        L_pfbase2:
        s_sub_u32 s88, s88, L_pfbase2-{NAME}_kernel
        s_subb_u32 s89, s89, 0
        s_lshl_b32 s61, s49, 12
        v_and_b32 v1, 31, v0
        v_lshl_add_u32 v1, v1, 7, s61
        v_min_u32 v1, L_end-{NAME}_kernel, v1
        global_load_dword v16, v1, s[88:89]
        """)
        vq.append("c")
    lstep(19); a("s_barrier")
    a("L_ltail:")
    stamp(11)
    a(f"""
    ds_write_b64 v{R+7}, v[{R+10}:{R+11}] offset:{PART}
    ds_write_b32 v{R+8}, v{R+9} offset:{FLAGS}
    s_waitcnt lgkmcnt(0)
    """)
    vwait({"B23"}); a("s_barrier")
    a(f"""
    s_waitcnt vmcnt(0)
    s_barrier
    global_load_dword v{R+9}, v{R+4}, s[34:35] sc1
    s_mov_b32 s52, {f2u(KS)}
    v_lshlrev_b32 v{R+1}, 16, v{R+1}
    v_lshlrev_b32 v{R+2}, 16, v{R+2}
    v_mul_f32 v{R+1}, s52, v{R+1}
    v_mul_f32 v{R+2}, s52, v{R+2}
    s_mov_b32 s59, {SPIN}
    s_barrier
    """)
    stamp(2)
    if lprio: a(f"s_setprio {lprio}")
    def nextjob_regs():
        a(f"""
        v_add_u32 v8, s40, v6
        v_add_u32 v10, 128, v7
        v_xor_b32 v9, 160, v8
        v_add_u32 v11, 256, v11
        v_add_u32 v14, 8, v14
        v_add_u32 v12, 16, v12
        """)
    a("s_cmp_ge_u32 s49, 2\ns_cbranch_scc1 L_nopub")
    part_publish("L_part", R + 6, 0, G, R + 5, "s[90:91]", psleep)
    stamp(3)
    a(f"""
    L_nopub:
    L_cnt:
    s_waitcnt vmcnt(0)
    v_readfirstlane_b32 s52, v{R+9}
    s_cmp_ge_u32 s52, 32
    s_cbranch_scc1 L_cnt_ok
    s_sleep 32
    global_load_dword v{R+9}, v{R+4}, s[34:35] sc1
    s_sub_u32 s59, s59, 1
    s_cmp_gt_i32 s59, 0
    s_cbranch_scc1 L_cnt
    L_cnt_ok:
    s_cmp_lt_u32 s49, 2
    s_cbranch_scc1 L_gather
    """)
    if ded:
        a(f"""
        s_mov_b32 s42, 0
        """)
        nextjob_regs()
        a(f"""
        s_mov_b32 s59, {SPIN}
        L_img2:
        ds_read_b32 v15, v12 offset:{FLAGS+16}
        s_waitcnt lgkmcnt(0)
        v_cmp_eq_u32 vcc, 0, v15
        s_cbranch_vccz L_img2_ok
        s_sleep 1
        s_sub_u32 s59, s59, 1
        s_cmp_gt_i32 s59, 0
        s_cbranch_scc1 L_img2
        L_img2_ok:
        """)
        preread(4)
    else:
        a("s_branch L_imgwait")
    a("L_gather:")
    if stamps: a("s_mov_b32 s94, 0")
    a(f"s_mov_b32 s59, {SPIN}\nL_poll:")
    if stamps: a("s_add_u32 s94, s94, 1")
    for i in range(NG):
        a(f"s_or_b64 exec, s[{MK+2*i}:{MK+2*i+1}], 1")
        a(f"buffer_load_dwordx4 v[{G+4*i}:{G+4*i+3}], v{R+3}, s[20:23], {'s%d' % (80+i) if i else 0} offen sc1")
    a("s_mov_b64 exec, -1\ns_waitcnt vmcnt(0)")
    for i in range(NG):
        a(f"v_min_f32 v1, v{G+4*i+1}, v{G+4*i+3}")
        a(f"v_cmp_gt_f32 s[{MK+2*i}:{MK+2*i+1}], 0, v1")
    a(f"s_or_b64 s[52:53], s[{MK}:{MK+1}], s[{MK+2}:{MK+3}]")
    for i in range(2, NG):
        a(f"s_or_b64 s[52:53], s[52:53], s[{MK+2*i}:{MK+2*i+1}]")
    a(f"""
    s_cbranch_scc0 L_poll_done
    {"s_sleep %d" % rsleep if rsleep else ""}
    s_sub_u32 s59, s59, 1
    s_cmp_gt_i32 s59, 0
    s_cbranch_scc1 L_poll
    L_poll_done:
    """)
    if stamps: a(f"v_writelane_b32 v{VST2}, s94, 63")
    stamp(4)
    for step_ in (4, 2, 1):
        for i in range(step_):
            for h in range(4):
                x = G + 4 * i + h; y = G + 4 * (i + step_) + h
                a(f"v_add_f32 v{x}, v{x}, v{y}")
    x = G
    a(f"""
    s_mov_b32 s52, {f2u(1.0/LROWS)}
    s_nop 0
    v_permlane32_swap_b32 v{x}, v{x+2}
    v_permlane32_swap_b32 v{x+1}, v{x+3}
    s_nop 1
    v_add_f32 v{x}, v{x}, v{x+2}
    v_add_f32 v{x+1}, v{x+1}, v{x+3}
    v_mov_b32 v{x+2}, v{x}
    v_mov_b32 v{x+3}, v{x+1}
    s_nop 1
    v_permlane16_swap_b32 v{x}, v{x+2}
    v_permlane16_swap_b32 v{x+1}, v{x+3}
    s_nop 1
    v_add_f32 v{x}, v{x}, v{x+2}
    v_add_f32 v{x+1}, v{x+1}, v{x+3}
    v_mul_f32 v{G}, s52, v{G}             ; mean
    v_mul_f32 v{G+1}, s52, v{G+1}         ; E[h^2]
    v_fma_f32 v{G+1}, -v{G}, v{G}, v{G+1} ; var
    v_max_f32 v{G+1}, 0, v{G+1}
    v_add_f32 v{G+1}, {f2u(1e-5)}, v{G+1}
    v_rsq_f32 v{G+1}, v{G+1}
    s_lshl_b32 s52, s49, 2
    v_mul_f32 v{G+1}, v{G+1}, v{R+1}      ; KS*scale
    v_mov_b32 v1, s52
    v_fma_f32 v{G}, -v{G}, v{G+1}, v{R+2} ; KS*shift
    ds_write_b32 v{R}, v{G+1} offset:{CONST}
    ds_write_b32 v{R}, v{G} offset:{CONST+512}
    ds_write_b32 v1, v13 offset:{FLAGS}
    s_mov_b32 s59, {SPIN*4}
    """)
    if gprio is not None: a(f"s_setprio {gprio}")
    if ded: a("s_cmp_ge_u32 s49, 2\ns_cbranch_scc1 L_fw")
    a("s_branch L_imgwait")

    ACC = 128
    def acc(j, n): return ACC + (j * 4 + n) * 4
    BF = 64; AF = 32; NRING = 8
    aE, aE8, aO, bB = 16, 18, 20, 22
    VIMG, VPART, VPRD, VREC = 26, 27, 28, 29
    a("L_compute:")
    if codepf:
        a(f"""
        s_getpc_b64 s[52:53]
        L_pfbase:
        s_sub_u32 s52, s52, L_pfbase-{NAME}_kernel
        s_subb_u32 s53, s53, 0
        s_lshl_b32 s50, s49, 5
        s_add_u32 s50, s50, s40
        s_lshl_b32 s50, s50, 7
        v_lshl_add_u32 v1, v0, 10, s50
        v_min_u32 v1, L_end-{NAME}_kernel, v1
        s_mov_b64 exec, 15
        global_load_dword v30, v1, s[52:53]
        s_mov_b64 exec, -1
        """)
    a(f"""
    s_lshr_b32 s50, s49, 1                ; wm
    s_and_b32 s51, s49, 1                 ; wn
    v_and_b32 v32, 15, v0                 ; i
    v_lshrrev_b32 v33, 4, v0              ; g
    s_lshl_b32 s52, s50, 14
    v_bfe_u32 v34, v32, 1, 3
    v_xor_b32 v34, v34, v33
    v_lshlrev_b32 v34, 4, v34
    v_lshl_add_u32 v34, v32, 7, v34
    v_add_u32 v{aE}, s52, v34
    v_xor_b32 v{aE+1}, 64, v{aE}
    v_add_u32 v{aO}, {A_SLOT}, v{aE}
    v_add_u32 v{aO+1}, {A_SLOT}, v{aE+1}
    v_add_u32 v35, 1, v32
    s_mul_i32 s52, s50, 127
    s_add_u32 s52, s52, 128
    s_lshl_b32 s53, s50, 7
    v_add_u32 v35, s53, v35
    v_mov_b32 v36, s52
    v_cmp_eq_u32 vcc, 15, v32
    s_nop 1
    v_cndmask_b32 v35, v35, v36, vcc
    v_bfe_u32 v34, v35, 1, 3
    v_xor_b32 v34, v34, v33
    v_lshlrev_b32 v34, 4, v34
    v_lshl_add_u32 v{aE8}, v35, 7, v34
    v_xor_b32 v{aE8+1}, 64, v{aE8}
    v_bfe_u32 v34, v0, 2, 2
    v_lshl_add_u32 v35, v33, 3, v34
    v_bfe_u32 v34, v0, 2, 3
    v_lshlrev_b32 v34, 5, v34
    s_lshl_b32 s52, s51, 6
    v_xor_b32 v34, s52, v34
    v_and_b32 v36, 3, v0
    v_lshl_add_u32 v34, v36, 3, v34
    v_lshl_add_u32 v34, v35, 8, v34
    v_add_u32 v{bB}, {W_BASE}, v34
    v_xor_b32 v{bB+1}, 32, v{bB}
    v_xor_b32 v{bB+2}, 128, v{bB}
    v_xor_b32 v{bB+3}, 160, v{bB}
    s_mov_b64 s[64:65], -1
    s_mov_b64 s[66:67], -1
    s_cmp_eq_u32 s50, 0
    s_cbranch_scc1 L_nomask
    s_cmp_eq_u32 s47, 249
    s_cselect_b32 s65, 0xffff, -1
    s_cselect_b32 s67, -1, 0xffff
    L_nomask:
    v_bfe_u32 v34, v32, 2, 1
    v_mul_u32_u24 v34, 10, v34
    v_lshrrev_b32 v35, 3, v32
    v_or_b32 v34, v34, v35
    v_and_b32 v35, 1, v33
    v_xor_b32 v35, s51, v35
    v_lshl_add_u32 v34, v35, 2, v34
    v_lshlrev_b32 v34, 4, v34
    v_and_b32 v35, 3, v32
    v_lshl_add_u32 v34, v35, 2, v34
    v_lshl_add_u32 v34, v33, 13, v34
    s_lshl_b32 s52, s50, 15
    s_add_u32 s52, s52, {W_BASE}
    v_add_u32 v{VIMG}, s52, v34
    v_lshrrev_b32 v34, 5, v0
    v_lshl_add_u32 v34, v34, 4, v32
    s_lshl_b32 s52, s49, 8
    v_lshl_add_u32 v{VPART}, v34, 3, s52
    v_lshlrev_b32 v{VPRD}, 4, v0
    s_lshl_b32 s39, s48, 5
    s_add_u32 s39, s39, s44
    s_lshl_b32 s39, s39, 10
    s_add_u32 s39, s39, 512
    v_add_u32 v{VREC}, s39, v{VPRD}
    s_lshl_b32 s52, s49, 3
    s_lshl_b64 s[90:91], 0xff, s52
    s_lshl_b32 s52, s49, 2
    v_mov_b32 v15, s52
    s_waitcnt lgkmcnt(0)
    s_mov_b32 s20, s36
    s_mov_b32 s21, s37
    s_mov_b32 s22, 0x40000
    s_mov_b32 s23, 0x20000
    """)
    final_setup("c")
    if acc0 is None:
        for i in range(0, 128, 2): a(f"v_mov_b64 v[{ACC+i}:{ACC+i+1}], 0")
    else:
        for i in range(128): a(f"v_mov_b32 v{ACC+i}, {f2u(acc0)}")
    if stamps: a(f"v_writelane_b32 v{VST}, s92, 0")
    a(f"""
    s_mov_b32 s54, 0                      ; sE
    s_mov_b32 s55, {A_SLOT}               ; sO
    s_mov_b32 s56, 0
    s_mov_b32 s57, 4
    s_mov_b32 s63, 16384
    s_mov_b32 s61, 16
    """)
    if hop:
        if hopwait: a("s_waitcnt vmcnt(0)")
        a("""
        s_mov_b64 exec, 0
        s_cmp_eq_u32 s49, 0
        s_cbranch_scc1 L_hopg0
        s_cmp_eq_u32 s49, 1
        s_cbranch_scc1 L_hopg1
        s_cmp_eq_u32 s49, 2
        s_cbranch_scc1 L_hopg2
        s_branch L_hopg3
        L_hopret:
        s_mov_b64 exec, -1
        """)
    stamp(7)
    a("s_barrier")
    lq = []; ring = {}; rpos = [0]; occ = {}; dead = set()
    def afrags(t, j):
        if t < 2:
            return [("F", t, 0), ("F", t, 1)] if j == 0 else [("F", t, j + 1)]
        return [("G", 0, j), ("G", 1, j)]
    def atext(tag, d):
        kind, x, j = tag[:3]
        if kind == "F":
            if j < 8: return f"ds_read_b128 v[{d}:{d+3}], v{aE+x} offset:{j*2048}"
            return f"ds_read_b128 v[{d}:{d+3}], v{aE8+x}"
        return f"ds_read_b128 v[{d}:{d+3}], v{aO+x} offset:{j*2048}"
    def aread(tag):
        idx = rpos[0] % NRING; rpos[0] += 1
        if tag[0] == "F" and tag[2] == 8: rpos[0] += 1
        if idx in occ: assert occ[idx] in dead, (tag, idx, occ[idx])
        occ[idx] = tag; dead.discard(tag)
        ring[tag] = idx
        return ("lds", tag, atext(tag, AF + idx * 4))
    def bfrag(tag, d, n, pq, extra=0):
        return [("lds", tag, f"ds_read_b64_tr_b16 v[{d+2*h}:{d+2*h+1}], v{bB+n} offset:{extra + pq*8192 + h*1024}") for h in range(2)]
    def breg(buf, pq, n): return BF + buf * 32 + (pq * 4 + n) * 4
    def breads(buf):
        r = []
        for n in range(4):
            for pq in range(2): r += bfrag(("B", buf), breg(buf, pq, n), n, pq)
        return r
    def emit(op):
        if isinstance(op, tuple):
            lq.append(op[1]); a(op[2])
        else: a(op)
    def lwait(tags):
        last = max([i for i, t in enumerate(lq) if t in tags], default=-1)
        if last < 0: return
        n = min(15, len(lq) - 1 - last)
        a(f"s_waitcnt lgkmcnt({n})")
        del lq[:len(lq) - n]
    def badv():
        return ["s_add_u32 s56, s56, 16384", "s_cmp_eq_u32 s56, 0x10000", "s_cselect_b32 s58, 0xffff4000, s63", "s_and_b32 s56, s56, 0xffff"] + \
               [f"v_add_u32 v{bB+n}, s58, v{bB+n}" for n in range(4)]
    def mfma(d, ar, br): a(f"v_mfma_f32_16x16x32_bf16 v[{d}:{d+3}], v[{ar}:{ar+3}], v[{br}:{br+3}], v[{d}:{d+3}]")
    def bar():
        a("s_barrier")
        if itstamps:
            a(f"s_mov_b32 m0, s61\ns_add_u32 s61, s61, 1\nv_writelane_b32 v{VST}, s96, m0\nv_writelane_b32 v{VST2}, s98, m0")
            a("s_memrealtime s[96:97]\ns_memtime s[98:99]")
    if onebar: stamp(1)
    for op in breads(0): emit(op)
    for op in badv(): a(op)
    if not onebar:
        a("s_waitcnt lgkmcnt(0)")
        a("s_barrier")
        stamp(1)
    lq[:] = []
    if itstamps: a("s_memrealtime s[96:97]\ns_memtime s[98:99]")
    for j in range(LA):
        for tg in afrags(0, j): emit(aread(tg))
    for _ in range(shift): a("s_nop 0")
    init_state = (list(lq), dict(ring), rpos[0] % NRING)
    def step(k):
        t = k % 3; buf = k & 1
        tn = (t + 1) % 3
        bq = breads(buf ^ 1)
        JB = 8 - LA
        nb_per = -(-16 // (JB - 1))
        for j in range(8):
            X, Y = (("F", t, j), ("F", t, j + 1)) if t < 2 else (("G", 0, j), ("G", 1, j))
            need = {X, Y}
            if j == 0: need.add(("B", buf))
            q = []
            if j == JB: lwait(set(lq))
            else: lwait(need)
            if j + LA < 8: q += [("A", tg) for tg in afrags(t, j + LA)]
            else: q += [("A", tg) for tg in afrags(tn, j + LA - 8)]
            for _ in range(nb_per):
                if bq: q.append(bq.pop(0))
            if j == JB - 1: q += badv()
            if t == 1 and j == 7:
                q += [f"s_add_u32 s59, s54, s55", f"s_sub_u32 s59, {3*A_SLOT}, s59", "s_sub_u32 s60, s59, s54"]
                q += [f"v_add_u32 v{r}, s60, v{r}" for r in (aE, aE + 1, aE8, aE8 + 1)]
            if t == 2 and j == 7:
                q += ["s_sub_u32 s60, s54, s55", "s_mov_b32 s55, s54", "s_mov_b32 s54, s59"]
                q += [f"v_add_u32 v{r}, s60, v{r}" for r in (aO, aO + 1)]
                if k == 2: q += ["s_sub_u32 s57, s57, 1", "s_cmp_eq_u32 s57, 0"]
            xr = AF + ring[X] * 4; yr = AF + ring[Y] * 4
            per = -(-len(q) // 4)
            for ni in range(4):
                n = 3 - ni if (snake and j % 2 == 1) else ni
                pr = [(xr, breg(buf, 0, n)), (yr, breg(buf, 1, n))]
                if alt is not None and ni % 2 == alt: pr = pr[::-1]
                for ar, br in pr: mfma(acc(j, n), ar, br)
                if j == JB and ni == 0: bar()
                for _ in range(per):
                    if q:
                        op = q.pop(0)
                        if isinstance(op, tuple) and op[0] == "A": op = aread(op[1])
                        emit(op)
            assert not q
            dead.add(X)
            if t == 2 or j == 7: dead.add(Y)
        assert not bq
    a("L_cloop:")
    for k in range(6):
        a(f"; ---- step {k}")
        step(k)
        if k == 2:
            saved = (list(lq), dict(ring))
            a("s_cbranch_scc1 L_clast")
    end_state = (list(lq), {k_: v for k_, v in ring.items() if k_ in init_state[1]}, rpos[0] % NRING)
    assert end_state == init_state, (end_state, init_state)
    a("s_branch L_cloop")
    a("L_clast:")
    if cprio: a(f"s_setprio {cprio}")
    stamp(11)
    lq[:] = [t + (0,) for t in saved[0]]
    loc = {t + (0,): AF + saved[1][t] * 4 for t in saved[0]}
    free = [AF + 4 * i for i in range(NRING) if AF + 4 * i not in loc.values()]
    bloc = {}
    for n in range(4):
        for pq in range(2):
            bloc[(0, pq, n)] = breg(1, pq, n); bloc[(1, pq, n)] = breg(0, pq, n)
            bloc[(2, pq, n)] = breg(1, pq, n) if n < 2 else breg(0, pq, n - 2)
    T0 = breg(1, 0, 0)
    def stats(h):
        for n in (2 * h, 2 * h + 1):
            a(f"v_cndmask_b32 v{acc(1,n)+3}, 0, v{acc(1,n)+3}, s[64:65]")
            a(f"v_cndmask_b32 v{acc(2,n)+3}, 0, v{acc(2,n)+3}, s[66:67]")
        for j in range(8):
            for hh in range(2):
                for n in (2 * h, 2 * h + 1):
                    x = acc(j, n) + 2 * hh; S = T0 + 4 * (n & 1); Q = S + 2
                    if j == 0 and hh == 0:
                        a(f"v_pk_mul_f32 v[{Q}:{Q+1}], v[{x}:{x+1}], v[{x}:{x+1}]")
                    else:
                        a(f"v_pk_fma_f32 v[{Q}:{Q+1}], v[{x}:{x+1}], v[{x}:{x+1}], v[{Q}:{Q+1}]")
                        src = f"v[{x-2}:{x-1}]" if j == 0 else f"v[{S}:{S+1}]"
                        a(f"v_pk_add_f32 v[{S}:{S+1}], {src}, v[{x}:{x+1}]")
        a(f"""
        v_add_f32 v{T0}, v{T0}, v{T0+1}
        v_add_f32 v{T0+4}, v{T0+4}, v{T0+5}
        v_add_f32 v{T0+1}, v{T0+2}, v{T0+3}
        v_add_f32 v{T0+5}, v{T0+6}, v{T0+7}
        s_nop 0
        v_permlane32_swap_b32 v{T0}, v{T0+4}
        v_permlane32_swap_b32 v{T0+1}, v{T0+5}
        s_nop 0
        v_add_f32 v{T0}, v{T0}, v{T0+4}
        v_add_f32 v{T0+1}, v{T0+1}, v{T0+5}
        v_mov_b32 v{T0+4}, v{T0}
        v_mov_b32 v{T0+5}, v{T0+1}
        s_nop 1
        v_permlane16_swap_b32 v{T0}, v{T0+4}
        v_permlane16_swap_b32 v{T0+1}, v{T0+5}
        s_nop 0
        v_add_f32 v{T0}, v{T0}, v{T0+4}
        v_add_f32 v{T0+1}, v{T0+1}, v{T0+5}
        """)
        emit(("lds", "P", f"ds_write_b64 v{VPART}, v[{T0}:{T0+1}] offset:{PART + 1024*h}"))
    def image_ops(h):
        ops = []
        for n in (2 * h, 2 * h + 1):
            for f in range(2):
                ops.append(f"v_xor_b32 v{4+f}, {((n&1)<<5) ^ (f<<7)}, v{VIMG}")
                for j in range(8):
                    if (j >> 1) & 1 != f: continue
                    for r in (0, 2):
                        x = acc(j, n) + r
                        ops.append(("lds", "I", f"ds_write2st64_b32 v{4+f}, v{x}, v{x+1} offset0:{8*r+j} offset1:{8*(r+1)+j}"))
        ops.append(("lds", "F", f"ds_write_b32 v15, v13 offset:{FLAGS + 16 + 16*h}"))
        return ops
    seq = [(0, t, j) for t in range(3) for j in range(8)]
    if jouter: seq += [(1, t, j) for j in range(8) for t in range(3)]
    else: seq += [(1, t, j) for t in range(3) for j in range(8)]
    aorder = []
    for s, (h, t, j) in enumerate(seq):
        for tg in afrags(t, j):
            if tg + (h,) not in loc: aorder.append((s, tg + (h,)))
    s_a0, s_a1, s_a2 = 7, 16 - LB, 16 + 5
    bq = []; iq = []; sq = []
    def plain_stats(j):
        ops = []
        for n in (2, 3):
            if j in (1, 2): ops.append(f"v_cndmask_b32 v{acc(j,n)+3}, 0, v{acc(j,n)+3}, s[{62+2*j}:{63+2*j}]")
        for r in range(4):
            for n in (2, 3):
                x = acc(j, n) + r; S = T0 + 4 * (n & 1) + 2; Q = S + 1
                if j == 0 and r == 0: ops.append(f"v_mul_f32 v{Q}, v{x}, v{x}")
                else:
                    ops.append(f"v_fmac_f32 v{Q}, v{x}, v{x}")
                    ops.append(f"v_add_f32 v{S}, v{x-1 if (j == 0 and r == 1) else S}, v{x}")
        return ops
    def pairs_of(h, t, j):
        X, Y = (("F", t, j, h), ("F", t, j + 1, h)) if t < 2 else (("G", 0, j, h), ("G", 1, j, h))
        return X, Y
    s = 0
    while s < len(seq):
        h, t, j = seq[s]
        grp = [seq[s]] if not (jouter and h == 1) else seq[s:s + 3]
        if h == 0 and j == 0:
            a(f"; ---- last chunk pass A step {t}")
            bq = []
            ns_ = range(4) if t == 0 else (range(2) if t == 1 else range(2, 4))
            for n in ns_:
                for pq in range(2):
                    tb = 1 if t == 0 else 2
                    bq += bfrag(("LB", tb, n >> 1), bloc[(tb, pq, n)], n, pq, extra=(tb - 1) * 16384)
        if s == 24:
            a("; ---- last chunk pass B")
            a("s_nop 4")
            stats(0)
            stamp(5)
            iq = image_ops(0)
            free += [breg(1, 1, 0), breg(1, 1, 1)]
        if probes and s >= 18 and (s - 18) % 3 == 0:
            pi = (s - 18) // 3
            a(f"L_probe{pi}:\ns_memrealtime s[{68+2*pi}:{69+2*pi}]")
        if jouter and h == 1 and j >= 1: sq += plain_stats(j - 1)
        slots = [(tt, n) for n in (2 * h, 2 * h + 1) for (_, tt, _) in grp]
        nslot = len(slots)
        for si, (tt, n) in enumerate(slots):
            X, Y = pairs_of(h, tt, j)
            need = {X, Y} | ({("LB", tt, h)} if j == 0 else set())
            if s == s_a2: need |= {("LB", 2, 1)}
            lwait(need)
            pr = [(loc[X], bloc[(tt, 0, n)]), (loc[Y], bloc[(tt, 1, n)])]
            if n % 2 == 1 and len(grp) == 1: pr = pr[::-1]
            for ar, br in pr: mfma(acc(j, n), ar, br)
            if s in (s_a0, s_a1, s_a2) and si == 0: bar()
            cur = s + (si * len(grp)) // nslot
            nq = 0
            while aorder and aorder[0][0] <= cur + LB + (2 if len(grp) > 1 else 0) and free and nq < 2 and not (aorder[0][1][0] == "G" and s < s_a1):
                _, tg = aorder.pop(0)
                d = free.pop(0); loc[tg] = d
                emit(("lds", tg, atext(tg, d))); nq += 1
            for _ in range(2 if (t == 0 and si == 1) else 1):
                if bq: emit(bq.pop(0))
            if iq: emit(iq.pop(0))
            if si >= 2:
                for _ in range(5):
                    if sq: a(sq.pop(0))
            if n % 2 == 1:
                free.append(loc[X])
                if tt == 2 or j == 7: free.append(loc[Y])
        if h == 0 and (j == 7 or s == s_a2 - 1): assert not bq
        assert not sq
        s += len(grp)
    assert not aorder and not iq
    stamp(2)
    if probes:
        for pi in range(10):
            a(f"v_writelane_b32 v{VST}, s{68+2*pi}, {40+pi}")
            a(f"s_mov_b32 s100, L_probe{pi}-{NAME}_kernel\nv_writelane_b32 v{VST2}, s100, {40+pi}")
        a(f"s_getpc_b64 s[100:101]\nL_pq:\ns_sub_u32 s100, s100, L_pq-{NAME}_kernel\nv_writelane_b32 v{VST2}, s100, 50")
    a(f"s_nop 7\ns_mov_b32 s59, {SPIN}")
    if jouter:
        for op in plain_stats(7): a(op)
        a(f"""
        s_nop 0
        v_permlane32_swap_b32 v{T0+3}, v{T0+7}
        v_permlane32_swap_b32 v{T0+2}, v{T0+6}
        s_nop 0
        v_add_f32 v{T0+3}, v{T0+3}, v{T0+7}
        v_add_f32 v{T0+2}, v{T0+2}, v{T0+6}
        v_mov_b32 v{T0+7}, v{T0+3}
        v_mov_b32 v{T0+6}, v{T0+2}
        s_nop 1
        v_permlane16_swap_b32 v{T0+3}, v{T0+7}
        v_permlane16_swap_b32 v{T0+2}, v{T0+6}
        s_nop 0
        v_add_f32 v{T0+3}, v{T0+3}, v{T0+7}
        v_add_f32 v{T0+2}, v{T0+2}, v{T0+6}
        ds_write_b64 v{VPART}, v[{T0+2}:{T0+3}] offset:{PART + 1024}
        """)
    else:
        stats(1)
    stamp(13)
    part_publish("L_cpart", VPRD, 1, 32, VREC, "s[90:91]", 0)
    if not hk: a("s_setprio 0")
    stamp(3)
    a(f"v_add_u32 v{VIMG}, s40, v{VIMG}")
    for op in image_ops(1): emit(op)
    SC, SH, T, O, Y = 16, 24, 32, 40, 48
    a(f"""
    L_imgwait:
    s_mov_b32 s59, {SPIN*4}
    L_img:
    ds_read_b32 v15, v12 offset:{FLAGS+16}
    s_waitcnt lgkmcnt(0)
    v_cmp_eq_u32 vcc, 0, v15
    s_cbranch_vccz L_job
    s_sleep {isleep}
    s_sub_u32 s59, s59, 1
    s_cmp_gt_i32 s59, 0
    s_cbranch_scc1 L_img
    L_job:
    """)
    preread(4)
    a(f"""
    L_fw:
    ds_read_b32 v15, v14 offset:{FLAGS}
    ds_read_b128 v[{SC}:{SC+3}], v11 offset:{CONST}
    ds_read_b128 v[{SC+4}:{SC+7}], v11 offset:{CONST+16}
    ds_read_b128 v[{SH}:{SH+3}], v11 offset:{CONST+512}
    ds_read_b128 v[{SH+4}:{SH+7}], v11 offset:{CONST+528}
    s_waitcnt lgkmcnt(0)
    v_cmp_eq_u32 vcc, 0, v15
    s_cbranch_vccz L_fw_ok
    {"s_sleep %d" % fsleep if fsleep else ""}
    s_sub_u32 s59, s59, 1
    s_cmp_gt_i32 s59, 0
    s_cbranch_scc1 L_fw
    L_fw_ok:
    """)
    if stamps:
        a("s_cmp_eq_u32 s42, 0\ns_cbranch_scc1 L_st8")
        stamp(14)
        a("L_st8:")
    stamp(8)
    def lowprio(lb):
        if hk: a(f"s_setprio 1\ns_cmp_ge_u32 s3, 4\ns_cbranch_scc1 {lb}\ns_setprio 0\n{lb}:")
    lowprio("L_lp1")
    def p(x): return f"v[{x}:{x+1}]"
    for i in (3, 2, 1, 0):
        if i == 1: a("L_g2:")
        h = HH + 8 * i; o = O + 4 * (i & 1)
        for j in range(0, 8, 2): a(f"v_pk_fma_f32 {p(h+j)}, {p(h+j)}, {p(SC+j)}, {p(SH+j)}")
        for j in range(0, 8, 2): a(f"v_pk_fma_f32 {p(T+j)}, {p(h+j)}, {p(h+j)}, s[24:25]")
        for j in range(0, 8, 2): a(f"v_pk_mul_f32 {p(T+j)}, {p(T+j)}, {p(h+j)} neg_lo:[1,0] neg_hi:[1,0]")
        for j in range(8): a(f"v_exp_f32 v{T+j}, v{T+j}")
        for j in range(0, 8, 2): a(f"v_pk_fma_f32 {p(T+j)}, {p(T+j)}, s[26:27], s[26:27]")
        for j in range(8): a(f"v_rcp_f32 v{T+j}, v{T+j}")
        for j in range(0, 8, 2): a(f"v_pk_mul_f32 {p(T+j)}, {p(T+j)}, {p(h+j)}")
        for j in range(0, 8, 2): a(f"v_cvt_pk_bf16_f32 v{o+j//2}, v{T+j}, v{T+j+1}")
        if sthr is not None: a(f"s_waitcnt vmcnt({sthr})")
        if not nostore: a(f"buffer_store_dwordx4 v[{o}:{o+3}], v{10 if i == 0 else VO+i}, s[16:19], 0 offen{omod}")
    a("s_cmp_eq_u32 s42, 0\ns_cbranch_scc1 L_fin")
    if hk: a("s_setprio 2")
    stamp(12)
    a("s_sub_u32 s42, s42, 1\ns_cmp_eq_u32 s42, 0\ns_cbranch_scc1 L_toB")
    a(f"""
    v_add_u32 v8, s0, v6
    v_add_u32 v10, s1, v7
    v_xor_b32 v9, 160, v8
    """)
    preread(2)
    a("s_waitcnt lgkmcnt(0)")
    lowprio("L_lp2")
    a("s_branch L_g2\nL_toB:")
    nextjob_regs()
    if not ded: a("s_cmp_ge_u32 s3, 6\ns_cbranch_scc1 L_gather")
    a("s_branch L_imgwait\nL_fin:")
    if hold in (9, 10) and not stamps: stamp(hold)
    if stamps:
        stamp(9)
        a("s_waitcnt vmcnt(0)")
        stamp(10)
        a(f"""
        s_lshl_b32 s52, s2, 12
        s_lshl_b32 s53, s3, 9
        s_add_u32 s52, s52, s53
        s_add_u32 s52, s52, {STAMP_OFF}
        v_lshlrev_b32 v1, 3, v0
        v_add_u32 v1, s52, v1
        global_store_dwordx2 v1, v[{VST}:{VST2}], s[36:37]
        s_waitcnt vmcnt(0)
        """)
    a("L_end:\ns_endpgm")
    if relayout:
        L = a.lines
        ix = {t: L.index(t) for t in ("L_ltail:", "L_compute:", "L_cloop:", "L_imgwait:", "L_end:")}
        a.lines = (L[:ix["L_ltail:"]] + ["    s_branch L_ltail", ".p2align 12", "L_page:"] +
                   L[ix["L_compute:"]:ix["L_cloop:"]] + ["    s_branch L_cloop"] +
                   L[ix["L_ltail:"]:ix["L_compute:"]] + L[ix["L_imgwait:"]:ix["L_end:"]] + ["    s_endpgm", ".p2align 6"] +
                   L[ix["L_cloop:"]:ix["L_imgwait:"]] + ["    s_branch L_imgwait"] + L[ix["L_end:"]:])
        if hop: a.lines = add_hops(a.lines, [("L_ltail:", "L_end:")], hop, page="L_page:")
    elif hop: a.lines = add_hops(a.lines, [("L_lloop:", "L_compute:"), ("L_cloop:", "L_end:")], hop)
    if align8: a.lines = pad8(a.lines, "L_cloop:", "L_cpart:")
    hazcheck(a.lines)
    return wrap(a.text(), 256, 512, 163840, 256)

if __name__ == "__main__":
    out = sys.argv[1]
    kw = json.loads(sys.argv[2]) if len(sys.argv) > 2 else {}
    open(out, "w").write(gen(**kw))
```

```python
import sys, json, struct
from asmlib import *

def f2u(f): return struct.unpack("<I", struct.pack("<f", f))[0]

LROWS = 7999
C1 = -2.0 * 0.7978845608028654 * 1.4426950408889634
C2 = C1 * 0.044715
KS = (-C2) ** (1.0 / 3.0)
CP = -C1 / KS
SENT = 0xBF800000
A_SLOT = 32768
W_BASE = 98304
MISC = 32768
PART = MISC
CONST = MISC + 2048
FLAGS = MISC + 3072
STAMP_OFF = 1 << 20
SPIN = 0x20000

def gen(stamps=False, xmod="", wmod="", omod=" sc0 sc1", codepf=True, itstamps=False, hold=None, holdus=40,
        parity=True, psleep=0, fsleep=1, rsleep=0, lprio=2, cprio=3, LA=2, LB=3, only=None, wpar=True, jouter=False, ded=False, onebar=False, align8=False, shift=0, pf2=False, isleep=2, probes=False, ilv=True, hop=4096, acc0=None, relayout=True, hopwait=False, nostore=False, gprio=None, hk=False, sthr=None, alt=1, snake=False, amp=None, ampw=None):
    a = Asm()
    VST, VST2 = 2, 3
    def stamp(k):
        if hold == k:
            lb = a.label("L_hold")
            a(f"""s_waitcnt lgkmcnt(0)
            {lb}:
            s_memrealtime s[96:97]
            s_waitcnt lgkmcnt(0)
            s_sub_u32 s96, s96, s92
            s_cmp_lt_u32 s96, {holdus*100}
            s_cbranch_scc1 {lb}""")
        if amp == k: a("s_memrealtime s[94:95]")
        if not stamps or (only is not None and k not in only): return
        a(f"s_memrealtime s[100:101]\ns_waitcnt lgkmcnt(0)\nv_writelane_b32 v{VST}, s100, {k}")
        if k in (1, 2, 8, 9): a(f"s_memtime s[100:101]\ns_waitcnt lgkmcnt(0)\nv_writelane_b32 v{VST2}, s100, {k}")
    def final_setup(role):
        a(f"""
        s_mul_i32 s38, s43, {LROWS}
        s_add_u32 s38, s38, s45
        s_lshl_b32 s38, s38, 10
        s_add_u32 s16, s32, s38
        s_addc_u32 s17, s33, 0
        s_lshl_b32 s18, s47, 10
        s_mov_b32 s19, 0x20000
        v_and_b32 v1, 7, v0                   ; o
        v_lshrrev_b32 v8, 3, v0
        s_and_b32 s38, s49, 1
        s_lshl_b32 s40, s38, 5
        s_add_u32 s40, s40, {64 if role == "c" else 0}
        v_add_u32 v8, s40, v8
        s_lshl_b32 s38, s38, 2
        v_xor_b32 v9, s38, v1                 ; o ^ 4*((row>>5)&1)
        v_bfe_u32 v10, v0, 4, 1               ; f
        v_lshl_add_u32 v9, v10, 3, v9
        v_lshlrev_b32 v9, 4, v9
        v_lshl_add_u32 v9, v8, 8, v9
        s_lshr_b32 s38, s49, 1
        s_lshl_b32 s40, s38, 15
        s_add_u32 s42, s40, {W_BASE}
        v_add_u32 v6, s42, v9
        s_sub_u32 s40, s40, {W_BASE}
        s_lshl_b32 s42, s38, 7
        v_add_u32 v8, s42, v8
        v_lshlrev_b32 v8, 10, v8
        v_lshl_add_u32 v7, v1, 4, v8
        s_lshl_b32 s42, s41, 8
        v_add_u32 v7, s42, v7
        v_lshlrev_b32 v11, 5, v1
        v_and_b32 v14, 1, v0
        v_lshlrev_b32 v14, 2, v14             ; constflag[lane&1]
        v_and_b32 v12, 3, v0
        v_lshlrev_b32 v12, 2, v12             ; imgflag[lane&3]
        v_mov_b32 v13, 1
        v_mov_b32 v8, v6
        v_xor_b32 v9, 160, v6
        v_mov_b32 v10, v7
        s_mov_b32 s24, {f2u(CP)}
        s_mov_b32 s25, {f2u(CP)}
        s_mov_b32 s26, {f2u(KS)}
        s_mov_b32 s27, {f2u(KS)}
        """)
        if not ded: a("s_mov_b32 s42, 1")
        elif role == "l": a("s_mov_b32 s42, 2\ns_mov_b32 s0, 32768\ns_mov_b32 s1, 131072")
        else: a(f"s_add_u32 s42, s38, 1\ns_mov_b32 s0, {(-48*256) & 0xffffffff}\ns_mov_b32 s1, {(-48*1024) & 0xffffffff}")
    HH, VO = 160, 60
    def preread(n):
        for i in range(n - 1, -1, -1):
            a(f"ds_read_b128 v[{HH+8*i}:{HH+8*i+3}], v8 offset:{2048*i}\nds_read_b128 v[{HH+8*i+4}:{HH+8*i+7}], v9 offset:{2048*i}")
        for i in range(1, n): a(f"v_add_u32 v{VO+i}, {8192*i}, v10")
    def part_publish(lbl, vaddr, half, x, vrec, maskreg, sleep):
        a(f"""
        {lbl}:
        ds_read_b128 v[{x}:{x+3}], v{vaddr} offset:{PART + 1024*half}
        s_waitcnt lgkmcnt(0)
        v_min_f32 v1, v{x+1}, v{x+3}
        v_cmp_gt_f32 vcc, 0, v1
        s_cbranch_vccz {lbl}_ok
        {"s_sleep %d" % sleep if sleep else ""}
        s_sub_u32 s59, s59, 1
        s_cmp_gt_i32 s59, 0
        s_cbranch_scc1 {lbl}
        {lbl}_ok:
        """)
        for i in range(4): a(f"v_mov_b32 v{x+4+i}, v{x+i}")
        for i in range(4): a(f"v_permlane32_swap_b32 v{x+i}, v{x+4+i}")
        for i in range(4): a(f"v_add_f32 v{x+i}, v{x+i}, v{x+4+i}")
        a(f"""
        s_mov_b64 exec, {maskreg}
        buffer_store_dwordx4 v[{x}:{x+3}], v{vrec}, s[20:23], 0 offen sc1
        s_mov_b64 exec, -1
        """)
    a(f"""
    s_cmp_ge_u32 s2, 256
    s_cbranch_scc1 L_end
    s_load_dwordx4 s[4:7], s[0:1], 0      ; x, w
    s_load_dwordx4 s[28:31], s[0:1], 16
    s_load_dwordx4 s[32:35], s[0:1], 32
    s_load_dwordx2 s[36:37], s[0:1], 48   ; ws
    """)
    if stamps or hold is not None or amp is not None: a("s_memrealtime s[92:93]")
    if amp is not None: a("s_memrealtime s[94:95]")
    a(f"""
    v_lshrrev_b32 v1, 6, v0
    v_and_b32 v0, 63, v0
    v_readfirstlane_b32 s3, v1
    s_and_b32 s38, s2, 7
    s_bfe_u32 s40, s2, 0x30005
    s_bfe_u32 s41, s2, 0x20003
    s_lshl_b32 s42, s38, 3
    s_add_u32 s42, s42, s40               ; mt 0..63
    s_lshr_b32 s43, s42, 5                ; batch
    s_and_b32 s44, s42, 31
    s_mul_i32 s45, s44, 250
    s_mul_i32 s46, s43, 8000
    s_add_u32 s46, s46, s45
    s_cmp_eq_u32 s44, 31
    s_cselect_b32 s47, 1, 0
    s_sub_u32 s47, 250, s47               ; nvalid
    s_lshl_b32 s48, s43, 2
    s_add_u32 s48, s48, s41
    s_and_b32 s49, s3, 3
    s_cmp_lt_u32 s3, 4
    s_cbranch_scc1 L_compute
    """)
    VA, VW = 56, 60
    a(f"""
    v_lshrrev_b32 v4, 4, v0               ; l>>4
    v_and_b32 v5, 15, v0
    v_lshlrev_b32 v6, 1, v4
    v_xor_b32 v5, v5, v6                  ; W chunk (n<2)
    s_and_b32 s50, s49, 1
    s_lshl_b32 s51, s50, 14
    s_lshl_b32 s52, s41, 8
    s_add_u32 s51, s51, s52
    v_lshlrev_b32 v5, 4, v5
    v_lshl_add_u32 v5, v4, 10, v5
    s_and_b32 s53, s40, {1 if wpar else 0}
    s_mul_i32 s52, s53, {8192 + 128}
    v_add_u32 v5, s51, v5
    v_xor_b32 v{VW}, s52, v5
    v_xor_b32 v{VW+2}, {8192 + 128}, v{VW}
    v_add_u32 v{VW+1}, 3072, v{VW}
    v_add_u32 v{VW+3}, 3072, v{VW+2}
    s_lshl_b32 s51, s49, 12
    s_lshl_b32 s53, s53, 11
    s_add_u32 s51, s51, s53
    s_add_u32 s51, s51, {W_BASE}
    s_lshr_b32 s62, s49, 1                ; lw>=2
    s_lshl_b32 s54, s62, 20               ; sB0
    s_mov_b32 s14, 1572864
    s_mov_b32 s15, 0x20000
    s_mov_b32 m0, s51
    s_waitcnt lgkmcnt(0)
    s_mov_b32 s12, s6
    s_mov_b32 s13, s7
    """)
    if stamps: a(f"v_writelane_b32 v{VST}, s92, 0")
    vq = []
    def issueA(slot_s, soff, tag, halves=(0, 1)):
        for half in halves:
            if half == halves[0]: a(f"s_add_u32 m0, s50, {slot_s}")
            if half == 1: a(f"s_xor_b32 m0, m0, 4096")
            a("s_nop 0")
            for n in range(4):
                vq.append(tag)
                a(f"buffer_load_dwordx4 v{VA+half*2+(n&1)}, s[8:11], {soff} offen offset:{n*1024}{xmod} lds")
    def issueW(slot_s, soff, tag, setm0=True, halves=(0, 1)):
        for half in halves:
            if half == halves[0] and setm0: a(f"s_add_u32 m0, s51, {slot_s}")
            if half == 1: a("s_xor_b32 m0, m0, 2048")
            if setm0 or half == 1: a("s_nop 0")
            for n in range(2):
                vq.append(tag)
                a(f"buffer_load_dwordx4 v{VW+2*half+n}, s[12:15], {soff} offen offset:{n*1024}{wmod} lds")
    def vwait(tags):
        last = max([i for i, t in enumerate(vq) if t in tags], default=-1)
        n = len(vq) - 1 - last
        a(f"s_waitcnt vmcnt({n})")
        return n
    def Aname(k): return f"E{k//3}" if k % 3 < 2 else f"O{k//3}"
    issueW(0, "s54", "B0", setm0=False, halves=(0,) if wpar else (0, 1))
    a(f"""
    v_and_b32 v5, 7, v0
    v_xor_b32 v5, v5, v4
    v_lshlrev_b32 v5, 4, v5
    v_lshrrev_b32 v6, 3, v0
    v_lshl_add_u32 v5, v6, 14, v5
    s_lshl_b32 s52, s62, 18
    s_lshl_b32 s53, s50, 13
    s_add_u32 s52, s52, s53
    s_and_b32 s53, s41, {1 if parity else 0}
    s_lshl_b32 s53, s53, 12
    s_add_u32 s52, s52, s53
    v_add_u32 v{VA}, s52, v5
    v_xor_b32 v{VA+2}, 4096, v{VA}
    v_xor_b32 v{VA+1}, 64, v{VA}
    v_xor_b32 v{VA+3}, 64, v{VA+2}
    v_add_u32 v{VA+1}, {64*2048 - 1024}, v{VA+1}
    v_add_u32 v{VA+3}, {64*2048 - 1024}, v{VA+3}
    s_lshl_b32 s50, s49, 13
    s_add_u32 s50, s50, s53
    s_lshl_b32 s10, s47, 11
    s_add_u32 s10, s10, 1024
    s_mov_b32 s11, 0x20000
    s_lshl_b32 s57, s46, 11
    s_add_u32 s8, s4, s57
    s_addc_u32 s9, s5, 0
    s_mov_b32 s52, 0                      ; x k-offset (E)
    s_mov_b32 s53, 1024                   ; x k-offset (O)
    s_add_u32 s55, s54, 0x8000            ; sB1
    s_lshl_b32 s56, s62, 15
    s_add_u32 s56, s56, 0x80000           ; sB2
    """)
    issueA(0, "s52", "E0", halves=(0,))
    if wpar: issueW(16384, "s55", "B1", halves=(0,))
    R = 80
    NG = 8; MK = 64; G = 96
    a(f"""
    s_mov_b32 s20, s36
    s_mov_b32 s21, s37
    s_mov_b32 s22, 0x40000
    s_mov_b32 s23, 0x20000
    s_lshl_b32 s39, s48, 5
    s_add_u32 s39, s39, s44
    s_lshl_b32 s39, s39, 10
    v_lshlrev_b32 v{R+6}, 4, v0
    v_add_u32 v{R+5}, s39, v{R+6}
    v_and_b32 v1, 15, v0
    v_lshrrev_b32 v5, 5, v0
    v_lshl_add_u32 v5, v1, 1, v5
    s_lshl_b32 s57, s49, 5
    v_add_u32 v{R}, s57, v5
    s_lshl_b32 s57, s41, 7
    v_add_u32 v{R+7}, s57, v{R}
    v_lshlrev_b32 v{R+7}, 1, v{R+7}
    v_lshlrev_b32 v{R}, 2, v{R}
    v_lshlrev_b32 v1, 4, v1
    v_lshl_add_u32 v1, v4, 10, v1
    s_lshl_b32 s57, s48, 15
    s_lshl_b32 s58, s49, 8
    s_add_u32 s57, s57, s58
    v_add_u32 v{R+3}, s57, v1
    s_lshl_b32 s57, s48, 5
    v_mov_b32 v{R+4}, s57
    s_add_u32 s57, s39, s58
    v_lshl_add_u32 v{R+8}, v0, 2, s57
    v_mov_b32 v29, 0
    v_mov_b32 v{R+10}, {SENT}
    v_mov_b32 v{R+11}, {SENT}
    s_lshl_b32 s57, s49, 4
    s_lshl_b64 s[90:91], 0xffff, s57
    """)
    for i in range(NG): a(f"s_mov_b64 s[{MK+2*i}:{MK+2*i+1}], -1")
    for i in range(1, NG): a(f"s_mov_b32 s{80+i}, {i*4096}")
    final_setup("l")
    if wpar: issueW(0, "s54", "B0", halves=(1,))
    issueA(0, "s52", "E0", halves=(1,))
    if wpar: issueW(16384, "s55", "B1", halves=(1,))
    if onebar:
        if not wpar: issueW(16384, "s55", "B1")
        issueW(32768, "s56", "B2")
        stamp(6)
        vwait({"B0", "E0", "B1"}); a("s_barrier")
        stamp(1)
    else:
        vwait({"B0"}); a("s_barrier")
        if not wpar: issueW(16384, "s55", "B1")
    a(f"""
    buffer_store_dword v{R+10}, v{R+8}, s[20:23], 0 offen sc1
    global_load_ushort v{R+1}, v{R+7}, s[28:29]
    global_load_ushort v{R+2}, v{R+7}, s[30:31]
    s_lshl_b32 s57, s49, 9
    v_lshl_add_u32 v{R+7}, v0, 3, s57
    v_lshlrev_b32 v{R+8}, 2, v0
    v_mov_b32 v{R+9}, 0
    """)
    vq += ["S", "g", "g"]
    if not onebar: issueW(32768, "s56", "B2")
    a(f"""
    s_mov_b32 s57, {2*A_SLOT}
    s_mov_b32 s58, {A_SLOT}
    s_mov_b32 s59, 49152
    """)
    if not onebar:
        stamp(6)
        vwait({"E0", "B1"}); a("s_barrier")
        stamp(1)
    def iB(kb, ph, nth=0):
        sreg = ["s54", "s55", "s56"][kb % 3]
        if ph in (0, None): a(f"s_add_u32 {sreg}, {sreg}, 0x10000")
        issueW("s59", sreg, f"B{kb}", halves=(0, 1) if ph is None else (ph,))
        if ph in (1, None): a("s_add_u32 s59, s59, 16384\ns_and_b32 s59, s59, 0xffff")
    def iO(c, ph):
        if c > 0 and ph in (0, None): a("s_add_u32 s53, s53, 128")
        issueA("s58", "s53", f"O{c}", halves=(0, 1) if ph is None else (ph,))
    def iE(c, ph):
        if ph in (0, None): a("s_add_u32 s52, s52, 128")
        issueA("s57", "s52", f"E{c}", halves=(0, 1) if ph is None else (ph,))
        if ph in (1, None): a(f"s_add_u32 s61, s57, s58\ns_mov_b32 s57, s58\ns_sub_u32 s58, {3*A_SLOT}, s61")
    ramp = {-1: [("O", 0), ("B", 3)], 0: [("E", 1), ("B", 4)], 1: [("B", 5), ("O", 1)], 2: [("B", 6), ("E", 2)], 3: [("B", 7), ("B", 8)]}
    def lstep(k):
        c = k // 3
        if k in ramp: todo = list(ramp[k])
        else:
            todo = []
            if k + 5 <= 23: todo.append(("B", k + 5))
            if k % 3 == 1 and c + 1 <= 7: todo.append(("O", c + 1))
            if k % 3 == 2 and c + 2 <= 7: todo.append(("E", c + 2))
        two = ilv and len(todo) == 2 and todo[0][0] != todo[1][0]
        for ph in ((0, 1) if two else (None,)):
            for kind, i in todo: {"B": iB, "O": iO, "E": iE}[kind](i, ph)
        return vwait({Aname(k + 2), f"B{k+3}"})
    for k in range(-1, 4):
        lstep(k); a("s_barrier")
    a("""
    s_mov_b32 s60, 5
    s_and_b32 s62, s44, 3
    s_add_u32 s62, s62, 2
    s_cmp_lg_u32 s49, 0
    s_cselect_b32 s62, 0, s62
    L_lloop:
    """)
    ns = []
    for k in range(4, 7):
        ns.append(lstep(k))
        if k == 6:
            a(f"""
            s_cmp_lg_u32 s60, s62
            s_cbranch_scc1 L_noat
            s_mov_b64 exec, 1
            global_atomic_add v{R+4}, v13, s[34:35]
            s_mov_b64 exec, -1
            L_noat:
            """)
        a("s_barrier")
    a("s_sub_u32 s60, s60, 1\ns_cmp_lg_u32 s60, 0\ns_cbranch_scc1 L_lloop")
    keep = len(a.lines)
    for k in range(7, 19):
        n = lstep(k); assert n >= ns[(k - 4) % 3], (k, n, ns)
    del a.lines[keep:]
    if pf2:
        a(f"""
        s_getpc_b64 s[88:89]
        L_pfbase2:
        s_sub_u32 s88, s88, L_pfbase2-{NAME}_kernel
        s_subb_u32 s89, s89, 0
        s_lshl_b32 s61, s49, 12
        v_and_b32 v1, 31, v0
        v_lshl_add_u32 v1, v1, 7, s61
        v_min_u32 v1, L_end-{NAME}_kernel, v1
        global_load_dword v16, v1, s[88:89]
        """)
        vq.append("c")
    lstep(19); a("s_barrier")
    a("L_ltail:")
    stamp(11)
    a(f"""
    ds_write_b64 v{R+7}, v[{R+10}:{R+11}] offset:{PART}
    ds_write_b32 v{R+8}, v{R+9} offset:{FLAGS}
    s_waitcnt lgkmcnt(0)
    """)
    vwait({"B23"}); a("s_barrier")
    a(f"""
    s_waitcnt vmcnt(0)
    s_barrier
    global_load_dword v{R+9}, v{R+4}, s[34:35] sc1
    s_mov_b32 s52, {f2u(KS)}
    v_lshlrev_b32 v{R+1}, 16, v{R+1}
    v_lshlrev_b32 v{R+2}, 16, v{R+2}
    v_mul_f32 v{R+1}, s52, v{R+1}
    v_mul_f32 v{R+2}, s52, v{R+2}
    s_mov_b32 s59, {SPIN}
    s_barrier
    """)
    stamp(2)
    if lprio: a(f"s_setprio {lprio}")
    def nextjob_regs():
        a(f"""
        v_add_u32 v8, s40, v6
        v_add_u32 v10, 128, v7
        v_xor_b32 v9, 160, v8
        v_add_u32 v11, 256, v11
        v_add_u32 v14, 8, v14
        v_add_u32 v12, 16, v12
        """)
    a("s_cmp_ge_u32 s49, 2\ns_cbranch_scc1 L_nopub")
    part_publish("L_part", R + 6, 0, G, R + 5, "s[90:91]", psleep)
    stamp(3)
    a(f"""
    L_nopub:
    L_cnt:
    s_waitcnt vmcnt(0)
    v_readfirstlane_b32 s52, v{R+9}
    s_cmp_ge_u32 s52, 32
    s_cbranch_scc1 L_cnt_ok
    s_sleep 32
    global_load_dword v{R+9}, v{R+4}, s[34:35] sc1
    s_sub_u32 s59, s59, 1
    s_cmp_gt_i32 s59, 0
    s_cbranch_scc1 L_cnt
    L_cnt_ok:
    s_cmp_lt_u32 s49, 2
    s_cbranch_scc1 L_gather
    """)
    if ded:
        a(f"""
        s_mov_b32 s42, 0
        """)
        nextjob_regs()
        a(f"""
        s_mov_b32 s59, {SPIN}
        L_img2:
        ds_read_b32 v15, v12 offset:{FLAGS+16}
        s_waitcnt lgkmcnt(0)
        v_cmp_eq_u32 vcc, 0, v15
        s_cbranch_vccz L_img2_ok
        s_sleep 1
        s_sub_u32 s59, s59, 1
        s_cmp_gt_i32 s59, 0
        s_cbranch_scc1 L_img2
        L_img2_ok:
        """)
        preread(4)
    else:
        a("s_branch L_imgwait")
    a("L_gather:")
    if stamps: a("s_mov_b32 s94, 0")
    a(f"s_mov_b32 s59, {SPIN}\nL_poll:")
    if stamps: a("s_add_u32 s94, s94, 1")
    for i in range(NG):
        a(f"s_or_b64 exec, s[{MK+2*i}:{MK+2*i+1}], 1")
        a(f"buffer_load_dwordx4 v[{G+4*i}:{G+4*i+3}], v{R+3}, s[20:23], {'s%d' % (80+i) if i else 0} offen sc1")
    a("s_mov_b64 exec, -1\ns_waitcnt vmcnt(0)")
    for i in range(NG):
        a(f"v_min_f32 v1, v{G+4*i+1}, v{G+4*i+3}")
        a(f"v_cmp_gt_f32 s[{MK+2*i}:{MK+2*i+1}], 0, v1")
    a(f"s_or_b64 s[52:53], s[{MK}:{MK+1}], s[{MK+2}:{MK+3}]")
    for i in range(2, NG):
        a(f"s_or_b64 s[52:53], s[52:53], s[{MK+2*i}:{MK+2*i+1}]")
    a(f"""
    s_cbranch_scc0 L_poll_done
    {"s_sleep %d" % rsleep if rsleep else ""}
    s_sub_u32 s59, s59, 1
    s_cmp_gt_i32 s59, 0
    s_cbranch_scc1 L_poll
    L_poll_done:
    """)
    if stamps: a(f"v_writelane_b32 v{VST2}, s94, 63")
    stamp(4)
    for step_ in (4, 2, 1):
        for i in range(step_):
            for h in range(4):
                x = G + 4 * i + h; y = G + 4 * (i + step_) + h
                a(f"v_add_f32 v{x}, v{x}, v{y}")
    x = G
    a(f"""
    s_mov_b32 s52, {f2u(1.0/LROWS)}
    s_nop 0
    v_permlane32_swap_b32 v{x}, v{x+2}
    v_permlane32_swap_b32 v{x+1}, v{x+3}
    s_nop 1
    v_add_f32 v{x}, v{x}, v{x+2}
    v_add_f32 v{x+1}, v{x+1}, v{x+3}
    v_mov_b32 v{x+2}, v{x}
    v_mov_b32 v{x+3}, v{x+1}
    s_nop 1
    v_permlane16_swap_b32 v{x}, v{x+2}
    v_permlane16_swap_b32 v{x+1}, v{x+3}
    s_nop 1
    v_add_f32 v{x}, v{x}, v{x+2}
    v_add_f32 v{x+1}, v{x+1}, v{x+3}
    v_mul_f32 v{G}, s52, v{G}             ; mean
    v_mul_f32 v{G+1}, s52, v{G+1}         ; E[h^2]
    v_fma_f32 v{G+1}, -v{G}, v{G}, v{G+1} ; var
    v_max_f32 v{G+1}, 0, v{G+1}
    v_add_f32 v{G+1}, {f2u(1e-5)}, v{G+1}
    v_rsq_f32 v{G+1}, v{G+1}
    s_lshl_b32 s52, s49, 2
    v_mul_f32 v{G+1}, v{G+1}, v{R+1}      ; KS*scale
    v_mov_b32 v1, s52
    v_fma_f32 v{G}, -v{G}, v{G+1}, v{R+2} ; KS*shift
    ds_write_b32 v{R}, v{G+1} offset:{CONST}
    ds_write_b32 v{R}, v{G} offset:{CONST+512}
    ds_write_b32 v1, v13 offset:{FLAGS}
    s_mov_b32 s59, {SPIN*4}
    """)
    if gprio is not None: a(f"s_setprio {gprio}")
    if ded: a("s_cmp_ge_u32 s49, 2\ns_cbranch_scc1 L_fw")
    a("s_branch L_imgwait")

    ACC = 128
    def acc(j, n): return ACC + (j * 4 + n) * 4
    BF = 64; AF = 32; NRING = 8
    aE, aE8, aO, bB = 16, 18, 20, 22
    VIMG, VPART, VPRD, VREC = 26, 27, 28, 29
    a("L_compute:")
    if codepf:
        a(f"""
        s_getpc_b64 s[52:53]
        L_pfbase:
        s_sub_u32 s52, s52, L_pfbase-{NAME}_kernel
        s_subb_u32 s53, s53, 0
        s_lshl_b32 s50, s49, 5
        s_add_u32 s50, s50, s40
        s_lshl_b32 s50, s50, 7
        v_lshl_add_u32 v1, v0, 10, s50
        v_min_u32 v1, L_end-{NAME}_kernel, v1
        s_mov_b64 exec, 15
        global_load_dword v30, v1, s[52:53]
        s_mov_b64 exec, -1
        """)
    a(f"""
    s_lshr_b32 s50, s49, 1                ; wm
    s_and_b32 s51, s49, 1                 ; wn
    v_and_b32 v32, 15, v0                 ; i
    v_lshrrev_b32 v33, 4, v0              ; g
    s_lshl_b32 s52, s50, 14
    v_bfe_u32 v34, v32, 1, 3
    v_xor_b32 v34, v34, v33
    v_lshlrev_b32 v34, 4, v34
    v_lshl_add_u32 v34, v32, 7, v34
    v_add_u32 v{aE}, s52, v34
    v_xor_b32 v{aE+1}, 64, v{aE}
    v_add_u32 v{aO}, {A_SLOT}, v{aE}
    v_add_u32 v{aO+1}, {A_SLOT}, v{aE+1}
    v_add_u32 v35, 1, v32
    s_mul_i32 s52, s50, 127
    s_add_u32 s52, s52, 128
    s_lshl_b32 s53, s50, 7
    v_add_u32 v35, s53, v35
    v_mov_b32 v36, s52
    v_cmp_eq_u32 vcc, 15, v32
    s_nop 1
    v_cndmask_b32 v35, v35, v36, vcc
    v_bfe_u32 v34, v35, 1, 3
    v_xor_b32 v34, v34, v33
    v_lshlrev_b32 v34, 4, v34
    v_lshl_add_u32 v{aE8}, v35, 7, v34
    v_xor_b32 v{aE8+1}, 64, v{aE8}
    v_bfe_u32 v34, v0, 2, 2
    v_lshl_add_u32 v35, v33, 3, v34
    v_bfe_u32 v34, v0, 2, 3
    v_lshlrev_b32 v34, 5, v34
    s_lshl_b32 s52, s51, 6
    v_xor_b32 v34, s52, v34
    v_and_b32 v36, 3, v0
    v_lshl_add_u32 v34, v36, 3, v34
    v_lshl_add_u32 v34, v35, 8, v34
    v_add_u32 v{bB}, {W_BASE}, v34
    v_xor_b32 v{bB+1}, 32, v{bB}
    v_xor_b32 v{bB+2}, 128, v{bB}
    v_xor_b32 v{bB+3}, 160, v{bB}
    s_mov_b64 s[64:65], -1
    s_mov_b64 s[66:67], -1
    s_cmp_eq_u32 s50, 0
    s_cbranch_scc1 L_nomask
    s_cmp_eq_u32 s47, 249
    s_cselect_b32 s65, 0xffff, -1
    s_cselect_b32 s67, -1, 0xffff
    L_nomask:
    v_bfe_u32 v34, v32, 2, 1
    v_mul_u32_u24 v34, 10, v34
    v_lshrrev_b32 v35, 3, v32
    v_or_b32 v34, v34, v35
    v_and_b32 v35, 1, v33
    v_xor_b32 v35, s51, v35
    v_lshl_add_u32 v34, v35, 2, v34
    v_lshlrev_b32 v34, 4, v34
    v_and_b32 v35, 3, v32
    v_lshl_add_u32 v34, v35, 2, v34
    v_lshl_add_u32 v34, v33, 13, v34
    s_lshl_b32 s52, s50, 15
    s_add_u32 s52, s52, {W_BASE}
    v_add_u32 v{VIMG}, s52, v34
    v_lshrrev_b32 v34, 5, v0
    v_lshl_add_u32 v34, v34, 4, v32
    s_lshl_b32 s52, s49, 8
    v_lshl_add_u32 v{VPART}, v34, 3, s52
    v_lshlrev_b32 v{VPRD}, 4, v0
    s_lshl_b32 s39, s48, 5
    s_add_u32 s39, s39, s44
    s_lshl_b32 s39, s39, 10
    s_add_u32 s39, s39, 512
    v_add_u32 v{VREC}, s39, v{VPRD}
    s_lshl_b32 s52, s49, 3
    s_lshl_b64 s[90:91], 0xff, s52
    s_lshl_b32 s52, s49, 2
    v_mov_b32 v15, s52
    s_waitcnt lgkmcnt(0)
    s_mov_b32 s20, s36
    s_mov_b32 s21, s37
    s_mov_b32 s22, 0x40000
    s_mov_b32 s23, 0x20000
    """)
    final_setup("c")
    if acc0 is None:
        for i in range(0, 128, 2): a(f"v_mov_b64 v[{ACC+i}:{ACC+i+1}], 0")
    else:
        for i in range(128): a(f"v_mov_b32 v{ACC+i}, {f2u(acc0)}")
    if stamps: a(f"v_writelane_b32 v{VST}, s92, 0")
    a(f"""
    s_mov_b32 s54, 0                      ; sE
    s_mov_b32 s55, {A_SLOT}               ; sO
    s_mov_b32 s56, 0
    s_mov_b32 s57, 4
    s_mov_b32 s63, 16384
    s_mov_b32 s61, 16
    """)
    if hop:
        if hopwait: a("s_waitcnt vmcnt(0)")
        a("""
        s_mov_b64 exec, 0
        s_cmp_eq_u32 s49, 0
        s_cbranch_scc1 L_hopg0
        s_cmp_eq_u32 s49, 1
        s_cbranch_scc1 L_hopg1
        s_cmp_eq_u32 s49, 2
        s_cbranch_scc1 L_hopg2
        s_branch L_hopg3
        L_hopret:
        s_mov_b64 exec, -1
        """)
    stamp(7)
    a("s_barrier")
    lq = []; ring = {}; rpos = [0]; occ = {}; dead = set()
    def afrags(t, j):
        if t < 2:
            return [("F", t, 0), ("F", t, 1)] if j == 0 else [("F", t, j + 1)]
        return [("G", 0, j), ("G", 1, j)]
    def atext(tag, d):
        kind, x, j = tag[:3]
        if kind == "F":
            if j < 8: return f"ds_read_b128 v[{d}:{d+3}], v{aE+x} offset:{j*2048}"
            return f"ds_read_b128 v[{d}:{d+3}], v{aE8+x}"
        return f"ds_read_b128 v[{d}:{d+3}], v{aO+x} offset:{j*2048}"
    def aread(tag):
        idx = rpos[0] % NRING; rpos[0] += 1
        if tag[0] == "F" and tag[2] == 8: rpos[0] += 1
        if idx in occ: assert occ[idx] in dead, (tag, idx, occ[idx])
        occ[idx] = tag; dead.discard(tag)
        ring[tag] = idx
        return ("lds", tag, atext(tag, AF + idx * 4))
    def bfrag(tag, d, n, pq, extra=0):
        return [("lds", tag, f"ds_read_b64_tr_b16 v[{d+2*h}:{d+2*h+1}], v{bB+n} offset:{extra + pq*8192 + h*1024}") for h in range(2)]
    def breg(buf, pq, n): return BF + buf * 32 + (pq * 4 + n) * 4
    def breads(buf):
        r = []
        for n in range(4):
            for pq in range(2): r += bfrag(("B", buf), breg(buf, pq, n), n, pq)
        return r
    def emit(op):
        if isinstance(op, tuple):
            lq.append(op[1]); a(op[2])
        else: a(op)
    def lwait(tags):
        last = max([i for i, t in enumerate(lq) if t in tags], default=-1)
        if last < 0: return
        n = min(15, len(lq) - 1 - last)
        a(f"s_waitcnt lgkmcnt({n})")
        del lq[:len(lq) - n]
    def badv():
        return ["s_add_u32 s56, s56, 16384", "s_cmp_eq_u32 s56, 0x10000", "s_cselect_b32 s58, 0xffff4000, s63", "s_and_b32 s56, s56, 0xffff"] + \
               [f"v_add_u32 v{bB+n}, s58, v{bB+n}" for n in range(4)]
    def mfma(d, ar, br): a(f"v_mfma_f32_16x16x32_bf16 v[{d}:{d+3}], v[{ar}:{ar+3}], v[{br}:{br+3}], v[{d}:{d+3}]")
    def bar():
        a("s_barrier")
        if itstamps:
            a(f"s_mov_b32 m0, s61\ns_add_u32 s61, s61, 1\nv_writelane_b32 v{VST}, s96, m0\nv_writelane_b32 v{VST2}, s98, m0")
            a("s_memrealtime s[96:97]\ns_memtime s[98:99]")
    if onebar: stamp(1)
    for op in breads(0): emit(op)
    for op in badv(): a(op)
    if not onebar:
        a("s_waitcnt lgkmcnt(0)")
        a("s_barrier")
        stamp(1)
    lq[:] = []
    if itstamps: a("s_memrealtime s[96:97]\ns_memtime s[98:99]")
    for j in range(LA):
        for tg in afrags(0, j): emit(aread(tg))
    for _ in range(shift): a("s_nop 0")
    init_state = (list(lq), dict(ring), rpos[0] % NRING)
    def step(k):
        t = k % 3; buf = k & 1
        tn = (t + 1) % 3
        bq = breads(buf ^ 1)
        JB = 8 - LA
        nb_per = -(-16 // (JB - 1))
        for j in range(8):
            X, Y = (("F", t, j), ("F", t, j + 1)) if t < 2 else (("G", 0, j), ("G", 1, j))
            need = {X, Y}
            if j == 0: need.add(("B", buf))
            q = []
            if j == JB: lwait(set(lq))
            else: lwait(need)
            if j + LA < 8: q += [("A", tg) for tg in afrags(t, j + LA)]
            else: q += [("A", tg) for tg in afrags(tn, j + LA - 8)]
            for _ in range(nb_per):
                if bq: q.append(bq.pop(0))
            if j == JB - 1: q += badv()
            if t == 1 and j == 7:
                q += [f"s_add_u32 s59, s54, s55", f"s_sub_u32 s59, {3*A_SLOT}, s59", "s_sub_u32 s60, s59, s54"]
                q += [f"v_add_u32 v{r}, s60, v{r}" for r in (aE, aE + 1, aE8, aE8 + 1)]
            if t == 2 and j == 7:
                q += ["s_sub_u32 s60, s54, s55", "s_mov_b32 s55, s54", "s_mov_b32 s54, s59"]
                q += [f"v_add_u32 v{r}, s60, v{r}" for r in (aO, aO + 1)]
                if k == 2: q += ["s_sub_u32 s57, s57, 1", "s_cmp_eq_u32 s57, 0"]
            xr = AF + ring[X] * 4; yr = AF + ring[Y] * 4
            per = -(-len(q) // 4)
            for ni in range(4):
                n = 3 - ni if (snake and j % 2 == 1) else ni
                pr = [(xr, breg(buf, 0, n)), (yr, breg(buf, 1, n))]
                if alt is not None and ni % 2 == alt: pr = pr[::-1]
                for ar, br in pr: mfma(acc(j, n), ar, br)
                if j == JB and ni == 0: bar()
                for _ in range(per):
                    if q:
                        op = q.pop(0)
                        if isinstance(op, tuple) and op[0] == "A": op = aread(op[1])
                        emit(op)
            assert not q
            dead.add(X)
            if t == 2 or j == 7: dead.add(Y)
        assert not bq
    a("L_cloop:")
    for k in range(6):
        a(f"; ---- step {k}")
        step(k)
        if k == 2:
            saved = (list(lq), dict(ring))
            a("s_cbranch_scc1 L_clast")
    end_state = (list(lq), {k_: v for k_, v in ring.items() if k_ in init_state[1]}, rpos[0] % NRING)
    assert end_state == init_state, (end_state, init_state)
    a("s_branch L_cloop")
    a("L_clast:")
    if cprio: a(f"s_setprio {cprio}")
    stamp(11)
    lq[:] = [t + (0,) for t in saved[0]]
    loc = {t + (0,): AF + saved[1][t] * 4 for t in saved[0]}
    free = [AF + 4 * i for i in range(NRING) if AF + 4 * i not in loc.values()]
    bloc = {}
    for n in range(4):
        for pq in range(2):
            bloc[(0, pq, n)] = breg(1, pq, n); bloc[(1, pq, n)] = breg(0, pq, n)
            bloc[(2, pq, n)] = breg(1, pq, n) if n < 2 else breg(0, pq, n - 2)
    T0 = breg(1, 0, 0)
    def stats(h):
        for n in (2 * h, 2 * h + 1):
            a(f"v_cndmask_b32 v{acc(1,n)+3}, 0, v{acc(1,n)+3}, s[64:65]")
            a(f"v_cndmask_b32 v{acc(2,n)+3}, 0, v{acc(2,n)+3}, s[66:67]")
        for j in range(8):
            for hh in range(2):
                for n in (2 * h, 2 * h + 1):
                    x = acc(j, n) + 2 * hh; S = T0 + 4 * (n & 1); Q = S + 2
                    if j == 0 and hh == 0:
                        a(f"v_pk_mul_f32 v[{Q}:{Q+1}], v[{x}:{x+1}], v[{x}:{x+1}]")
                    else:
                        a(f"v_pk_fma_f32 v[{Q}:{Q+1}], v[{x}:{x+1}], v[{x}:{x+1}], v[{Q}:{Q+1}]")
                        src = f"v[{x-2}:{x-1}]" if j == 0 else f"v[{S}:{S+1}]"
                        a(f"v_pk_add_f32 v[{S}:{S+1}], {src}, v[{x}:{x+1}]")
        a(f"""
        v_add_f32 v{T0}, v{T0}, v{T0+1}
        v_add_f32 v{T0+4}, v{T0+4}, v{T0+5}
        v_add_f32 v{T0+1}, v{T0+2}, v{T0+3}
        v_add_f32 v{T0+5}, v{T0+6}, v{T0+7}
        s_nop 0
        v_permlane32_swap_b32 v{T0}, v{T0+4}
        v_permlane32_swap_b32 v{T0+1}, v{T0+5}
        s_nop 0
        v_add_f32 v{T0}, v{T0}, v{T0+4}
        v_add_f32 v{T0+1}, v{T0+1}, v{T0+5}
        v_mov_b32 v{T0+4}, v{T0}
        v_mov_b32 v{T0+5}, v{T0+1}
        s_nop 1
        v_permlane16_swap_b32 v{T0}, v{T0+4}
        v_permlane16_swap_b32 v{T0+1}, v{T0+5}
        s_nop 0
        v_add_f32 v{T0}, v{T0}, v{T0+4}
        v_add_f32 v{T0+1}, v{T0+1}, v{T0+5}
        """)
        emit(("lds", "P", f"ds_write_b64 v{VPART}, v[{T0}:{T0+1}] offset:{PART + 1024*h}"))
    def image_ops(h):
        ops = []
        for n in (2 * h, 2 * h + 1):
            for f in range(2):
                ops.append(f"v_xor_b32 v{4+f}, {((n&1)<<5) ^ (f<<7)}, v{VIMG}")
                for j in range(8):
                    if (j >> 1) & 1 != f: continue
                    for r in (0, 2):
                        x = acc(j, n) + r
                        ops.append(("lds", "I", f"ds_write2st64_b32 v{4+f}, v{x}, v{x+1} offset0:{8*r+j} offset1:{8*(r+1)+j}"))
        ops.append(("lds", "F", f"ds_write_b32 v15, v13 offset:{FLAGS + 16 + 16*h}"))
        return ops
    seq = [(0, t, j) for t in range(3) for j in range(8)]
    if jouter: seq += [(1, t, j) for j in range(8) for t in range(3)]
    else: seq += [(1, t, j) for t in range(3) for j in range(8)]
    aorder = []
    for s, (h, t, j) in enumerate(seq):
        for tg in afrags(t, j):
            if tg + (h,) not in loc: aorder.append((s, tg + (h,)))
    s_a0, s_a1, s_a2 = 7, 16 - LB, 16 + 5
    bq = []; iq = []; sq = []
    def plain_stats(j):
        ops = []
        for n in (2, 3):
            if j in (1, 2): ops.append(f"v_cndmask_b32 v{acc(j,n)+3}, 0, v{acc(j,n)+3}, s[{62+2*j}:{63+2*j}]")
        for r in range(4):
            for n in (2, 3):
                x = acc(j, n) + r; S = T0 + 4 * (n & 1) + 2; Q = S + 1
                if j == 0 and r == 0: ops.append(f"v_mul_f32 v{Q}, v{x}, v{x}")
                else:
                    ops.append(f"v_fmac_f32 v{Q}, v{x}, v{x}")
                    ops.append(f"v_add_f32 v{S}, v{x-1 if (j == 0 and r == 1) else S}, v{x}")
        return ops
    def pairs_of(h, t, j):
        X, Y = (("F", t, j, h), ("F", t, j + 1, h)) if t < 2 else (("G", 0, j, h), ("G", 1, j, h))
        return X, Y
    s = 0
    while s < len(seq):
        h, t, j = seq[s]
        grp = [seq[s]] if not (jouter and h == 1) else seq[s:s + 3]
        if h == 0 and j == 0:
            a(f"; ---- last chunk pass A step {t}")
            bq = []
            ns_ = range(4) if t == 0 else (range(2) if t == 1 else range(2, 4))
            for n in ns_:
                for pq in range(2):
                    tb = 1 if t == 0 else 2
                    bq += bfrag(("LB", tb, n >> 1), bloc[(tb, pq, n)], n, pq, extra=(tb - 1) * 16384)
        if s == 24:
            a("; ---- last chunk pass B")
            a("s_nop 4")
            stats(0)
            stamp(5)
            iq = image_ops(0)
            free += [breg(1, 1, 0), breg(1, 1, 1)]
        if probes and s >= 18 and (s - 18) % 3 == 0:
            pi = (s - 18) // 3
            a(f"L_probe{pi}:\ns_memrealtime s[{68+2*pi}:{69+2*pi}]")
        if jouter and h == 1 and j >= 1: sq += plain_stats(j - 1)
        slots = [(tt, n) for n in (2 * h, 2 * h + 1) for (_, tt, _) in grp]
        nslot = len(slots)
        for si, (tt, n) in enumerate(slots):
            X, Y = pairs_of(h, tt, j)
            need = {X, Y} | ({("LB", tt, h)} if j == 0 else set())
            if s == s_a2: need |= {("LB", 2, 1)}
            lwait(need)
            pr = [(loc[X], bloc[(tt, 0, n)]), (loc[Y], bloc[(tt, 1, n)])]
            if n % 2 == 1 and len(grp) == 1: pr = pr[::-1]
            for ar, br in pr: mfma(acc(j, n), ar, br)
            if s in (s_a0, s_a1, s_a2) and si == 0: bar()
            cur = s + (si * len(grp)) // nslot
            nq = 0
            while aorder and aorder[0][0] <= cur + LB + (2 if len(grp) > 1 else 0) and free and nq < 2 and not (aorder[0][1][0] == "G" and s < s_a1):
                _, tg = aorder.pop(0)
                d = free.pop(0); loc[tg] = d
                emit(("lds", tg, atext(tg, d))); nq += 1
            for _ in range(2 if (t == 0 and si == 1) else 1):
                if bq: emit(bq.pop(0))
            if iq: emit(iq.pop(0))
            if si >= 2:
                for _ in range(5):
                    if sq: a(sq.pop(0))
            if n % 2 == 1:
                free.append(loc[X])
                if tt == 2 or j == 7: free.append(loc[Y])
        if h == 0 and (j == 7 or s == s_a2 - 1): assert not bq
        assert not sq
        s += len(grp)
    assert not aorder and not iq
    stamp(2)
    if probes:
        for pi in range(10):
            a(f"v_writelane_b32 v{VST}, s{68+2*pi}, {40+pi}")
            a(f"s_mov_b32 s100, L_probe{pi}-{NAME}_kernel\nv_writelane_b32 v{VST2}, s100, {40+pi}")
        a(f"s_getpc_b64 s[100:101]\nL_pq:\ns_sub_u32 s100, s100, L_pq-{NAME}_kernel\nv_writelane_b32 v{VST2}, s100, 50")
    a(f"s_nop 7\ns_mov_b32 s59, {SPIN}")
    if jouter:
        for op in plain_stats(7): a(op)
        a(f"""
        s_nop 0
        v_permlane32_swap_b32 v{T0+3}, v{T0+7}
        v_permlane32_swap_b32 v{T0+2}, v{T0+6}
        s_nop 0
        v_add_f32 v{T0+3}, v{T0+3}, v{T0+7}
        v_add_f32 v{T0+2}, v{T0+2}, v{T0+6}
        v_mov_b32 v{T0+7}, v{T0+3}
        v_mov_b32 v{T0+6}, v{T0+2}
        s_nop 1
        v_permlane16_swap_b32 v{T0+3}, v{T0+7}
        v_permlane16_swap_b32 v{T0+2}, v{T0+6}
        s_nop 0
        v_add_f32 v{T0+3}, v{T0+3}, v{T0+7}
        v_add_f32 v{T0+2}, v{T0+2}, v{T0+6}
        ds_write_b64 v{VPART}, v[{T0+2}:{T0+3}] offset:{PART + 1024}
        """)
    else:
        stats(1)
    stamp(13)
    part_publish("L_cpart", VPRD, 1, 32, VREC, "s[90:91]", 0)
    if not hk: a("s_setprio 0")
    stamp(3)
    a(f"v_add_u32 v{VIMG}, s40, v{VIMG}")
    for op in image_ops(1): emit(op)
    SC, SH, T, O, Y = 16, 24, 32, 40, 48
    a(f"""
    L_imgwait:
    s_mov_b32 s59, {SPIN*4}
    L_img:
    ds_read_b32 v15, v12 offset:{FLAGS+16}
    s_waitcnt lgkmcnt(0)
    v_cmp_eq_u32 vcc, 0, v15
    s_cbranch_vccz L_job
    s_sleep {isleep}
    s_sub_u32 s59, s59, 1
    s_cmp_gt_i32 s59, 0
    s_cbranch_scc1 L_img
    L_job:
    """)
    preread(4)
    a(f"""
    L_fw:
    ds_read_b32 v15, v14 offset:{FLAGS}
    ds_read_b128 v[{SC}:{SC+3}], v11 offset:{CONST}
    ds_read_b128 v[{SC+4}:{SC+7}], v11 offset:{CONST+16}
    ds_read_b128 v[{SH}:{SH+3}], v11 offset:{CONST+512}
    ds_read_b128 v[{SH+4}:{SH+7}], v11 offset:{CONST+528}
    s_waitcnt lgkmcnt(0)
    v_cmp_eq_u32 vcc, 0, v15
    s_cbranch_vccz L_fw_ok
    {"s_sleep %d" % fsleep if fsleep else ""}
    s_sub_u32 s59, s59, 1
    s_cmp_gt_i32 s59, 0
    s_cbranch_scc1 L_fw
    L_fw_ok:
    """)
    if stamps:
        a("s_cmp_eq_u32 s42, 0\ns_cbranch_scc1 L_st8")
        stamp(14)
        a("L_st8:")
    stamp(8)
    def lowprio(lb):
        if hk: a(f"s_setprio 1\ns_cmp_ge_u32 s3, 4\ns_cbranch_scc1 {lb}\ns_setprio 0\n{lb}:")
    lowprio("L_lp1")
    def p(x): return f"v[{x}:{x+1}]"
    for i in (3, 2, 1, 0):
        if i == 1: a("L_g2:")
        h = HH + 8 * i; o = O + 4 * (i & 1)
        for j in range(0, 8, 2): a(f"v_pk_fma_f32 {p(h+j)}, {p(h+j)}, {p(SC+j)}, {p(SH+j)}")
        for j in range(0, 8, 2): a(f"v_pk_fma_f32 {p(T+j)}, {p(h+j)}, {p(h+j)}, s[24:25]")
        for j in range(0, 8, 2): a(f"v_pk_mul_f32 {p(T+j)}, {p(T+j)}, {p(h+j)} neg_lo:[1,0] neg_hi:[1,0]")
        for j in range(8): a(f"v_exp_f32 v{T+j}, v{T+j}")
        for j in range(0, 8, 2): a(f"v_pk_fma_f32 {p(T+j)}, {p(T+j)}, s[26:27], s[26:27]")
        for j in range(8): a(f"v_rcp_f32 v{T+j}, v{T+j}")
        for j in range(0, 8, 2): a(f"v_pk_mul_f32 {p(T+j)}, {p(T+j)}, {p(h+j)}")
        for j in range(0, 8, 2): a(f"v_cvt_pk_bf16_f32 v{o+j//2}, v{T+j}, v{T+j+1}")
        if sthr is not None: a(f"s_waitcnt vmcnt({sthr})")
        if not nostore: a(f"buffer_store_dwordx4 v[{o}:{o+3}], v{10 if i == 0 else VO+i}, s[16:19], 0 offen{omod}")
    a("s_cmp_eq_u32 s42, 0\ns_cbranch_scc1 L_fin")
    if hk: a("s_setprio 2")
    stamp(12)
    a("s_sub_u32 s42, s42, 1\ns_cmp_eq_u32 s42, 0\ns_cbranch_scc1 L_toB")
    a(f"""
    v_add_u32 v8, s0, v6
    v_add_u32 v10, s1, v7
    v_xor_b32 v9, 160, v8
    """)
    preread(2)
    a("s_waitcnt lgkmcnt(0)")
    lowprio("L_lp2")
    a("s_branch L_g2\nL_toB:")
    nextjob_regs()
    if not ded: a("s_cmp_ge_u32 s3, 6\ns_cbranch_scc1 L_gather")
    a("s_branch L_imgwait\nL_fin:")
    if hold in (9, 10) and not stamps: stamp(hold)
    if amp is not None:
        a("s_waitcnt vmcnt(0)")
        if amp == 10: stamp(10)
        a("s_waitcnt lgkmcnt(0)")
        if ampw == "c": a("s_cmp_ge_u32 s3, 4\ns_cselect_b32 s94, s92, s94")
        if ampw == "l": a("s_cmp_lt_u32 s3, 4\ns_cselect_b32 s94, s92, s94")
        a(f"""
        s_not_b32 s95, s92
        v_mov_b32 v4, s94
        v_mov_b32 v5, s95
        v_mov_b32 v1, 8
        s_mov_b64 exec, 1
        global_atomic_umax v1, v4, s[34:35]
        global_atomic_umax v1, v5, s[34:35] offset:4
        s_waitcnt vmcnt(0)
        L_amp1:
        s_sleep 8
        s_memrealtime s[96:97]
        s_waitcnt lgkmcnt(0)
        s_sub_u32 s96, s96, s92
        s_cmp_lt_u32 s96, 6000
        s_cbranch_scc1 L_amp1
        global_load_dwordx2 v[4:5], v1, s[34:35] sc1
        s_waitcnt vmcnt(0)
        v_readfirstlane_b32 s94, v4
        v_readfirstlane_b32 s95, v5
        s_not_b32 s95, s95
        s_sub_u32 s94, s94, s95
        s_mul_i32 s94, s94, 10
        s_add_u32 s94, s94, 7000
        s_min_u32 s94, s94, 100000
        L_amp2:
        s_sleep 2
        s_memrealtime s[96:97]
        s_waitcnt lgkmcnt(0)
        s_sub_u32 s96, s96, s95
        s_cmp_lt_u32 s96, s94
        s_cbranch_scc1 L_amp2
        """)
    if stamps:
        stamp(9)
        a("s_waitcnt vmcnt(0)")
        stamp(10)
        a(f"""
        s_lshl_b32 s52, s2, 12
        s_lshl_b32 s53, s3, 9
        s_add_u32 s52, s52, s53
        s_add_u32 s52, s52, {STAMP_OFF}
        v_lshlrev_b32 v1, 3, v0
        v_add_u32 v1, s52, v1
        global_store_dwordx2 v1, v[{VST}:{VST2}], s[36:37]
        s_waitcnt vmcnt(0)
        """)
    a("L_end:\ns_endpgm")
    if relayout:
        L = a.lines
        ix = {t: L.index(t) for t in ("L_ltail:", "L_compute:", "L_cloop:", "L_imgwait:", "L_end:")}
        a.lines = (L[:ix["L_ltail:"]] + ["    s_branch L_ltail", ".p2align 12", "L_page:"] +
                   L[ix["L_compute:"]:ix["L_cloop:"]] + ["    s_branch L_cloop"] +
                   L[ix["L_ltail:"]:ix["L_compute:"]] + L[ix["L_imgwait:"]:ix["L_end:"]] + ["    s_endpgm", ".p2align 6"] +
                   L[ix["L_cloop:"]:ix["L_imgwait:"]] + ["    s_branch L_imgwait"] + L[ix["L_end:"]:])
        if hop: a.lines = add_hops(a.lines, [("L_ltail:", "L_end:")], hop, page="L_page:")
    elif hop: a.lines = add_hops(a.lines, [("L_lloop:", "L_compute:"), ("L_cloop:", "L_end:")], hop)
    if align8: a.lines = pad8(a.lines, "L_cloop:", "L_cpart:")
    hazcheck(a.lines)
    return wrap(a.text(), 256, 512, 163840, 256)

if __name__ == "__main__":
    out = sys.argv[1]
    kw = json.loads(sys.argv[2]) if len(sys.argv) > 2 else {}
    open(out, "w").write(gen(**kw))
```

```python
import sys, json, struct
from asmlib import *

def f2u(f): return struct.unpack("<I", struct.pack("<f", f))[0]

LROWS = 7999
C1 = -2.0 * 0.7978845608028654 * 1.4426950408889634
C2 = C1 * 0.044715
KS = (-C2) ** (1.0 / 3.0)
CP = -C1 / KS
SENT = 0xBF800000
A_SLOT = 32768
W_BASE = 98304
MISC = 32768
PART = MISC
CONST = MISC + 2048
FLAGS = MISC + 3072
STAMP_OFF = 1 << 20
SPIN = 0x20000

def gen(stamps=False, xmod="", wmod="", omod=" sc1", codepf=True, itstamps=False, hold=None, holdus=40,
        parity=True, psleep=1, fsleep=1, rsleep=0, lprio=2, cprio=3, LA=2, LB=3, only=None, wpar=True, jouter=False, ded=False, onebar=False, align8=False, shift=0, pf2=False, isleep=2, probes=False, ilv=True, hop=4096, acc0=None, relayout=True, hopwait=False, nostore=False, gprio=None, hk=False, sthr=None, alt=1, snake=False, amp=None, ampw=None, swap=False, mprio=0, valu_in=False, iper=1, lag=True, lagfrom=3):
    a = Asm()
    VST, VST2 = 2, 3
    def stamp(k):
        if hold == k:
            lb = a.label("L_hold")
            a(f"""s_waitcnt lgkmcnt(0)
            {lb}:
            s_memrealtime s[96:97]
            s_waitcnt lgkmcnt(0)
            s_sub_u32 s96, s96, s92
            s_cmp_lt_u32 s96, {holdus*100}
            s_cbranch_scc1 {lb}""")
        if amp == k: a("s_memrealtime s[94:95]")
        if not stamps or (only is not None and k not in only): return
        a(f"s_memrealtime s[100:101]\ns_waitcnt lgkmcnt(0)\nv_writelane_b32 v{VST}, s100, {k}")
        if k in (1, 2, 8, 9): a(f"s_memtime s[100:101]\ns_waitcnt lgkmcnt(0)\nv_writelane_b32 v{VST2}, s100, {k}")
    def final_setup(role):
        a(f"""
        s_mul_i32 s38, s43, {LROWS}
        s_add_u32 s38, s38, s45
        s_lshl_b32 s38, s38, 10
        s_add_u32 s16, s32, s38
        s_addc_u32 s17, s33, 0
        s_lshl_b32 s18, s47, 10
        s_mov_b32 s19, 0x20000
        v_and_b32 v1, 7, v0                   ; o
        v_lshrrev_b32 v8, 3, v0
        s_and_b32 s38, s49, 1
        s_lshl_b32 s40, s38, 5
        s_add_u32 s40, s40, {64 if role == "c" else 0}
        v_add_u32 v8, s40, v8
        s_lshl_b32 s38, s38, 2
        v_xor_b32 v9, s38, v1                 ; o ^ 4*((row>>5)&1)
        v_bfe_u32 v10, v0, 4, 1               ; f
        v_lshl_add_u32 v9, v10, 3, v9
        v_lshlrev_b32 v9, 4, v9
        v_lshl_add_u32 v9, v8, 8, v9
        s_lshr_b32 s38, s49, 1
        s_lshl_b32 s40, s38, 15
        s_add_u32 s42, s40, {W_BASE}
        v_add_u32 v6, s42, v9
        s_sub_u32 s40, s40, {W_BASE}
        s_lshl_b32 s42, s38, 7
        v_add_u32 v8, s42, v8
        v_lshlrev_b32 v8, 10, v8
        v_lshl_add_u32 v7, v1, 4, v8
        s_lshl_b32 s42, s41, 8
        v_add_u32 v7, s42, v7
        v_lshlrev_b32 v11, 5, v1
        v_and_b32 v14, 1, v0
        v_lshlrev_b32 v14, 2, v14             ; constflag[lane&1]
        v_and_b32 v12, 3, v0
        v_lshlrev_b32 v12, 2, v12             ; imgflag[lane&3]
        v_mov_b32 v13, 1
        v_mov_b32 v8, v6
        v_xor_b32 v9, 160, v6
        v_mov_b32 v10, v7
        s_mov_b32 s24, {f2u(CP)}
        s_mov_b32 s25, {f2u(CP)}
        s_mov_b32 s26, {f2u(KS)}
        s_mov_b32 s27, {f2u(KS)}
        """)
        if not ded: a("s_mov_b32 s42, 1")
        elif role == "l": a("s_mov_b32 s42, 2\ns_mov_b32 s0, 32768\ns_mov_b32 s1, 131072")
        else: a(f"s_add_u32 s42, s38, 1\ns_mov_b32 s0, {(-48*256) & 0xffffffff}\ns_mov_b32 s1, {(-48*1024) & 0xffffffff}")
    HH, VO = 160, 60
    def preread(n):
        for i in range(n - 1, -1, -1):
            a(f"ds_read_b128 v[{HH+8*i}:{HH+8*i+3}], v8 offset:{2048*i}\nds_read_b128 v[{HH+8*i+4}:{HH+8*i+7}], v9 offset:{2048*i}")
        for i in range(1, n): a(f"v_add_u32 v{VO+i}, {8192*i}, v10")
    def part_publish(lbl, vaddr, half, x, vrec, maskreg, sleep):
        a(f"""
        {lbl}:
        ds_read_b128 v[{x}:{x+3}], v{vaddr} offset:{PART + 1024*half}
        s_waitcnt lgkmcnt(0)
        v_min_f32 v1, v{x+1}, v{x+3}
        v_cmp_gt_f32 vcc, 0, v1
        s_cbranch_vccz {lbl}_ok
        {"s_sleep %d" % sleep if sleep else ""}
        s_sub_u32 s59, s59, 1
        s_cmp_gt_i32 s59, 0
        s_cbranch_scc1 {lbl}
        {lbl}_ok:
        """)
        for i in range(4): a(f"v_mov_b32 v{x+4+i}, v{x+i}")
        for i in range(4): a(f"v_permlane32_swap_b32 v{x+i}, v{x+4+i}")
        for i in range(4): a(f"v_add_f32 v{x+i}, v{x+i}, v{x+4+i}")
        a(f"""
        s_mov_b64 exec, {maskreg}
        buffer_store_dwordx4 v[{x}:{x+3}], v{vrec}, s[20:23], 0 offen sc1
        s_mov_b64 exec, -1
        """)
    a(f"""
    s_cmp_ge_u32 s2, 256
    s_cbranch_scc1 L_end
    s_load_dwordx4 s[4:7], s[0:1], 0      ; x, w
    s_load_dwordx4 s[28:31], s[0:1], 16
    s_load_dwordx4 s[32:35], s[0:1], 32
    s_load_dwordx2 s[36:37], s[0:1], 48   ; ws
    """)
    if stamps or hold is not None or amp is not None: a("s_memrealtime s[92:93]")
    if amp is not None: a("s_memrealtime s[94:95]")
    a(f"""
    v_lshrrev_b32 v1, 6, v0
    v_and_b32 v0, 63, v0
    v_readfirstlane_b32 s3, v1
    s_and_b32 s38, s2, 7
    s_bfe_u32 s40, s2, 0x30005
    s_bfe_u32 s41, s2, 0x20003
    s_lshl_b32 s42, s38, 3
    s_add_u32 s42, s42, s40               ; mt 0..63
    s_lshr_b32 s43, s42, 5                ; batch
    s_and_b32 s44, s42, 31
    s_mul_i32 s45, s44, 250
    s_mul_i32 s46, s43, 8000
    s_add_u32 s46, s46, s45
    s_cmp_eq_u32 s44, 31
    s_cselect_b32 s47, 1, 0
    s_sub_u32 s47, 250, s47               ; nvalid
    s_lshl_b32 s48, s43, 2
    s_add_u32 s48, s48, s41
    s_and_b32 s49, s3, 3
    {"s_xor_b32 s3, s3, 4" if swap else ""}
    s_cmp_lt_u32 s3, 4
    s_cbranch_scc1 L_compute
    """)
    VA, VW = 56, 60
    a(f"""
    v_lshrrev_b32 v4, 4, v0               ; l>>4
    v_and_b32 v5, 15, v0
    v_lshlrev_b32 v6, 1, v4
    v_xor_b32 v5, v5, v6                  ; W chunk (n<2)
    s_and_b32 s50, s49, 1
    s_lshl_b32 s51, s50, 14
    s_lshl_b32 s52, s41, 8
    s_add_u32 s51, s51, s52
    v_lshlrev_b32 v5, 4, v5
    v_lshl_add_u32 v5, v4, 10, v5
    s_and_b32 s53, s40, {1 if wpar else 0}
    s_mul_i32 s52, s53, {8192 + 128}
    v_add_u32 v5, s51, v5
    v_xor_b32 v{VW}, s52, v5
    v_xor_b32 v{VW+2}, {8192 + 128}, v{VW}
    v_add_u32 v{VW+1}, 3072, v{VW}
    v_add_u32 v{VW+3}, 3072, v{VW+2}
    s_lshl_b32 s51, s49, 12
    s_lshl_b32 s53, s53, 11
    s_add_u32 s51, s51, s53
    s_add_u32 s51, s51, {W_BASE}
    s_lshr_b32 s62, s49, 1                ; lw>=2
    s_lshl_b32 s54, s62, 20               ; sB0
    s_mov_b32 s14, 1572864
    s_mov_b32 s15, 0x20000
    s_mov_b32 m0, s51
    s_waitcnt lgkmcnt(0)
    s_mov_b32 s12, s6
    s_mov_b32 s13, s7
    """)
    if stamps: a(f"v_writelane_b32 v{VST}, s92, 0")
    vq = []
    def issueA(slot_s, soff, tag, halves=(0, 1)):
        for half in halves:
            if half == halves[0]: a(f"s_add_u32 m0, s50, {slot_s}")
            if half == 1: a(f"s_xor_b32 m0, m0, 4096")
            a("s_nop 0")
            for n in range(4):
                vq.append(tag)
                a(f"buffer_load_dwordx4 v{VA+half*2+(n&1)}, s[8:11], {soff} offen offset:{n*1024}{xmod} lds")
    def issueW(slot_s, soff, tag, setm0=True, halves=(0, 1)):
        for half in halves:
            if half == halves[0] and setm0: a(f"s_add_u32 m0, s51, {slot_s}")
            if half == 1: a("s_xor_b32 m0, m0, 2048")
            if setm0 or half == 1: a("s_nop 0")
            for n in range(2):
                vq.append(tag)
                a(f"buffer_load_dwordx4 v{VW+2*half+n}, s[12:15], {soff} offen offset:{n*1024}{wmod} lds")
    def vwait(tags):
        last = max([i for i, t in enumerate(vq) if t in tags], default=-1)
        n = len(vq) - 1 - last
        a(f"s_waitcnt vmcnt({n})")
        return n
    def Aname(k): return f"E{k//3}" if k % 3 < 2 else f"O{k//3}"
    issueW(0, "s54", "B0", setm0=False, halves=(0,) if wpar else (0, 1))
    a(f"""
    v_and_b32 v5, 7, v0
    v_xor_b32 v5, v5, v4
    v_lshlrev_b32 v5, 4, v5
    v_lshrrev_b32 v6, 3, v0
    v_lshl_add_u32 v5, v6, 14, v5
    s_lshl_b32 s52, s62, 18
    s_lshl_b32 s53, s50, 13
    s_add_u32 s52, s52, s53
    s_and_b32 s53, s41, {1 if parity else 0}
    s_lshl_b32 s53, s53, 12
    s_add_u32 s52, s52, s53
    v_add_u32 v{VA}, s52, v5
    v_xor_b32 v{VA+2}, 4096, v{VA}
    v_xor_b32 v{VA+1}, 64, v{VA}
    v_xor_b32 v{VA+3}, 64, v{VA+2}
    v_add_u32 v{VA+1}, {64*2048 - 1024}, v{VA+1}
    v_add_u32 v{VA+3}, {64*2048 - 1024}, v{VA+3}
    s_lshl_b32 s50, s49, 13
    s_add_u32 s50, s50, s53
    s_lshl_b32 s10, s47, 11
    s_add_u32 s10, s10, 1024
    s_mov_b32 s11, 0x20000
    s_lshl_b32 s57, s46, 11
    s_add_u32 s8, s4, s57
    s_addc_u32 s9, s5, 0
    s_mov_b32 s52, 0                      ; x k-offset (E)
    s_mov_b32 s53, 1024                   ; x k-offset (O)
    s_add_u32 s55, s54, 0x8000            ; sB1
    s_lshl_b32 s56, s62, 15
    s_add_u32 s56, s56, 0x80000           ; sB2
    """)
    issueA(0, "s52", "E0", halves=(0,))
    if wpar: issueW(16384, "s55", "B1", halves=(0,))
    stamp(5)
    R = 80
    NG = 8; MK = 64; G = 96
    a(f"""
    s_mov_b32 s20, s36
    s_mov_b32 s21, s37
    s_mov_b32 s22, 0x40000
    s_mov_b32 s23, 0x20000
    s_lshl_b32 s39, s48, 5
    s_add_u32 s39, s39, s44
    s_lshl_b32 s39, s39, 10
    v_lshlrev_b32 v{R+6}, 4, v0
    v_add_u32 v{R+5}, s39, v{R+6}
    v_and_b32 v1, 15, v0
    v_lshrrev_b32 v5, 5, v0
    v_lshl_add_u32 v5, v1, 1, v5
    s_lshl_b32 s57, s49, 5
    v_add_u32 v{R}, s57, v5
    s_lshl_b32 s57, s41, 7
    v_add_u32 v{R+7}, s57, v{R}
    v_lshlrev_b32 v{R+7}, 1, v{R+7}
    v_lshlrev_b32 v{R}, 2, v{R}
    v_lshlrev_b32 v1, 4, v1
    v_lshl_add_u32 v1, v4, 10, v1
    s_lshl_b32 s57, s48, 15
    s_lshl_b32 s58, s49, 8
    s_add_u32 s57, s57, s58
    v_add_u32 v{R+3}, s57, v1
    s_lshl_b32 s57, s48, 5
    v_mov_b32 v{R+4}, s57
    s_add_u32 s57, s39, s58
    v_lshl_add_u32 v{R+8}, v0, 2, s57
    v_mov_b32 v29, 0
    v_mov_b32 v{R+10}, {SENT}
    v_mov_b32 v{R+11}, {SENT}
    s_lshl_b32 s57, s49, 4
    s_lshl_b64 s[90:91], 0xffff, s57
    """)
    for i in range(NG): a(f"s_mov_b64 s[{MK+2*i}:{MK+2*i+1}], -1")
    for i in range(1, NG): a(f"s_mov_b32 s{80+i}, {i*4096}")
    final_setup("l")
    stamp(13)
    if wpar: issueW(0, "s54", "B0", halves=(1,))
    issueA(0, "s52", "E0", halves=(1,))
    if wpar: issueW(16384, "s55", "B1", halves=(1,))
    if onebar:
        if not wpar: issueW(16384, "s55", "B1")
        issueW(32768, "s56", "B2")
        stamp(6)
        vwait({"B0", "E0", "B1"}); a("s_barrier")
        stamp(1)
    else:
        stamp(7)
        vwait({"B0"}); stamp(15); a("s_barrier")
        if not wpar: issueW(16384, "s55", "B1")
    a(f"""
    buffer_store_dword v{R+10}, v{R+8}, s[20:23], 0 offen sc1
    global_load_ushort v{R+1}, v{R+7}, s[28:29]
    global_load_ushort v{R+2}, v{R+7}, s[30:31]
    s_lshl_b32 s57, s49, 9
    v_lshl_add_u32 v{R+7}, v0, 3, s57
    v_lshlrev_b32 v{R+8}, 2, v0
    v_mov_b32 v{R+9}, 0
    """)
    vq += ["S", "g", "g"]
    if not onebar: issueW(32768, "s56", "B2")
    a(f"""
    s_mov_b32 s57, {2*A_SLOT}
    s_mov_b32 s58, {A_SLOT}
    s_mov_b32 s59, 49152
    """)
    if not onebar:
        stamp(6)
        vwait({"E0", "B1"}); a("s_barrier")
        stamp(1)
    def iB(kb, ph, nth=0):
        sreg = ["s54", "s55", "s56"][kb % 3]
        if ph in (0, None): a(f"s_add_u32 {sreg}, {sreg}, 0x10000")
        issueW("s59", sreg, f"B{kb}", halves=(0, 1) if ph is None else (ph,))
        if ph in (1, None): a("s_add_u32 s59, s59, 16384\ns_and_b32 s59, s59, 0xffff")
    def iO(c, ph):
        if c > 0 and ph in (0, None): a("s_add_u32 s53, s53, 128")
        issueA("s58", "s53", f"O{c}", halves=(0, 1) if ph is None else (ph,))
    def iE(c, ph):
        if ph in (0, None): a("s_add_u32 s52, s52, 128")
        issueA("s57", "s52", f"E{c}", halves=(0, 1) if ph is None else (ph,))
        if ph in (1, None): a(f"s_add_u32 s61, s57, s58\ns_mov_b32 s57, s58\ns_sub_u32 s58, {3*A_SLOT}, s61")
    ramp = {-1: [("O", 0), ("B", 3)], 0: [("E", 1), ("B", 4)], 1: [("B", 5), ("O", 1)], 2: [("B", 6), ("E", 2)], 3: [("B", 7), ("B", 8)]}
    pend = []
    fn = {"B": iB, "O": iO, "E": iE}
    def lstep(k):
        c = k // 3
        if k in ramp: todo = list(ramp[k])
        else:
            todo = []
            if k + 5 <= 23: todo.append(("B", k + 5))
            if k % 3 == 1 and c + 1 <= 7: todo.append(("O", c + 1))
            if k % 3 == 2 and c + 2 <= 7: todo.append(("E", c + 2))
        for kind, i in pend: fn[kind](i, 1)
        pend[:] = []
        if lag and lagfrom <= k < 19:
            if todo[0][0] == todo[-1][0] and len(todo) == 2:
                fn[todo[0][0]](todo[0][1], None); todo = todo[1:]
            for kind, i in todo: fn[kind](i, 0)
            pend[:] = todo
        else:
            two = ilv and len(todo) == 2 and todo[0][0] != todo[1][0]
            for ph in ((0, 1) if two else (None,)):
                for kind, i in todo: fn[kind](i, ph)
        need = {Aname(k + 2), f"B{k+3}"}
        assert not need & {f"{kd}{i}" for kd, i in pend}
        return vwait(need)
    K0 = 5 if lag else 4
    NLI = 4 if lag else 5
    for k in range(-1, K0):
        lstep(k); a("s_barrier")
    a(f"""
    s_mov_b32 s60, {NLI}
    s_and_b32 s62, s44, 3
    s_min_u32 s62, s62, 2
    s_add_u32 s62, s62, 2
    s_cmp_lg_u32 s49, 0
    s_cselect_b32 s62, 0, s62
    L_lloop:
    """)
    ns = []
    for k in range(K0, K0 + 3):
        ns.append(lstep(k))
        if k == 6:
            a(f"""
            s_cmp_lg_u32 s60, s62
            s_cbranch_scc1 L_noat
            s_mov_b64 exec, 1
            global_atomic_add v{R+4}, v13, s[34:35]
            s_mov_b64 exec, -1
            L_noat:
            """)
        a("s_barrier")
    a("s_sub_u32 s60, s60, 1\ns_cmp_lg_u32 s60, 0\ns_cbranch_scc1 L_lloop")
    keep = len(a.lines)
    mins = list(ns)
    for k in range(K0 + 3, K0 + 3 * NLI):
        n = lstep(k); mins[(k - K0) % 3] = min(mins[(k - K0) % 3], n)
    del a.lines[keep:]
    li = a.lines.index("L_lloop:"); wi = 0
    for q in range(li, len(a.lines)):
        if "s_waitcnt vmcnt" in a.lines[q]:
            a.lines[q] = f"    s_waitcnt vmcnt({mins[wi]})"; wi += 1
    assert wi == 3
    for k in range(K0 + 3 * NLI, 19):
        lstep(k); a("s_barrier")
    if pf2:
        a(f"""
        s_getpc_b64 s[88:89]
        L_pfbase2:
        s_sub_u32 s88, s88, L_pfbase2-{NAME}_kernel
        s_subb_u32 s89, s89, 0
        s_lshl_b32 s61, s49, 12
        v_and_b32 v1, 31, v0
        v_lshl_add_u32 v1, v1, 7, s61
        v_min_u32 v1, L_end-{NAME}_kernel, v1
        global_load_dword v16, v1, s[88:89]
        """)
        vq.append("c")
    lstep(19); a("s_barrier")
    a("L_ltail:")
    stamp(11)
    a(f"""
    ds_write_b64 v{R+7}, v[{R+10}:{R+11}] offset:{PART}
    ds_write_b32 v{R+8}, v{R+9} offset:{FLAGS}
    s_waitcnt lgkmcnt(0)
    """)
    vwait({"B23"}); a("s_barrier")
    a(f"""
    s_waitcnt vmcnt(0)
    s_barrier
    global_load_dword v{R+9}, v{R+4}, s[34:35] sc1
    s_mov_b32 s52, {f2u(KS)}
    v_lshlrev_b32 v{R+1}, 16, v{R+1}
    v_lshlrev_b32 v{R+2}, 16, v{R+2}
    v_mul_f32 v{R+1}, s52, v{R+1}
    v_mul_f32 v{R+2}, s52, v{R+2}
    s_mov_b32 s59, {SPIN}
    s_barrier
    """)
    stamp(2)
    if lprio: a(f"s_setprio {lprio}")
    def nextjob_regs():
        a(f"""
        v_add_u32 v8, s40, v6
        v_add_u32 v10, 128, v7
        v_xor_b32 v9, 160, v8
        v_add_u32 v11, 256, v11
        v_add_u32 v14, 8, v14
        v_add_u32 v12, 16, v12
        """)
    a("s_cmp_ge_u32 s49, 2\ns_cbranch_scc1 L_nopub")
    part_publish("L_part", R + 6, 0, G, R + 5, "s[90:91]", psleep)
    stamp(3)
    a(f"""
    L_nopub:
    L_cnt:
    s_waitcnt vmcnt(0)
    v_readfirstlane_b32 s52, v{R+9}
    s_cmp_ge_u32 s52, 32
    s_cbranch_scc1 L_cnt_ok
    s_sleep 32
    global_load_dword v{R+9}, v{R+4}, s[34:35] sc1
    s_sub_u32 s59, s59, 1
    s_cmp_gt_i32 s59, 0
    s_cbranch_scc1 L_cnt
    L_cnt_ok:
    s_cmp_lt_u32 s49, 2
    s_cbranch_scc1 L_gather
    """)
    if ded:
        a(f"""
        s_mov_b32 s42, 0
        """)
        nextjob_regs()
        a(f"""
        s_mov_b32 s59, {SPIN}
        L_img2:
        ds_read_b32 v15, v12 offset:{FLAGS+16}
        s_waitcnt lgkmcnt(0)
        v_cmp_eq_u32 vcc, 0, v15
        s_cbranch_vccz L_img2_ok
        s_sleep 1
        s_sub_u32 s59, s59, 1
        s_cmp_gt_i32 s59, 0
        s_cbranch_scc1 L_img2
        L_img2_ok:
        """)
        preread(4)
    else:
        a("s_branch L_imgwait")
    a("L_gather:")
    if stamps: a("s_mov_b32 s94, 0")
    a(f"s_mov_b32 s59, {SPIN}\nL_poll:")
    if stamps: a("s_add_u32 s94, s94, 1")
    for i in range(NG):
        a(f"s_or_b64 exec, s[{MK+2*i}:{MK+2*i+1}], 1")
        a(f"buffer_load_dwordx4 v[{G+4*i}:{G+4*i+3}], v{R+3}, s[20:23], {'s%d' % (80+i) if i else 0} offen sc1")
    a("s_mov_b64 exec, -1\ns_waitcnt vmcnt(0)")
    for i in range(NG):
        a(f"v_min_f32 v1, v{G+4*i+1}, v{G+4*i+3}")
        a(f"v_cmp_gt_f32 s[{MK+2*i}:{MK+2*i+1}], 0, v1")
    a(f"s_or_b64 s[52:53], s[{MK}:{MK+1}], s[{MK+2}:{MK+3}]")
    for i in range(2, NG):
        a(f"s_or_b64 s[52:53], s[52:53], s[{MK+2*i}:{MK+2*i+1}]")
    a(f"""
    s_cbranch_scc0 L_poll_done
    {"s_sleep %d" % rsleep if rsleep else ""}
    s_sub_u32 s59, s59, 1
    s_cmp_gt_i32 s59, 0
    s_cbranch_scc1 L_poll
    L_poll_done:
    """)
    if stamps: a(f"v_writelane_b32 v{VST2}, s94, 63")
    stamp(4)
    for step_ in (4, 2, 1):
        for i in range(step_):
            for h in range(4):
                x = G + 4 * i + h; y = G + 4 * (i + step_) + h
                a(f"v_add_f32 v{x}, v{x}, v{y}")
    x = G
    a(f"""
    s_mov_b32 s52, {f2u(1.0/LROWS)}
    s_nop 0
    v_permlane32_swap_b32 v{x}, v{x+2}
    v_permlane32_swap_b32 v{x+1}, v{x+3}
    s_nop 1
    v_add_f32 v{x}, v{x}, v{x+2}
    v_add_f32 v{x+1}, v{x+1}, v{x+3}
    v_mov_b32 v{x+2}, v{x}
    v_mov_b32 v{x+3}, v{x+1}
    s_nop 1
    v_permlane16_swap_b32 v{x}, v{x+2}
    v_permlane16_swap_b32 v{x+1}, v{x+3}
    s_nop 1
    v_add_f32 v{x}, v{x}, v{x+2}
    v_add_f32 v{x+1}, v{x+1}, v{x+3}
    v_mul_f32 v{G}, s52, v{G}             ; mean
    v_mul_f32 v{G+1}, s52, v{G+1}         ; E[h^2]
    v_fma_f32 v{G+1}, -v{G}, v{G}, v{G+1} ; var
    v_max_f32 v{G+1}, 0, v{G+1}
    v_add_f32 v{G+1}, {f2u(1e-5)}, v{G+1}
    v_rsq_f32 v{G+1}, v{G+1}
    s_lshl_b32 s52, s49, 2
    v_mul_f32 v{G+1}, v{G+1}, v{R+1}      ; KS*scale
    v_mov_b32 v1, s52
    v_fma_f32 v{G}, -v{G}, v{G+1}, v{R+2} ; KS*shift
    ds_write_b32 v{R}, v{G+1} offset:{CONST}
    ds_write_b32 v{R}, v{G} offset:{CONST+512}
    ds_write_b32 v1, v13 offset:{FLAGS}
    s_mov_b32 s59, {SPIN*4}
    """)
    if gprio is not None: a(f"s_setprio {gprio}")
    if ded: a("s_cmp_ge_u32 s49, 2\ns_cbranch_scc1 L_fw")
    a("s_branch L_imgwait")

    ACC = 128
    def acc(j, n): return ACC + (j * 4 + n) * 4
    BF = 64; AF = 32; NRING = 8
    aE, aE8, aO, bB = 16, 18, 20, 22
    VIMG, VPART, VPRD, VREC = 26, 27, 28, 29
    a("L_compute:")
    if mprio: a(f"s_setprio {mprio}")
    if codepf:
        a(f"""
        s_getpc_b64 s[52:53]
        L_pfbase:
        s_sub_u32 s52, s52, L_pfbase-L_compute
        s_subb_u32 s53, s53, 0
        s_lshl_b32 s50, s49, 5
        s_add_u32 s50, s50, s40
        s_lshl_b32 s50, s50, 7
        v_lshl_add_u32 v1, v0, 10, s50
        v_min_u32 v1, L_end-L_compute, v1
        s_mov_b64 exec, 15
        global_load_dword v30, v1, s[52:53]
        s_mov_b64 exec, -1
        """)
    a(f"""
    s_lshr_b32 s50, s49, 1                ; wm
    s_and_b32 s51, s49, 1                 ; wn
    v_and_b32 v32, 15, v0                 ; i
    v_lshrrev_b32 v33, 4, v0              ; g
    s_lshl_b32 s52, s50, 14
    v_bfe_u32 v34, v32, 1, 3
    v_xor_b32 v34, v34, v33
    v_lshlrev_b32 v34, 4, v34
    v_lshl_add_u32 v34, v32, 7, v34
    v_add_u32 v{aE}, s52, v34
    v_xor_b32 v{aE+1}, 64, v{aE}
    v_add_u32 v{aO}, {A_SLOT}, v{aE}
    v_add_u32 v{aO+1}, {A_SLOT}, v{aE+1}
    v_add_u32 v35, 1, v32
    s_mul_i32 s52, s50, 127
    s_add_u32 s52, s52, 128
    s_lshl_b32 s53, s50, 7
    v_add_u32 v35, s53, v35
    v_mov_b32 v36, s52
    v_cmp_eq_u32 vcc, 15, v32
    s_nop 1
    v_cndmask_b32 v35, v35, v36, vcc
    v_bfe_u32 v34, v35, 1, 3
    v_xor_b32 v34, v34, v33
    v_lshlrev_b32 v34, 4, v34
    v_lshl_add_u32 v{aE8}, v35, 7, v34
    v_xor_b32 v{aE8+1}, 64, v{aE8}
    v_bfe_u32 v34, v0, 2, 2
    v_lshl_add_u32 v35, v33, 3, v34
    v_bfe_u32 v34, v0, 2, 3
    v_lshlrev_b32 v34, 5, v34
    s_lshl_b32 s52, s51, 6
    v_xor_b32 v34, s52, v34
    v_and_b32 v36, 3, v0
    v_lshl_add_u32 v34, v36, 3, v34
    v_lshl_add_u32 v34, v35, 8, v34
    v_add_u32 v{bB}, {W_BASE}, v34
    v_xor_b32 v{bB+1}, 32, v{bB}
    v_xor_b32 v{bB+2}, 128, v{bB}
    v_xor_b32 v{bB+3}, 160, v{bB}
    s_mov_b64 s[64:65], -1
    s_mov_b64 s[66:67], -1
    s_cmp_eq_u32 s50, 0
    s_cbranch_scc1 L_nomask
    s_cmp_eq_u32 s47, 249
    s_cselect_b32 s65, 0xffff, -1
    s_cselect_b32 s67, -1, 0xffff
    L_nomask:
    v_bfe_u32 v34, v32, 2, 1
    v_mul_u32_u24 v34, 10, v34
    v_lshrrev_b32 v35, 3, v32
    v_or_b32 v34, v34, v35
    v_and_b32 v35, 1, v33
    v_xor_b32 v35, s51, v35
    v_lshl_add_u32 v34, v35, 2, v34
    v_lshlrev_b32 v34, 4, v34
    v_and_b32 v35, 3, v32
    v_lshl_add_u32 v34, v35, 2, v34
    v_lshl_add_u32 v34, v33, 13, v34
    s_lshl_b32 s52, s50, 15
    s_add_u32 s52, s52, {W_BASE}
    v_add_u32 v{VIMG}, s52, v34
    v_lshrrev_b32 v34, 5, v0
    v_lshl_add_u32 v34, v34, 4, v32
    s_lshl_b32 s52, s49, 8
    v_lshl_add_u32 v{VPART}, v34, 3, s52
    v_lshlrev_b32 v{VPRD}, 4, v0
    s_lshl_b32 s39, s48, 5
    s_add_u32 s39, s39, s44
    s_lshl_b32 s39, s39, 10
    s_add_u32 s39, s39, 512
    v_add_u32 v{VREC}, s39, v{VPRD}
    s_lshl_b32 s52, s49, 3
    s_lshl_b64 s[90:91], 0xff, s52
    s_lshl_b32 s52, s49, 2
    v_mov_b32 v15, s52
    s_waitcnt lgkmcnt(0)
    s_mov_b32 s20, s36
    s_mov_b32 s21, s37
    s_mov_b32 s22, 0x40000
    s_mov_b32 s23, 0x20000
    """)
    final_setup("c")
    if acc0 is None:
        for i in range(0, 128, 2): a(f"v_mov_b64 v[{ACC+i}:{ACC+i+1}], 0")
    else:
        for i in range(128): a(f"v_mov_b32 v{ACC+i}, {f2u(acc0)}")
    if stamps: a(f"v_writelane_b32 v{VST}, s92, 0")
    a(f"""
    s_mov_b32 s54, 0                      ; sE
    s_mov_b32 s55, {A_SLOT}               ; sO
    s_mov_b32 s56, 0
    s_mov_b32 s57, 4
    s_mov_b32 s63, 16384
    s_mov_b32 s61, 16
    """)
    if hop:
        if hopwait: a("s_waitcnt vmcnt(0)")
        a("""
        s_mov_b64 exec, 0
        s_cmp_eq_u32 s49, 0
        s_cbranch_scc1 L_hopg0
        s_cmp_eq_u32 s49, 1
        s_cbranch_scc1 L_hopg1
        s_cmp_eq_u32 s49, 2
        s_cbranch_scc1 L_hopg2
        s_branch L_hopg3
        L_hopret:
        s_mov_b64 exec, -1
        """)
    stamp(7)
    a("s_barrier")
    lq = []; ring = {}; rpos = [0]; occ = {}; dead = set()
    def afrags(t, j):
        if t < 2:
            return [("F", t, 0), ("F", t, 1)] if j == 0 else [("F", t, j + 1)]
        return [("G", 0, j), ("G", 1, j)]
    def atext(tag, d):
        kind, x, j = tag[:3]
        if kind == "F":
            if j < 8: return f"ds_read_b128 v[{d}:{d+3}], v{aE+x} offset:{j*2048}"
            return f"ds_read_b128 v[{d}:{d+3}], v{aE8+x}"
        return f"ds_read_b128 v[{d}:{d+3}], v{aO+x} offset:{j*2048}"
    def aread(tag):
        idx = rpos[0] % NRING; rpos[0] += 1
        if tag[0] == "F" and tag[2] == 8: rpos[0] += 1
        if idx in occ: assert occ[idx] in dead, (tag, idx, occ[idx])
        occ[idx] = tag; dead.discard(tag)
        ring[tag] = idx
        return ("lds", tag, atext(tag, AF + idx * 4))
    def bfrag(tag, d, n, pq, extra=0):
        return [("lds", tag, f"ds_read_b64_tr_b16 v[{d+2*h}:{d+2*h+1}], v{bB+n} offset:{extra + pq*8192 + h*1024}") for h in range(2)]
    def breg(buf, pq, n): return BF + buf * 32 + (pq * 4 + n) * 4
    def breads(buf):
        r = []
        for n in range(4):
            for pq in range(2): r += bfrag(("B", buf), breg(buf, pq, n), n, pq)
        return r
    def emit(op):
        if isinstance(op, tuple):
            lq.append(op[1]); a(op[2])
        else: a(op)
    def lwait(tags):
        last = max([i for i, t in enumerate(lq) if t in tags], default=-1)
        if last < 0: return
        n = min(15, len(lq) - 1 - last)
        a(f"s_waitcnt lgkmcnt({n})")
        del lq[:len(lq) - n]
    def badv():
        return ["s_add_u32 s56, s56, 16384", "s_cmp_eq_u32 s56, 0x10000", "s_cselect_b32 s58, 0xffff4000, s63", "s_and_b32 s56, s56, 0xffff"] + \
               [f"v_add_u32 v{bB+n}, s58, v{bB+n}" for n in range(4)]
    def mfma(d, ar, br): a(f"v_mfma_f32_16x16x32_bf16 v[{d}:{d+3}], v[{ar}:{ar+3}], v[{br}:{br+3}], v[{d}:{d+3}]")
    def bar():
        a("s_barrier")
        if itstamps:
            a(f"s_mov_b32 m0, s61\ns_add_u32 s61, s61, 1\nv_writelane_b32 v{VST}, s96, m0\nv_writelane_b32 v{VST2}, s98, m0")
            a("s_memrealtime s[96:97]\ns_memtime s[98:99]")
    if onebar: stamp(1)
    for op in breads(0): emit(op)
    for op in badv(): a(op)
    if not onebar:
        a("s_waitcnt lgkmcnt(0)")
        a("s_barrier")
        stamp(1)
    lq[:] = []
    if itstamps: a("s_memrealtime s[96:97]\ns_memtime s[98:99]")
    for j in range(LA):
        for tg in afrags(0, j): emit(aread(tg))
    for _ in range(shift): a("s_nop 0")
    init_state = (list(lq), dict(ring), rpos[0] % NRING)
    def run_gaps(mf, q, barrier_after=None, first_free=0, reserve_last=True):
        ng = len(mf)
        def isvalu(op): return isinstance(op, str) and op.startswith("v_")
        gaps = [g for g in range(first_free, ng) if not (reserve_last and g == ng - 1 and len(q) < ng - first_free)]
        if barrier_after is not None: gaps = [g for g in gaps if g > barrier_after]
        plan = {g: [] for g in range(ng)}
        cap = max(1, -(-len(q) // max(1, len(gaps))))
        while True:
            for g in plan: plan[g] = []
            gi = 0; ok = True
            for op in q:
                while gi < len(gaps) and (len(plan[gaps[gi]]) >= cap or (isvalu(op) and not valu_in and gaps[gi] % 2 == 0)): gi += 1
                if gi >= len(gaps): ok = False; break
                plan[gaps[gi]].append(op)
            if ok: break
            if reserve_last and ng - 1 not in gaps: gaps.append(ng - 1)
            else: cap += 1
        for g, m in enumerate(mf):
            mfma(*m)
            if g == barrier_after: bar()
            for op in plan[g]:
                if isinstance(op, tuple) and op[0] == "A": op = aread(op[1])
                emit(op)
    def step(k):
        t = k % 3; buf = k & 1
        tn = (t + 1) % 3
        bq = breads(buf ^ 1)
        JB = 8 - LA
        nb_per = 4
        bv = badv()
        for j in range(8):
            X, Y = (("F", t, j), ("F", t, j + 1)) if t < 2 else (("G", 0, j), ("G", 1, j))
            need = {X, Y}
            if j == 0: need.add(("B", buf))
            q = []
            if j == JB: lwait(set(lq))
            else: lwait(need)
            if j + LA < 8: q += [("A", tg) for tg in afrags(t, j + LA)]
            else: q += [("A", tg) for tg in afrags(tn, j + LA - 8)]
            for _ in range(nb_per):
                if bq: q.append(bq.pop(0))
            def mix(q, v):
                out = []
                while q or v:
                    if q: out.append(q.pop(0))
                    if v: out.append(v.pop(0))
                return out
            if j == 4: q += bv[:4]
            if j == 5: q = mix(q, bv[4:])
            if t == 1 and j == 6: q += [f"s_add_u32 s59, s54, s55", f"s_sub_u32 s59, {3*A_SLOT}, s59", "s_sub_u32 s60, s59, s54"]
            if t == 1 and j == 7: q = mix(q, [f"v_add_u32 v{r}, s60, v{r}" for r in (aE, aE + 1, aE8, aE8 + 1)])
            if t == 2 and j == 6: q += ["s_sub_u32 s60, s54, s55", "s_mov_b32 s55, s54", "s_mov_b32 s54, s59"]
            if t == 2 and j == 7:
                q = mix(q, [f"v_add_u32 v{r}, s60, v{r}" for r in (aO, aO + 1)])
                if k == 2: q += ["s_sub_u32 s57, s57, 1", "s_cmp_eq_u32 s57, 0"]
            xr = AF + ring[X] * 4; yr = AF + ring[Y] * 4
            mf = []
            for n in range(4):
                pr = [(xr, breg(buf, 0, n)), (yr, breg(buf, 1, n))]
                if n % 2 == 1: pr = pr[::-1]
                mf += [(acc(j, n), ar, br) for ar, br in pr]
            run_gaps(mf, q, barrier_after=1 if j == JB else None)
            dead.add(X)
            if t == 2 or j == 7: dead.add(Y)
        assert not bq
    a("L_cloop:")
    for k in range(6):
        a(f"; ---- step {k}")
        step(k)
        if k == 2:
            saved = (list(lq), dict(ring))
            a("s_cbranch_scc1 L_clast")
    end_state = (list(lq), {k_: v for k_, v in ring.items() if k_ in init_state[1]}, rpos[0] % NRING)
    assert end_state == init_state, (end_state, init_state)
    a("s_branch L_cloop")
    a("L_clast:")
    if cprio: a(f"s_setprio {cprio}")
    stamp(11)
    lq[:] = [t + (0,) for t in saved[0]]
    loc = {t + (0,): AF + saved[1][t] * 4 for t in saved[0]}
    free = [AF + 4 * i for i in range(NRING) if AF + 4 * i not in loc.values()]
    bloc = {}
    for n in range(4):
        for pq in range(2):
            bloc[(0, pq, n)] = breg(1, pq, n); bloc[(1, pq, n)] = breg(0, pq, n)
            bloc[(2, pq, n)] = breg(1, pq, n) if n < 2 else breg(0, pq, n - 2)
    T0 = breg(1, 0, 0)
    def stats(h):
        for n in (2 * h, 2 * h + 1):
            a(f"v_cndmask_b32 v{acc(1,n)+3}, 0, v{acc(1,n)+3}, s[64:65]")
            a(f"v_cndmask_b32 v{acc(2,n)+3}, 0, v{acc(2,n)+3}, s[66:67]")
        for j in range(8):
            for hh in range(2):
                for n in (2 * h, 2 * h + 1):
                    x = acc(j, n) + 2 * hh; S = T0 + 4 * (n & 1); Q = S + 2
                    if j == 0 and hh == 0:
                        a(f"v_pk_mul_f32 v[{Q}:{Q+1}], v[{x}:{x+1}], v[{x}:{x+1}]")
                    else:
                        a(f"v_pk_fma_f32 v[{Q}:{Q+1}], v[{x}:{x+1}], v[{x}:{x+1}], v[{Q}:{Q+1}]")
                        src = f"v[{x-2}:{x-1}]" if j == 0 else f"v[{S}:{S+1}]"
                        a(f"v_pk_add_f32 v[{S}:{S+1}], {src}, v[{x}:{x+1}]")
        a(f"""
        v_add_f32 v{T0}, v{T0}, v{T0+1}
        v_add_f32 v{T0+4}, v{T0+4}, v{T0+5}
        v_add_f32 v{T0+1}, v{T0+2}, v{T0+3}
        v_add_f32 v{T0+5}, v{T0+6}, v{T0+7}
        s_nop 0
        v_permlane32_swap_b32 v{T0}, v{T0+4}
        v_permlane32_swap_b32 v{T0+1}, v{T0+5}
        s_nop 0
        v_add_f32 v{T0}, v{T0}, v{T0+4}
        v_add_f32 v{T0+1}, v{T0+1}, v{T0+5}
        v_mov_b32 v{T0+4}, v{T0}
        v_mov_b32 v{T0+5}, v{T0+1}
        s_nop 1
        v_permlane16_swap_b32 v{T0}, v{T0+4}
        v_permlane16_swap_b32 v{T0+1}, v{T0+5}
        s_nop 0
        v_add_f32 v{T0}, v{T0}, v{T0+4}
        v_add_f32 v{T0+1}, v{T0+1}, v{T0+5}
        """)
        emit(("lds", "P", f"ds_write_b64 v{VPART}, v[{T0}:{T0+1}] offset:{PART + 1024*h}"))
    def image_ops(h):
        ops = []
        for n in (2 * h, 2 * h + 1):
            for f in range(2):
                ops.append(f"v_xor_b32 v{4+f}, {((n&1)<<5) ^ (f<<7)}, v{VIMG}")
                for j in range(8):
                    if (j >> 1) & 1 != f: continue
                    for r in (0, 2):
                        x = acc(j, n) + r
                        ops.append(("lds", "I", f"ds_write2st64_b32 v{4+f}, v{x}, v{x+1} offset0:{8*r+j} offset1:{8*(r+1)+j}"))
        ops.append(("lds", "F", f"ds_write_b32 v15, v13 offset:{FLAGS + 16 + 16*h}"))
        return ops
    seq = [(0, t, j) for t in range(3) for j in range(8)]
    if jouter: seq += [(1, t, j) for j in range(8) for t in range(3)]
    else: seq += [(1, t, j) for t in range(3) for j in range(8)]
    aorder = []
    for s, (h, t, j) in enumerate(seq):
        for tg in afrags(t, j):
            if tg + (h,) not in loc: aorder.append((s, tg + (h,)))
    s_a0, s_a1, s_a2 = 7, 16 - LB, 16 + 5
    bq = []; iq = []; sq = []
    def plain_stats(j):
        ops = []
        for n in (2, 3):
            if j in (1, 2): ops.append(f"v_cndmask_b32 v{acc(j,n)+3}, 0, v{acc(j,n)+3}, s[{62+2*j}:{63+2*j}]")
        for r in range(4):
            for n in (2, 3):
                x = acc(j, n) + r; S = T0 + 4 * (n & 1) + 2; Q = S + 1
                if j == 0 and r == 0: ops.append(f"v_mul_f32 v{Q}, v{x}, v{x}")
                else:
                    ops.append(f"v_fmac_f32 v{Q}, v{x}, v{x}")
                    ops.append(f"v_add_f32 v{S}, v{x-1 if (j == 0 and r == 1) else S}, v{x}")
        return ops
    def pairs_of(h, t, j):
        X, Y = (("F", t, j, h), ("F", t, j + 1, h)) if t < 2 else (("G", 0, j, h), ("G", 1, j, h))
        return X, Y
    for s, (h, t, j) in enumerate(seq):
        if h == 0 and j == 0:
            a(f"; ---- last chunk pass A step {t}")
            bq = []
            if t == 1: late = carry
            ns_ = range(4) if t == 0 else (range(2) if t == 1 else range(2, 4))
            for n in ns_:
                for pq in range(2):
                    tb = 1 if t == 0 else 2
                    bq += bfrag(("LB", tb, n >> 1), bloc[(tb, pq, n)], n, pq, extra=(tb - 1) * 16384)
            if t == 1: bq += late
        if s == 24:
            a("; ---- last chunk pass B")
            a("s_nop 4")
            stats(0)
            stamp(5)
            iq = image_ops(0)
            free += [breg(1, 1, 0), breg(1, 1, 1)]
        X, Y = pairs_of(h, t, j)
        need = {X, Y} | ({("LB", t, h)} if j == 0 else set())
        if s == s_a2: need |= {("LB", 2, 1)}
        lwait(need)
        q = []
        while aorder and aorder[0][0] <= s + LB and free and len(q) < 2 and not (aorder[0][1][0] == "G" and s < s_a1):
            _, tg = aorder.pop(0)
            d = free.pop(0); loc[tg] = d
            q.append(("lds", tg, atext(tg, d)))
        for _ in range(2):
            if bq and (len(q) < 3 or t == 2): q.append(bq.pop(0))
        while iq and len(q) < 2 + iper: q.append(iq.pop(0))
        mf = []
        for n in (2 * h, 2 * h + 1):
            pr = [(loc[X], bloc[(t, 0, n)]), (loc[Y], bloc[(t, 1, n)])]
            if n % 2 == 1: pr = pr[::-1]
            mf += [(acc(j, n), ar, br) for ar, br in pr]
        run_gaps(mf, q, barrier_after=1 if s in (s_a0, s_a1, s_a2) else None, first_free=1 if j == 0 else 0)
        free.append(loc[X])
        if t == 2 or j == 7: free.append(loc[Y])
        if h == 0 and t == 0 and j == 7: carry = list(bq)
        if h == 0 and t > 0 and (j == 7 or s == s_a2 - 1): assert not bq, (s, bq)
    assert not aorder and not iq
    stamp(2)
    if probes:
        for pi in range(10):
            a(f"v_writelane_b32 v{VST}, s{68+2*pi}, {40+pi}")
            a(f"s_mov_b32 s100, L_probe{pi}-{NAME}_kernel\nv_writelane_b32 v{VST2}, s100, {40+pi}")
        a(f"s_getpc_b64 s[100:101]\nL_pq:\ns_sub_u32 s100, s100, L_pq-{NAME}_kernel\nv_writelane_b32 v{VST2}, s100, 50")
    a(f"s_nop 7\ns_mov_b32 s59, {SPIN}")
    if jouter:
        for op in plain_stats(7): a(op)
        a(f"""
        s_nop 0
        v_permlane32_swap_b32 v{T0+3}, v{T0+7}
        v_permlane32_swap_b32 v{T0+2}, v{T0+6}
        s_nop 0
        v_add_f32 v{T0+3}, v{T0+3}, v{T0+7}
        v_add_f32 v{T0+2}, v{T0+2}, v{T0+6}
        v_mov_b32 v{T0+7}, v{T0+3}
        v_mov_b32 v{T0+6}, v{T0+2}
        s_nop 1
        v_permlane16_swap_b32 v{T0+3}, v{T0+7}
        v_permlane16_swap_b32 v{T0+2}, v{T0+6}
        s_nop 0
        v_add_f32 v{T0+3}, v{T0+3}, v{T0+7}
        v_add_f32 v{T0+2}, v{T0+2}, v{T0+6}
        ds_write_b64 v{VPART}, v[{T0+2}:{T0+3}] offset:{PART + 1024}
        """)
    else:
        stats(1)
    stamp(13)
    part_publish("L_cpart", VPRD, 1, 32, VREC, "s[90:91]", 0)
    if not hk: a("s_setprio 0")
    stamp(3)
    a(f"v_add_u32 v{VIMG}, s40, v{VIMG}")
    for op in image_ops(1): emit(op)
    SC, SH, T, O, Y = 16, 24, 32, 40, 48
    a(f"""
    L_imgwait:
    s_mov_b32 s59, {SPIN*4}
    L_img:
    ds_read_b32 v15, v12 offset:{FLAGS+16}
    s_waitcnt lgkmcnt(0)
    v_cmp_eq_u32 vcc, 0, v15
    s_cbranch_vccz L_job
    s_sleep {isleep}
    s_sub_u32 s59, s59, 1
    s_cmp_gt_i32 s59, 0
    s_cbranch_scc1 L_img
    L_job:
    """)
    preread(4)
    if hk == 2: a("s_cmp_ge_u32 s3, 4\ns_cbranch_scc1 L_fw\ns_setprio 0")
    a(f"""
    L_fw:
    ds_read_b32 v15, v14 offset:{FLAGS}
    ds_read_b128 v[{SC}:{SC+3}], v11 offset:{CONST}
    ds_read_b128 v[{SC+4}:{SC+7}], v11 offset:{CONST+16}
    ds_read_b128 v[{SH}:{SH+3}], v11 offset:{CONST+512}
    ds_read_b128 v[{SH+4}:{SH+7}], v11 offset:{CONST+528}
    s_waitcnt lgkmcnt(0)
    v_cmp_eq_u32 vcc, 0, v15
    s_cbranch_vccz L_fw_ok
    {"s_sleep %d" % fsleep if fsleep else ""}
    s_sub_u32 s59, s59, 1
    s_cmp_gt_i32 s59, 0
    s_cbranch_scc1 L_fw
    L_fw_ok:
    """)
    if stamps:
        a("s_cmp_eq_u32 s42, 0\ns_cbranch_scc1 L_st8")
        stamp(14)
        a("L_st8:")
    stamp(8)
    def lowprio(lb):
        if hk == 1: a(f"s_setprio 1\ns_cmp_ge_u32 s3, 4\ns_cbranch_scc1 {lb}\ns_setprio 0\n{lb}:")
    lowprio("L_lp1")
    def p(x): return f"v[{x}:{x+1}]"
    for i in (3, 2, 1, 0):
        if i == 1: a("L_g2:")
        h = HH + 8 * i; o = O + 4 * (i & 1)
        for j in range(0, 8, 2): a(f"v_pk_fma_f32 {p(h+j)}, {p(h+j)}, {p(SC+j)}, {p(SH+j)}")
        for j in range(0, 8, 2): a(f"v_pk_fma_f32 {p(T+j)}, {p(h+j)}, {p(h+j)}, s[24:25]")
        for j in range(0, 8, 2): a(f"v_pk_mul_f32 {p(T+j)}, {p(T+j)}, {p(h+j)} neg_lo:[1,0] neg_hi:[1,0]")
        for j in range(8): a(f"v_exp_f32 v{T+j}, v{T+j}")
        for j in range(0, 8, 2): a(f"v_pk_fma_f32 {p(T+j)}, {p(T+j)}, s[26:27], s[26:27]")
        for j in range(8): a(f"v_rcp_f32 v{T+j}, v{T+j}")
        for j in range(0, 8, 2): a(f"v_pk_mul_f32 {p(T+j)}, {p(T+j)}, {p(h+j)}")
        for j in range(0, 8, 2): a(f"v_cvt_pk_bf16_f32 v{o+j//2}, v{T+j}, v{T+j+1}")
        if sthr is not None: a(f"s_waitcnt vmcnt({sthr})")
        if not nostore: a(f"buffer_store_dwordx4 v[{o}:{o+3}], v{10 if i == 0 else VO+i}, s[16:19], 0 offen{omod}")
    a("s_cmp_eq_u32 s42, 0\ns_cbranch_scc1 L_fin")
    if hk == 1: a("s_setprio 2")
    if hk == 2: a("s_cmp_ge_u32 s3, 4\ns_cbranch_scc1 L_hk2\ns_setprio 3\nL_hk2:")
    stamp(12)
    a("s_sub_u32 s42, s42, 1\ns_cmp_eq_u32 s42, 0\ns_cbranch_scc1 L_toB")
    a(f"""
    v_add_u32 v8, s0, v6
    v_add_u32 v10, s1, v7
    v_xor_b32 v9, 160, v8
    """)
    preread(2)
    a("s_waitcnt lgkmcnt(0)")
    lowprio("L_lp2")
    a("s_branch L_g2\nL_toB:")
    nextjob_regs()
    if not ded: a("s_cmp_ge_u32 s3, 6\ns_cbranch_scc1 L_gather")
    a("s_branch L_imgwait\nL_fin:")
    if hold in (9, 10) and not stamps: stamp(hold)
    if amp is not None:
        a("s_waitcnt vmcnt(0)")
        if amp == 10: stamp(10)
        a("s_waitcnt lgkmcnt(0)")
        if ampw == "c": a("s_cmp_ge_u32 s3, 4\ns_cselect_b32 s94, s92, s94")
        if ampw == "l": a("s_cmp_lt_u32 s3, 4\ns_cselect_b32 s94, s92, s94")
        a(f"""
        s_not_b32 s95, s92
        v_mov_b32 v4, s94
        v_mov_b32 v5, s95
        v_mov_b32 v1, 8
        s_mov_b64 exec, 1
        global_atomic_umax v1, v4, s[34:35]
        global_atomic_umax v1, v5, s[34:35] offset:4
        s_waitcnt vmcnt(0)
        L_amp1:
        s_sleep 8
        s_memrealtime s[96:97]
        s_waitcnt lgkmcnt(0)
        s_sub_u32 s96, s96, s92
        s_cmp_lt_u32 s96, 6000
        s_cbranch_scc1 L_amp1
        global_load_dwordx2 v[4:5], v1, s[34:35] sc1
        s_waitcnt vmcnt(0)
        v_readfirstlane_b32 s94, v4
        v_readfirstlane_b32 s95, v5
        s_not_b32 s95, s95
        s_sub_u32 s94, s94, s95
        s_mul_i32 s94, s94, 10
        s_add_u32 s94, s94, 7000
        s_min_u32 s94, s94, 100000
        L_amp2:
        s_sleep 2
        s_memrealtime s[96:97]
        s_waitcnt lgkmcnt(0)
        s_sub_u32 s96, s96, s95
        s_cmp_lt_u32 s96, s94
        s_cbranch_scc1 L_amp2
        """)
    if stamps:
        stamp(9)
        a("s_waitcnt vmcnt(0)")
        stamp(10)
        a(f"""
        s_lshl_b32 s52, s2, 12
        s_lshl_b32 s53, s3, 9
        s_add_u32 s52, s52, s53
        s_add_u32 s52, s52, {STAMP_OFF}
        v_lshlrev_b32 v1, 3, v0
        v_add_u32 v1, s52, v1
        global_store_dwordx2 v1, v[{VST}:{VST2}], s[36:37]
        s_waitcnt vmcnt(0)
        """)
    a("L_end:\ns_endpgm")
    if relayout:
        L = a.lines
        ix = {t: L.index(t) for t in ("L_ltail:", "L_compute:", "L_cloop:", "L_imgwait:", "L_end:")}
        a.lines = (L[:ix["L_ltail:"]] + ["    s_branch L_ltail", ".p2align 12", "L_page:"] +
                   L[ix["L_compute:"]:ix["L_cloop:"]] + ["    s_branch L_cloop"] +
                   L[ix["L_ltail:"]:ix["L_compute:"]] + L[ix["L_imgwait:"]:ix["L_end:"]] + ["    s_endpgm", ".p2align 6"] +
                   L[ix["L_cloop:"]:ix["L_imgwait:"]] + ["    s_branch L_imgwait"] + L[ix["L_end:"]:])
        if hop: a.lines = add_hops(a.lines, [("L_ltail:", "L_end:")], hop, page="L_page:")
    elif hop: a.lines = add_hops(a.lines, [("L_lloop:", "L_compute:"), ("L_cloop:", "L_end:")], hop)
    if align8: a.lines = pad8(a.lines, "L_cloop:", "L_cpart:")
    hazcheck(a.lines)
    return wrap(a.text(), 256, 512, 163840, 256)

if __name__ == "__main__":
    out = sys.argv[1]
    kw = json.loads(sys.argv[2]) if len(sys.argv) > 2 else {}
    open(out, "w").write(gen(**kw))
```

```python
import sys, json, struct
from asmlib import *

def f2u(f): return struct.unpack("<I", struct.pack("<f", f))[0]

LROWS = 7999
C1 = -2.0 * 0.7978845608028654 * 1.4426950408889634
C2 = C1 * 0.044715
KS = (-C2) ** (1.0 / 3.0)
CP = -C1 / KS
SENT = 0xBF800000
A_SLOT = 32768
W_BASE = 98304
MISC = 32768
PART = MISC
CONST = MISC + 2048
FLAGS = MISC + 3072
STAMP_OFF = 1 << 20
SPIN = 0x20000

def gen(stamps=False, xmod="", wmod="", omod=" sc1", codepf=True, itstamps=False, hold=None, holdus=40,
        parity=True, psleep=1, fsleep=1, rsleep=0, lprio=2, cprio=3, LA=2, LB=3, only=None, wpar=True, jouter=False, ded=False, onebar=False, align8=False, shift=0, pf2=False, isleep=2, probes=False, ilv=True, hop=4096, acc0=None, relayout=True, hopwait=False, nostore=False, gprio=None, hk=False, sthr=None, alt=1, snake=False, amp=None, ampw=None, swap=False, mprio=0, valu_in=False, iper=1, lag=True, lagfrom=3):
    a = Asm()
    VST, VST2 = 2, 3
    def stamp(k):
        if hold == k:
            lb = a.label("L_hold")
            a(f"""s_waitcnt lgkmcnt(0)
            {lb}:
            s_memrealtime s[96:97]
            s_waitcnt lgkmcnt(0)
            s_sub_u32 s96, s96, s92
            s_cmp_lt_u32 s96, {holdus*100}
            s_cbranch_scc1 {lb}""")
        if amp == k: a("s_memrealtime s[94:95]")
        if not stamps or (only is not None and k not in only): return
        a(f"s_memrealtime s[100:101]\ns_waitcnt lgkmcnt(0)\nv_writelane_b32 v{VST}, s100, {k}")
        if k in (1, 2, 8, 9): a(f"s_memtime s[100:101]\ns_waitcnt lgkmcnt(0)\nv_writelane_b32 v{VST2}, s100, {k}")
    def final_setup(role):
        a(f"""
        s_mul_i32 s38, s43, {LROWS}
        s_add_u32 s38, s38, s45
        s_lshl_b32 s38, s38, 10
        s_add_u32 s16, s32, s38
        s_addc_u32 s17, s33, 0
        s_lshl_b32 s18, s47, 10
        s_mov_b32 s19, 0x20000
        v_and_b32 v1, 7, v0                   ; o
        v_lshrrev_b32 v8, 3, v0
        s_and_b32 s38, s49, 1
        s_lshl_b32 s40, s38, 5
        s_add_u32 s40, s40, {64 if role == "c" else 0}
        v_add_u32 v8, s40, v8
        s_lshl_b32 s38, s38, 2
        v_xor_b32 v9, s38, v1                 ; o ^ 4*((row>>5)&1)
        v_bfe_u32 v10, v0, 4, 1               ; f
        v_lshl_add_u32 v9, v10, 3, v9
        v_lshlrev_b32 v9, 4, v9
        v_lshl_add_u32 v9, v8, 8, v9
        s_lshr_b32 s38, s49, 1
        s_lshl_b32 s40, s38, 15
        s_add_u32 s42, s40, {W_BASE}
        v_add_u32 v6, s42, v9
        s_sub_u32 s40, s40, {W_BASE}
        s_lshl_b32 s42, s38, 7
        v_add_u32 v8, s42, v8
        v_lshlrev_b32 v8, 10, v8
        v_lshl_add_u32 v7, v1, 4, v8
        s_lshl_b32 s42, s41, 8
        v_add_u32 v7, s42, v7
        v_lshlrev_b32 v11, 5, v1
        v_and_b32 v14, 1, v0
        v_lshlrev_b32 v14, 2, v14             ; constflag[lane&1]
        v_and_b32 v12, 3, v0
        v_lshlrev_b32 v12, 2, v12             ; imgflag[lane&3]
        v_mov_b32 v13, 1
        v_mov_b32 v8, v6
        v_xor_b32 v9, 160, v6
        v_mov_b32 v10, v7
        s_mov_b32 s24, {f2u(CP)}
        s_mov_b32 s25, {f2u(CP)}
        s_mov_b32 s26, {f2u(KS)}
        s_mov_b32 s27, {f2u(KS)}
        """)
        if not ded: a("s_mov_b32 s42, 1")
        elif role == "l": a("s_mov_b32 s42, 2\ns_mov_b32 s0, 32768\ns_mov_b32 s1, 131072")
        else: a(f"s_add_u32 s42, s38, 1\ns_mov_b32 s0, {(-48*256) & 0xffffffff}\ns_mov_b32 s1, {(-48*1024) & 0xffffffff}")
    HH, VO = 160, 60
    def preread(n):
        for i in range(n - 1, -1, -1):
            a(f"ds_read_b128 v[{HH+8*i}:{HH+8*i+3}], v8 offset:{2048*i}\nds_read_b128 v[{HH+8*i+4}:{HH+8*i+7}], v9 offset:{2048*i}")
        for i in range(1, n): a(f"v_add_u32 v{VO+i}, {8192*i}, v10")
    def part_publish(lbl, vaddr, half, x, vrec, maskreg, sleep):
        a(f"""
        {lbl}:
        ds_read_b128 v[{x}:{x+3}], v{vaddr} offset:{PART + 1024*half}
        s_waitcnt lgkmcnt(0)
        v_min_f32 v1, v{x+1}, v{x+3}
        v_cmp_gt_f32 vcc, 0, v1
        s_cbranch_vccz {lbl}_ok
        {"s_sleep %d" % sleep if sleep else ""}
        s_sub_u32 s59, s59, 1
        s_cmp_gt_i32 s59, 0
        s_cbranch_scc1 {lbl}
        {lbl}_ok:
        """)
        for i in range(4): a(f"v_mov_b32 v{x+4+i}, v{x+i}")
        for i in range(4): a(f"v_permlane32_swap_b32 v{x+i}, v{x+4+i}")
        for i in range(4): a(f"v_add_f32 v{x+i}, v{x+i}, v{x+4+i}")
        a(f"""
        s_mov_b64 exec, {maskreg}
        buffer_store_dwordx4 v[{x}:{x+3}], v{vrec}, s[20:23], 0 offen sc1
        s_mov_b64 exec, -1
        """)
    a(f"""
    s_cmp_ge_u32 s2, 256
    s_cbranch_scc1 L_end
    s_load_dwordx4 s[4:7], s[0:1], 0      ; x, w
    s_load_dwordx4 s[28:31], s[0:1], 16
    s_load_dwordx4 s[32:35], s[0:1], 32
    s_load_dwordx2 s[36:37], s[0:1], 48   ; ws
    """)
    if stamps or hold is not None or amp is not None: a("s_memrealtime s[92:93]")
    if amp is not None: a("s_memrealtime s[94:95]")
    a(f"""
    v_lshrrev_b32 v1, 6, v0
    v_and_b32 v0, 63, v0
    v_readfirstlane_b32 s3, v1
    s_and_b32 s38, s2, 7
    s_bfe_u32 s40, s2, 0x30005
    s_bfe_u32 s41, s2, 0x20003
    s_lshl_b32 s42, s38, 3
    s_add_u32 s42, s42, s40               ; mt 0..63
    s_lshr_b32 s43, s42, 5                ; batch
    s_and_b32 s44, s42, 31
    s_mul_i32 s45, s44, 250
    s_mul_i32 s46, s43, 8000
    s_add_u32 s46, s46, s45
    s_cmp_eq_u32 s44, 31
    s_cselect_b32 s47, 1, 0
    s_sub_u32 s47, 250, s47               ; nvalid
    s_lshl_b32 s48, s43, 2
    s_add_u32 s48, s48, s41
    s_and_b32 s49, s3, 3
    {"s_xor_b32 s3, s3, 4" if swap else ""}
    s_cmp_lt_u32 s3, 4
    s_cbranch_scc1 L_compute
    """)
    VA, VW = 56, 60
    a(f"""
    v_lshrrev_b32 v4, 4, v0               ; l>>4
    v_and_b32 v5, 15, v0
    v_lshlrev_b32 v6, 1, v4
    v_xor_b32 v5, v5, v6                  ; W chunk (n<2)
    s_and_b32 s50, s49, 1
    s_lshl_b32 s51, s50, 14
    s_lshl_b32 s52, s41, 8
    s_add_u32 s51, s51, s52
    v_lshlrev_b32 v5, 4, v5
    v_lshl_add_u32 v5, v4, 10, v5
    s_and_b32 s53, s40, {1 if wpar else 0}
    s_mul_i32 s52, s53, {8192 + 128}
    v_add_u32 v5, s51, v5
    v_xor_b32 v{VW}, s52, v5
    v_xor_b32 v{VW+2}, {8192 + 128}, v{VW}
    v_add_u32 v{VW+1}, 3072, v{VW}
    v_add_u32 v{VW+3}, 3072, v{VW+2}
    s_lshl_b32 s51, s49, 12
    s_lshl_b32 s53, s53, 11
    s_add_u32 s51, s51, s53
    s_add_u32 s51, s51, {W_BASE}
    s_lshr_b32 s62, s49, 1                ; lw>=2
    s_lshl_b32 s54, s62, 20               ; sB0
    s_mov_b32 s14, 1572864
    s_mov_b32 s15, 0x20000
    s_mov_b32 m0, s51
    s_waitcnt lgkmcnt(0)
    s_mov_b32 s12, s6
    s_mov_b32 s13, s7
    """)
    if stamps: a(f"v_writelane_b32 v{VST}, s92, 0")
    vq = []
    def issueA(slot_s, soff, tag, halves=(0, 1)):
        for half in halves:
            if half == halves[0]: a(f"s_add_u32 m0, s50, {slot_s}")
            if half == 1: a(f"s_xor_b32 m0, m0, 4096")
            a("s_nop 0")
            for n in range(4):
                vq.append(tag)
                a(f"buffer_load_dwordx4 v{VA+half*2+(n&1)}, s[8:11], {soff} offen offset:{n*1024}{xmod} lds")
    def issueW(slot_s, soff, tag, setm0=True, halves=(0, 1)):
        for half in halves:
            if half == halves[0] and setm0: a(f"s_add_u32 m0, s51, {slot_s}")
            if half == 1: a("s_xor_b32 m0, m0, 2048")
            if setm0 or half == 1: a("s_nop 0")
            for n in range(2):
                vq.append(tag)
                a(f"buffer_load_dwordx4 v{VW+2*half+n}, s[12:15], {soff} offen offset:{n*1024}{wmod} lds")
    def vwait(tags):
        last = max([i for i, t in enumerate(vq) if t in tags], default=-1)
        n = len(vq) - 1 - last
        a(f"s_waitcnt vmcnt({n})")
        return n
    def Aname(k): return f"E{k//3}" if k % 3 < 2 else f"O{k//3}"
    issueW(0, "s54", "B0", setm0=False, halves=(0,) if wpar else (0, 1))
    a(f"""
    v_and_b32 v5, 7, v0
    v_xor_b32 v5, v5, v4
    v_lshlrev_b32 v5, 4, v5
    v_lshrrev_b32 v6, 3, v0
    v_lshl_add_u32 v5, v6, 14, v5
    s_lshl_b32 s52, s62, 18
    s_lshl_b32 s53, s50, 13
    s_add_u32 s52, s52, s53
    s_and_b32 s53, s41, {1 if parity else 0}
    s_lshl_b32 s53, s53, 12
    s_add_u32 s52, s52, s53
    v_add_u32 v{VA}, s52, v5
    v_xor_b32 v{VA+2}, 4096, v{VA}
    v_xor_b32 v{VA+1}, 64, v{VA}
    v_xor_b32 v{VA+3}, 64, v{VA+2}
    v_add_u32 v{VA+1}, {64*2048 - 1024}, v{VA+1}
    v_add_u32 v{VA+3}, {64*2048 - 1024}, v{VA+3}
    s_lshl_b32 s50, s49, 13
    s_add_u32 s50, s50, s53
    s_lshl_b32 s10, s47, 11
    s_add_u32 s10, s10, 1024
    s_mov_b32 s11, 0x20000
    s_lshl_b32 s57, s46, 11
    s_add_u32 s8, s4, s57
    s_addc_u32 s9, s5, 0
    s_mov_b32 s52, 0                      ; x k-offset (E)
    s_mov_b32 s53, 1024                   ; x k-offset (O)
    s_add_u32 s55, s54, 0x8000            ; sB1
    s_lshl_b32 s56, s62, 15
    s_add_u32 s56, s56, 0x80000           ; sB2
    """)
    issueA(0, "s52", "E0", halves=(0,))
    if wpar: issueW(16384, "s55", "B1", halves=(0,))
    stamp(5)
    R = 80
    NG = 8; MK = 64; G = 96
    a(f"""
    s_mov_b32 s20, s36
    s_mov_b32 s21, s37
    s_mov_b32 s22, 0x40000
    s_mov_b32 s23, 0x20000
    s_lshl_b32 s39, s48, 5
    s_add_u32 s39, s39, s44
    s_lshl_b32 s39, s39, 10
    v_lshlrev_b32 v{R+6}, 4, v0
    v_add_u32 v{R+5}, s39, v{R+6}
    v_and_b32 v1, 15, v0
    v_lshrrev_b32 v5, 5, v0
    v_lshl_add_u32 v5, v1, 1, v5
    s_lshl_b32 s57, s49, 5
    v_add_u32 v{R}, s57, v5
    s_lshl_b32 s57, s41, 7
    v_add_u32 v{R+7}, s57, v{R}
    v_lshlrev_b32 v{R+7}, 1, v{R+7}
    v_lshlrev_b32 v{R}, 2, v{R}
    v_lshlrev_b32 v1, 4, v1
    v_lshl_add_u32 v1, v4, 10, v1
    s_lshl_b32 s57, s48, 15
    s_lshl_b32 s58, s49, 8
    s_add_u32 s57, s57, s58
    v_add_u32 v{R+3}, s57, v1
    s_lshl_b32 s57, s48, 5
    v_mov_b32 v{R+4}, s57
    s_add_u32 s57, s39, s58
    v_lshl_add_u32 v{R+8}, v0, 2, s57
    v_mov_b32 v29, 0
    v_mov_b32 v{R+10}, {SENT}
    v_mov_b32 v{R+11}, {SENT}
    s_lshl_b32 s57, s49, 4
    s_lshl_b64 s[90:91], 0xffff, s57
    """)
    for i in range(NG): a(f"s_mov_b64 s[{MK+2*i}:{MK+2*i+1}], -1")
    for i in range(1, NG): a(f"s_mov_b32 s{80+i}, {i*4096}")
    final_setup("l")
    stamp(13)
    if wpar: issueW(0, "s54", "B0", halves=(1,))
    issueA(0, "s52", "E0", halves=(1,))
    if wpar: issueW(16384, "s55", "B1", halves=(1,))
    if onebar:
        if not wpar: issueW(16384, "s55", "B1")
        issueW(32768, "s56", "B2")
        stamp(6)
        vwait({"B0", "E0", "B1"}); a("s_barrier")
        stamp(1)
    else:
        stamp(7)
        vwait({"B0"}); stamp(15); a("s_barrier")
        if not wpar: issueW(16384, "s55", "B1")
    a(f"""
    buffer_store_dword v{R+10}, v{R+8}, s[20:23], 0 offen sc1
    global_load_ushort v{R+1}, v{R+7}, s[28:29]
    global_load_ushort v{R+2}, v{R+7}, s[30:31]
    s_lshl_b32 s57, s49, 9
    v_lshl_add_u32 v{R+7}, v0, 3, s57
    v_lshlrev_b32 v{R+8}, 2, v0
    v_mov_b32 v{R+9}, 0
    """)
    vq += ["S", "g", "g"]
    if not onebar: issueW(32768, "s56", "B2")
    a(f"""
    s_mov_b32 s57, {2*A_SLOT}
    s_mov_b32 s58, {A_SLOT}
    s_mov_b32 s59, 49152
    """)
    if not onebar:
        stamp(6)
        vwait({"E0", "B1"}); a("s_barrier")
        stamp(1)
    def iB(kb, ph, nth=0):
        sreg = ["s54", "s55", "s56"][kb % 3]
        if ph in (0, None): a(f"s_add_u32 {sreg}, {sreg}, 0x10000")
        issueW("s59", sreg, f"B{kb}", halves=(0, 1) if ph is None else (ph,))
        if ph in (1, None): a("s_add_u32 s59, s59, 16384\ns_and_b32 s59, s59, 0xffff")
    def iO(c, ph):
        if c > 0 and ph in (0, None): a("s_add_u32 s53, s53, 128")
        issueA("s58", "s53", f"O{c}", halves=(0, 1) if ph is None else (ph,))
    def iE(c, ph):
        if ph in (0, None): a("s_add_u32 s52, s52, 128")
        issueA("s57", "s52", f"E{c}", halves=(0, 1) if ph is None else (ph,))
        if ph in (1, None): a(f"s_add_u32 s61, s57, s58\ns_mov_b32 s57, s58\ns_sub_u32 s58, {3*A_SLOT}, s61")
    ramp = {-1: [("O", 0), ("B", 3)], 0: [("E", 1), ("B", 4)], 1: [("B", 5), ("O", 1)], 2: [("B", 6), ("E", 2)], 3: [("B", 7), ("B", 8)]}
    pend = []
    fn = {"B": iB, "O": iO, "E": iE}
    def lstep(k):
        c = k // 3
        if k in ramp: todo = list(ramp[k])
        else:
            todo = []
            if k + 5 <= 23: todo.append(("B", k + 5))
            if k % 3 == 1 and c + 1 <= 7: todo.append(("O", c + 1))
            if k % 3 == 2 and c + 2 <= 7: todo.append(("E", c + 2))
        for kind, i in pend: fn[kind](i, 1)
        pend[:] = []
        if lag and lagfrom <= k < 19:
            if todo[0][0] == todo[-1][0] and len(todo) == 2:
                fn[todo[0][0]](todo[0][1], None); todo = todo[1:]
            for kind, i in todo: fn[kind](i, 0)
            pend[:] = todo
        else:
            two = ilv and len(todo) == 2 and todo[0][0] != todo[1][0]
            for ph in ((0, 1) if two else (None,)):
                for kind, i in todo: fn[kind](i, ph)
        need = {Aname(k + 2), f"B{k+3}"}
        assert not need & {f"{kd}{i}" for kd, i in pend}
        return vwait(need)
    K0 = 5 if lag else 4
    NLI = 4 if lag else 5
    for k in range(-1, K0):
        lstep(k); a("s_barrier")
    a(f"""
    s_mov_b32 s60, {NLI}
    s_and_b32 s62, s44, 3
    s_min_u32 s62, s62, 2
    s_add_u32 s62, s62, 2
    s_cmp_lg_u32 s49, 0
    s_cselect_b32 s62, 0, s62
    L_lloop:
    """)
    ns = []
    for k in range(K0, K0 + 3):
        ns.append(lstep(k))
        if k == 6:
            a(f"""
            s_cmp_lg_u32 s60, s62
            s_cbranch_scc1 L_noat
            s_mov_b64 exec, 1
            global_atomic_add v{R+4}, v13, s[34:35]
            s_mov_b64 exec, -1
            L_noat:
            """)
        a("s_barrier")
    a("s_sub_u32 s60, s60, 1\ns_cmp_lg_u32 s60, 0\ns_cbranch_scc1 L_lloop")
    keep = len(a.lines)
    mins = list(ns)
    for k in range(K0 + 3, K0 + 3 * NLI):
        n = lstep(k); mins[(k - K0) % 3] = min(mins[(k - K0) % 3], n)
    del a.lines[keep:]
    li = a.lines.index("L_lloop:"); wi = 0
    for q in range(li, len(a.lines)):
        if "s_waitcnt vmcnt" in a.lines[q]:
            a.lines[q] = f"    s_waitcnt vmcnt({mins[wi]})"; wi += 1
    assert wi == 3
    for k in range(K0 + 3 * NLI, 19):
        lstep(k); a("s_barrier")
    if pf2:
        a(f"""
        s_getpc_b64 s[88:89]
        L_pfbase2:
        s_sub_u32 s88, s88, L_pfbase2-{NAME}_kernel
        s_subb_u32 s89, s89, 0
        s_lshl_b32 s61, s49, 12
        v_and_b32 v1, 31, v0
        v_lshl_add_u32 v1, v1, 7, s61
        v_min_u32 v1, L_end-{NAME}_kernel, v1
        global_load_dword v16, v1, s[88:89]
        """)
        vq.append("c")
    lstep(19); a("s_barrier")
    a("L_ltail:")
    stamp(11)
    a(f"""
    ds_write_b64 v{R+7}, v[{R+10}:{R+11}] offset:{PART}
    ds_write_b32 v{R+8}, v{R+9} offset:{FLAGS}
    s_waitcnt lgkmcnt(0)
    """)
    vwait({"B23"}); a("s_barrier")
    a(f"""
    s_waitcnt vmcnt(0)
    s_barrier
    global_load_dword v{R+9}, v{R+4}, s[34:35] sc1
    s_mov_b32 s52, {f2u(KS)}
    v_lshlrev_b32 v{R+1}, 16, v{R+1}
    v_lshlrev_b32 v{R+2}, 16, v{R+2}
    v_mul_f32 v{R+1}, s52, v{R+1}
    v_mul_f32 v{R+2}, s52, v{R+2}
    s_mov_b32 s59, {SPIN}
    s_barrier
    """)
    stamp(2)
    if lprio: a(f"s_setprio {lprio}")
    def nextjob_regs():
        a(f"""
        v_add_u32 v8, s40, v6
        v_add_u32 v10, 128, v7
        v_xor_b32 v9, 160, v8
        v_add_u32 v11, 256, v11
        v_add_u32 v14, 8, v14
        v_add_u32 v12, 16, v12
        """)
    a("s_cmp_ge_u32 s49, 2\ns_cbranch_scc1 L_nopub")
    part_publish("L_part", R + 6, 0, G, R + 5, "s[90:91]", psleep)
    stamp(3)
    a(f"""
    L_nopub:
    L_cnt:
    s_waitcnt vmcnt(0)
    v_readfirstlane_b32 s52, v{R+9}
    s_cmp_ge_u32 s52, 32
    s_cbranch_scc1 L_cnt_ok
    s_sleep 32
    global_load_dword v{R+9}, v{R+4}, s[34:35] sc1
    s_sub_u32 s59, s59, 1
    s_cmp_gt_i32 s59, 0
    s_cbranch_scc1 L_cnt
    L_cnt_ok:
    s_cmp_lt_u32 s49, 2
    s_cbranch_scc1 L_gather
    """)
    if ded:
        a(f"""
        s_mov_b32 s42, 0
        """)
        nextjob_regs()
        a(f"""
        s_mov_b32 s59, {SPIN}
        L_img2:
        ds_read_b32 v15, v12 offset:{FLAGS+16}
        s_waitcnt lgkmcnt(0)
        v_cmp_eq_u32 vcc, 0, v15
        s_cbranch_vccz L_img2_ok
        s_sleep 1
        s_sub_u32 s59, s59, 1
        s_cmp_gt_i32 s59, 0
        s_cbranch_scc1 L_img2
        L_img2_ok:
        """)
        preread(4)
    else:
        a("s_branch L_imgwait")
    a("L_gather:")
    if stamps: a("s_mov_b32 s94, 0")
    a(f"s_mov_b32 s59, {SPIN}\nL_poll:")
    if stamps: a("s_add_u32 s94, s94, 1")
    for i in range(NG):
        a(f"s_or_b64 exec, s[{MK+2*i}:{MK+2*i+1}], 1")
        a(f"buffer_load_dwordx4 v[{G+4*i}:{G+4*i+3}], v{R+3}, s[20:23], {'s%d' % (80+i) if i else 0} offen sc1")
    a("s_mov_b64 exec, -1\ns_waitcnt vmcnt(0)")
    for i in range(NG):
        a(f"v_min_f32 v1, v{G+4*i+1}, v{G+4*i+3}")
        a(f"v_cmp_gt_f32 s[{MK+2*i}:{MK+2*i+1}], 0, v1")
    a(f"s_or_b64 s[52:53], s[{MK}:{MK+1}], s[{MK+2}:{MK+3}]")
    for i in range(2, NG):
        a(f"s_or_b64 s[52:53], s[52:53], s[{MK+2*i}:{MK+2*i+1}]")
    a(f"""
    s_cbranch_scc0 L_poll_done
    {"s_sleep %d" % rsleep if rsleep else ""}
    s_sub_u32 s59, s59, 1
    s_cmp_gt_i32 s59, 0
    s_cbranch_scc1 L_poll
    L_poll_done:
    """)
    if stamps: a(f"v_writelane_b32 v{VST2}, s94, 63")
    stamp(4)
    for step_ in (4, 2, 1):
        for i in range(step_):
            for h in range(4):
                x = G + 4 * i + h; y = G + 4 * (i + step_) + h
                a(f"v_add_f32 v{x}, v{x}, v{y}")
    x = G
    a(f"""
    s_mov_b32 s52, {f2u(1.0/LROWS)}
    s_nop 0
    v_permlane32_swap_b32 v{x}, v{x+2}
    v_permlane32_swap_b32 v{x+1}, v{x+3}
    s_nop 1
    v_add_f32 v{x}, v{x}, v{x+2}
    v_add_f32 v{x+1}, v{x+1}, v{x+3}
    v_mov_b32 v{x+2}, v{x}
    v_mov_b32 v{x+3}, v{x+1}
    s_nop 1
    v_permlane16_swap_b32 v{x}, v{x+2}
    v_permlane16_swap_b32 v{x+1}, v{x+3}
    s_nop 1
    v_add_f32 v{x}, v{x}, v{x+2}
    v_add_f32 v{x+1}, v{x+1}, v{x+3}
    v_mul_f32 v{G}, s52, v{G}             ; mean
    v_mul_f32 v{G+1}, s52, v{G+1}         ; E[h^2]
    v_fma_f32 v{G+1}, -v{G}, v{G}, v{G+1} ; var
    v_max_f32 v{G+1}, 0, v{G+1}
    v_add_f32 v{G+1}, {f2u(1e-5)}, v{G+1}
    v_rsq_f32 v{G+1}, v{G+1}
    s_lshl_b32 s52, s49, 2
    v_mul_f32 v{G+1}, v{G+1}, v{R+1}      ; KS*scale
    v_mov_b32 v1, s52
    v_fma_f32 v{G}, -v{G}, v{G+1}, v{R+2} ; KS*shift
    ds_write_b32 v{R}, v{G+1} offset:{CONST}
    ds_write_b32 v{R}, v{G} offset:{CONST+512}
    ds_write_b32 v1, v13 offset:{FLAGS}
    s_mov_b32 s59, {SPIN*4}
    """)
    if gprio is not None: a(f"s_setprio {gprio}")
    if ded: a("s_cmp_ge_u32 s49, 2\ns_cbranch_scc1 L_fw")
    a("s_branch L_imgwait")

    ACC = 128
    def acc(j, n): return ACC + (j * 4 + n) * 4
    BF = 64; AF = 32; NRING = 8
    aE, aE8, aO, bB = 16, 18, 20, 22
    VIMG, VPART, VPRD, VREC = 26, 27, 28, 29
    a("L_compute:")
    if mprio: a(f"s_setprio {mprio}")
    if codepf:
        a(f"""
        s_getpc_b64 s[52:53]
        L_pfbase:
        s_sub_u32 s52, s52, L_pfbase-L_compute
        s_subb_u32 s53, s53, 0
        s_lshl_b32 s50, s49, 5
        s_add_u32 s50, s50, s40
        s_lshl_b32 s50, s50, 7
        v_lshl_add_u32 v1, v0, 10, s50
        v_min_u32 v1, L_end-L_compute, v1
        s_mov_b64 exec, 15
        global_load_dword v30, v1, s[52:53]
        s_mov_b64 exec, -1
        """)
    a(f"""
    s_lshr_b32 s50, s49, 1                ; wm
    s_and_b32 s51, s49, 1                 ; wn
    v_and_b32 v32, 15, v0                 ; i
    v_lshrrev_b32 v33, 4, v0              ; g
    s_lshl_b32 s52, s50, 14
    v_bfe_u32 v34, v32, 1, 3
    v_xor_b32 v34, v34, v33
    v_lshlrev_b32 v34, 4, v34
    v_lshl_add_u32 v34, v32, 7, v34
    v_add_u32 v{aE}, s52, v34
    v_xor_b32 v{aE+1}, 64, v{aE}
    v_add_u32 v{aO}, {A_SLOT}, v{aE}
    v_add_u32 v{aO+1}, {A_SLOT}, v{aE+1}
    v_add_u32 v35, 1, v32
    s_mul_i32 s52, s50, 127
    s_add_u32 s52, s52, 128
    s_lshl_b32 s53, s50, 7
    v_add_u32 v35, s53, v35
    v_mov_b32 v36, s52
    v_cmp_eq_u32 vcc, 15, v32
    s_nop 1
    v_cndmask_b32 v35, v35, v36, vcc
    v_bfe_u32 v34, v35, 1, 3
    v_xor_b32 v34, v34, v33
    v_lshlrev_b32 v34, 4, v34
    v_lshl_add_u32 v{aE8}, v35, 7, v34
    v_xor_b32 v{aE8+1}, 64, v{aE8}
    v_bfe_u32 v34, v0, 2, 2
    v_lshl_add_u32 v35, v33, 3, v34
    v_bfe_u32 v34, v0, 2, 3
    v_lshlrev_b32 v34, 5, v34
    s_lshl_b32 s52, s51, 6
    v_xor_b32 v34, s52, v34
    v_and_b32 v36, 3, v0
    v_lshl_add_u32 v34, v36, 3, v34
    v_lshl_add_u32 v34, v35, 8, v34
    v_add_u32 v{bB}, {W_BASE}, v34
    v_xor_b32 v{bB+1}, 32, v{bB}
    v_xor_b32 v{bB+2}, 128, v{bB}
    v_xor_b32 v{bB+3}, 160, v{bB}
    s_mov_b64 s[64:65], -1
    s_mov_b64 s[66:67], -1
    s_cmp_eq_u32 s50, 0
    s_cbranch_scc1 L_nomask
    s_cmp_eq_u32 s47, 249
    s_cselect_b32 s65, 0xffff, -1
    s_cselect_b32 s67, -1, 0xffff
    L_nomask:
    v_bfe_u32 v34, v32, 2, 1
    v_mul_u32_u24 v34, 10, v34
    v_lshrrev_b32 v35, 3, v32
    v_or_b32 v34, v34, v35
    v_and_b32 v35, 1, v33
    v_xor_b32 v35, s51, v35
    v_lshl_add_u32 v34, v35, 2, v34
    v_lshlrev_b32 v34, 4, v34
    v_and_b32 v35, 3, v32
    v_lshl_add_u32 v34, v35, 2, v34
    v_lshl_add_u32 v34, v33, 13, v34
    s_lshl_b32 s52, s50, 15
    s_add_u32 s52, s52, {W_BASE}
    v_add_u32 v{VIMG}, s52, v34
    v_lshrrev_b32 v34, 5, v0
    v_lshl_add_u32 v34, v34, 4, v32
    s_lshl_b32 s52, s49, 8
    v_lshl_add_u32 v{VPART}, v34, 3, s52
    v_lshlrev_b32 v{VPRD}, 4, v0
    s_lshl_b32 s39, s48, 5
    s_add_u32 s39, s39, s44
    s_lshl_b32 s39, s39, 10
    s_add_u32 s39, s39, 512
    v_add_u32 v{VREC}, s39, v{VPRD}
    s_lshl_b32 s52, s49, 3
    s_lshl_b64 s[90:91], 0xff, s52
    s_lshl_b32 s52, s49, 2
    v_mov_b32 v15, s52
    s_waitcnt lgkmcnt(0)
    s_mov_b32 s20, s36
    s_mov_b32 s21, s37
    s_mov_b32 s22, 0x40000
    s_mov_b32 s23, 0x20000
    """)
    final_setup("c")
    if acc0 is None:
        for i in range(0, 128, 2): a(f"v_mov_b64 v[{ACC+i}:{ACC+i+1}], 0")
    else:
        for i in range(128): a(f"v_mov_b32 v{ACC+i}, {f2u(acc0)}")
    if stamps: a(f"v_writelane_b32 v{VST}, s92, 0")
    a(f"""
    s_mov_b32 s54, 0                      ; sE
    s_mov_b32 s55, {A_SLOT}               ; sO
    s_mov_b32 s56, 0
    s_mov_b32 s57, 4
    s_mov_b32 s63, 16384
    s_mov_b32 s61, 16
    """)
    if hop:
        if hopwait: a("s_waitcnt vmcnt(0)")
        a("""
        s_mov_b64 exec, 0
        s_cmp_eq_u32 s49, 0
        s_cbranch_scc1 L_hopg0
        s_cmp_eq_u32 s49, 1
        s_cbranch_scc1 L_hopg1
        s_cmp_eq_u32 s49, 2
        s_cbranch_scc1 L_hopg2
        s_branch L_hopg3
        L_hopret:
        s_mov_b64 exec, -1
        """)
    stamp(7)
    a("s_barrier")
    lq = []; ring = {}; rpos = [0]; occ = {}; dead = set()
    def afrags(t, j):
        if t < 2:
            return [("F", t, 0), ("F", t, 1)] if j == 0 else [("F", t, j + 1)]
        return [("G", 0, j), ("G", 1, j)]
    def atext(tag, d):
        kind, x, j = tag[:3]
        if kind == "F":
            if j < 8: return f"ds_read_b128 v[{d}:{d+3}], v{aE+x} offset:{j*2048}"
            return f"ds_read_b128 v[{d}:{d+3}], v{aE8+x}"
        return f"ds_read_b128 v[{d}:{d+3}], v{aO+x} offset:{j*2048}"
    def aread(tag):
        idx = rpos[0] % NRING; rpos[0] += 1
        if tag[0] == "F" and tag[2] == 8: rpos[0] += 1
        if idx in occ: assert occ[idx] in dead, (tag, idx, occ[idx])
        occ[idx] = tag; dead.discard(tag)
        ring[tag] = idx
        return ("lds", tag, atext(tag, AF + idx * 4))
    def bfrag(tag, d, n, pq, extra=0):
        return [("lds", tag, f"ds_read_b64_tr_b16 v[{d+2*h}:{d+2*h+1}], v{bB+n} offset:{extra + pq*8192 + h*1024}") for h in range(2)]
    def breg(buf, pq, n): return BF + buf * 32 + (pq * 4 + n) * 4
    def breads(buf):
        r = []
        for n in range(4):
            for pq in range(2): r += bfrag(("B", buf), breg(buf, pq, n), n, pq)
        return r
    def emit(op):
        if isinstance(op, tuple):
            lq.append(op[1]); a(op[2])
        else: a(op)
    def lwait(tags):
        last = max([i for i, t in enumerate(lq) if t in tags], default=-1)
        if last < 0: return
        n = min(15, len(lq) - 1 - last)
        a(f"s_waitcnt lgkmcnt({n})")
        del lq[:len(lq) - n]
    def badv():
        return ["s_add_u32 s56, s56, 16384", "s_cmp_eq_u32 s56, 0x10000", "s_cselect_b32 s58, 0xffff4000, s63", "s_and_b32 s56, s56, 0xffff"] + \
               [f"v_add_u32 v{bB+n}, s58, v{bB+n}" for n in range(4)]
    def mfma(d, ar, br): a(f"v_mfma_f32_16x16x32_bf16 v[{d}:{d+3}], v[{ar}:{ar+3}], v[{br}:{br+3}], v[{d}:{d+3}]")
    def bar():
        a("s_barrier")
        if itstamps:
            a(f"s_mov_b32 m0, s61\ns_add_u32 s61, s61, 1\nv_writelane_b32 v{VST}, s96, m0\nv_writelane_b32 v{VST2}, s98, m0")
            a("s_memrealtime s[96:97]\ns_memtime s[98:99]")
    if onebar: stamp(1)
    for op in breads(0): emit(op)
    for op in badv(): a(op)
    if not onebar:
        a("s_waitcnt lgkmcnt(0)")
        a("s_barrier")
        stamp(1)
    lq[:] = []
    if itstamps: a("s_memrealtime s[96:97]\ns_memtime s[98:99]")
    for j in range(LA):
        for tg in afrags(0, j): emit(aread(tg))
    for _ in range(shift): a("s_nop 0")
    init_state = (list(lq), dict(ring), rpos[0] % NRING)
    def run_gaps(mf, q, barrier_after=None, first_free=0, reserve_last=True):
        ng = len(mf)
        def isvalu(op): return isinstance(op, str) and op.startswith("v_")
        gaps = [g for g in range(first_free, ng) if not (reserve_last and g == ng - 1 and len(q) < ng - first_free)]
        if barrier_after is not None: gaps = [g for g in gaps if g > barrier_after]
        plan = {g: [] for g in range(ng)}
        cap = max(1, -(-len(q) // max(1, len(gaps))))
        while True:
            for g in plan: plan[g] = []
            gi = 0; ok = True
            for op in q:
                while gi < len(gaps) and (len(plan[gaps[gi]]) >= cap or (isvalu(op) and not valu_in and gaps[gi] % 2 == 0)): gi += 1
                if gi >= len(gaps): ok = False; break
                plan[gaps[gi]].append(op)
            if ok: break
            if reserve_last and ng - 1 not in gaps: gaps.append(ng - 1)
            else: cap += 1
        for g, m in enumerate(mf):
            mfma(*m)
            if g == barrier_after: bar()
            for op in plan[g]:
                if isinstance(op, tuple) and op[0] == "A": op = aread(op[1])
                emit(op)
    def step(k):
        t = k % 3; buf = k & 1
        tn = (t + 1) % 3
        bq = breads(buf ^ 1)
        JB = 8 - LA
        nb_per = 4
        bv = badv()
        for j in range(8):
            X, Y = (("F", t, j), ("F", t, j + 1)) if t < 2 else (("G", 0, j), ("G", 1, j))
            need = {X, Y}
            if j == 0: need.add(("B", buf))
            q = []
            if j == JB: lwait(set(lq))
            else: lwait(need)
            if j + LA < 8: q += [("A", tg) for tg in afrags(t, j + LA)]
            else: q += [("A", tg) for tg in afrags(tn, j + LA - 8)]
            for _ in range(nb_per):
                if bq: q.append(bq.pop(0))
            def mix(q, v):
                out = []
                while q or v:
                    if q: out.append(q.pop(0))
                    if v: out.append(v.pop(0))
                return out
            if j == 4: q += bv[:4]
            if j == 5: q = mix(q, bv[4:])
            if t == 1 and j == 6: q += [f"s_add_u32 s59, s54, s55", f"s_sub_u32 s59, {3*A_SLOT}, s59", "s_sub_u32 s60, s59, s54"]
            if t == 1 and j == 7: q = mix(q, [f"v_add_u32 v{r}, s60, v{r}" for r in (aE, aE + 1, aE8, aE8 + 1)])
            if t == 2 and j == 6: q += ["s_sub_u32 s60, s54, s55", "s_mov_b32 s55, s54", "s_mov_b32 s54, s59"]
            if t == 2 and j == 7:
                q = mix(q, [f"v_add_u32 v{r}, s60, v{r}" for r in (aO, aO + 1)])
                if k == 2: q += ["s_sub_u32 s57, s57, 1", "s_cmp_eq_u32 s57, 0"]
            xr = AF + ring[X] * 4; yr = AF + ring[Y] * 4
            mf = []
            for n in range(4):
                pr = [(xr, breg(buf, 0, n)), (yr, breg(buf, 1, n))]
                if n % 2 == 1: pr = pr[::-1]
                mf += [(acc(j, n), ar, br) for ar, br in pr]
            run_gaps(mf, q, barrier_after=1 if j == JB else None)
            dead.add(X)
            if t == 2 or j == 7: dead.add(Y)
        assert not bq
    a("L_cloop:")
    for k in range(6):
        a(f"; ---- step {k}")
        step(k)
        if k == 2:
            saved = (list(lq), dict(ring))
            a("s_cbranch_scc1 L_clast")
    end_state = (list(lq), {k_: v for k_, v in ring.items() if k_ in init_state[1]}, rpos[0] % NRING)
    assert end_state == init_state, (end_state, init_state)
    a("s_branch L_cloop")
    a("L_clast:")
    if cprio: a(f"s_setprio {cprio}")
    stamp(11)
    lq[:] = [t + (0,) for t in saved[0]]
    loc = {t + (0,): AF + saved[1][t] * 4 for t in saved[0]}
    free = [AF + 4 * i for i in range(NRING) if AF + 4 * i not in loc.values()]
    bloc = {}
    for n in range(4):
        for pq in range(2):
            bloc[(0, pq, n)] = breg(1, pq, n); bloc[(1, pq, n)] = breg(0, pq, n)
            bloc[(2, pq, n)] = breg(1, pq, n) if n < 2 else breg(0, pq, n - 2)
    T0 = breg(1, 0, 0)
    def stats(h):
        for n in (2 * h, 2 * h + 1):
            a(f"v_cndmask_b32 v{acc(1,n)+3}, 0, v{acc(1,n)+3}, s[64:65]")
            a(f"v_cndmask_b32 v{acc(2,n)+3}, 0, v{acc(2,n)+3}, s[66:67]")
        for j in range(8):
            for hh in range(2):
                for n in (2 * h, 2 * h + 1):
                    x = acc(j, n) + 2 * hh; S = T0 + 4 * (n & 1); Q = S + 2
                    if j == 0 and hh == 0:
                        a(f"v_pk_mul_f32 v[{Q}:{Q+1}], v[{x}:{x+1}], v[{x}:{x+1}]")
                    else:
                        a(f"v_pk_fma_f32 v[{Q}:{Q+1}], v[{x}:{x+1}], v[{x}:{x+1}], v[{Q}:{Q+1}]")
                        src = f"v[{x-2}:{x-1}]" if j == 0 else f"v[{S}:{S+1}]"
                        a(f"v_pk_add_f32 v[{S}:{S+1}], {src}, v[{x}:{x+1}]")
        a(f"""
        v_add_f32 v{T0}, v{T0}, v{T0+1}
        v_add_f32 v{T0+4}, v{T0+4}, v{T0+5}
        v_add_f32 v{T0+1}, v{T0+2}, v{T0+3}
        v_add_f32 v{T0+5}, v{T0+6}, v{T0+7}
        s_nop 0
        v_permlane32_swap_b32 v{T0}, v{T0+4}
        v_permlane32_swap_b32 v{T0+1}, v{T0+5}
        s_nop 0
        v_add_f32 v{T0}, v{T0}, v{T0+4}
        v_add_f32 v{T0+1}, v{T0+1}, v{T0+5}
        v_mov_b32 v{T0+4}, v{T0}
        v_mov_b32 v{T0+5}, v{T0+1}
        s_nop 1
        v_permlane16_swap_b32 v{T0}, v{T0+4}
        v_permlane16_swap_b32 v{T0+1}, v{T0+5}
        s_nop 0
        v_add_f32 v{T0}, v{T0}, v{T0+4}
        v_add_f32 v{T0+1}, v{T0+1}, v{T0+5}
        """)
        emit(("lds", "P", f"ds_write_b64 v{VPART}, v[{T0}:{T0+1}] offset:{PART + 1024*h}"))
    def image_ops(h):
        ops = []
        for n in (2 * h, 2 * h + 1):
            for f in range(2):
                ops.append(f"v_xor_b32 v{4+f}, {((n&1)<<5) ^ (f<<7)}, v{VIMG}")
                for j in range(8):
                    if (j >> 1) & 1 != f: continue
                    for r in (0, 2):
                        x = acc(j, n) + r
                        ops.append(("lds", "I", f"ds_write2st64_b32 v{4+f}, v{x}, v{x+1} offset0:{8*r+j} offset1:{8*(r+1)+j}"))
        ops.append(("lds", "F", f"ds_write_b32 v15, v13 offset:{FLAGS + 16 + 16*h}"))
        return ops
    seq = [(0, t, j) for t in range(3) for j in range(8)]
    if jouter: seq += [(1, t, j) for j in range(8) for t in range(3)]
    else: seq += [(1, t, j) for t in range(3) for j in range(8)]
    aorder = []
    for s, (h, t, j) in enumerate(seq):
        for tg in afrags(t, j):
            if tg + (h,) not in loc: aorder.append((s, tg + (h,)))
    s_a0, s_a1, s_a2 = 7, 16 - LB, 16 + 5
    bq = []; iq = []; sq = []
    def plain_stats(j):
        ops = []
        for n in (2, 3):
            if j in (1, 2): ops.append(f"v_cndmask_b32 v{acc(j,n)+3}, 0, v{acc(j,n)+3}, s[{62+2*j}:{63+2*j}]")
        for r in range(4):
            for n in (2, 3):
                x = acc(j, n) + r; S = T0 + 4 * (n & 1) + 2; Q = S + 1
                if j == 0 and r == 0: ops.append(f"v_mul_f32 v{Q}, v{x}, v{x}")
                else:
                    ops.append(f"v_fmac_f32 v{Q}, v{x}, v{x}")
                    ops.append(f"v_add_f32 v{S}, v{x-1 if (j == 0 and r == 1) else S}, v{x}")
        return ops
    def pairs_of(h, t, j):
        X, Y = (("F", t, j, h), ("F", t, j + 1, h)) if t < 2 else (("G", 0, j, h), ("G", 1, j, h))
        return X, Y
    for s, (h, t, j) in enumerate(seq):
        if h == 0 and j == 0:
            a(f"; ---- last chunk pass A step {t}")
            bq = []
            if t == 1: late = carry
            ns_ = range(4) if t == 0 else (range(2) if t == 1 else range(2, 4))
            for n in ns_:
                for pq in range(2):
                    tb = 1 if t == 0 else 2
                    bq += bfrag(("LB", tb, n >> 1), bloc[(tb, pq, n)], n, pq, extra=(tb - 1) * 16384)
            if t == 1: bq += late
        if s == 24:
            a("; ---- last chunk pass B")
            a("s_nop 4")
            stats(0)
            stamp(5)
            iq = image_ops(0)
            free += [breg(1, 1, 0), breg(1, 1, 1)]
        X, Y = pairs_of(h, t, j)
        need = {X, Y} | ({("LB", t, h)} if j == 0 else set())
        if s == s_a2: need |= {("LB", 2, 1)}
        lwait(need)
        q = []
        while aorder and aorder[0][0] <= s + LB and free and len(q) < 2 and not (aorder[0][1][0] == "G" and s < s_a1):
            _, tg = aorder.pop(0)
            d = free.pop(0); loc[tg] = d
            q.append(("lds", tg, atext(tg, d)))
        for _ in range(2):
            if bq and (len(q) < 3 or t == 2): q.append(bq.pop(0))
        while iq and len(q) < 2 + iper: q.append(iq.pop(0))
        mf = []
        for n in (2 * h, 2 * h + 1):
            pr = [(loc[X], bloc[(t, 0, n)]), (loc[Y], bloc[(t, 1, n)])]
            if n % 2 == 1: pr = pr[::-1]
            mf += [(acc(j, n), ar, br) for ar, br in pr]
        run_gaps(mf, q, barrier_after=1 if s in (s_a0, s_a1, s_a2) else None, first_free=1 if j == 0 else 0)
        free.append(loc[X])
        if t == 2 or j == 7: free.append(loc[Y])
        if h == 0 and t == 0 and j == 7: carry = list(bq)
        if h == 0 and t > 0 and (j == 7 or s == s_a2 - 1): assert not bq, (s, bq)
    assert not aorder and not iq
    stamp(2)
    if probes:
        for pi in range(10):
            a(f"v_writelane_b32 v{VST}, s{68+2*pi}, {40+pi}")
            a(f"s_mov_b32 s100, L_probe{pi}-{NAME}_kernel\nv_writelane_b32 v{VST2}, s100, {40+pi}")
        a(f"s_getpc_b64 s[100:101]\nL_pq:\ns_sub_u32 s100, s100, L_pq-{NAME}_kernel\nv_writelane_b32 v{VST2}, s100, 50")
    a(f"s_nop 7\ns_mov_b32 s59, {SPIN}")
    if jouter:
        for op in plain_stats(7): a(op)
        a(f"""
        s_nop 0
        v_permlane32_swap_b32 v{T0+3}, v{T0+7}
        v_permlane32_swap_b32 v{T0+2}, v{T0+6}
        s_nop 0
        v_add_f32 v{T0+3}, v{T0+3}, v{T0+7}
        v_add_f32 v{T0+2}, v{T0+2}, v{T0+6}
        v_mov_b32 v{T0+7}, v{T0+3}
        v_mov_b32 v{T0+6}, v{T0+2}
        s_nop 1
        v_permlane16_swap_b32 v{T0+3}, v{T0+7}
        v_permlane16_swap_b32 v{T0+2}, v{T0+6}
        s_nop 0
        v_add_f32 v{T0+3}, v{T0+3}, v{T0+7}
        v_add_f32 v{T0+2}, v{T0+2}, v{T0+6}
        ds_write_b64 v{VPART}, v[{T0+2}:{T0+3}] offset:{PART + 1024}
        """)
    else:
        stats(1)
    stamp(13)
    part_publish("L_cpart", VPRD, 1, 32, VREC, "s[90:91]", 0)
    if not hk: a("s_setprio 0")
    stamp(3)
    a(f"v_add_u32 v{VIMG}, s40, v{VIMG}")
    for op in image_ops(1): emit(op)
    SC, SH, T, O, Y = 16, 24, 32, 40, 48
    a(f"""
    L_imgwait:
    s_mov_b32 s59, {SPIN*4}
    L_img:
    ds_read_b32 v15, v12 offset:{FLAGS+16}
    s_waitcnt lgkmcnt(0)
    v_cmp_eq_u32 vcc, 0, v15
    s_cbranch_vccz L_job
    s_sleep {isleep}
    s_sub_u32 s59, s59, 1
    s_cmp_gt_i32 s59, 0
    s_cbranch_scc1 L_img
    L_job:
    """)
    preread(4)
    if hk == 2: a("s_cmp_ge_u32 s3, 4\ns_cbranch_scc1 L_fw\ns_setprio 0")
    a(f"""
    L_fw:
    ds_read_b32 v15, v14 offset:{FLAGS}
    ds_read_b128 v[{SC}:{SC+3}], v11 offset:{CONST}
    ds_read_b128 v[{SC+4}:{SC+7}], v11 offset:{CONST+16}
    ds_read_b128 v[{SH}:{SH+3}], v11 offset:{CONST+512}
    ds_read_b128 v[{SH+4}:{SH+7}], v11 offset:{CONST+528}
    s_waitcnt lgkmcnt(0)
    v_cmp_eq_u32 vcc, 0, v15
    s_cbranch_vccz L_fw_ok
    {"s_sleep %d" % fsleep if fsleep else ""}
    s_sub_u32 s59, s59, 1
    s_cmp_gt_i32 s59, 0
    s_cbranch_scc1 L_fw
    L_fw_ok:
    """)
    if stamps:
        a("s_cmp_eq_u32 s42, 0\ns_cbranch_scc1 L_st8")
        stamp(14)
        a("L_st8:")
    stamp(8)
    def lowprio(lb):
        if hk == 1: a(f"s_setprio 1\ns_cmp_ge_u32 s3, 4\ns_cbranch_scc1 {lb}\ns_setprio 0\n{lb}:")
    lowprio("L_lp1")
    def p(x): return f"v[{x}:{x+1}]"
    for i in (3, 2, 1, 0):
        if i == 1: a("L_g2:")
        h = HH + 8 * i; o = O + 4 * (i & 1)
        for j in range(0, 8, 2): a(f"v_pk_fma_f32 {p(h+j)}, {p(h+j)}, {p(SC+j)}, {p(SH+j)}")
        for j in range(0, 8, 2): a(f"v_pk_fma_f32 {p(T+j)}, {p(h+j)}, {p(h+j)}, s[24:25]")
        for j in range(0, 8, 2): a(f"v_pk_mul_f32 {p(T+j)}, {p(T+j)}, {p(h+j)} neg_lo:[1,0] neg_hi:[1,0]")
        for j in range(8): a(f"v_exp_f32 v{T+j}, v{T+j}")
        for j in range(0, 8, 2): a(f"v_pk_fma_f32 {p(T+j)}, {p(T+j)}, s[26:27], s[26:27]")
        for j in range(8): a(f"v_rcp_f32 v{T+j}, v{T+j}")
        for j in range(0, 8, 2): a(f"v_pk_mul_f32 {p(T+j)}, {p(T+j)}, {p(h+j)}")
        for j in range(0, 8, 2): a(f"v_cvt_pk_bf16_f32 v{o+j//2}, v{T+j}, v{T+j+1}")
        if sthr is not None: a(f"s_waitcnt vmcnt({sthr})")
        if not nostore: a(f"buffer_store_dwordx4 v[{o}:{o+3}], v{10 if i == 0 else VO+i}, s[16:19], 0 offen{omod}")
    a("s_cmp_eq_u32 s42, 0\ns_cbranch_scc1 L_fin")
    if hk == 1: a("s_setprio 2")
    if hk == 2: a("s_cmp_ge_u32 s3, 4\ns_cbranch_scc1 L_hk2\ns_setprio 3\nL_hk2:")
    stamp(12)
    a("s_sub_u32 s42, s42, 1\ns_cmp_eq_u32 s42, 0\ns_cbranch_scc1 L_toB")
    a(f"""
    v_add_u32 v8, s0, v6
    v_add_u32 v10, s1, v7
    v_xor_b32 v9, 160, v8
    """)
    preread(2)
    a("s_waitcnt lgkmcnt(0)")
    lowprio("L_lp2")
    a("s_branch L_g2\nL_toB:")
    nextjob_regs()
    if not ded: a("s_cmp_ge_u32 s3, 6\ns_cbranch_scc1 L_gather")
    a("s_branch L_imgwait\nL_fin:")
    if hold in (9, 10) and not stamps: stamp(hold)
    if amp is not None:
        a("s_waitcnt vmcnt(0)")
        if amp == 10: stamp(10)
        a("s_waitcnt lgkmcnt(0)")
        if ampw == "c": a("s_cmp_ge_u32 s3, 4\ns_cselect_b32 s94, s92, s94")
        if ampw == "l": a("s_cmp_lt_u32 s3, 4\ns_cselect_b32 s94, s92, s94")
        a(f"""
        L_amp0:
        s_sleep 8
        s_memrealtime s[96:97]
        s_waitcnt lgkmcnt(0)
        s_sub_u32 s96, s96, s92
        s_cmp_lt_u32 s96, 4000
        s_cbranch_scc1 L_amp0
        s_not_b32 s95, s92
        v_mov_b32 v4, s94
        v_mov_b32 v5, s95
        v_mov_b32 v1, 8
        s_mov_b64 exec, 1
        global_atomic_umax v1, v4, s[34:35]
        global_atomic_umax v1, v5, s[34:35] offset:4
        s_waitcnt vmcnt(0)
        L_amp1:
        s_sleep 8
        s_memrealtime s[96:97]
        s_waitcnt lgkmcnt(0)
        s_sub_u32 s96, s96, s92
        s_cmp_lt_u32 s96, 16000
        s_cbranch_scc1 L_amp1
        global_load_dwordx2 v[4:5], v1, s[34:35] sc1
        s_waitcnt vmcnt(0)
        v_readfirstlane_b32 s94, v4
        v_readfirstlane_b32 s95, v5
        s_not_b32 s95, s95
        s_sub_u32 s94, s94, s95
        s_mul_i32 s94, s94, 10
        s_add_u32 s94, s94, 18900
        s_min_u32 s94, s94, 100000
        L_amp2:
        s_sleep 2
        s_memrealtime s[96:97]
        s_waitcnt lgkmcnt(0)
        s_sub_u32 s96, s96, s95
        s_cmp_lt_u32 s96, s94
        s_cbranch_scc1 L_amp2
        """)
    if stamps:
        stamp(9)
        a("s_waitcnt vmcnt(0)")
        stamp(10)
        a(f"""
        s_lshl_b32 s52, s2, 12
        s_lshl_b32 s53, s3, 9
        s_add_u32 s52, s52, s53
        s_add_u32 s52, s52, {STAMP_OFF}
        v_lshlrev_b32 v1, 3, v0
        v_add_u32 v1, s52, v1
        global_store_dwordx2 v1, v[{VST}:{VST2}], s[36:37]
        s_waitcnt vmcnt(0)
        """)
    a("L_end:\ns_endpgm")
    if relayout:
        L = a.lines
        ix = {t: L.index(t) for t in ("L_ltail:", "L_compute:", "L_cloop:", "L_imgwait:", "L_end:")}
        a.lines = (L[:ix["L_ltail:"]] + ["    s_branch L_ltail", ".p2align 12", "L_page:"] +
                   L[ix["L_compute:"]:ix["L_cloop:"]] + ["    s_branch L_cloop"] +
                   L[ix["L_ltail:"]:ix["L_compute:"]] + L[ix["L_imgwait:"]:ix["L_end:"]] + ["    s_endpgm", ".p2align 6"] +
                   L[ix["L_cloop:"]:ix["L_imgwait:"]] + ["    s_branch L_imgwait"] + L[ix["L_end:"]:])
        if hop: a.lines = add_hops(a.lines, [("L_ltail:", "L_end:")], hop, page="L_page:")
    elif hop: a.lines = add_hops(a.lines, [("L_lloop:", "L_compute:"), ("L_cloop:", "L_end:")], hop)
    if align8: a.lines = pad8(a.lines, "L_cloop:", "L_cpart:")
    hazcheck(a.lines)
    return wrap(a.text(), 256, 512, 163840, 256)

if __name__ == "__main__":
    out = sys.argv[1]
    kw = json.loads(sys.argv[2]) if len(sys.argv) > 2 else {}
    open(out, "w").write(gen(**kw))
```

```python
import sys, json, struct
from asmlib import *

def f2u(f): return struct.unpack("<I", struct.pack("<f", f))[0]

LROWS = 7999
C1 = -2.0 * 0.7978845608028654 * 1.4426950408889634
C2 = C1 * 0.044715
KS = (-C2) ** (1.0 / 3.0)
CP = -C1 / KS
SENT = 0xBF800000
A_SLOT = 32768
W_BASE = 98304
MISC = 32768
PART = MISC
CONST = MISC + 2048
FLAGS = MISC + 3072
STAMP_OFF = 1 << 20
SPIN = 0x20000

def gen(stamps=False, xmod="", wmod="", omod=" sc1", codepf=True, itstamps=False, hold=None, holdus=40,
        parity=True, psleep=1, fsleep=1, rsleep=0, lprio=2, cprio=3, LA=2, LB=3, only=None, wpar=True, jouter=False, ded=False, onebar=False, align8=False, shift=0, pf2=False, isleep=2, probes=False, ilv=True, hop=0, acc0=None, relayout=True, hopwait=False, nostore=False, gprio=None, hk=False, sthr=None, alt=1, snake=False, amp=None, ampw=None, swap=False, mprio=0, valu_in=False, iper=1, lag=True, lagfrom=3, rampv=0, pfk=19):
    a = Asm()
    VST, VST2 = 2, 3
    def stamp(k):
        if hold == k:
            lb = a.label("L_hold")
            a(f"""s_waitcnt lgkmcnt(0)
            {lb}:
            s_memrealtime s[96:97]
            s_waitcnt lgkmcnt(0)
            s_sub_u32 s96, s96, s92
            s_cmp_lt_u32 s96, {holdus*100}
            s_cbranch_scc1 {lb}""")
        if amp == k: a("s_memrealtime s[94:95]")
        if not stamps or (only is not None and k not in only): return
        a(f"s_memrealtime s[100:101]\ns_waitcnt lgkmcnt(0)\nv_writelane_b32 v{VST}, s100, {k}")
        if k in (1, 2, 8, 9): a(f"s_memtime s[100:101]\ns_waitcnt lgkmcnt(0)\nv_writelane_b32 v{VST2}, s100, {k}")
    def final_setup(role):
        a(f"""
        s_mul_i32 s38, s43, {LROWS}
        s_add_u32 s38, s38, s45
        s_lshl_b32 s38, s38, 10
        s_add_u32 s16, s32, s38
        s_addc_u32 s17, s33, 0
        s_lshl_b32 s18, s47, 10
        s_mov_b32 s19, 0x20000
        v_and_b32 v1, 7, v0                   ; o
        v_lshrrev_b32 v8, 3, v0
        s_and_b32 s38, s49, 1
        s_lshl_b32 s40, s38, 5
        s_add_u32 s40, s40, {64 if role == "c" else 0}
        v_add_u32 v8, s40, v8
        s_lshl_b32 s38, s38, 2
        v_xor_b32 v9, s38, v1                 ; o ^ 4*((row>>5)&1)
        v_bfe_u32 v10, v0, 4, 1               ; f
        v_lshl_add_u32 v9, v10, 3, v9
        v_lshlrev_b32 v9, 4, v9
        v_lshl_add_u32 v9, v8, 8, v9
        s_lshr_b32 s38, s49, 1
        s_lshl_b32 s40, s38, 15
        s_add_u32 s42, s40, {W_BASE}
        v_add_u32 v6, s42, v9
        s_sub_u32 s40, s40, {W_BASE}
        s_lshl_b32 s42, s38, 7
        v_add_u32 v8, s42, v8
        v_lshlrev_b32 v8, 10, v8
        v_lshl_add_u32 v7, v1, 4, v8
        s_lshl_b32 s42, s41, 8
        v_add_u32 v7, s42, v7
        v_lshlrev_b32 v11, 5, v1
        v_and_b32 v14, 1, v0
        v_lshlrev_b32 v14, 2, v14             ; constflag[lane&1]
        v_and_b32 v12, 3, v0
        v_lshlrev_b32 v12, 2, v12             ; imgflag[lane&3]
        v_mov_b32 v13, 1
        v_mov_b32 v8, v6
        v_xor_b32 v9, 160, v6
        v_mov_b32 v10, v7
        s_mov_b32 s24, {f2u(CP)}
        s_mov_b32 s25, {f2u(CP)}
        s_mov_b32 s26, {f2u(KS)}
        s_mov_b32 s27, {f2u(KS)}
        """)
        if not ded: a("s_mov_b32 s42, 1")
        elif role == "l": a("s_mov_b32 s42, 2\ns_mov_b32 s0, 32768\ns_mov_b32 s1, 131072")
        else: a(f"s_add_u32 s42, s38, 1\ns_mov_b32 s0, {(-48*256) & 0xffffffff}\ns_mov_b32 s1, {(-48*1024) & 0xffffffff}")
    HH, VO = 160, 60
    def preread(n):
        for i in range(n - 1, -1, -1):
            a(f"ds_read_b128 v[{HH+8*i}:{HH+8*i+3}], v8 offset:{2048*i}\nds_read_b128 v[{HH+8*i+4}:{HH+8*i+7}], v9 offset:{2048*i}")
        for i in range(1, n): a(f"v_add_u32 v{VO+i}, {8192*i}, v10")
    def part_publish(lbl, vaddr, half, x, vrec, maskreg, sleep):
        a(f"""
        {lbl}:
        ds_read_b128 v[{x}:{x+3}], v{vaddr} offset:{PART + 1024*half}
        s_waitcnt lgkmcnt(0)
        v_min_f32 v1, v{x+1}, v{x+3}
        v_cmp_gt_f32 vcc, 0, v1
        s_cbranch_vccz {lbl}_ok
        {"s_sleep %d" % sleep if sleep else ""}
        s_sub_u32 s59, s59, 1
        s_cmp_gt_i32 s59, 0
        s_cbranch_scc1 {lbl}
        {lbl}_ok:
        """)
        for i in range(4): a(f"v_mov_b32 v{x+4+i}, v{x+i}")
        for i in range(4): a(f"v_permlane32_swap_b32 v{x+i}, v{x+4+i}")
        for i in range(4): a(f"v_add_f32 v{x+i}, v{x+i}, v{x+4+i}")
        a(f"""
        s_mov_b64 exec, {maskreg}
        buffer_store_dwordx4 v[{x}:{x+3}], v{vrec}, s[20:23], 0 offen sc1
        s_mov_b64 exec, -1
        """)
    a(f"""
    s_cmp_ge_u32 s2, 256
    s_cbranch_scc1 L_end
    s_load_dwordx4 s[4:7], s[0:1], 0      ; x, w
    s_load_dwordx4 s[28:31], s[0:1], 16
    s_load_dwordx4 s[32:35], s[0:1], 32
    s_load_dwordx2 s[36:37], s[0:1], 48   ; ws
    """)
    if stamps or hold is not None or amp is not None: a("s_memrealtime s[92:93]")
    if amp is not None: a("s_memrealtime s[94:95]")
    a(f"""
    v_lshrrev_b32 v1, 6, v0
    v_and_b32 v0, 63, v0
    v_readfirstlane_b32 s3, v1
    s_and_b32 s38, s2, 7
    s_bfe_u32 s40, s2, 0x30005
    s_bfe_u32 s41, s2, 0x20003
    s_lshl_b32 s42, s38, 3
    s_add_u32 s42, s42, s40               ; mt 0..63
    s_lshr_b32 s43, s42, 5                ; batch
    s_and_b32 s44, s42, 31
    s_mul_i32 s45, s44, 250
    s_mul_i32 s46, s43, 8000
    s_add_u32 s46, s46, s45
    s_cmp_eq_u32 s44, 31
    s_cselect_b32 s47, 1, 0
    s_sub_u32 s47, 250, s47               ; nvalid
    s_lshl_b32 s48, s43, 2
    s_add_u32 s48, s48, s41
    s_and_b32 s49, s3, 3
    {"s_xor_b32 s3, s3, 4" if swap else ""}
    s_cmp_lt_u32 s3, 4
    s_cbranch_scc1 L_compute
    """)
    VA, VW = 56, 60
    a(f"""
    v_lshrrev_b32 v4, 4, v0               ; l>>4
    v_and_b32 v5, 15, v0
    v_lshlrev_b32 v6, 1, v4
    v_xor_b32 v5, v5, v6                  ; W chunk (n<2)
    s_and_b32 s50, s49, 1
    s_lshl_b32 s51, s50, 14
    s_lshl_b32 s52, s41, 8
    s_add_u32 s51, s51, s52
    v_lshlrev_b32 v5, 4, v5
    v_lshl_add_u32 v5, v4, 10, v5
    s_and_b32 s53, s40, {1 if wpar else 0}
    s_mul_i32 s52, s53, {8192 + 128}
    v_add_u32 v5, s51, v5
    v_xor_b32 v{VW}, s52, v5
    v_xor_b32 v{VW+2}, {8192 + 128}, v{VW}
    v_add_u32 v{VW+1}, 3072, v{VW}
    v_add_u32 v{VW+3}, 3072, v{VW+2}
    s_lshl_b32 s51, s49, 12
    s_lshl_b32 s53, s53, 11
    s_add_u32 s51, s51, s53
    s_add_u32 s51, s51, {W_BASE}
    s_lshr_b32 s62, s49, 1                ; lw>=2
    s_lshl_b32 s54, s62, 20               ; sB0
    s_mov_b32 s14, 1572864
    s_mov_b32 s15, 0x20000
    s_mov_b32 m0, s51
    s_waitcnt lgkmcnt(0)
    s_mov_b32 s12, s6
    s_mov_b32 s13, s7
    """)
    if stamps: a(f"v_writelane_b32 v{VST}, s92, 0")
    vq = []
    def issueA(slot_s, soff, tag, halves=(0, 1)):
        for half in halves:
            if half == halves[0]: a(f"s_add_u32 m0, s50, {slot_s}")
            if half == 1: a(f"s_xor_b32 m0, m0, 4096")
            a("s_nop 0")
            for n in range(4):
                vq.append(tag)
                a(f"buffer_load_dwordx4 v{VA+half*2+(n&1)}, s[8:11], {soff} offen offset:{n*1024}{xmod} lds")
    def issueW(slot_s, soff, tag, setm0=True, halves=(0, 1)):
        for half in halves:
            if half == halves[0] and setm0: a(f"s_add_u32 m0, s51, {slot_s}")
            if half == 1: a("s_xor_b32 m0, m0, 2048")
            if setm0 or half == 1: a("s_nop 0")
            for n in range(2):
                vq.append(tag)
                a(f"buffer_load_dwordx4 v{VW+2*half+n}, s[12:15], {soff} offen offset:{n*1024}{wmod} lds")
    def vwait(tags):
        last = max([i for i, t in enumerate(vq) if t in tags], default=-1)
        n = len(vq) - 1 - last
        a(f"s_waitcnt vmcnt({n})")
        return n
    def Aname(k): return f"E{k//3}" if k % 3 < 2 else f"O{k//3}"
    issueW(0, "s54", "B0", setm0=False, halves=(0,) if wpar else (0, 1))
    a(f"""
    v_and_b32 v5, 7, v0
    v_xor_b32 v5, v5, v4
    v_lshlrev_b32 v5, 4, v5
    v_lshrrev_b32 v6, 3, v0
    v_lshl_add_u32 v5, v6, 14, v5
    s_lshl_b32 s52, s62, 18
    s_lshl_b32 s53, s50, 13
    s_add_u32 s52, s52, s53
    s_and_b32 s53, s41, {1 if parity else 0}
    s_lshl_b32 s53, s53, 12
    s_add_u32 s52, s52, s53
    v_add_u32 v{VA}, s52, v5
    v_xor_b32 v{VA+2}, 4096, v{VA}
    v_xor_b32 v{VA+1}, 64, v{VA}
    v_xor_b32 v{VA+3}, 64, v{VA+2}
    v_add_u32 v{VA+1}, {64*2048 - 1024}, v{VA+1}
    v_add_u32 v{VA+3}, {64*2048 - 1024}, v{VA+3}
    s_lshl_b32 s50, s49, 13
    s_add_u32 s50, s50, s53
    s_lshl_b32 s10, s47, 11
    s_add_u32 s10, s10, 1024
    s_mov_b32 s11, 0x20000
    s_lshl_b32 s57, s46, 11
    s_add_u32 s8, s4, s57
    s_addc_u32 s9, s5, 0
    s_mov_b32 s52, 0                      ; x k-offset (E)
    s_mov_b32 s53, 1024                   ; x k-offset (O)
    s_add_u32 s55, s54, 0x8000            ; sB1
    s_lshl_b32 s56, s62, 15
    s_add_u32 s56, s56, 0x80000           ; sB2
    """)
    issueA(0, "s52", "E0", halves=(0,))
    if wpar: issueW(16384, "s55", "B1", halves=(0,))
    stamp(5)
    R = 80
    NG = 8; MK = 64; G = 96
    a(f"""
    s_mov_b32 s20, s36
    s_mov_b32 s21, s37
    s_mov_b32 s22, 0x40000
    s_mov_b32 s23, 0x20000
    s_lshl_b32 s39, s48, 5
    s_add_u32 s39, s39, s44
    s_lshl_b32 s39, s39, 10
    v_lshlrev_b32 v{R+6}, 4, v0
    v_add_u32 v{R+5}, s39, v{R+6}
    v_and_b32 v1, 15, v0
    v_lshrrev_b32 v5, 5, v0
    v_lshl_add_u32 v5, v1, 1, v5
    s_lshl_b32 s57, s49, 5
    v_add_u32 v{R}, s57, v5
    s_lshl_b32 s57, s41, 7
    v_add_u32 v{R+7}, s57, v{R}
    v_lshlrev_b32 v{R+7}, 1, v{R+7}
    v_lshlrev_b32 v{R}, 2, v{R}
    v_lshlrev_b32 v1, 4, v1
    v_lshl_add_u32 v1, v4, 10, v1
    s_lshl_b32 s57, s48, 15
    s_lshl_b32 s58, s49, 8
    s_add_u32 s57, s57, s58
    v_add_u32 v{R+3}, s57, v1
    s_lshl_b32 s57, s48, 5
    v_mov_b32 v{R+4}, s57
    s_add_u32 s57, s39, s58
    v_lshl_add_u32 v{R+8}, v0, 2, s57
    v_mov_b32 v29, 0
    v_mov_b32 v{R+10}, {SENT}
    v_mov_b32 v{R+11}, {SENT}
    s_lshl_b32 s57, s49, 4
    s_lshl_b64 s[90:91], 0xffff, s57
    """)
    for i in range(NG): a(f"s_mov_b64 s[{MK+2*i}:{MK+2*i+1}], -1")
    for i in range(1, NG): a(f"s_mov_b32 s{80+i}, {i*4096}")
    final_setup("l")
    stamp(13)
    if wpar: issueW(0, "s54", "B0", halves=(1,))
    issueA(0, "s52", "E0", halves=(1,))
    if wpar: issueW(16384, "s55", "B1", halves=(1,))
    if onebar:
        if not wpar: issueW(16384, "s55", "B1")
        issueW(32768, "s56", "B2")
        stamp(6)
        vwait({"B0", "E0", "B1"}); a("s_barrier")
        stamp(1)
    else:
        stamp(7)
        vwait({"B0"}); stamp(15); a("s_barrier")
        if not wpar: issueW(16384, "s55", "B1")
    a(f"""
    buffer_store_dword v{R+10}, v{R+8}, s[20:23], 0 offen sc1
    global_load_ushort v{R+1}, v{R+7}, s[28:29]
    global_load_ushort v{R+2}, v{R+7}, s[30:31]
    s_lshl_b32 s57, s49, 9
    v_lshl_add_u32 v{R+7}, v0, 3, s57
    v_lshlrev_b32 v{R+8}, 2, v0
    v_mov_b32 v{R+9}, 0
    """)
    vq += ["S", "g", "g"]
    if not onebar: issueW(32768, "s56", "B2")
    a(f"""
    s_mov_b32 s57, {2*A_SLOT}
    s_mov_b32 s58, {A_SLOT}
    s_mov_b32 s59, 49152
    """)
    if not onebar:
        stamp(6)
        vwait({"E0", "B1"}); a("s_barrier")
        stamp(1)
    def iB(kb, ph, nth=0):
        sreg = ["s54", "s55", "s56"][kb % 3]
        if ph in (0, None): a(f"s_add_u32 {sreg}, {sreg}, 0x10000")
        issueW("s59", sreg, f"B{kb}", halves=(0, 1) if ph is None else (ph,))
        if ph in (1, None): a("s_add_u32 s59, s59, 16384\ns_and_b32 s59, s59, 0xffff")
    def iO(c, ph):
        if c > 0 and ph in (0, None): a("s_add_u32 s53, s53, 128")
        issueA("s58", "s53", f"O{c}", halves=(0, 1) if ph is None else (ph,))
    def iE(c, ph):
        if ph in (0, None): a("s_add_u32 s52, s52, 128")
        issueA("s57", "s52", f"E{c}", halves=(0, 1) if ph is None else (ph,))
        if ph in (1, None): a(f"s_add_u32 s61, s57, s58\ns_mov_b32 s57, s58\ns_sub_u32 s58, {3*A_SLOT}, s61")
    ramp = {-1: [("O", 0), ("B", 3)], 0: [("E", 1), ("B", 4)], 1: [("B", 5), ("O", 1)], 2: [("B", 6), ("E", 2)], 3: [("B", 7), ("B", 8)]}
    if rampv == 1: ramp = {-1: [("O", 0), ("B", 3)], 0: [("E", 1), ("B", 4)], 1: [("B", 5), ("O", 1)], 2: [("B", 6), ("E", 2)], 3: [("B", 7)], 4: [("B", 8), ("B", 9), ("O", 2)]}
    pend = []
    fn = {"B": iB, "O": iO, "E": iE}
    def lstep(k):
        c = k // 3
        if k in ramp: todo = list(ramp[k])
        else:
            todo = []
            if k + 5 <= 23: todo.append(("B", k + 5))
            if k % 3 == 1 and c + 1 <= 7: todo.append(("O", c + 1))
            if k % 3 == 2 and c + 2 <= 7: todo.append(("E", c + 2))
        for kind, i in pend: fn[kind](i, 1)
        pend[:] = []
        if lag and lagfrom <= k < 19:
            if len(todo) >= 2 and todo[0][0] == todo[1][0]:
                fn[todo[0][0]](todo[0][1], None); todo = todo[1:]
            for kind, i in todo: fn[kind](i, 0)
            pend[:] = todo
        else:
            two = ilv and len(todo) == 2 and todo[0][0] != todo[1][0]
            for ph in ((0, 1) if two else (None,)):
                for kind, i in todo: fn[kind](i, ph)
        if pf2 and k == pfk:
            a(f"""
            s_getpc_b64 s[88:89]
            L_pfbase2:
            s_add_u32 s88, s88, L_compute-L_pfbase2
            s_addc_u32 s89, s89, 0
            s_bfe_u32 s61, s2, 0x30005
            s_lshl_b32 s63, s49, 5
            s_add_u32 s61, s61, s63
            s_lshl_b32 s61, s61, 7
            v_lshl_add_u32 v1, v0, 10, s61
            v_min_u32 v1, L_end-L_compute, v1
            s_mov_b64 exec, 15
            global_load_dword v16, v1, s[88:89]
            s_mov_b64 exec, -1
            """)
            vq.append("c")
        need = {Aname(k + 2), f"B{k+3}"}
        assert not need & {f"{kd}{i}" for kd, i in pend}
        return vwait(need)
    K0 = 5 if lag else 4
    NLI = 4 if lag else 5
    for k in range(-1, K0):
        lstep(k); a("s_barrier")
    a(f"""
    s_mov_b32 s60, {NLI}
    s_and_b32 s62, s44, 3
    s_min_u32 s62, s62, 2
    s_add_u32 s62, s62, 2
    s_cmp_lg_u32 s49, 0
    s_cselect_b32 s62, 0, s62
    L_lloop:
    """)
    ns = []
    for k in range(K0, K0 + 3):
        ns.append(lstep(k))
        if k == 6:
            a(f"""
            s_cmp_lg_u32 s60, s62
            s_cbranch_scc1 L_noat
            s_mov_b64 exec, 1
            global_atomic_add v{R+4}, v13, s[34:35]
            s_mov_b64 exec, -1
            L_noat:
            """)
        a("s_barrier")
    a("s_sub_u32 s60, s60, 1\ns_cmp_lg_u32 s60, 0\ns_cbranch_scc1 L_lloop")
    keep = len(a.lines)
    mins = list(ns)
    for k in range(K0 + 3, K0 + 3 * NLI):
        n = lstep(k); mins[(k - K0) % 3] = min(mins[(k - K0) % 3], n)
    del a.lines[keep:]
    li = a.lines.index("L_lloop:"); wi = 0
    for q in range(li, len(a.lines)):
        if "s_waitcnt vmcnt" in a.lines[q]:
            a.lines[q] = f"    s_waitcnt vmcnt({mins[wi]})"; wi += 1
    assert wi == 3
    for k in range(K0 + 3 * NLI, 19):
        lstep(k); a("s_barrier")
    lstep(19); a("s_barrier")
    a("L_ltail:")
    stamp(11)
    a(f"""
    ds_write_b64 v{R+7}, v[{R+10}:{R+11}] offset:{PART}
    ds_write_b32 v{R+8}, v{R+9} offset:{FLAGS}
    s_waitcnt lgkmcnt(0)
    """)
    vwait({"B23"}); a("s_barrier")
    a(f"""
    s_waitcnt vmcnt(0)
    s_barrier
    global_load_dword v{R+9}, v{R+4}, s[34:35] sc1
    s_mov_b32 s52, {f2u(KS)}
    v_lshlrev_b32 v{R+1}, 16, v{R+1}
    v_lshlrev_b32 v{R+2}, 16, v{R+2}
    v_mul_f32 v{R+1}, s52, v{R+1}
    v_mul_f32 v{R+2}, s52, v{R+2}
    s_mov_b32 s59, {SPIN}
    s_barrier
    """)
    stamp(2)
    if lprio: a(f"s_setprio {lprio}")
    def nextjob_regs():
        a(f"""
        v_add_u32 v8, s40, v6
        v_add_u32 v10, 128, v7
        v_xor_b32 v9, 160, v8
        v_add_u32 v11, 256, v11
        v_add_u32 v14, 8, v14
        v_add_u32 v12, 16, v12
        """)
    a("s_cmp_ge_u32 s49, 2\ns_cbranch_scc1 L_nopub")
    part_publish("L_part", R + 6, 0, G, R + 5, "s[90:91]", psleep)
    stamp(3)
    a(f"""
    L_nopub:
    L_cnt:
    s_waitcnt vmcnt(0)
    v_readfirstlane_b32 s52, v{R+9}
    s_cmp_ge_u32 s52, 32
    s_cbranch_scc1 L_cnt_ok
    s_sleep 32
    global_load_dword v{R+9}, v{R+4}, s[34:35] sc1
    s_sub_u32 s59, s59, 1
    s_cmp_gt_i32 s59, 0
    s_cbranch_scc1 L_cnt
    L_cnt_ok:
    s_cmp_lt_u32 s49, 2
    s_cbranch_scc1 L_gather
    """)
    if ded:
        a(f"""
        s_mov_b32 s42, 0
        """)
        nextjob_regs()
        a(f"""
        s_mov_b32 s59, {SPIN}
        L_img2:
        ds_read_b32 v15, v12 offset:{FLAGS+16}
        s_waitcnt lgkmcnt(0)
        v_cmp_eq_u32 vcc, 0, v15
        s_cbranch_vccz L_img2_ok
        s_sleep 1
        s_sub_u32 s59, s59, 1
        s_cmp_gt_i32 s59, 0
        s_cbranch_scc1 L_img2
        L_img2_ok:
        """)
        preread(4)
    else:
        a("s_branch L_imgwait")
    a("L_gather:")
    if stamps: a("s_mov_b32 s94, 0")
    a(f"s_mov_b32 s59, {SPIN}\nL_poll:")
    if stamps: a("s_add_u32 s94, s94, 1")
    for i in range(NG):
        a(f"s_or_b64 exec, s[{MK+2*i}:{MK+2*i+1}], 1")
        a(f"buffer_load_dwordx4 v[{G+4*i}:{G+4*i+3}], v{R+3}, s[20:23], {'s%d' % (80+i) if i else 0} offen sc1")
    a("s_mov_b64 exec, -1\ns_waitcnt vmcnt(0)")
    for i in range(NG):
        a(f"v_min_f32 v1, v{G+4*i+1}, v{G+4*i+3}")
        a(f"v_cmp_gt_f32 s[{MK+2*i}:{MK+2*i+1}], 0, v1")
    a(f"s_or_b64 s[52:53], s[{MK}:{MK+1}], s[{MK+2}:{MK+3}]")
    for i in range(2, NG):
        a(f"s_or_b64 s[52:53], s[52:53], s[{MK+2*i}:{MK+2*i+1}]")
    a(f"""
    s_cbranch_scc0 L_poll_done
    {"s_sleep %d" % rsleep if rsleep else ""}
    s_sub_u32 s59, s59, 1
    s_cmp_gt_i32 s59, 0
    s_cbranch_scc1 L_poll
    L_poll_done:
    """)
    if stamps: a(f"v_writelane_b32 v{VST2}, s94, 63")
    stamp(4)
    for step_ in (4, 2, 1):
        for i in range(step_):
            for h in range(4):
                x = G + 4 * i + h; y = G + 4 * (i + step_) + h
                a(f"v_add_f32 v{x}, v{x}, v{y}")
    x = G
    a(f"""
    s_mov_b32 s52, {f2u(1.0/LROWS)}
    s_nop 0
    v_permlane32_swap_b32 v{x}, v{x+2}
    v_permlane32_swap_b32 v{x+1}, v{x+3}
    s_nop 1
    v_add_f32 v{x}, v{x}, v{x+2}
    v_add_f32 v{x+1}, v{x+1}, v{x+3}
    v_mov_b32 v{x+2}, v{x}
    v_mov_b32 v{x+3}, v{x+1}
    s_nop 1
    v_permlane16_swap_b32 v{x}, v{x+2}
    v_permlane16_swap_b32 v{x+1}, v{x+3}
    s_nop 1
    v_add_f32 v{x}, v{x}, v{x+2}
    v_add_f32 v{x+1}, v{x+1}, v{x+3}
    v_mul_f32 v{G}, s52, v{G}             ; mean
    v_mul_f32 v{G+1}, s52, v{G+1}         ; E[h^2]
    v_fma_f32 v{G+1}, -v{G}, v{G}, v{G+1} ; var
    v_max_f32 v{G+1}, 0, v{G+1}
    v_add_f32 v{G+1}, {f2u(1e-5)}, v{G+1}
    v_rsq_f32 v{G+1}, v{G+1}
    s_lshl_b32 s52, s49, 2
    v_mul_f32 v{G+1}, v{G+1}, v{R+1}      ; KS*scale
    v_mov_b32 v1, s52
    v_fma_f32 v{G}, -v{G}, v{G+1}, v{R+2} ; KS*shift
    ds_write_b32 v{R}, v{G+1} offset:{CONST}
    ds_write_b32 v{R}, v{G} offset:{CONST+512}
    ds_write_b32 v1, v13 offset:{FLAGS}
    s_mov_b32 s59, {SPIN*4}
    """)
    if gprio is not None: a(f"s_setprio {gprio}")
    if ded: a("s_cmp_ge_u32 s49, 2\ns_cbranch_scc1 L_fw")
    a("s_branch L_imgwait")

    ACC = 128
    def acc(j, n): return ACC + (j * 4 + n) * 4
    BF = 64; AF = 32; NRING = 8
    aE, aE8, aO, bB = 16, 18, 20, 22
    VIMG, VPART, VPRD, VREC = 26, 27, 28, 29
    a("L_compute:")
    if mprio: a(f"s_setprio {mprio}")
    if codepf:
        a(f"""
        s_getpc_b64 s[52:53]
        L_pfbase:
        s_sub_u32 s52, s52, L_pfbase-L_compute
        s_subb_u32 s53, s53, 0
        s_lshl_b32 s50, s49, 5
        s_add_u32 s50, s50, s40
        s_lshl_b32 s50, s50, 7
        v_lshl_add_u32 v1, v0, 10, s50
        v_min_u32 v1, L_end-L_compute, v1
        s_mov_b64 exec, 15
        global_load_dword v30, v1, s[52:53]
        s_mov_b64 exec, -1
        """)
    a(f"""
    s_lshr_b32 s50, s49, 1                ; wm
    s_and_b32 s51, s49, 1                 ; wn
    v_and_b32 v32, 15, v0                 ; i
    v_lshrrev_b32 v33, 4, v0              ; g
    s_lshl_b32 s52, s50, 14
    v_bfe_u32 v34, v32, 1, 3
    v_xor_b32 v34, v34, v33
    v_lshlrev_b32 v34, 4, v34
    v_lshl_add_u32 v34, v32, 7, v34
    v_add_u32 v{aE}, s52, v34
    v_xor_b32 v{aE+1}, 64, v{aE}
    v_add_u32 v{aO}, {A_SLOT}, v{aE}
    v_add_u32 v{aO+1}, {A_SLOT}, v{aE+1}
    v_add_u32 v35, 1, v32
    s_mul_i32 s52, s50, 127
    s_add_u32 s52, s52, 128
    s_lshl_b32 s53, s50, 7
    v_add_u32 v35, s53, v35
    v_mov_b32 v36, s52
    v_cmp_eq_u32 vcc, 15, v32
    s_nop 1
    v_cndmask_b32 v35, v35, v36, vcc
    v_bfe_u32 v34, v35, 1, 3
    v_xor_b32 v34, v34, v33
    v_lshlrev_b32 v34, 4, v34
    v_lshl_add_u32 v{aE8}, v35, 7, v34
    v_xor_b32 v{aE8+1}, 64, v{aE8}
    v_bfe_u32 v34, v0, 2, 2
    v_lshl_add_u32 v35, v33, 3, v34
    v_bfe_u32 v34, v0, 2, 3
    v_lshlrev_b32 v34, 5, v34
    s_lshl_b32 s52, s51, 6
    v_xor_b32 v34, s52, v34
    v_and_b32 v36, 3, v0
    v_lshl_add_u32 v34, v36, 3, v34
    v_lshl_add_u32 v34, v35, 8, v34
    v_add_u32 v{bB}, {W_BASE}, v34
    v_xor_b32 v{bB+1}, 32, v{bB}
    v_xor_b32 v{bB+2}, 128, v{bB}
    v_xor_b32 v{bB+3}, 160, v{bB}
    s_mov_b64 s[64:65], -1
    s_mov_b64 s[66:67], -1
    s_cmp_eq_u32 s50, 0
    s_cbranch_scc1 L_nomask
    s_cmp_eq_u32 s47, 249
    s_cselect_b32 s65, 0xffff, -1
    s_cselect_b32 s67, -1, 0xffff
    L_nomask:
    v_bfe_u32 v34, v32, 2, 1
    v_mul_u32_u24 v34, 10, v34
    v_lshrrev_b32 v35, 3, v32
    v_or_b32 v34, v34, v35
    v_and_b32 v35, 1, v33
    v_xor_b32 v35, s51, v35
    v_lshl_add_u32 v34, v35, 2, v34
    v_lshlrev_b32 v34, 4, v34
    v_and_b32 v35, 3, v32
    v_lshl_add_u32 v34, v35, 2, v34
    v_lshl_add_u32 v34, v33, 13, v34
    s_lshl_b32 s52, s50, 15
    s_add_u32 s52, s52, {W_BASE}
    v_add_u32 v{VIMG}, s52, v34
    v_lshrrev_b32 v34, 5, v0
    v_lshl_add_u32 v34, v34, 4, v32
    s_lshl_b32 s52, s49, 8
    v_lshl_add_u32 v{VPART}, v34, 3, s52
    v_lshlrev_b32 v{VPRD}, 4, v0
    s_lshl_b32 s39, s48, 5
    s_add_u32 s39, s39, s44
    s_lshl_b32 s39, s39, 10
    s_add_u32 s39, s39, 512
    v_add_u32 v{VREC}, s39, v{VPRD}
    s_lshl_b32 s52, s49, 3
    s_lshl_b64 s[90:91], 0xff, s52
    s_lshl_b32 s52, s49, 2
    v_mov_b32 v15, s52
    s_waitcnt lgkmcnt(0)
    s_mov_b32 s20, s36
    s_mov_b32 s21, s37
    s_mov_b32 s22, 0x40000
    s_mov_b32 s23, 0x20000
    """)
    final_setup("c")
    if acc0 is None:
        for i in range(0, 128, 2): a(f"v_mov_b64 v[{ACC+i}:{ACC+i+1}], 0")
    else:
        for i in range(128): a(f"v_mov_b32 v{ACC+i}, {f2u(acc0)}")
    if stamps: a(f"v_writelane_b32 v{VST}, s92, 0")
    a(f"""
    s_mov_b32 s54, 0                      ; sE
    s_mov_b32 s55, {A_SLOT}               ; sO
    s_mov_b32 s56, 0
    s_mov_b32 s57, 4
    s_mov_b32 s63, 16384
    s_mov_b32 s61, 16
    """)
    if hop:
        if hopwait: a("s_waitcnt vmcnt(0)")
        a("""
        s_mov_b64 exec, 0
        s_cmp_eq_u32 s49, 0
        s_cbranch_scc1 L_hopg0
        s_cmp_eq_u32 s49, 1
        s_cbranch_scc1 L_hopg1
        s_cmp_eq_u32 s49, 2
        s_cbranch_scc1 L_hopg2
        s_branch L_hopg3
        L_hopret:
        s_mov_b64 exec, -1
        """)
    stamp(7)
    a("s_barrier")
    lq = []; ring = {}; rpos = [0]; occ = {}; dead = set()
    def afrags(t, j):
        if t < 2:
            return [("F", t, 0), ("F", t, 1)] if j == 0 else [("F", t, j + 1)]
        return [("G", 0, j), ("G", 1, j)]
    def atext(tag, d):
        kind, x, j = tag[:3]
        if kind == "F":
            if j < 8: return f"ds_read_b128 v[{d}:{d+3}], v{aE+x} offset:{j*2048}"
            return f"ds_read_b128 v[{d}:{d+3}], v{aE8+x}"
        return f"ds_read_b128 v[{d}:{d+3}], v{aO+x} offset:{j*2048}"
    def aread(tag):
        idx = rpos[0] % NRING; rpos[0] += 1
        if tag[0] == "F" and tag[2] == 8: rpos[0] += 1
        if idx in occ: assert occ[idx] in dead, (tag, idx, occ[idx])
        occ[idx] = tag; dead.discard(tag)
        ring[tag] = idx
        return ("lds", tag, atext(tag, AF + idx * 4))
    def bfrag(tag, d, n, pq, extra=0):
        return [("lds", tag, f"ds_read_b64_tr_b16 v[{d+2*h}:{d+2*h+1}], v{bB+n} offset:{extra + pq*8192 + h*1024}") for h in range(2)]
    def breg(buf, pq, n): return BF + buf * 32 + (pq * 4 + n) * 4
    def breads(buf):
        r = []
        for n in range(4):
            for pq in range(2): r += bfrag(("B", buf), breg(buf, pq, n), n, pq)
        return r
    def emit(op):
        if isinstance(op, tuple):
            lq.append(op[1]); a(op[2])
        else: a(op)
    def lwait(tags):
        last = max([i for i, t in enumerate(lq) if t in tags], default=-1)
        if last < 0: return
        n = min(15, len(lq) - 1 - last)
        a(f"s_waitcnt lgkmcnt({n})")
        del lq[:len(lq) - n]
    def badv():
        return ["s_add_u32 s56, s56, 16384", "s_cmp_eq_u32 s56, 0x10000", "s_cselect_b32 s58, 0xffff4000, s63", "s_and_b32 s56, s56, 0xffff"] + \
               [f"v_add_u32 v{bB+n}, s58, v{bB+n}" for n in range(4)]
    def mfma(d, ar, br): a(f"v_mfma_f32_16x16x32_bf16 v[{d}:{d+3}], v[{ar}:{ar+3}], v[{br}:{br+3}], v[{d}:{d+3}]")
    def bar():
        a("s_barrier")
        if itstamps:
            a(f"s_mov_b32 m0, s61\ns_add_u32 s61, s61, 1\nv_writelane_b32 v{VST}, s96, m0\nv_writelane_b32 v{VST2}, s98, m0")
            a("s_memrealtime s[96:97]\ns_memtime s[98:99]")
    if onebar: stamp(1)
    for op in breads(0): emit(op)
    for op in badv(): a(op)
    if not onebar:
        a("s_waitcnt lgkmcnt(0)")
        a("s_barrier")
        stamp(1)
    lq[:] = []
    if itstamps: a("s_memrealtime s[96:97]\ns_memtime s[98:99]")
    for j in range(LA):
        for tg in afrags(0, j): emit(aread(tg))
    for _ in range(shift): a("s_nop 0")
    init_state = (list(lq), dict(ring), rpos[0] % NRING)
    def run_gaps(mf, q, barrier_after=None, first_free=0, reserve_last=True):
        ng = len(mf)
        def isvalu(op): return isinstance(op, str) and op.startswith("v_")
        gaps = [g for g in range(first_free, ng) if not (reserve_last and g == ng - 1 and len(q) < ng - first_free)]
        if barrier_after is not None: gaps = [g for g in gaps if g > barrier_after]
        plan = {g: [] for g in range(ng)}
        cap = max(1, -(-len(q) // max(1, len(gaps))))
        while True:
            for g in plan: plan[g] = []
            gi = 0; ok = True
            for op in q:
                while gi < len(gaps) and (len(plan[gaps[gi]]) >= cap or (isvalu(op) and not valu_in and gaps[gi] % 2 == 0)): gi += 1
                if gi >= len(gaps): ok = False; break
                plan[gaps[gi]].append(op)
            if ok: break
            if reserve_last and ng - 1 not in gaps: gaps.append(ng - 1)
            else: cap += 1
        for g, m in enumerate(mf):
            mfma(*m)
            if g == barrier_after: bar()
            for op in plan[g]:
                if isinstance(op, tuple) and op[0] == "A": op = aread(op[1])
                emit(op)
    def step(k):
        t = k % 3; buf = k & 1
        tn = (t + 1) % 3
        bq = breads(buf ^ 1)
        JB = 8 - LA
        nb_per = 4
        bv = badv()
        for j in range(8):
            X, Y = (("F", t, j), ("F", t, j + 1)) if t < 2 else (("G", 0, j), ("G", 1, j))
            need = {X, Y}
            if j == 0: need.add(("B", buf))
            q = []
            if j == JB: lwait(set(lq))
            else: lwait(need)
            if j + LA < 8: q += [("A", tg) for tg in afrags(t, j + LA)]
            else: q += [("A", tg) for tg in afrags(tn, j + LA - 8)]
            for _ in range(nb_per):
                if bq: q.append(bq.pop(0))
            def mix(q, v):
                out = []
                while q or v:
                    if q: out.append(q.pop(0))
                    if v: out.append(v.pop(0))
                return out
            if j == 4: q += bv[:4]
            if j == 5: q = mix(q, bv[4:])
            if t == 1 and j == 6: q += [f"s_add_u32 s59, s54, s55", f"s_sub_u32 s59, {3*A_SLOT}, s59", "s_sub_u32 s60, s59, s54"]
            if t == 1 and j == 7: q = mix(q, [f"v_add_u32 v{r}, s60, v{r}" for r in (aE, aE + 1, aE8, aE8 + 1)])
            if t == 2 and j == 6: q += ["s_sub_u32 s60, s54, s55", "s_mov_b32 s55, s54", "s_mov_b32 s54, s59"]
            if t == 2 and j == 7:
                q = mix(q, [f"v_add_u32 v{r}, s60, v{r}" for r in (aO, aO + 1)])
                if k == 2: q += ["s_sub_u32 s57, s57, 1", "s_cmp_eq_u32 s57, 0"]
            xr = AF + ring[X] * 4; yr = AF + ring[Y] * 4
            mf = []
            for n in range(4):
                pr = [(xr, breg(buf, 0, n)), (yr, breg(buf, 1, n))]
                if n % 2 == 1: pr = pr[::-1]
                mf += [(acc(j, n), ar, br) for ar, br in pr]
            run_gaps(mf, q, barrier_after=1 if j == JB else None)
            dead.add(X)
            if t == 2 or j == 7: dead.add(Y)
        assert not bq
    a("L_cloop:")
    for k in range(6):
        a(f"; ---- step {k}")
        step(k)
        if k == 2:
            saved = (list(lq), dict(ring))
            a("s_cbranch_scc1 L_clast")
    end_state = (list(lq), {k_: v for k_, v in ring.items() if k_ in init_state[1]}, rpos[0] % NRING)
    assert end_state == init_state, (end_state, init_state)
    a("s_branch L_cloop")
    a("L_clast:")
    if cprio: a(f"s_setprio {cprio}")
    stamp(11)
    lq[:] = [t + (0,) for t in saved[0]]
    loc = {t + (0,): AF + saved[1][t] * 4 for t in saved[0]}
    free = [AF + 4 * i for i in range(NRING) if AF + 4 * i not in loc.values()]
    bloc = {}
    for n in range(4):
        for pq in range(2):
            bloc[(0, pq, n)] = breg(1, pq, n); bloc[(1, pq, n)] = breg(0, pq, n)
            bloc[(2, pq, n)] = breg(1, pq, n) if n < 2 else breg(0, pq, n - 2)
    T0 = breg(1, 0, 0)
    def stats(h):
        for n in (2 * h, 2 * h + 1):
            a(f"v_cndmask_b32 v{acc(1,n)+3}, 0, v{acc(1,n)+3}, s[64:65]")
            a(f"v_cndmask_b32 v{acc(2,n)+3}, 0, v{acc(2,n)+3}, s[66:67]")
        for j in range(8):
            for hh in range(2):
                for n in (2 * h, 2 * h + 1):
                    x = acc(j, n) + 2 * hh; S = T0 + 4 * (n & 1); Q = S + 2
                    if j == 0 and hh == 0:
                        a(f"v_pk_mul_f32 v[{Q}:{Q+1}], v[{x}:{x+1}], v[{x}:{x+1}]")
                    else:
                        a(f"v_pk_fma_f32 v[{Q}:{Q+1}], v[{x}:{x+1}], v[{x}:{x+1}], v[{Q}:{Q+1}]")
                        src = f"v[{x-2}:{x-1}]" if j == 0 else f"v[{S}:{S+1}]"
                        a(f"v_pk_add_f32 v[{S}:{S+1}], {src}, v[{x}:{x+1}]")
        a(f"""
        v_add_f32 v{T0}, v{T0}, v{T0+1}
        v_add_f32 v{T0+4}, v{T0+4}, v{T0+5}
        v_add_f32 v{T0+1}, v{T0+2}, v{T0+3}
        v_add_f32 v{T0+5}, v{T0+6}, v{T0+7}
        s_nop 0
        v_permlane32_swap_b32 v{T0}, v{T0+4}
        v_permlane32_swap_b32 v{T0+1}, v{T0+5}
        s_nop 0
        v_add_f32 v{T0}, v{T0}, v{T0+4}
        v_add_f32 v{T0+1}, v{T0+1}, v{T0+5}
        v_mov_b32 v{T0+4}, v{T0}
        v_mov_b32 v{T0+5}, v{T0+1}
        s_nop 1
        v_permlane16_swap_b32 v{T0}, v{T0+4}
        v_permlane16_swap_b32 v{T0+1}, v{T0+5}
        s_nop 0
        v_add_f32 v{T0}, v{T0}, v{T0+4}
        v_add_f32 v{T0+1}, v{T0+1}, v{T0+5}
        """)
        emit(("lds", "P", f"ds_write_b64 v{VPART}, v[{T0}:{T0+1}] offset:{PART + 1024*h}"))
    def image_ops(h):
        ops = []
        for n in (2 * h, 2 * h + 1):
            for f in range(2):
                ops.append(f"v_xor_b32 v{4+f}, {((n&1)<<5) ^ (f<<7)}, v{VIMG}")
                for j in range(8):
                    if (j >> 1) & 1 != f: continue
                    for r in (0, 2):
                        x = acc(j, n) + r
                        ops.append(("lds", "I", f"ds_write2st64_b32 v{4+f}, v{x}, v{x+1} offset0:{8*r+j} offset1:{8*(r+1)+j}"))
        ops.append(("lds", "F", f"ds_write_b32 v15, v13 offset:{FLAGS + 16 + 16*h}"))
        return ops
    seq = [(0, t, j) for t in range(3) for j in range(8)]
    if jouter: seq += [(1, t, j) for j in range(8) for t in range(3)]
    else: seq += [(1, t, j) for t in range(3) for j in range(8)]
    aorder = []
    for s, (h, t, j) in enumerate(seq):
        for tg in afrags(t, j):
            if tg + (h,) not in loc: aorder.append((s, tg + (h,)))
    s_a0, s_a1, s_a2 = 7, 16 - LB, 16 + 5
    bq = []; iq = []; sq = []
    def plain_stats(j):
        ops = []
        for n in (2, 3):
            if j in (1, 2): ops.append(f"v_cndmask_b32 v{acc(j,n)+3}, 0, v{acc(j,n)+3}, s[{62+2*j}:{63+2*j}]")
        for r in range(4):
            for n in (2, 3):
                x = acc(j, n) + r; S = T0 + 4 * (n & 1) + 2; Q = S + 1
                if j == 0 and r == 0: ops.append(f"v_mul_f32 v{Q}, v{x}, v{x}")
                else:
                    ops.append(f"v_fmac_f32 v{Q}, v{x}, v{x}")
                    ops.append(f"v_add_f32 v{S}, v{x-1 if (j == 0 and r == 1) else S}, v{x}")
        return ops
    def pairs_of(h, t, j):
        X, Y = (("F", t, j, h), ("F", t, j + 1, h)) if t < 2 else (("G", 0, j, h), ("G", 1, j, h))
        return X, Y
    for s, (h, t, j) in enumerate(seq):
        if h == 0 and j == 0:
            a(f"; ---- last chunk pass A step {t}")
            bq = []
            if t == 1: late = carry
            ns_ = range(4) if t == 0 else (range(2) if t == 1 else range(2, 4))
            for n in ns_:
                for pq in range(2):
                    tb = 1 if t == 0 else 2
                    bq += bfrag(("LB", tb, n >> 1), bloc[(tb, pq, n)], n, pq, extra=(tb - 1) * 16384)
            if t == 1: bq += late
        if s == 24:
            a("; ---- last chunk pass B")
            a("s_nop 4")
            stats(0)
            stamp(5)
            iq = image_ops(0)
            free += [breg(1, 1, 0), breg(1, 1, 1)]
        X, Y = pairs_of(h, t, j)
        need = {X, Y} | ({("LB", t, h)} if j == 0 else set())
        if s == s_a2: need |= {("LB", 2, 1)}
        lwait(need)
        q = []
        while aorder and aorder[0][0] <= s + LB and free and len(q) < 2 and not (aorder[0][1][0] == "G" and s < s_a1):
            _, tg = aorder.pop(0)
            d = free.pop(0); loc[tg] = d
            q.append(("lds", tg, atext(tg, d)))
        for _ in range(2):
            if bq and (len(q) < 3 or t == 2): q.append(bq.pop(0))
        while iq and len(q) < 2 + iper: q.append(iq.pop(0))
        mf = []
        for n in (2 * h, 2 * h + 1):
            pr = [(loc[X], bloc[(t, 0, n)]), (loc[Y], bloc[(t, 1, n)])]
            if n % 2 == 1: pr = pr[::-1]
            mf += [(acc(j, n), ar, br) for ar, br in pr]
        run_gaps(mf, q, barrier_after=1 if s in (s_a0, s_a1, s_a2) else None, first_free=1 if j == 0 else 0)
        free.append(loc[X])
        if t == 2 or j == 7: free.append(loc[Y])
        if h == 0 and t == 0 and j == 7: carry = list(bq)
        if h == 0 and t > 0 and (j == 7 or s == s_a2 - 1): assert not bq, (s, bq)
    assert not aorder and not iq
    stamp(2)
    if probes:
        for pi in range(10):
            a(f"v_writelane_b32 v{VST}, s{68+2*pi}, {40+pi}")
            a(f"s_mov_b32 s100, L_probe{pi}-{NAME}_kernel\nv_writelane_b32 v{VST2}, s100, {40+pi}")
        a(f"s_getpc_b64 s[100:101]\nL_pq:\ns_sub_u32 s100, s100, L_pq-{NAME}_kernel\nv_writelane_b32 v{VST2}, s100, 50")
    a(f"s_nop 7\ns_mov_b32 s59, {SPIN}")
    if jouter:
        for op in plain_stats(7): a(op)
        a(f"""
        s_nop 0
        v_permlane32_swap_b32 v{T0+3}, v{T0+7}
        v_permlane32_swap_b32 v{T0+2}, v{T0+6}
        s_nop 0
        v_add_f32 v{T0+3}, v{T0+3}, v{T0+7}
        v_add_f32 v{T0+2}, v{T0+2}, v{T0+6}
        v_mov_b32 v{T0+7}, v{T0+3}
        v_mov_b32 v{T0+6}, v{T0+2}
        s_nop 1
        v_permlane16_swap_b32 v{T0+3}, v{T0+7}
        v_permlane16_swap_b32 v{T0+2}, v{T0+6}
        s_nop 0
        v_add_f32 v{T0+3}, v{T0+3}, v{T0+7}
        v_add_f32 v{T0+2}, v{T0+2}, v{T0+6}
        ds_write_b64 v{VPART}, v[{T0+2}:{T0+3}] offset:{PART + 1024}
        """)
    else:
        stats(1)
    stamp(13)
    part_publish("L_cpart", VPRD, 1, 32, VREC, "s[90:91]", 0)
    if not hk: a("s_setprio 0")
    stamp(3)
    a(f"v_add_u32 v{VIMG}, s40, v{VIMG}")
    for op in image_ops(1): emit(op)
    SC, SH, T, O, Y = 16, 24, 32, 40, 48
    a(f"""
    L_imgwait:
    s_mov_b32 s59, {SPIN*4}
    L_img:
    ds_read_b32 v15, v12 offset:{FLAGS+16}
    s_waitcnt lgkmcnt(0)
    v_cmp_eq_u32 vcc, 0, v15
    s_cbranch_vccz L_job
    s_sleep {isleep}
    s_sub_u32 s59, s59, 1
    s_cmp_gt_i32 s59, 0
    s_cbranch_scc1 L_img
    L_job:
    """)
    preread(4)
    if hk == 2: a("s_cmp_ge_u32 s3, 4\ns_cbranch_scc1 L_fw\ns_setprio 0")
    a(f"""
    L_fw:
    ds_read_b32 v15, v14 offset:{FLAGS}
    ds_read_b128 v[{SC}:{SC+3}], v11 offset:{CONST}
    ds_read_b128 v[{SC+4}:{SC+7}], v11 offset:{CONST+16}
    ds_read_b128 v[{SH}:{SH+3}], v11 offset:{CONST+512}
    ds_read_b128 v[{SH+4}:{SH+7}], v11 offset:{CONST+528}
    s_waitcnt lgkmcnt(0)
    v_cmp_eq_u32 vcc, 0, v15
    s_cbranch_vccz L_fw_ok
    {"s_sleep %d" % fsleep if fsleep else ""}
    s_sub_u32 s59, s59, 1
    s_cmp_gt_i32 s59, 0
    s_cbranch_scc1 L_fw
    L_fw_ok:
    """)
    if stamps or amp == 14:
        a("s_cmp_eq_u32 s42, 0\ns_cbranch_scc1 L_st8")
        stamp(14)
        a("L_st8:")
    stamp(8)
    def lowprio(lb):
        if hk == 1: a(f"s_setprio 1\ns_cmp_ge_u32 s3, 4\ns_cbranch_scc1 {lb}\ns_setprio 0\n{lb}:")
    lowprio("L_lp1")
    def p(x): return f"v[{x}:{x+1}]"
    for i in (3, 2, 1, 0):
        if i == 1: a("L_g2:")
        h = HH + 8 * i; o = O + 4 * (i & 1)
        for j in range(0, 8, 2): a(f"v_pk_fma_f32 {p(h+j)}, {p(h+j)}, {p(SC+j)}, {p(SH+j)}")
        for j in range(0, 8, 2): a(f"v_pk_fma_f32 {p(T+j)}, {p(h+j)}, {p(h+j)}, s[24:25]")
        for j in range(0, 8, 2): a(f"v_pk_mul_f32 {p(T+j)}, {p(T+j)}, {p(h+j)} neg_lo:[1,0] neg_hi:[1,0]")
        for j in range(8): a(f"v_exp_f32 v{T+j}, v{T+j}")
        for j in range(0, 8, 2): a(f"v_pk_fma_f32 {p(T+j)}, {p(T+j)}, s[26:27], s[26:27]")
        for j in range(8): a(f"v_rcp_f32 v{T+j}, v{T+j}")
        for j in range(0, 8, 2): a(f"v_pk_mul_f32 {p(T+j)}, {p(T+j)}, {p(h+j)}")
        for j in range(0, 8, 2): a(f"v_cvt_pk_bf16_f32 v{o+j//2}, v{T+j}, v{T+j+1}")
        if sthr is not None: a(f"s_waitcnt vmcnt({sthr})")
        if not nostore: a(f"buffer_store_dwordx4 v[{o}:{o+3}], v{10 if i == 0 else VO+i}, s[16:19], 0 offen{omod}")
    a("s_cmp_eq_u32 s42, 0\ns_cbranch_scc1 L_fin")
    if hk == 1: a("s_setprio 2")
    if hk == 2: a("s_cmp_ge_u32 s3, 4\ns_cbranch_scc1 L_hk2\ns_setprio 3\nL_hk2:")
    stamp(12)
    a("s_sub_u32 s42, s42, 1\ns_cmp_eq_u32 s42, 0\ns_cbranch_scc1 L_toB")
    a(f"""
    v_add_u32 v8, s0, v6
    v_add_u32 v10, s1, v7
    v_xor_b32 v9, 160, v8
    """)
    preread(2)
    a("s_waitcnt lgkmcnt(0)")
    lowprio("L_lp2")
    a("s_branch L_g2\nL_toB:")
    nextjob_regs()
    if not ded: a("s_cmp_ge_u32 s3, 6\ns_cbranch_scc1 L_gather")
    a("s_branch L_imgwait\nL_fin:")
    if hold in (9, 10) and not stamps: stamp(hold)
    if amp is not None:
        if amp == 9: stamp(9)
        a("s_waitcnt vmcnt(0)")
        if amp == 10: stamp(10)
        a("s_waitcnt lgkmcnt(0)")
        if ampw == "c": a("s_cmp_ge_u32 s3, 4\ns_cselect_b32 s94, s92, s94")
        if ampw == "l": a("s_cmp_lt_u32 s3, 4\ns_cselect_b32 s94, s92, s94")
        a(f"""
        L_amp0:
        s_sleep 8
        s_memrealtime s[96:97]
        s_waitcnt lgkmcnt(0)
        s_sub_u32 s96, s96, s92
        s_cmp_lt_u32 s96, 4000
        s_cbranch_scc1 L_amp0
        s_not_b32 s95, s92
        v_mov_b32 v4, s94
        v_mov_b32 v5, s95
        v_mov_b32 v1, 8
        s_mov_b64 exec, 1
        global_atomic_umax v1, v4, s[34:35]
        global_atomic_umax v1, v5, s[34:35] offset:4
        s_waitcnt vmcnt(0)
        L_amp1:
        s_sleep 8
        s_memrealtime s[96:97]
        s_waitcnt lgkmcnt(0)
        s_sub_u32 s96, s96, s92
        s_cmp_lt_u32 s96, 16000
        s_cbranch_scc1 L_amp1
        global_load_dwordx2 v[4:5], v1, s[34:35] sc1
        s_waitcnt vmcnt(0)
        v_readfirstlane_b32 s94, v4
        v_readfirstlane_b32 s95, v5
        s_not_b32 s95, s95
        s_sub_u32 s94, s94, s95
        s_mul_i32 s94, s94, 10
        s_add_u32 s94, s94, 18900
        s_min_u32 s94, s94, 100000
        L_amp2:
        s_sleep 2
        s_memrealtime s[96:97]
        s_waitcnt lgkmcnt(0)
        s_sub_u32 s96, s96, s95
        s_cmp_lt_u32 s96, s94
        s_cbranch_scc1 L_amp2
        """)
    if stamps:
        stamp(9)
        a("s_waitcnt vmcnt(0)")
        stamp(10)
        a(f"""
        s_lshl_b32 s52, s2, 12
        s_lshl_b32 s53, s3, 9
        s_add_u32 s52, s52, s53
        s_add_u32 s52, s52, {STAMP_OFF}
        v_lshlrev_b32 v1, 3, v0
        v_add_u32 v1, s52, v1
        global_store_dwordx2 v1, v[{VST}:{VST2}], s[36:37]
        s_waitcnt vmcnt(0)
        """)
    a("L_end:\ns_endpgm")
    if relayout:
        L = a.lines
        ix = {t: L.index(t) for t in ("L_ltail:", "L_compute:", "L_cloop:", "L_imgwait:", "L_end:")}
        a.lines = (L[:ix["L_ltail:"]] + ["    s_branch L_ltail", ".p2align 12", "L_page:"] +
                   L[ix["L_compute:"]:ix["L_cloop:"]] + ["    s_branch L_cloop"] +
                   L[ix["L_ltail:"]:ix["L_compute:"]] + L[ix["L_imgwait:"]:ix["L_end:"]] + ["    s_endpgm", ".p2align 6"] +
                   L[ix["L_cloop:"]:ix["L_imgwait:"]] + ["    s_branch L_imgwait"] + L[ix["L_end:"]:])
        if hop: a.lines = add_hops(a.lines, [("L_ltail:", "L_end:")], hop, page="L_page:")
    elif hop: a.lines = add_hops(a.lines, [("L_lloop:", "L_compute:"), ("L_cloop:", "L_end:")], hop)
    if align8: a.lines = pad8(a.lines, "L_cloop:", "L_cpart:")
    hazcheck(a.lines)
    return wrap(a.text(), 256, 512, 163840, 256)

if __name__ == "__main__":
    out = sys.argv[1]
    kw = json.loads(sys.argv[2]) if len(sys.argv) > 2 else {}
    open(out, "w").write(gen(**kw))
```

```python
import sys, json, struct
from asmlib import *

def f2u(f): return struct.unpack("<I", struct.pack("<f", f))[0]

LROWS = 7999
C1 = -2.0 * 0.7978845608028654 * 1.4426950408889634
C2 = C1 * 0.044715
KS = (-C2) ** (1.0 / 3.0)
CP = -C1 / KS
SENT = 0xBF800000
A_SLOT = 32768
W_BASE = 98304
MISC = 32768
PART = MISC
CONST = MISC + 2048
FLAGS = MISC + 3072
STAMP_OFF = 1 << 20
SPIN = 0x20000

def gen(stamps=False, xmod="", wmod="", omod=" sc1", codepf=True, itstamps=False, hold=None, holdus=40,
        parity=True, psleep=1, fsleep=1, rsleep=0, lprio=2, cprio=3, LA=2, LB=3, only=None, wpar=True, jouter=False, ded=False, onebar=False, align8=False, shift=0, pf2=False, isleep=2, probes=False, ilv=True, hop=0, acc0=None, relayout=True, hopwait=False, nostore=False, gprio=None, hk=False, sthr=None, alt=1, snake=False, amp=None, ampw=None, swap=False, mprio=0, valu_in=False, iper=1, lag=True, lagfrom=3, rampv=0, pfk=19, otouch=None):
    a = Asm()
    VST, VST2 = 2, 3
    def stamp(k):
        if hold == k:
            lb = a.label("L_hold")
            a(f"""s_waitcnt lgkmcnt(0)
            {lb}:
            s_memrealtime s[96:97]
            s_waitcnt lgkmcnt(0)
            s_sub_u32 s96, s96, s92
            s_cmp_lt_u32 s96, {holdus*100}
            s_cbranch_scc1 {lb}""")
        if amp == k: a("s_memrealtime s[94:95]")
        if not stamps or (only is not None and k not in only): return
        a(f"s_memrealtime s[100:101]\ns_waitcnt lgkmcnt(0)\nv_writelane_b32 v{VST}, s100, {k}")
        if k in (1, 2, 8, 9): a(f"s_memtime s[100:101]\ns_waitcnt lgkmcnt(0)\nv_writelane_b32 v{VST2}, s100, {k}")
    def final_setup(role):
        a(f"""
        s_mul_i32 s38, s43, {LROWS}
        s_add_u32 s38, s38, s45
        s_lshl_b32 s38, s38, 10
        s_add_u32 s16, s32, s38
        s_addc_u32 s17, s33, 0
        s_lshl_b32 s18, s47, 10
        s_mov_b32 s19, 0x20000
        v_and_b32 v1, 7, v0                   ; o
        v_lshrrev_b32 v8, 3, v0
        s_and_b32 s38, s49, 1
        s_lshl_b32 s40, s38, 5
        s_add_u32 s40, s40, {64 if role == "c" else 0}
        v_add_u32 v8, s40, v8
        s_lshl_b32 s38, s38, 2
        v_xor_b32 v9, s38, v1                 ; o ^ 4*((row>>5)&1)
        v_bfe_u32 v10, v0, 4, 1               ; f
        v_lshl_add_u32 v9, v10, 3, v9
        v_lshlrev_b32 v9, 4, v9
        v_lshl_add_u32 v9, v8, 8, v9
        s_lshr_b32 s38, s49, 1
        s_lshl_b32 s40, s38, 15
        s_add_u32 s42, s40, {W_BASE}
        v_add_u32 v6, s42, v9
        s_sub_u32 s40, s40, {W_BASE}
        s_lshl_b32 s42, s38, 7
        v_add_u32 v8, s42, v8
        v_lshlrev_b32 v8, 10, v8
        v_lshl_add_u32 v7, v1, 4, v8
        s_lshl_b32 s42, s41, 8
        v_add_u32 v7, s42, v7
        v_lshlrev_b32 v11, 5, v1
        v_and_b32 v14, 1, v0
        v_lshlrev_b32 v14, 2, v14             ; constflag[lane&1]
        v_and_b32 v12, 3, v0
        v_lshlrev_b32 v12, 2, v12             ; imgflag[lane&3]
        v_mov_b32 v13, 1
        v_mov_b32 v8, v6
        v_xor_b32 v9, 160, v6
        v_mov_b32 v10, v7
        s_mov_b32 s24, {f2u(CP)}
        s_mov_b32 s25, {f2u(CP)}
        s_mov_b32 s26, {f2u(KS)}
        s_mov_b32 s27, {f2u(KS)}
        """)
        if not ded: a("s_mov_b32 s42, 1")
        elif role == "l": a("s_mov_b32 s42, 2\ns_mov_b32 s0, 32768\ns_mov_b32 s1, 131072")
        else: a(f"s_add_u32 s42, s38, 1\ns_mov_b32 s0, {(-48*256) & 0xffffffff}\ns_mov_b32 s1, {(-48*1024) & 0xffffffff}")
    HH, VO = 160, 60
    def preread(n):
        for i in range(n - 1, -1, -1):
            a(f"ds_read_b128 v[{HH+8*i}:{HH+8*i+3}], v8 offset:{2048*i}\nds_read_b128 v[{HH+8*i+4}:{HH+8*i+7}], v9 offset:{2048*i}")
        for i in range(1, n): a(f"v_add_u32 v{VO+i}, {8192*i}, v10")
    def part_publish(lbl, vaddr, half, x, vrec, maskreg, sleep):
        a(f"""
        {lbl}:
        ds_read_b128 v[{x}:{x+3}], v{vaddr} offset:{PART + 1024*half}
        s_waitcnt lgkmcnt(0)
        v_min_f32 v1, v{x+1}, v{x+3}
        v_cmp_gt_f32 vcc, 0, v1
        s_cbranch_vccz {lbl}_ok
        {"s_sleep %d" % sleep if sleep else ""}
        s_sub_u32 s59, s59, 1
        s_cmp_gt_i32 s59, 0
        s_cbranch_scc1 {lbl}
        {lbl}_ok:
        """)
        for i in range(4): a(f"v_mov_b32 v{x+4+i}, v{x+i}")
        for i in range(4): a(f"v_permlane32_swap_b32 v{x+i}, v{x+4+i}")
        for i in range(4): a(f"v_add_f32 v{x+i}, v{x+i}, v{x+4+i}")
        a(f"""
        s_mov_b64 exec, {maskreg}
        buffer_store_dwordx4 v[{x}:{x+3}], v{vrec}, s[20:23], 0 offen sc1
        s_mov_b64 exec, -1
        """)
    a(f"""
    s_cmp_ge_u32 s2, 256
    s_cbranch_scc1 L_end
    s_load_dwordx4 s[4:7], s[0:1], 0      ; x, w
    s_load_dwordx4 s[28:31], s[0:1], 16
    s_load_dwordx4 s[32:35], s[0:1], 32
    s_load_dwordx2 s[36:37], s[0:1], 48   ; ws
    """)
    if stamps or hold is not None or amp is not None: a("s_memrealtime s[92:93]")
    if amp is not None: a("s_memrealtime s[94:95]")
    a(f"""
    v_lshrrev_b32 v1, 6, v0
    v_and_b32 v0, 63, v0
    v_readfirstlane_b32 s3, v1
    s_and_b32 s38, s2, 7
    s_bfe_u32 s40, s2, 0x30005
    s_bfe_u32 s41, s2, 0x20003
    s_lshl_b32 s42, s38, 3
    s_add_u32 s42, s42, s40               ; mt 0..63
    s_lshr_b32 s43, s42, 5                ; batch
    s_and_b32 s44, s42, 31
    s_mul_i32 s45, s44, 250
    s_mul_i32 s46, s43, 8000
    s_add_u32 s46, s46, s45
    s_cmp_eq_u32 s44, 31
    s_cselect_b32 s47, 1, 0
    s_sub_u32 s47, 250, s47               ; nvalid
    s_lshl_b32 s48, s43, 2
    s_add_u32 s48, s48, s41
    s_and_b32 s49, s3, 3
    {"s_xor_b32 s3, s3, 4" if swap else ""}
    s_cmp_lt_u32 s3, 4
    s_cbranch_scc1 L_compute
    """)
    VA, VW = 56, 60
    a(f"""
    v_lshrrev_b32 v4, 4, v0               ; l>>4
    v_and_b32 v5, 15, v0
    v_lshlrev_b32 v6, 1, v4
    v_xor_b32 v5, v5, v6                  ; W chunk (n<2)
    s_and_b32 s50, s49, 1
    s_lshl_b32 s51, s50, 14
    s_lshl_b32 s52, s41, 8
    s_add_u32 s51, s51, s52
    v_lshlrev_b32 v5, 4, v5
    v_lshl_add_u32 v5, v4, 10, v5
    s_and_b32 s53, s40, {1 if wpar else 0}
    s_mul_i32 s52, s53, {8192 + 128}
    v_add_u32 v5, s51, v5
    v_xor_b32 v{VW}, s52, v5
    v_xor_b32 v{VW+2}, {8192 + 128}, v{VW}
    v_add_u32 v{VW+1}, 3072, v{VW}
    v_add_u32 v{VW+3}, 3072, v{VW+2}
    s_lshl_b32 s51, s49, 12
    s_lshl_b32 s53, s53, 11
    s_add_u32 s51, s51, s53
    s_add_u32 s51, s51, {W_BASE}
    s_lshr_b32 s62, s49, 1                ; lw>=2
    s_lshl_b32 s54, s62, 20               ; sB0
    s_mov_b32 s14, 1572864
    s_mov_b32 s15, 0x20000
    s_mov_b32 m0, s51
    s_waitcnt lgkmcnt(0)
    s_mov_b32 s12, s6
    s_mov_b32 s13, s7
    """)
    if stamps: a(f"v_writelane_b32 v{VST}, s92, 0")
    vq = []
    def issueA(slot_s, soff, tag, halves=(0, 1)):
        for half in halves:
            if half == halves[0]: a(f"s_add_u32 m0, s50, {slot_s}")
            if half == 1: a(f"s_xor_b32 m0, m0, 4096")
            a("s_nop 0")
            for n in range(4):
                vq.append(tag)
                a(f"buffer_load_dwordx4 v{VA+half*2+(n&1)}, s[8:11], {soff} offen offset:{n*1024}{xmod} lds")
    def issueW(slot_s, soff, tag, setm0=True, halves=(0, 1)):
        for half in halves:
            if half == halves[0] and setm0: a(f"s_add_u32 m0, s51, {slot_s}")
            if half == 1: a("s_xor_b32 m0, m0, 2048")
            if setm0 or half == 1: a("s_nop 0")
            for n in range(2):
                vq.append(tag)
                a(f"buffer_load_dwordx4 v{VW+2*half+n}, s[12:15], {soff} offen offset:{n*1024}{wmod} lds")
    def vwait(tags):
        last = max([i for i, t in enumerate(vq) if t in tags], default=-1)
        n = len(vq) - 1 - last
        a(f"s_waitcnt vmcnt({n})")
        return n
    def Aname(k): return f"E{k//3}" if k % 3 < 2 else f"O{k//3}"
    issueW(0, "s54", "B0", setm0=False, halves=(0,) if wpar else (0, 1))
    a(f"""
    v_and_b32 v5, 7, v0
    v_xor_b32 v5, v5, v4
    v_lshlrev_b32 v5, 4, v5
    v_lshrrev_b32 v6, 3, v0
    v_lshl_add_u32 v5, v6, 14, v5
    s_lshl_b32 s52, s62, 18
    s_lshl_b32 s53, s50, 13
    s_add_u32 s52, s52, s53
    s_and_b32 s53, s41, {1 if parity else 0}
    s_lshl_b32 s53, s53, 12
    s_add_u32 s52, s52, s53
    v_add_u32 v{VA}, s52, v5
    v_xor_b32 v{VA+2}, 4096, v{VA}
    v_xor_b32 v{VA+1}, 64, v{VA}
    v_xor_b32 v{VA+3}, 64, v{VA+2}
    v_add_u32 v{VA+1}, {64*2048 - 1024}, v{VA+1}
    v_add_u32 v{VA+3}, {64*2048 - 1024}, v{VA+3}
    s_lshl_b32 s50, s49, 13
    s_add_u32 s50, s50, s53
    s_lshl_b32 s10, s47, 11
    s_add_u32 s10, s10, 1024
    s_mov_b32 s11, 0x20000
    s_lshl_b32 s57, s46, 11
    s_add_u32 s8, s4, s57
    s_addc_u32 s9, s5, 0
    s_mov_b32 s52, 0                      ; x k-offset (E)
    s_mov_b32 s53, 1024                   ; x k-offset (O)
    s_add_u32 s55, s54, 0x8000            ; sB1
    s_lshl_b32 s56, s62, 15
    s_add_u32 s56, s56, 0x80000           ; sB2
    """)
    issueA(0, "s52", "E0", halves=(0,))
    if wpar: issueW(16384, "s55", "B1", halves=(0,))
    stamp(5)
    R = 80
    NG = 8; MK = 64; G = 96
    a(f"""
    s_mov_b32 s20, s36
    s_mov_b32 s21, s37
    s_mov_b32 s22, 0x40000
    s_mov_b32 s23, 0x20000
    s_lshl_b32 s39, s48, 5
    s_add_u32 s39, s39, s44
    s_lshl_b32 s39, s39, 10
    v_lshlrev_b32 v{R+6}, 4, v0
    v_add_u32 v{R+5}, s39, v{R+6}
    v_and_b32 v1, 15, v0
    v_lshrrev_b32 v5, 5, v0
    v_lshl_add_u32 v5, v1, 1, v5
    s_lshl_b32 s57, s49, 5
    v_add_u32 v{R}, s57, v5
    s_lshl_b32 s57, s41, 7
    v_add_u32 v{R+7}, s57, v{R}
    v_lshlrev_b32 v{R+7}, 1, v{R+7}
    v_lshlrev_b32 v{R}, 2, v{R}
    v_lshlrev_b32 v1, 4, v1
    v_lshl_add_u32 v1, v4, 10, v1
    s_lshl_b32 s57, s48, 15
    s_lshl_b32 s58, s49, 8
    s_add_u32 s57, s57, s58
    v_add_u32 v{R+3}, s57, v1
    s_lshl_b32 s57, s48, 5
    v_mov_b32 v{R+4}, s57
    s_add_u32 s57, s39, s58
    v_lshl_add_u32 v{R+8}, v0, 2, s57
    v_mov_b32 v29, 0
    v_mov_b32 v{R+10}, {SENT}
    v_mov_b32 v{R+11}, {SENT}
    s_lshl_b32 s57, s49, 4
    s_lshl_b64 s[90:91], 0xffff, s57
    """)
    for i in range(NG): a(f"s_mov_b64 s[{MK+2*i}:{MK+2*i+1}], -1")
    for i in range(1, NG): a(f"s_mov_b32 s{80+i}, {i*4096}")
    final_setup("l")
    stamp(13)
    if wpar: issueW(0, "s54", "B0", halves=(1,))
    issueA(0, "s52", "E0", halves=(1,))
    if wpar: issueW(16384, "s55", "B1", halves=(1,))
    if onebar:
        if not wpar: issueW(16384, "s55", "B1")
        issueW(32768, "s56", "B2")
        stamp(6)
        vwait({"B0", "E0", "B1"}); a("s_barrier")
        stamp(1)
    else:
        stamp(7)
        vwait({"B0"}); stamp(15); a("s_barrier")
        if not wpar: issueW(16384, "s55", "B1")
    a(f"""
    buffer_store_dword v{R+10}, v{R+8}, s[20:23], 0 offen sc1
    global_load_ushort v{R+1}, v{R+7}, s[28:29]
    global_load_ushort v{R+2}, v{R+7}, s[30:31]
    s_lshl_b32 s57, s49, 9
    v_lshl_add_u32 v{R+7}, v0, 3, s57
    v_lshlrev_b32 v{R+8}, 2, v0
    v_mov_b32 v{R+9}, 0
    """)
    vq += ["S", "g", "g"]
    if not onebar: issueW(32768, "s56", "B2")
    a(f"""
    s_mov_b32 s57, {2*A_SLOT}
    s_mov_b32 s58, {A_SLOT}
    s_mov_b32 s59, 49152
    """)
    if not onebar:
        stamp(6)
        vwait({"E0", "B1"}); a("s_barrier")
        stamp(1)
    def iB(kb, ph, nth=0):
        sreg = ["s54", "s55", "s56"][kb % 3]
        if ph in (0, None): a(f"s_add_u32 {sreg}, {sreg}, 0x10000")
        issueW("s59", sreg, f"B{kb}", halves=(0, 1) if ph is None else (ph,))
        if ph in (1, None): a("s_add_u32 s59, s59, 16384\ns_and_b32 s59, s59, 0xffff")
    def iO(c, ph):
        if c > 0 and ph in (0, None): a("s_add_u32 s53, s53, 128")
        issueA("s58", "s53", f"O{c}", halves=(0, 1) if ph is None else (ph,))
    def iE(c, ph):
        if ph in (0, None): a("s_add_u32 s52, s52, 128")
        issueA("s57", "s52", f"E{c}", halves=(0, 1) if ph is None else (ph,))
        if ph in (1, None): a(f"s_add_u32 s61, s57, s58\ns_mov_b32 s57, s58\ns_sub_u32 s58, {3*A_SLOT}, s61")
    ramp = {-1: [("O", 0), ("B", 3)], 0: [("E", 1), ("B", 4)], 1: [("B", 5), ("O", 1)], 2: [("B", 6), ("E", 2)], 3: [("B", 7), ("B", 8)]}
    if rampv == 1: ramp = {-1: [("O", 0), ("B", 3)], 0: [("E", 1), ("B", 4)], 1: [("B", 5), ("O", 1)], 2: [("B", 6), ("E", 2)], 3: [("B", 7)], 4: [("B", 8), ("B", 9), ("O", 2)]}
    pend = []
    fn = {"B": iB, "O": iO, "E": iE}
    def lstep(k):
        c = k // 3
        if k in ramp: todo = list(ramp[k])
        else:
            todo = []
            if k + 5 <= 23: todo.append(("B", k + 5))
            if k % 3 == 1 and c + 1 <= 7: todo.append(("O", c + 1))
            if k % 3 == 2 and c + 2 <= 7: todo.append(("E", c + 2))
        for kind, i in pend: fn[kind](i, 1)
        pend[:] = []
        if lag and lagfrom <= k < 19:
            if len(todo) >= 2 and todo[0][0] == todo[1][0]:
                fn[todo[0][0]](todo[0][1], None); todo = todo[1:]
            for kind, i in todo: fn[kind](i, 0)
            pend[:] = todo
        else:
            two = ilv and len(todo) == 2 and todo[0][0] != todo[1][0]
            for ph in ((0, 1) if two else (None,)):
                for kind, i in todo: fn[kind](i, ph)
        if pf2 and k == pfk:
            a(f"""
            s_getpc_b64 s[88:89]
            L_pfbase2:
            s_add_u32 s88, s88, L_compute-L_pfbase2
            s_addc_u32 s89, s89, 0
            s_bfe_u32 s61, s2, 0x30005
            s_lshl_b32 s63, s49, 5
            s_add_u32 s61, s61, s63
            s_lshl_b32 s61, s61, 7
            v_lshl_add_u32 v1, v0, 10, s61
            v_min_u32 v1, L_end-L_compute, v1
            s_mov_b64 exec, 15
            global_load_dword v16, v1, s[88:89]
            s_mov_b64 exec, -1
            """)
            vq.append("c")
        if otouch == k:
            a(f"""
            s_lshl_b32 s61, s49, 16
            v_lshl_add_u32 v1, v0, 12, s61
            s_mov_b64 exec, 0xffff
            buffer_load_dword v17, v1, s[16:19], 0 offen
            s_mov_b64 exec, -1
            """)
            vq.append("o")
        need = {Aname(k + 2), f"B{k+3}"}
        assert not need & {f"{kd}{i}" for kd, i in pend}
        return vwait(need)
    K0 = 5 if lag else 4
    NLI = 4 if lag else 5
    for k in range(-1, K0):
        lstep(k); a("s_barrier")
    a(f"""
    s_mov_b32 s60, {NLI}
    s_and_b32 s62, s44, 3
    s_min_u32 s62, s62, 2
    s_add_u32 s62, s62, 2
    s_cmp_lg_u32 s49, 0
    s_cselect_b32 s62, 0, s62
    L_lloop:
    """)
    ns = []
    for k in range(K0, K0 + 3):
        ns.append(lstep(k))
        if k == 6:
            a(f"""
            s_cmp_lg_u32 s60, s62
            s_cbranch_scc1 L_noat
            s_mov_b64 exec, 1
            global_atomic_add v{R+4}, v13, s[34:35]
            s_mov_b64 exec, -1
            L_noat:
            """)
        a("s_barrier")
    a("s_sub_u32 s60, s60, 1\ns_cmp_lg_u32 s60, 0\ns_cbranch_scc1 L_lloop")
    keep = len(a.lines)
    mins = list(ns)
    for k in range(K0 + 3, K0 + 3 * NLI):
        n = lstep(k); mins[(k - K0) % 3] = min(mins[(k - K0) % 3], n)
    del a.lines[keep:]
    li = a.lines.index("L_lloop:"); wi = 0
    for q in range(li, len(a.lines)):
        if "s_waitcnt vmcnt" in a.lines[q]:
            a.lines[q] = f"    s_waitcnt vmcnt({mins[wi]})"; wi += 1
    assert wi == 3
    for k in range(K0 + 3 * NLI, 19):
        lstep(k); a("s_barrier")
    lstep(19); a("s_barrier")
    a("L_ltail:")
    stamp(11)
    a(f"""
    ds_write_b64 v{R+7}, v[{R+10}:{R+11}] offset:{PART}
    ds_write_b32 v{R+8}, v{R+9} offset:{FLAGS}
    s_waitcnt lgkmcnt(0)
    """)
    vwait({"B23"}); a("s_barrier")
    a(f"""
    s_waitcnt vmcnt(0)
    s_barrier
    global_load_dword v{R+9}, v{R+4}, s[34:35] sc1
    s_mov_b32 s52, {f2u(KS)}
    v_lshlrev_b32 v{R+1}, 16, v{R+1}
    v_lshlrev_b32 v{R+2}, 16, v{R+2}
    v_mul_f32 v{R+1}, s52, v{R+1}
    v_mul_f32 v{R+2}, s52, v{R+2}
    s_mov_b32 s59, {SPIN}
    s_barrier
    """)
    stamp(2)
    if lprio: a(f"s_setprio {lprio}")
    def nextjob_regs():
        a(f"""
        v_add_u32 v8, s40, v6
        v_add_u32 v10, 128, v7
        v_xor_b32 v9, 160, v8
        v_add_u32 v11, 256, v11
        v_add_u32 v14, 8, v14
        v_add_u32 v12, 16, v12
        """)
    a("s_cmp_ge_u32 s49, 2\ns_cbranch_scc1 L_nopub")
    part_publish("L_part", R + 6, 0, G, R + 5, "s[90:91]", psleep)
    stamp(3)
    a(f"""
    L_nopub:
    L_cnt:
    s_waitcnt vmcnt(0)
    v_readfirstlane_b32 s52, v{R+9}
    s_cmp_ge_u32 s52, 32
    s_cbranch_scc1 L_cnt_ok
    s_sleep 32
    global_load_dword v{R+9}, v{R+4}, s[34:35] sc1
    s_sub_u32 s59, s59, 1
    s_cmp_gt_i32 s59, 0
    s_cbranch_scc1 L_cnt
    L_cnt_ok:
    s_cmp_lt_u32 s49, 2
    s_cbranch_scc1 L_gather
    """)
    if ded:
        a(f"""
        s_mov_b32 s42, 0
        """)
        nextjob_regs()
        a(f"""
        s_mov_b32 s59, {SPIN}
        L_img2:
        ds_read_b32 v15, v12 offset:{FLAGS+16}
        s_waitcnt lgkmcnt(0)
        v_cmp_eq_u32 vcc, 0, v15
        s_cbranch_vccz L_img2_ok
        s_sleep 1
        s_sub_u32 s59, s59, 1
        s_cmp_gt_i32 s59, 0
        s_cbranch_scc1 L_img2
        L_img2_ok:
        """)
        preread(4)
    else:
        a("s_branch L_imgwait")
    a("L_gather:")
    if stamps: a("s_mov_b32 s94, 0")
    a(f"s_mov_b32 s59, {SPIN}\nL_poll:")
    if stamps: a("s_add_u32 s94, s94, 1")
    for i in range(NG):
        a(f"s_or_b64 exec, s[{MK+2*i}:{MK+2*i+1}], 1")
        a(f"buffer_load_dwordx4 v[{G+4*i}:{G+4*i+3}], v{R+3}, s[20:23], {'s%d' % (80+i) if i else 0} offen sc1")
    a("s_mov_b64 exec, -1\ns_waitcnt vmcnt(0)")
    for i in range(NG):
        a(f"v_min_f32 v1, v{G+4*i+1}, v{G+4*i+3}")
        a(f"v_cmp_gt_f32 s[{MK+2*i}:{MK+2*i+1}], 0, v1")
    a(f"s_or_b64 s[52:53], s[{MK}:{MK+1}], s[{MK+2}:{MK+3}]")
    for i in range(2, NG):
        a(f"s_or_b64 s[52:53], s[52:53], s[{MK+2*i}:{MK+2*i+1}]")
    a(f"""
    s_cbranch_scc0 L_poll_done
    {"s_sleep %d" % rsleep if rsleep else ""}
    s_sub_u32 s59, s59, 1
    s_cmp_gt_i32 s59, 0
    s_cbranch_scc1 L_poll
    L_poll_done:
    """)
    if stamps: a(f"v_writelane_b32 v{VST2}, s94, 63")
    stamp(4)
    for step_ in (4, 2, 1):
        for i in range(step_):
            for h in range(4):
                x = G + 4 * i + h; y = G + 4 * (i + step_) + h
                a(f"v_add_f32 v{x}, v{x}, v{y}")
    x = G
    a(f"""
    s_mov_b32 s52, {f2u(1.0/LROWS)}
    s_nop 0
    v_permlane32_swap_b32 v{x}, v{x+2}
    v_permlane32_swap_b32 v{x+1}, v{x+3}
    s_nop 1
    v_add_f32 v{x}, v{x}, v{x+2}
    v_add_f32 v{x+1}, v{x+1}, v{x+3}
    v_mov_b32 v{x+2}, v{x}
    v_mov_b32 v{x+3}, v{x+1}
    s_nop 1
    v_permlane16_swap_b32 v{x}, v{x+2}
    v_permlane16_swap_b32 v{x+1}, v{x+3}
    s_nop 1
    v_add_f32 v{x}, v{x}, v{x+2}
    v_add_f32 v{x+1}, v{x+1}, v{x+3}
    v_mul_f32 v{G}, s52, v{G}             ; mean
    v_mul_f32 v{G+1}, s52, v{G+1}         ; E[h^2]
    v_fma_f32 v{G+1}, -v{G}, v{G}, v{G+1} ; var
    v_max_f32 v{G+1}, 0, v{G+1}
    v_add_f32 v{G+1}, {f2u(1e-5)}, v{G+1}
    v_rsq_f32 v{G+1}, v{G+1}
    s_lshl_b32 s52, s49, 2
    v_mul_f32 v{G+1}, v{G+1}, v{R+1}      ; KS*scale
    v_mov_b32 v1, s52
    v_fma_f32 v{G}, -v{G}, v{G+1}, v{R+2} ; KS*shift
    ds_write_b32 v{R}, v{G+1} offset:{CONST}
    ds_write_b32 v{R}, v{G} offset:{CONST+512}
    ds_write_b32 v1, v13 offset:{FLAGS}
    s_mov_b32 s59, {SPIN*4}
    """)
    if gprio is not None: a(f"s_setprio {gprio}")
    if ded: a("s_cmp_ge_u32 s49, 2\ns_cbranch_scc1 L_fw")
    a("s_branch L_imgwait")

    ACC = 128
    def acc(j, n): return ACC + (j * 4 + n) * 4
    BF = 64; AF = 32; NRING = 8
    aE, aE8, aO, bB = 16, 18, 20, 22
    VIMG, VPART, VPRD, VREC = 26, 27, 28, 29
    a("L_compute:")
    if mprio: a(f"s_setprio {mprio}")
    if codepf:
        a(f"""
        s_getpc_b64 s[52:53]
        L_pfbase:
        s_sub_u32 s52, s52, L_pfbase-L_compute
        s_subb_u32 s53, s53, 0
        s_lshl_b32 s50, s49, 5
        s_add_u32 s50, s50, s40
        s_lshl_b32 s50, s50, 7
        v_lshl_add_u32 v1, v0, 10, s50
        v_min_u32 v1, L_end-L_compute, v1
        s_mov_b64 exec, 15
        global_load_dword v30, v1, s[52:53]
        s_mov_b64 exec, -1
        """)
    a(f"""
    s_lshr_b32 s50, s49, 1                ; wm
    s_and_b32 s51, s49, 1                 ; wn
    v_and_b32 v32, 15, v0                 ; i
    v_lshrrev_b32 v33, 4, v0              ; g
    s_lshl_b32 s52, s50, 14
    v_bfe_u32 v34, v32, 1, 3
    v_xor_b32 v34, v34, v33
    v_lshlrev_b32 v34, 4, v34
    v_lshl_add_u32 v34, v32, 7, v34
    v_add_u32 v{aE}, s52, v34
    v_xor_b32 v{aE+1}, 64, v{aE}
    v_add_u32 v{aO}, {A_SLOT}, v{aE}
    v_add_u32 v{aO+1}, {A_SLOT}, v{aE+1}
    v_add_u32 v35, 1, v32
    s_mul_i32 s52, s50, 127
    s_add_u32 s52, s52, 128
    s_lshl_b32 s53, s50, 7
    v_add_u32 v35, s53, v35
    v_mov_b32 v36, s52
    v_cmp_eq_u32 vcc, 15, v32
    s_nop 1
    v_cndmask_b32 v35, v35, v36, vcc
    v_bfe_u32 v34, v35, 1, 3
    v_xor_b32 v34, v34, v33
    v_lshlrev_b32 v34, 4, v34
    v_lshl_add_u32 v{aE8}, v35, 7, v34
    v_xor_b32 v{aE8+1}, 64, v{aE8}
    v_bfe_u32 v34, v0, 2, 2
    v_lshl_add_u32 v35, v33, 3, v34
    v_bfe_u32 v34, v0, 2, 3
    v_lshlrev_b32 v34, 5, v34
    s_lshl_b32 s52, s51, 6
    v_xor_b32 v34, s52, v34
    v_and_b32 v36, 3, v0
    v_lshl_add_u32 v34, v36, 3, v34
    v_lshl_add_u32 v34, v35, 8, v34
    v_add_u32 v{bB}, {W_BASE}, v34
    v_xor_b32 v{bB+1}, 32, v{bB}
    v_xor_b32 v{bB+2}, 128, v{bB}
    v_xor_b32 v{bB+3}, 160, v{bB}
    s_mov_b64 s[64:65], -1
    s_mov_b64 s[66:67], -1
    s_cmp_eq_u32 s50, 0
    s_cbranch_scc1 L_nomask
    s_cmp_eq_u32 s47, 249
    s_cselect_b32 s65, 0xffff, -1
    s_cselect_b32 s67, -1, 0xffff
    L_nomask:
    v_bfe_u32 v34, v32, 2, 1
    v_mul_u32_u24 v34, 10, v34
    v_lshrrev_b32 v35, 3, v32
    v_or_b32 v34, v34, v35
    v_and_b32 v35, 1, v33
    v_xor_b32 v35, s51, v35
    v_lshl_add_u32 v34, v35, 2, v34
    v_lshlrev_b32 v34, 4, v34
    v_and_b32 v35, 3, v32
    v_lshl_add_u32 v34, v35, 2, v34
    v_lshl_add_u32 v34, v33, 13, v34
    s_lshl_b32 s52, s50, 15
    s_add_u32 s52, s52, {W_BASE}
    v_add_u32 v{VIMG}, s52, v34
    v_lshrrev_b32 v34, 5, v0
    v_lshl_add_u32 v34, v34, 4, v32
    s_lshl_b32 s52, s49, 8
    v_lshl_add_u32 v{VPART}, v34, 3, s52
    v_lshlrev_b32 v{VPRD}, 4, v0
    s_lshl_b32 s39, s48, 5
    s_add_u32 s39, s39, s44
    s_lshl_b32 s39, s39, 10
    s_add_u32 s39, s39, 512
    v_add_u32 v{VREC}, s39, v{VPRD}
    s_lshl_b32 s52, s49, 3
    s_lshl_b64 s[90:91], 0xff, s52
    s_lshl_b32 s52, s49, 2
    v_mov_b32 v15, s52
    s_waitcnt lgkmcnt(0)
    s_mov_b32 s20, s36
    s_mov_b32 s21, s37
    s_mov_b32 s22, 0x40000
    s_mov_b32 s23, 0x20000
    """)
    final_setup("c")
    if acc0 is None:
        for i in range(0, 128, 2): a(f"v_mov_b64 v[{ACC+i}:{ACC+i+1}], 0")
    else:
        for i in range(128): a(f"v_mov_b32 v{ACC+i}, {f2u(acc0)}")
    if stamps: a(f"v_writelane_b32 v{VST}, s92, 0")
    a(f"""
    s_mov_b32 s54, 0                      ; sE
    s_mov_b32 s55, {A_SLOT}               ; sO
    s_mov_b32 s56, 0
    s_mov_b32 s57, 4
    s_mov_b32 s63, 16384
    s_mov_b32 s61, 16
    """)
    if hop:
        if hopwait: a("s_waitcnt vmcnt(0)")
        a("""
        s_mov_b64 exec, 0
        s_cmp_eq_u32 s49, 0
        s_cbranch_scc1 L_hopg0
        s_cmp_eq_u32 s49, 1
        s_cbranch_scc1 L_hopg1
        s_cmp_eq_u32 s49, 2
        s_cbranch_scc1 L_hopg2
        s_branch L_hopg3
        L_hopret:
        s_mov_b64 exec, -1
        """)
    stamp(7)
    a("s_barrier")
    lq = []; ring = {}; rpos = [0]; occ = {}; dead = set()
    def afrags(t, j):
        if t < 2:
            return [("F", t, 0), ("F", t, 1)] if j == 0 else [("F", t, j + 1)]
        return [("G", 0, j), ("G", 1, j)]
    def atext(tag, d):
        kind, x, j = tag[:3]
        if kind == "F":
            if j < 8: return f"ds_read_b128 v[{d}:{d+3}], v{aE+x} offset:{j*2048}"
            return f"ds_read_b128 v[{d}:{d+3}], v{aE8+x}"
        return f"ds_read_b128 v[{d}:{d+3}], v{aO+x} offset:{j*2048}"
    def aread(tag):
        idx = rpos[0] % NRING; rpos[0] += 1
        if tag[0] == "F" and tag[2] == 8: rpos[0] += 1
        if idx in occ: assert occ[idx] in dead, (tag, idx, occ[idx])
        occ[idx] = tag; dead.discard(tag)
        ring[tag] = idx
        return ("lds", tag, atext(tag, AF + idx * 4))
    def bfrag(tag, d, n, pq, extra=0):
        return [("lds", tag, f"ds_read_b64_tr_b16 v[{d+2*h}:{d+2*h+1}], v{bB+n} offset:{extra + pq*8192 + h*1024}") for h in range(2)]
    def breg(buf, pq, n): return BF + buf * 32 + (pq * 4 + n) * 4
    def breads(buf):
        r = []
        for n in range(4):
            for pq in range(2): r += bfrag(("B", buf), breg(buf, pq, n), n, pq)
        return r
    def emit(op):
        if isinstance(op, tuple):
            lq.append(op[1]); a(op[2])
        else: a(op)
    def lwait(tags):
        last = max([i for i, t in enumerate(lq) if t in tags], default=-1)
        if last < 0: return
        n = min(15, len(lq) - 1 - last)
        a(f"s_waitcnt lgkmcnt({n})")
        del lq[:len(lq) - n]
    def badv():
        return ["s_add_u32 s56, s56, 16384", "s_cmp_eq_u32 s56, 0x10000", "s_cselect_b32 s58, 0xffff4000, s63", "s_and_b32 s56, s56, 0xffff"] + \
               [f"v_add_u32 v{bB+n}, s58, v{bB+n}" for n in range(4)]
    def mfma(d, ar, br): a(f"v_mfma_f32_16x16x32_bf16 v[{d}:{d+3}], v[{ar}:{ar+3}], v[{br}:{br+3}], v[{d}:{d+3}]")
    def bar():
        a("s_barrier")
        if itstamps:
            a(f"s_mov_b32 m0, s61\ns_add_u32 s61, s61, 1\nv_writelane_b32 v{VST}, s96, m0\nv_writelane_b32 v{VST2}, s98, m0")
            a("s_memrealtime s[96:97]\ns_memtime s[98:99]")
    if onebar: stamp(1)
    for op in breads(0): emit(op)
    for op in badv(): a(op)
    if not onebar:
        a("s_waitcnt lgkmcnt(0)")
        a("s_barrier")
        stamp(1)
    lq[:] = []
    if itstamps: a("s_memrealtime s[96:97]\ns_memtime s[98:99]")
    for j in range(LA):
        for tg in afrags(0, j): emit(aread(tg))
    for _ in range(shift): a("s_nop 0")
    init_state = (list(lq), dict(ring), rpos[0] % NRING)
    def run_gaps(mf, q, barrier_after=None, first_free=0, reserve_last=True):
        ng = len(mf)
        def isvalu(op): return isinstance(op, str) and op.startswith("v_")
        gaps = [g for g in range(first_free, ng) if not (reserve_last and g == ng - 1 and len(q) < ng - first_free)]
        if barrier_after is not None: gaps = [g for g in gaps if g > barrier_after]
        plan = {g: [] for g in range(ng)}
        cap = max(1, -(-len(q) // max(1, len(gaps))))
        while True:
            for g in plan: plan[g] = []
            gi = 0; ok = True
            for op in q:
                while gi < len(gaps) and (len(plan[gaps[gi]]) >= cap or (isvalu(op) and not valu_in and gaps[gi] % 2 == 0)): gi += 1
                if gi >= len(gaps): ok = False; break
                plan[gaps[gi]].append(op)
            if ok: break
            if reserve_last and ng - 1 not in gaps: gaps.append(ng - 1)
            else: cap += 1
        for g, m in enumerate(mf):
            mfma(*m)
            if g == barrier_after: bar()
            for op in plan[g]:
                if isinstance(op, tuple) and op[0] == "A": op = aread(op[1])
                emit(op)
    def step(k):
        t = k % 3; buf = k & 1
        tn = (t + 1) % 3
        bq = breads(buf ^ 1)
        JB = 8 - LA
        nb_per = 4
        bv = badv()
        for j in range(8):
            X, Y = (("F", t, j), ("F", t, j + 1)) if t < 2 else (("G", 0, j), ("G", 1, j))
            need = {X, Y}
            if j == 0: need.add(("B", buf))
            q = []
            if j == JB: lwait(set(lq))
            else: lwait(need)
            if j + LA < 8: q += [("A", tg) for tg in afrags(t, j + LA)]
            else: q += [("A", tg) for tg in afrags(tn, j + LA - 8)]
            for _ in range(nb_per):
                if bq: q.append(bq.pop(0))
            def mix(q, v):
                out = []
                while q or v:
                    if q: out.append(q.pop(0))
                    if v: out.append(v.pop(0))
                return out
            if j == 4: q += bv[:4]
            if j == 5: q = mix(q, bv[4:])
            if t == 1 and j == 6: q += [f"s_add_u32 s59, s54, s55", f"s_sub_u32 s59, {3*A_SLOT}, s59", "s_sub_u32 s60, s59, s54"]
            if t == 1 and j == 7: q = mix(q, [f"v_add_u32 v{r}, s60, v{r}" for r in (aE, aE + 1, aE8, aE8 + 1)])
            if t == 2 and j == 6: q += ["s_sub_u32 s60, s54, s55", "s_mov_b32 s55, s54", "s_mov_b32 s54, s59"]
            if t == 2 and j == 7:
                q = mix(q, [f"v_add_u32 v{r}, s60, v{r}" for r in (aO, aO + 1)])
                if k == 2: q += ["s_sub_u32 s57, s57, 1", "s_cmp_eq_u32 s57, 0"]
            xr = AF + ring[X] * 4; yr = AF + ring[Y] * 4
            mf = []
            for n in range(4):
                pr = [(xr, breg(buf, 0, n)), (yr, breg(buf, 1, n))]
                if n % 2 == 1: pr = pr[::-1]
                mf += [(acc(j, n), ar, br) for ar, br in pr]
            run_gaps(mf, q, barrier_after=1 if j == JB else None)
            dead.add(X)
            if t == 2 or j == 7: dead.add(Y)
        assert not bq
    a("L_cloop:")
    for k in range(6):
        a(f"; ---- step {k}")
        step(k)
        if k == 2:
            saved = (list(lq), dict(ring))
            a("s_cbranch_scc1 L_clast")
    end_state = (list(lq), {k_: v for k_, v in ring.items() if k_ in init_state[1]}, rpos[0] % NRING)
    assert end_state == init_state, (end_state, init_state)
    a("s_branch L_cloop")
    a("L_clast:")
    if cprio: a(f"s_setprio {cprio}")
    stamp(11)
    lq[:] = [t + (0,) for t in saved[0]]
    loc = {t + (0,): AF + saved[1][t] * 4 for t in saved[0]}
    free = [AF + 4 * i for i in range(NRING) if AF + 4 * i not in loc.values()]
    bloc = {}
    for n in range(4):
        for pq in range(2):
            bloc[(0, pq, n)] = breg(1, pq, n); bloc[(1, pq, n)] = breg(0, pq, n)
            bloc[(2, pq, n)] = breg(1, pq, n) if n < 2 else breg(0, pq, n - 2)
    T0 = breg(1, 0, 0)
    def stats(h):
        for n in (2 * h, 2 * h + 1):
            a(f"v_cndmask_b32 v{acc(1,n)+3}, 0, v{acc(1,n)+3}, s[64:65]")
            a(f"v_cndmask_b32 v{acc(2,n)+3}, 0, v{acc(2,n)+3}, s[66:67]")
        for j in range(8):
            for hh in range(2):
                for n in (2 * h, 2 * h + 1):
                    x = acc(j, n) + 2 * hh; S = T0 + 4 * (n & 1); Q = S + 2
                    if j == 0 and hh == 0:
                        a(f"v_pk_mul_f32 v[{Q}:{Q+1}], v[{x}:{x+1}], v[{x}:{x+1}]")
                    else:
                        a(f"v_pk_fma_f32 v[{Q}:{Q+1}], v[{x}:{x+1}], v[{x}:{x+1}], v[{Q}:{Q+1}]")
                        src = f"v[{x-2}:{x-1}]" if j == 0 else f"v[{S}:{S+1}]"
                        a(f"v_pk_add_f32 v[{S}:{S+1}], {src}, v[{x}:{x+1}]")
        a(f"""
        v_add_f32 v{T0}, v{T0}, v{T0+1}
        v_add_f32 v{T0+4}, v{T0+4}, v{T0+5}
        v_add_f32 v{T0+1}, v{T0+2}, v{T0+3}
        v_add_f32 v{T0+5}, v{T0+6}, v{T0+7}
        s_nop 0
        v_permlane32_swap_b32 v{T0}, v{T0+4}
        v_permlane32_swap_b32 v{T0+1}, v{T0+5}
        s_nop 0
        v_add_f32 v{T0}, v{T0}, v{T0+4}
        v_add_f32 v{T0+1}, v{T0+1}, v{T0+5}
        v_mov_b32 v{T0+4}, v{T0}
        v_mov_b32 v{T0+5}, v{T0+1}
        s_nop 1
        v_permlane16_swap_b32 v{T0}, v{T0+4}
        v_permlane16_swap_b32 v{T0+1}, v{T0+5}
        s_nop 0
        v_add_f32 v{T0}, v{T0}, v{T0+4}
        v_add_f32 v{T0+1}, v{T0+1}, v{T0+5}
        """)
        emit(("lds", "P", f"ds_write_b64 v{VPART}, v[{T0}:{T0+1}] offset:{PART + 1024*h}"))
    def image_ops(h):
        ops = []
        for n in (2 * h, 2 * h + 1):
            for f in range(2):
                ops.append(f"v_xor_b32 v{4+f}, {((n&1)<<5) ^ (f<<7)}, v{VIMG}")
                for j in range(8):
                    if (j >> 1) & 1 != f: continue
                    for r in (0, 2):
                        x = acc(j, n) + r
                        ops.append(("lds", "I", f"ds_write2st64_b32 v{4+f}, v{x}, v{x+1} offset0:{8*r+j} offset1:{8*(r+1)+j}"))
        ops.append(("lds", "F", f"ds_write_b32 v15, v13 offset:{FLAGS + 16 + 16*h}"))
        return ops
    seq = [(0, t, j) for t in range(3) for j in range(8)]
    if jouter: seq += [(1, t, j) for j in range(8) for t in range(3)]
    else: seq += [(1, t, j) for t in range(3) for j in range(8)]
    aorder = []
    for s, (h, t, j) in enumerate(seq):
        for tg in afrags(t, j):
            if tg + (h,) not in loc: aorder.append((s, tg + (h,)))
    s_a0, s_a1, s_a2 = 7, 16 - LB, 16 + 5
    bq = []; iq = []; sq = []
    def plain_stats(j):
        ops = []
        for n in (2, 3):
            if j in (1, 2): ops.append(f"v_cndmask_b32 v{acc(j,n)+3}, 0, v{acc(j,n)+3}, s[{62+2*j}:{63+2*j}]")
        for r in range(4):
            for n in (2, 3):
                x = acc(j, n) + r; S = T0 + 4 * (n & 1) + 2; Q = S + 1
                if j == 0 and r == 0: ops.append(f"v_mul_f32 v{Q}, v{x}, v{x}")
                else:
                    ops.append(f"v_fmac_f32 v{Q}, v{x}, v{x}")
                    ops.append(f"v_add_f32 v{S}, v{x-1 if (j == 0 and r == 1) else S}, v{x}")
        return ops
    def pairs_of(h, t, j):
        X, Y = (("F", t, j, h), ("F", t, j + 1, h)) if t < 2 else (("G", 0, j, h), ("G", 1, j, h))
        return X, Y
    for s, (h, t, j) in enumerate(seq):
        if h == 0 and j == 0:
            a(f"; ---- last chunk pass A step {t}")
            bq = []
            if t == 1: late = carry
            ns_ = range(4) if t == 0 else (range(2) if t == 1 else range(2, 4))
            for n in ns_:
                for pq in range(2):
                    tb = 1 if t == 0 else 2
                    bq += bfrag(("LB", tb, n >> 1), bloc[(tb, pq, n)], n, pq, extra=(tb - 1) * 16384)
            if t == 1: bq += late
        if s == 24:
            a("; ---- last chunk pass B")
            a("s_nop 4")
            stats(0)
            stamp(5)
            iq = image_ops(0)
            free += [breg(1, 1, 0), breg(1, 1, 1)]
        X, Y = pairs_of(h, t, j)
        need = {X, Y} | ({("LB", t, h)} if j == 0 else set())
        if s == s_a2: need |= {("LB", 2, 1)}
        lwait(need)
        q = []
        while aorder and aorder[0][0] <= s + LB and free and len(q) < 2 and not (aorder[0][1][0] == "G" and s < s_a1):
            _, tg = aorder.pop(0)
            d = free.pop(0); loc[tg] = d
            q.append(("lds", tg, atext(tg, d)))
        for _ in range(2):
            if bq and (len(q) < 3 or t == 2): q.append(bq.pop(0))
        while iq and len(q) < 2 + iper: q.append(iq.pop(0))
        mf = []
        for n in (2 * h, 2 * h + 1):
            pr = [(loc[X], bloc[(t, 0, n)]), (loc[Y], bloc[(t, 1, n)])]
            if n % 2 == 1: pr = pr[::-1]
            mf += [(acc(j, n), ar, br) for ar, br in pr]
        run_gaps(mf, q, barrier_after=1 if s in (s_a0, s_a1, s_a2) else None, first_free=1 if j == 0 else 0)
        free.append(loc[X])
        if t == 2 or j == 7: free.append(loc[Y])
        if h == 0 and t == 0 and j == 7: carry = list(bq)
        if h == 0 and t > 0 and (j == 7 or s == s_a2 - 1): assert not bq, (s, bq)
    assert not aorder and not iq
    stamp(2)
    if probes:
        for pi in range(10):
            a(f"v_writelane_b32 v{VST}, s{68+2*pi}, {40+pi}")
            a(f"s_mov_b32 s100, L_probe{pi}-{NAME}_kernel\nv_writelane_b32 v{VST2}, s100, {40+pi}")
        a(f"s_getpc_b64 s[100:101]\nL_pq:\ns_sub_u32 s100, s100, L_pq-{NAME}_kernel\nv_writelane_b32 v{VST2}, s100, 50")
    a(f"s_nop 7\ns_mov_b32 s59, {SPIN}")
    if jouter:
        for op in plain_stats(7): a(op)
        a(f"""
        s_nop 0
        v_permlane32_swap_b32 v{T0+3}, v{T0+7}
        v_permlane32_swap_b32 v{T0+2}, v{T0+6}
        s_nop 0
        v_add_f32 v{T0+3}, v{T0+3}, v{T0+7}
        v_add_f32 v{T0+2}, v{T0+2}, v{T0+6}
        v_mov_b32 v{T0+7}, v{T0+3}
        v_mov_b32 v{T0+6}, v{T0+2}
        s_nop 1
        v_permlane16_swap_b32 v{T0+3}, v{T0+7}
        v_permlane16_swap_b32 v{T0+2}, v{T0+6}
        s_nop 0
        v_add_f32 v{T0+3}, v{T0+3}, v{T0+7}
        v_add_f32 v{T0+2}, v{T0+2}, v{T0+6}
        ds_write_b64 v{VPART}, v[{T0+2}:{T0+3}] offset:{PART + 1024}
        """)
    else:
        stats(1)
    stamp(13)
    part_publish("L_cpart", VPRD, 1, 32, VREC, "s[90:91]", 0)
    if not hk: a("s_setprio 0")
    stamp(3)
    a(f"v_add_u32 v{VIMG}, s40, v{VIMG}")
    for op in image_ops(1): emit(op)
    SC, SH, T, O, Y = 16, 24, 32, 40, 48
    a(f"""
    L_imgwait:
    s_mov_b32 s59, {SPIN*4}
    L_img:
    ds_read_b32 v15, v12 offset:{FLAGS+16}
    s_waitcnt lgkmcnt(0)
    v_cmp_eq_u32 vcc, 0, v15
    s_cbranch_vccz L_job
    s_sleep {isleep}
    s_sub_u32 s59, s59, 1
    s_cmp_gt_i32 s59, 0
    s_cbranch_scc1 L_img
    L_job:
    """)
    preread(4)
    if hk == 2: a("s_cmp_ge_u32 s3, 4\ns_cbranch_scc1 L_fw\ns_setprio 0")
    a(f"""
    L_fw:
    ds_read_b32 v15, v14 offset:{FLAGS}
    ds_read_b128 v[{SC}:{SC+3}], v11 offset:{CONST}
    ds_read_b128 v[{SC+4}:{SC+7}], v11 offset:{CONST+16}
    ds_read_b128 v[{SH}:{SH+3}], v11 offset:{CONST+512}
    ds_read_b128 v[{SH+4}:{SH+7}], v11 offset:{CONST+528}
    s_waitcnt lgkmcnt(0)
    v_cmp_eq_u32 vcc, 0, v15
    s_cbranch_vccz L_fw_ok
    {"s_sleep %d" % fsleep if fsleep else ""}
    s_sub_u32 s59, s59, 1
    s_cmp_gt_i32 s59, 0
    s_cbranch_scc1 L_fw
    L_fw_ok:
    """)
    if stamps or amp == 14:
        a("s_cmp_eq_u32 s42, 0\ns_cbranch_scc1 L_st8")
        stamp(14)
        a("L_st8:")
    stamp(8)
    def lowprio(lb):
        if hk == 1: a(f"s_setprio 1\ns_cmp_ge_u32 s3, 4\ns_cbranch_scc1 {lb}\ns_setprio 0\n{lb}:")
    lowprio("L_lp1")
    def p(x): return f"v[{x}:{x+1}]"
    for i in (3, 2, 1, 0):
        if i == 1: a("L_g2:")
        h = HH + 8 * i; o = O + 4 * (i & 1)
        for j in range(0, 8, 2): a(f"v_pk_fma_f32 {p(h+j)}, {p(h+j)}, {p(SC+j)}, {p(SH+j)}")
        for j in range(0, 8, 2): a(f"v_pk_fma_f32 {p(T+j)}, {p(h+j)}, {p(h+j)}, s[24:25]")
        for j in range(0, 8, 2): a(f"v_pk_mul_f32 {p(T+j)}, {p(T+j)}, {p(h+j)} neg_lo:[1,0] neg_hi:[1,0]")
        for j in range(8): a(f"v_exp_f32 v{T+j}, v{T+j}")
        for j in range(0, 8, 2): a(f"v_pk_fma_f32 {p(T+j)}, {p(T+j)}, s[26:27], s[26:27]")
        for j in range(8): a(f"v_rcp_f32 v{T+j}, v{T+j}")
        for j in range(0, 8, 2): a(f"v_pk_mul_f32 {p(T+j)}, {p(T+j)}, {p(h+j)}")
        for j in range(0, 8, 2): a(f"v_cvt_pk_bf16_f32 v{o+j//2}, v{T+j}, v{T+j+1}")
        if sthr is not None: a(f"s_waitcnt vmcnt({sthr})")
        if not nostore: a(f"buffer_store_dwordx4 v[{o}:{o+3}], v{10 if i == 0 else VO+i}, s[16:19], 0 offen{omod}")
    a("s_cmp_eq_u32 s42, 0\ns_cbranch_scc1 L_fin")
    if hk == 1: a("s_setprio 2")
    if hk == 2: a("s_cmp_ge_u32 s3, 4\ns_cbranch_scc1 L_hk2\ns_setprio 3\nL_hk2:")
    stamp(12)
    a("s_sub_u32 s42, s42, 1\ns_cmp_eq_u32 s42, 0\ns_cbranch_scc1 L_toB")
    a(f"""
    v_add_u32 v8, s0, v6
    v_add_u32 v10, s1, v7
    v_xor_b32 v9, 160, v8
    """)
    preread(2)
    a("s_waitcnt lgkmcnt(0)")
    lowprio("L_lp2")
    a("s_branch L_g2\nL_toB:")
    nextjob_regs()
    if not ded: a("s_cmp_ge_u32 s3, 6\ns_cbranch_scc1 L_gather")
    a("s_branch L_imgwait\nL_fin:")
    if hold in (9, 10) and not stamps: stamp(hold)
    if amp is not None:
        if amp == 9: stamp(9)
        a("s_waitcnt vmcnt(0)")
        if amp == 10: stamp(10)
        a("s_waitcnt lgkmcnt(0)")
        if ampw == "c": a("s_cmp_ge_u32 s3, 4\ns_cselect_b32 s94, s92, s94")
        if ampw == "l": a("s_cmp_lt_u32 s3, 4\ns_cselect_b32 s94, s92, s94")
        a(f"""
        L_amp0:
        s_sleep 8
        s_memrealtime s[96:97]
        s_waitcnt lgkmcnt(0)
        s_sub_u32 s96, s96, s92
        s_cmp_lt_u32 s96, 4000
        s_cbranch_scc1 L_amp0
        s_not_b32 s95, s92
        v_mov_b32 v4, s94
        v_mov_b32 v5, s95
        v_mov_b32 v1, 8
        s_mov_b64 exec, 1
        global_atomic_umax v1, v4, s[34:35]
        global_atomic_umax v1, v5, s[34:35] offset:4
        s_waitcnt vmcnt(0)
        L_amp1:
        s_sleep 8
        s_memrealtime s[96:97]
        s_waitcnt lgkmcnt(0)
        s_sub_u32 s96, s96, s92
        s_cmp_lt_u32 s96, 16000
        s_cbranch_scc1 L_amp1
        global_load_dwordx2 v[4:5], v1, s[34:35] sc1
        s_waitcnt vmcnt(0)
        v_readfirstlane_b32 s94, v4
        v_readfirstlane_b32 s95, v5
        s_not_b32 s95, s95
        s_sub_u32 s94, s94, s95
        s_mul_i32 s94, s94, 10
        s_add_u32 s94, s94, 18900
        s_min_u32 s94, s94, 100000
        L_amp2:
        s_sleep 2
        s_memrealtime s[96:97]
        s_waitcnt lgkmcnt(0)
        s_sub_u32 s96, s96, s95
        s_cmp_lt_u32 s96, s94
        s_cbranch_scc1 L_amp2
        """)
    if stamps:
        stamp(9)
        a("s_waitcnt vmcnt(0)")
        stamp(10)
        a(f"""
        s_lshl_b32 s52, s2, 12
        s_lshl_b32 s53, s3, 9
        s_add_u32 s52, s52, s53
        s_add_u32 s52, s52, {STAMP_OFF}
        v_lshlrev_b32 v1, 3, v0
        v_add_u32 v1, s52, v1
        global_store_dwordx2 v1, v[{VST}:{VST2}], s[36:37]
        s_waitcnt vmcnt(0)
        """)
    a("L_end:\ns_endpgm")
    if relayout:
        L = a.lines
        ix = {t: L.index(t) for t in ("L_ltail:", "L_compute:", "L_cloop:", "L_imgwait:", "L_end:")}
        a.lines = (L[:ix["L_ltail:"]] + ["    s_branch L_ltail", ".p2align 12", "L_page:"] +
                   L[ix["L_compute:"]:ix["L_cloop:"]] + ["    s_branch L_cloop"] +
                   L[ix["L_ltail:"]:ix["L_compute:"]] + L[ix["L_imgwait:"]:ix["L_end:"]] + ["    s_endpgm", ".p2align 6"] +
                   L[ix["L_cloop:"]:ix["L_imgwait:"]] + ["    s_branch L_imgwait"] + L[ix["L_end:"]:])
        if hop: a.lines = add_hops(a.lines, [("L_ltail:", "L_end:")], hop, page="L_page:")
    elif hop: a.lines = add_hops(a.lines, [("L_lloop:", "L_compute:"), ("L_cloop:", "L_end:")], hop)
    if align8: a.lines = pad8(a.lines, "L_cloop:", "L_cpart:")
    hazcheck(a.lines)
    return wrap(a.text(), 256, 512, 163840, 256)

if __name__ == "__main__":
    out = sys.argv[1]
    kw = json.loads(sys.argv[2]) if len(sys.argv) > 2 else {}
    open(out, "w").write(gen(**kw))
```

```python
import sys, json, struct
from asmlib import *

def f2u(f): return struct.unpack("<I", struct.pack("<f", f))[0]

LROWS = 7999
C1 = -2.0 * 0.7978845608028654 * 1.4426950408889634
C2 = C1 * 0.044715
KS = (-C2) ** (1.0 / 3.0)
CP = -C1 / KS
SENT = 0xBF800000
A_SLOT = 32768
W_BASE = 98304
MISC = 32768
PART = MISC
CONST = MISC + 2048
FLAGS = MISC + 3072
STAMP_OFF = 1 << 20
SPIN = 0x40000

def gen(stamps=False, xmod="", wmod="", omod=" sc1", codepf=True, itstamps=False, hold=None, holdus=40,
        parity=True, psleep=1, fsleep=1, rsleep=0, lprio=2, cprio=3, LA=2, LB=3, only=None, wpar=True, jouter=False, ded=False, onebar=False, align8=False, shift=0, pf2=False, isleep=2, probes=False, ilv=True, hop=0, acc0=None, relayout=True, hopwait=False, nostore=False, gprio=None, hk=False, sthr=None, alt=1, snake=False, amp=None, ampw=None, swap=False, mprio=0, valu_in=False, iper=1, lag=True, lagfrom=3, rampv=0, pfk=19, otouch=None, bmap=0):
    a = Asm()
    VST, VST2 = 2, 3
    def stamp(k):
        if hold == k:
            lb = a.label("L_hold")
            a(f"""s_waitcnt lgkmcnt(0)
            {lb}:
            s_memrealtime s[96:97]
            s_waitcnt lgkmcnt(0)
            s_sub_u32 s96, s96, s92
            s_cmp_lt_u32 s96, {holdus*100}
            s_cbranch_scc1 {lb}""")
        if amp == k: a("s_memrealtime s[94:95]")
        if not stamps or (only is not None and k not in only): return
        a(f"s_memrealtime s[100:101]\ns_waitcnt lgkmcnt(0)\nv_writelane_b32 v{VST}, s100, {k}")
        if k in (1, 2, 8, 9): a(f"s_memtime s[100:101]\ns_waitcnt lgkmcnt(0)\nv_writelane_b32 v{VST2}, s100, {k}")
    def final_setup(role):
        a(f"""
        s_mul_i32 s38, s43, {LROWS}
        s_add_u32 s38, s38, s45
        s_lshl_b32 s38, s38, 10
        s_add_u32 s16, s32, s38
        s_addc_u32 s17, s33, 0
        s_lshl_b32 s18, s47, 10
        s_mov_b32 s19, 0x20000
        v_and_b32 v1, 7, v0                   ; o
        v_lshrrev_b32 v8, 3, v0
        s_and_b32 s38, s49, 1
        s_lshl_b32 s40, s38, 5
        s_add_u32 s40, s40, {64 if role == "c" else 0}
        v_add_u32 v8, s40, v8
        s_lshl_b32 s38, s38, 2
        v_xor_b32 v9, s38, v1                 ; o ^ 4*((row>>5)&1)
        v_bfe_u32 v10, v0, 4, 1               ; f
        v_lshl_add_u32 v9, v10, 3, v9
        v_lshlrev_b32 v9, 4, v9
        v_lshl_add_u32 v9, v8, 8, v9
        s_lshr_b32 s38, s49, 1
        s_lshl_b32 s40, s38, 15
        s_add_u32 s42, s40, {W_BASE}
        v_add_u32 v6, s42, v9
        s_sub_u32 s40, s40, {W_BASE}
        s_lshl_b32 s42, s38, 7
        v_add_u32 v8, s42, v8
        v_lshlrev_b32 v8, 10, v8
        v_lshl_add_u32 v7, v1, 4, v8
        s_lshl_b32 s42, s41, 8
        v_add_u32 v7, s42, v7
        v_lshlrev_b32 v11, 5, v1
        v_and_b32 v14, 1, v0
        v_lshlrev_b32 v14, 2, v14             ; constflag[lane&1]
        v_and_b32 v12, 3, v0
        v_lshlrev_b32 v12, 2, v12             ; imgflag[lane&3]
        v_mov_b32 v13, 1
        v_mov_b32 v8, v6
        v_xor_b32 v9, 160, v6
        v_mov_b32 v10, v7
        s_mov_b32 s24, {f2u(CP)}
        s_mov_b32 s25, {f2u(CP)}
        s_mov_b32 s26, {f2u(KS)}
        s_mov_b32 s27, {f2u(KS)}
        """)
        if not ded: a("s_mov_b32 s42, 1")
        elif role == "l": a("s_mov_b32 s42, 2\ns_mov_b32 s0, 32768\ns_mov_b32 s1, 131072")
        else: a(f"s_add_u32 s42, s38, 1\ns_mov_b32 s0, {(-48*256) & 0xffffffff}\ns_mov_b32 s1, {(-48*1024) & 0xffffffff}")
    HH, VO = 160, 60
    def preread(n):
        for i in range(n - 1, -1, -1):
            a(f"ds_read_b128 v[{HH+8*i}:{HH+8*i+3}], v8 offset:{2048*i}\nds_read_b128 v[{HH+8*i+4}:{HH+8*i+7}], v9 offset:{2048*i}")
        for i in range(1, n): a(f"v_add_u32 v{VO+i}, {8192*i}, v10")
    def part_publish(lbl, vaddr, half, x, vrec, maskreg, sleep):
        a(f"""
        {lbl}:
        ds_read_b128 v[{x}:{x+3}], v{vaddr} offset:{PART + 1024*half}
        s_waitcnt lgkmcnt(0)
        v_min_f32 v1, v{x+1}, v{x+3}
        v_cmp_gt_f32 vcc, 0, v1
        s_cbranch_vccz {lbl}_ok
        {"s_sleep %d" % sleep if sleep else ""}
        s_sub_u32 s59, s59, 1
        s_cmp_gt_i32 s59, 0
        s_cbranch_scc1 {lbl}
        {lbl}_ok:
        """)
        for i in range(4): a(f"v_mov_b32 v{x+4+i}, v{x+i}")
        for i in range(4): a(f"v_permlane32_swap_b32 v{x+i}, v{x+4+i}")
        for i in range(4): a(f"v_add_f32 v{x+i}, v{x+i}, v{x+4+i}")
        a(f"""
        s_mov_b64 exec, {maskreg}
        buffer_store_dwordx4 v[{x}:{x+3}], v{vrec}, s[20:23], 0 offen sc1
        s_mov_b64 exec, -1
        """)
    a(f"""
    s_cmp_ge_u32 s2, 256
    s_cbranch_scc1 L_end
    s_load_dwordx4 s[4:7], s[0:1], 0      ; x, w
    s_load_dwordx4 s[28:31], s[0:1], 16
    s_load_dwordx4 s[32:35], s[0:1], 32
    s_load_dwordx2 s[36:37], s[0:1], 48   ; ws
    """)
    if stamps or hold is not None or amp is not None: a("s_memrealtime s[92:93]")
    if amp is not None: a("s_memrealtime s[94:95]")
    a(f"""
    v_lshrrev_b32 v1, 6, v0
    v_and_b32 v0, 63, v0
    v_readfirstlane_b32 s3, v1
    s_and_b32 s38, s2, 7
    {"s_lshr_b32 s40, s38, 1" if bmap else ""}
    {"s_and_b32 s38, s38, 1" if bmap else ""}
    {"s_lshl_b32 s38, s38, 2" if bmap else ""}
    {"s_add_u32 s38, s38, s40" if bmap else ""}
    s_bfe_u32 s40, s2, 0x30005
    s_bfe_u32 s41, s2, 0x20003
    s_lshl_b32 s42, s38, 3
    s_add_u32 s42, s42, s40               ; mt 0..63
    s_lshr_b32 s43, s42, 5                ; batch
    s_and_b32 s44, s42, 31
    s_mul_i32 s45, s44, 250
    s_mul_i32 s46, s43, 8000
    s_add_u32 s46, s46, s45
    s_cmp_eq_u32 s44, 31
    s_cselect_b32 s47, 1, 0
    s_sub_u32 s47, 250, s47               ; nvalid
    s_lshl_b32 s48, s43, 2
    s_add_u32 s48, s48, s41
    s_and_b32 s49, s3, 3
    {"s_xor_b32 s3, s3, 4" if swap else ""}
    s_cmp_lt_u32 s3, 4
    s_cbranch_scc1 L_compute
    """)
    VA, VW = 56, 60
    a(f"""
    v_lshrrev_b32 v4, 4, v0               ; l>>4
    v_and_b32 v5, 15, v0
    v_lshlrev_b32 v6, 1, v4
    v_xor_b32 v5, v5, v6                  ; W chunk (n<2)
    s_and_b32 s50, s49, 1
    s_lshl_b32 s51, s50, 14
    s_lshl_b32 s52, s41, 8
    s_add_u32 s51, s51, s52
    v_lshlrev_b32 v5, 4, v5
    v_lshl_add_u32 v5, v4, 10, v5
    s_and_b32 s53, s40, {1 if wpar else 0}
    s_mul_i32 s52, s53, {8192 + 128}
    v_add_u32 v5, s51, v5
    v_xor_b32 v{VW}, s52, v5
    v_xor_b32 v{VW+2}, {8192 + 128}, v{VW}
    v_add_u32 v{VW+1}, 3072, v{VW}
    v_add_u32 v{VW+3}, 3072, v{VW+2}
    s_lshl_b32 s51, s49, 12
    s_lshl_b32 s53, s53, 11
    s_add_u32 s51, s51, s53
    s_add_u32 s51, s51, {W_BASE}
    s_lshr_b32 s62, s49, 1                ; lw>=2
    s_lshl_b32 s54, s62, 20               ; sB0
    s_mov_b32 s14, 1572864
    s_mov_b32 s15, 0x20000
    s_mov_b32 m0, s51
    s_waitcnt lgkmcnt(0)
    s_mov_b32 s12, s6
    s_mov_b32 s13, s7
    """)
    if stamps: a(f"v_writelane_b32 v{VST}, s92, 0")
    vq = []
    def issueA(slot_s, soff, tag, halves=(0, 1)):
        for half in halves:
            if half == halves[0]: a(f"s_add_u32 m0, s50, {slot_s}")
            if half == 1: a(f"s_xor_b32 m0, m0, 4096")
            a("s_nop 0")
            for n in range(4):
                vq.append(tag)
                a(f"buffer_load_dwordx4 v{VA+half*2+(n&1)}, s[8:11], {soff} offen offset:{n*1024}{xmod} lds")
    def issueW(slot_s, soff, tag, setm0=True, halves=(0, 1)):
        for half in halves:
            if half == halves[0] and setm0: a(f"s_add_u32 m0, s51, {slot_s}")
            if half == 1: a("s_xor_b32 m0, m0, 2048")
            if setm0 or half == 1: a("s_nop 0")
            for n in range(2):
                vq.append(tag)
                a(f"buffer_load_dwordx4 v{VW+2*half+n}, s[12:15], {soff} offen offset:{n*1024}{wmod} lds")
    def vwait(tags):
        last = max([i for i, t in enumerate(vq) if t in tags], default=-1)
        n = len(vq) - 1 - last
        a(f"s_waitcnt vmcnt({n})")
        return n
    def Aname(k): return f"E{k//3}" if k % 3 < 2 else f"O{k//3}"
    issueW(0, "s54", "B0", setm0=False, halves=(0,) if wpar else (0, 1))
    a(f"""
    v_and_b32 v5, 7, v0
    v_xor_b32 v5, v5, v4
    v_lshlrev_b32 v5, 4, v5
    v_lshrrev_b32 v6, 3, v0
    v_lshl_add_u32 v5, v6, 14, v5
    s_lshl_b32 s52, s62, 18
    s_lshl_b32 s53, s50, 13
    s_add_u32 s52, s52, s53
    s_and_b32 s53, s41, {1 if parity else 0}
    s_lshl_b32 s53, s53, 12
    s_add_u32 s52, s52, s53
    v_add_u32 v{VA}, s52, v5
    v_xor_b32 v{VA+2}, 4096, v{VA}
    v_xor_b32 v{VA+1}, 64, v{VA}
    v_xor_b32 v{VA+3}, 64, v{VA+2}
    v_add_u32 v{VA+1}, {64*2048 - 1024}, v{VA+1}
    v_add_u32 v{VA+3}, {64*2048 - 1024}, v{VA+3}
    s_lshl_b32 s50, s49, 13
    s_add_u32 s50, s50, s53
    s_lshl_b32 s10, s47, 11
    s_add_u32 s10, s10, 1024
    s_mov_b32 s11, 0x20000
    s_lshl_b32 s57, s46, 11
    s_add_u32 s8, s4, s57
    s_addc_u32 s9, s5, 0
    s_mov_b32 s52, 0                      ; x k-offset (E)
    s_mov_b32 s53, 1024                   ; x k-offset (O)
    s_add_u32 s55, s54, 0x8000            ; sB1
    s_lshl_b32 s56, s62, 15
    s_add_u32 s56, s56, 0x80000           ; sB2
    """)
    issueA(0, "s52", "E0", halves=(0,))
    if wpar: issueW(16384, "s55", "B1", halves=(0,))
    stamp(5)
    R = 80
    NG = 8; MK = 64; G = 96
    a(f"""
    s_mov_b32 s20, s36
    s_mov_b32 s21, s37
    s_mov_b32 s22, 0x40000
    s_mov_b32 s23, 0x20000
    s_lshl_b32 s39, s48, 5
    s_add_u32 s39, s39, s44
    s_lshl_b32 s39, s39, 10
    v_lshlrev_b32 v{R+6}, 4, v0
    v_add_u32 v{R+5}, s39, v{R+6}
    v_and_b32 v1, 15, v0
    v_lshrrev_b32 v5, 5, v0
    v_lshl_add_u32 v5, v1, 1, v5
    s_lshl_b32 s57, s49, 5
    v_add_u32 v{R}, s57, v5
    s_lshl_b32 s57, s41, 7
    v_add_u32 v{R+7}, s57, v{R}
    v_lshlrev_b32 v{R+7}, 1, v{R+7}
    v_lshlrev_b32 v{R}, 2, v{R}
    v_lshlrev_b32 v1, 4, v1
    v_lshl_add_u32 v1, v4, 10, v1
    s_lshl_b32 s57, s48, 15
    s_lshl_b32 s58, s49, 8
    s_add_u32 s57, s57, s58
    v_add_u32 v{R+3}, s57, v1
    s_lshl_b32 s57, s48, 5
    v_mov_b32 v{R+4}, s57
    s_add_u32 s57, s39, s58
    v_lshl_add_u32 v{R+8}, v0, 2, s57
    v_mov_b32 v29, 0
    v_mov_b32 v{R+10}, {SENT}
    v_mov_b32 v{R+11}, {SENT}
    s_lshl_b32 s57, s49, 4
    s_lshl_b64 s[90:91], 0xffff, s57
    """)
    for i in range(NG): a(f"s_mov_b64 s[{MK+2*i}:{MK+2*i+1}], -1")
    for i in range(1, NG): a(f"s_mov_b32 s{80+i}, {i*4096}")
    final_setup("l")
    stamp(13)
    if wpar: issueW(0, "s54", "B0", halves=(1,))
    issueA(0, "s52", "E0", halves=(1,))
    if wpar: issueW(16384, "s55", "B1", halves=(1,))
    if onebar:
        if not wpar: issueW(16384, "s55", "B1")
        issueW(32768, "s56", "B2")
        stamp(6)
        vwait({"B0", "E0", "B1"}); a("s_barrier")
        stamp(1)
    else:
        stamp(7)
        vwait({"B0"}); stamp(15); a("s_barrier")
        if not wpar: issueW(16384, "s55", "B1")
    a(f"""
    buffer_store_dword v{R+10}, v{R+8}, s[20:23], 0 offen sc1
    global_load_ushort v{R+1}, v{R+7}, s[28:29]
    global_load_ushort v{R+2}, v{R+7}, s[30:31]
    s_lshl_b32 s57, s49, 9
    v_lshl_add_u32 v{R+7}, v0, 3, s57
    v_lshlrev_b32 v{R+8}, 2, v0
    v_mov_b32 v{R+9}, 0
    """)
    vq += ["S", "g", "g"]
    if not onebar: issueW(32768, "s56", "B2")
    a(f"""
    s_mov_b32 s57, {2*A_SLOT}
    s_mov_b32 s58, {A_SLOT}
    s_mov_b32 s59, 49152
    """)
    if not onebar:
        stamp(6)
        vwait({"E0", "B1"}); a("s_barrier")
        stamp(1)
    def iB(kb, ph, nth=0):
        sreg = ["s54", "s55", "s56"][kb % 3]
        if ph in (0, None): a(f"s_add_u32 {sreg}, {sreg}, 0x10000")
        issueW("s59", sreg, f"B{kb}", halves=(0, 1) if ph is None else (ph,))
        if ph in (1, None): a("s_add_u32 s59, s59, 16384\ns_and_b32 s59, s59, 0xffff")
    def iO(c, ph):
        if c > 0 and ph in (0, None): a("s_add_u32 s53, s53, 128")
        issueA("s58", "s53", f"O{c}", halves=(0, 1) if ph is None else (ph,))
    def iE(c, ph):
        if ph in (0, None): a("s_add_u32 s52, s52, 128")
        issueA("s57", "s52", f"E{c}", halves=(0, 1) if ph is None else (ph,))
        if ph in (1, None): a(f"s_add_u32 s61, s57, s58\ns_mov_b32 s57, s58\ns_sub_u32 s58, {3*A_SLOT}, s61")
    ramp = {-1: [("O", 0), ("B", 3)], 0: [("E", 1), ("B", 4)], 1: [("B", 5), ("O", 1)], 2: [("B", 6), ("E", 2)], 3: [("B", 7), ("B", 8)]}
    if rampv == 1: ramp = {-1: [("O", 0), ("B", 3)], 0: [("E", 1), ("B", 4)], 1: [("B", 5), ("O", 1)], 2: [("B", 6), ("E", 2)], 3: [("B", 7)], 4: [("B", 8), ("B", 9), ("O", 2)]}
    pend = []
    fn = {"B": iB, "O": iO, "E": iE}
    def lstep(k):
        c = k // 3
        if k in ramp: todo = list(ramp[k])
        else:
            todo = []
            if k + 5 <= 23: todo.append(("B", k + 5))
            if k % 3 == 1 and c + 1 <= 7: todo.append(("O", c + 1))
            if k % 3 == 2 and c + 2 <= 7: todo.append(("E", c + 2))
        for kind, i in pend: fn[kind](i, 1)
        pend[:] = []
        if lag and lagfrom <= k < 19:
            if len(todo) >= 2 and todo[0][0] == todo[1][0]:
                fn[todo[0][0]](todo[0][1], None); todo = todo[1:]
            for kind, i in todo: fn[kind](i, 0)
            pend[:] = todo
        else:
            two = ilv and len(todo) == 2 and todo[0][0] != todo[1][0]
            for ph in ((0, 1) if two else (None,)):
                for kind, i in todo: fn[kind](i, ph)
        if pf2 and k == pfk:
            a(f"""
            s_getpc_b64 s[88:89]
            L_pfbase2:
            s_add_u32 s88, s88, L_compute-L_pfbase2
            s_addc_u32 s89, s89, 0
            s_bfe_u32 s61, s2, 0x30005
            s_lshl_b32 s63, s49, 5
            s_add_u32 s61, s61, s63
            s_lshl_b32 s61, s61, 7
            v_lshl_add_u32 v1, v0, 10, s61
            v_min_u32 v1, L_end-L_compute, v1
            s_mov_b64 exec, 15
            global_load_dword v16, v1, s[88:89]
            s_mov_b64 exec, -1
            """)
            vq.append("c")
        if otouch == k:
            a(f"""
            s_lshl_b32 s61, s49, 16
            v_lshl_add_u32 v1, v0, 12, s61
            s_mov_b64 exec, 0xffff
            buffer_load_dword v17, v1, s[16:19], 0 offen
            s_mov_b64 exec, -1
            """)
            vq.append("o")
        need = {Aname(k + 2), f"B{k+3}"}
        assert not need & {f"{kd}{i}" for kd, i in pend}
        return vwait(need)
    K0 = 5 if lag else 4
    NLI = 4 if lag else 5
    for k in range(-1, K0):
        lstep(k); a("s_barrier")
    a(f"""
    s_mov_b32 s60, {NLI}
    s_and_b32 s62, s44, 3
    s_min_u32 s62, s62, 2
    s_add_u32 s62, s62, 2
    s_cmp_lg_u32 s49, 0
    s_cselect_b32 s62, 0, s62
    L_lloop:
    """)
    ns = []
    for k in range(K0, K0 + 3):
        ns.append(lstep(k))
        if k == 6:
            a(f"""
            s_cmp_lg_u32 s60, s62
            s_cbranch_scc1 L_noat
            s_mov_b64 exec, 1
            global_atomic_add v{R+4}, v13, s[34:35]
            s_mov_b64 exec, -1
            L_noat:
            """)
        a("s_barrier")
    a("s_sub_u32 s60, s60, 1\ns_cmp_lg_u32 s60, 0\ns_cbranch_scc1 L_lloop")
    keep = len(a.lines)
    mins = list(ns)
    for k in range(K0 + 3, K0 + 3 * NLI):
        n = lstep(k); mins[(k - K0) % 3] = min(mins[(k - K0) % 3], n)
    del a.lines[keep:]
    li = a.lines.index("L_lloop:"); wi = 0
    for q in range(li, len(a.lines)):
        if "s_waitcnt vmcnt" in a.lines[q]:
            a.lines[q] = f"    s_waitcnt vmcnt({mins[wi]})"; wi += 1
    assert wi == 3
    for k in range(K0 + 3 * NLI, 19):
        lstep(k); a("s_barrier")
    lstep(19); a("s_barrier")
    a("L_ltail:")
    stamp(11)
    a(f"""
    ds_write_b64 v{R+7}, v[{R+10}:{R+11}] offset:{PART}
    ds_write_b32 v{R+8}, v{R+9} offset:{FLAGS}
    s_waitcnt lgkmcnt(0)
    """)
    vwait({"B23"}); a("s_barrier")
    a(f"""
    s_waitcnt vmcnt(0)
    s_barrier
    global_load_dword v{R+9}, v{R+4}, s[34:35] sc1
    s_mov_b32 s52, {f2u(KS)}
    v_lshlrev_b32 v{R+1}, 16, v{R+1}
    v_lshlrev_b32 v{R+2}, 16, v{R+2}
    v_mul_f32 v{R+1}, s52, v{R+1}
    v_mul_f32 v{R+2}, s52, v{R+2}
    s_mov_b32 s59, {SPIN}
    s_barrier
    """)
    stamp(2)
    if lprio: a(f"s_setprio {lprio}")
    def nextjob_regs():
        a(f"""
        v_add_u32 v8, s40, v6
        v_add_u32 v10, 128, v7
        v_xor_b32 v9, 160, v8
        v_add_u32 v11, 256, v11
        v_add_u32 v14, 8, v14
        v_add_u32 v12, 16, v12
        """)
    a("s_cmp_ge_u32 s49, 2\ns_cbranch_scc1 L_nopub")
    part_publish("L_part", R + 6, 0, G, R + 5, "s[90:91]", psleep)
    stamp(3)
    a(f"""
    L_nopub:
    L_cnt:
    s_waitcnt vmcnt(0)
    v_readfirstlane_b32 s52, v{R+9}
    s_cmp_ge_u32 s52, 32
    s_cbranch_scc1 L_cnt_ok
    s_sleep 32
    global_load_dword v{R+9}, v{R+4}, s[34:35] sc1
    s_sub_u32 s59, s59, 1
    s_cmp_gt_i32 s59, 0
    s_cbranch_scc1 L_cnt
    L_cnt_ok:
    s_cmp_lt_u32 s49, 2
    s_cbranch_scc1 L_gather
    """)
    if ded:
        a(f"""
        s_mov_b32 s42, 0
        """)
        nextjob_regs()
        a(f"""
        s_mov_b32 s59, {SPIN}
        L_img2:
        ds_read_b32 v15, v12 offset:{FLAGS+16}
        s_waitcnt lgkmcnt(0)
        v_cmp_eq_u32 vcc, 0, v15
        s_cbranch_vccz L_img2_ok
        s_sleep 1
        s_sub_u32 s59, s59, 1
        s_cmp_gt_i32 s59, 0
        s_cbranch_scc1 L_img2
        L_img2_ok:
        """)
        preread(4)
    else:
        a("s_branch L_imgwait")
    a("L_gather:")
    if stamps: a("s_mov_b32 s94, 0")
    a(f"s_mov_b32 s59, {SPIN}\nL_poll:")
    if stamps: a("s_add_u32 s94, s94, 1")
    for i in range(NG):
        a(f"s_or_b64 exec, s[{MK+2*i}:{MK+2*i+1}], 1")
        a(f"buffer_load_dwordx4 v[{G+4*i}:{G+4*i+3}], v{R+3}, s[20:23], {'s%d' % (80+i) if i else 0} offen sc1")
    a("s_mov_b64 exec, -1\ns_waitcnt vmcnt(0)")
    for i in range(NG):
        a(f"v_min_f32 v1, v{G+4*i+1}, v{G+4*i+3}")
        a(f"v_cmp_gt_f32 s[{MK+2*i}:{MK+2*i+1}], 0, v1")
    a(f"s_or_b64 s[52:53], s[{MK}:{MK+1}], s[{MK+2}:{MK+3}]")
    for i in range(2, NG):
        a(f"s_or_b64 s[52:53], s[52:53], s[{MK+2*i}:{MK+2*i+1}]")
    a(f"""
    s_cbranch_scc0 L_poll_done
    {"s_sleep %d" % rsleep if rsleep else ""}
    s_sub_u32 s59, s59, 1
    s_cmp_gt_i32 s59, 0
    s_cbranch_scc1 L_poll
    L_poll_done:
    """)
    if stamps: a(f"v_writelane_b32 v{VST2}, s94, 63")
    stamp(4)
    for step_ in (4, 2, 1):
        for i in range(step_):
            for h in range(4):
                x = G + 4 * i + h; y = G + 4 * (i + step_) + h
                a(f"v_add_f32 v{x}, v{x}, v{y}")
    x = G
    a(f"""
    s_mov_b32 s52, {f2u(1.0/LROWS)}
    s_nop 0
    v_permlane32_swap_b32 v{x}, v{x+2}
    v_permlane32_swap_b32 v{x+1}, v{x+3}
    s_nop 1
    v_add_f32 v{x}, v{x}, v{x+2}
    v_add_f32 v{x+1}, v{x+1}, v{x+3}
    v_mov_b32 v{x+2}, v{x}
    v_mov_b32 v{x+3}, v{x+1}
    s_nop 1
    v_permlane16_swap_b32 v{x}, v{x+2}
    v_permlane16_swap_b32 v{x+1}, v{x+3}
    s_nop 1
    v_add_f32 v{x}, v{x}, v{x+2}
    v_add_f32 v{x+1}, v{x+1}, v{x+3}
    v_mul_f32 v{G}, s52, v{G}             ; mean
    v_mul_f32 v{G+1}, s52, v{G+1}         ; E[h^2]
    v_fma_f32 v{G+1}, -v{G}, v{G}, v{G+1} ; var
    v_max_f32 v{G+1}, 0, v{G+1}
    v_add_f32 v{G+1}, {f2u(1e-5)}, v{G+1}
    v_rsq_f32 v{G+1}, v{G+1}
    s_lshl_b32 s52, s49, 2
    v_mul_f32 v{G+1}, v{G+1}, v{R+1}      ; KS*scale
    v_mov_b32 v1, s52
    v_fma_f32 v{G}, -v{G}, v{G+1}, v{R+2} ; KS*shift
    ds_write_b32 v{R}, v{G+1} offset:{CONST}
    ds_write_b32 v{R}, v{G} offset:{CONST+512}
    ds_write_b32 v1, v13 offset:{FLAGS}
    s_mov_b32 s59, {SPIN*16}
    """)
    if gprio is not None: a(f"s_setprio {gprio}")
    if ded: a("s_cmp_ge_u32 s49, 2\ns_cbranch_scc1 L_fw")
    a("s_branch L_imgwait")

    ACC = 128
    def acc(j, n): return ACC + (j * 4 + n) * 4
    BF = 64; AF = 32; NRING = 8
    aE, aE8, aO, bB = 16, 18, 20, 22
    VIMG, VPART, VPRD, VREC = 26, 27, 28, 29
    a("L_compute:")
    if mprio: a(f"s_setprio {mprio}")
    if codepf:
        a(f"""
        s_getpc_b64 s[52:53]
        L_pfbase:
        s_sub_u32 s52, s52, L_pfbase-L_compute
        s_subb_u32 s53, s53, 0
        s_lshl_b32 s50, s49, 5
        s_add_u32 s50, s50, s40
        s_lshl_b32 s50, s50, 7
        v_lshl_add_u32 v1, v0, 10, s50
        v_min_u32 v1, L_end-L_compute, v1
        s_mov_b64 exec, 15
        global_load_dword v30, v1, s[52:53]
        s_mov_b64 exec, -1
        """)
    a(f"""
    s_lshr_b32 s50, s49, 1                ; wm
    s_and_b32 s51, s49, 1                 ; wn
    v_and_b32 v32, 15, v0                 ; i
    v_lshrrev_b32 v33, 4, v0              ; g
    s_lshl_b32 s52, s50, 14
    v_bfe_u32 v34, v32, 1, 3
    v_xor_b32 v34, v34, v33
    v_lshlrev_b32 v34, 4, v34
    v_lshl_add_u32 v34, v32, 7, v34
    v_add_u32 v{aE}, s52, v34
    v_xor_b32 v{aE+1}, 64, v{aE}
    v_add_u32 v{aO}, {A_SLOT}, v{aE}
    v_add_u32 v{aO+1}, {A_SLOT}, v{aE+1}
    v_add_u32 v35, 1, v32
    s_mul_i32 s52, s50, 127
    s_add_u32 s52, s52, 128
    s_lshl_b32 s53, s50, 7
    v_add_u32 v35, s53, v35
    v_mov_b32 v36, s52
    v_cmp_eq_u32 vcc, 15, v32
    s_nop 1
    v_cndmask_b32 v35, v35, v36, vcc
    v_bfe_u32 v34, v35, 1, 3
    v_xor_b32 v34, v34, v33
    v_lshlrev_b32 v34, 4, v34
    v_lshl_add_u32 v{aE8}, v35, 7, v34
    v_xor_b32 v{aE8+1}, 64, v{aE8}
    v_bfe_u32 v34, v0, 2, 2
    v_lshl_add_u32 v35, v33, 3, v34
    v_bfe_u32 v34, v0, 2, 3
    v_lshlrev_b32 v34, 5, v34
    s_lshl_b32 s52, s51, 6
    v_xor_b32 v34, s52, v34
    v_and_b32 v36, 3, v0
    v_lshl_add_u32 v34, v36, 3, v34
    v_lshl_add_u32 v34, v35, 8, v34
    v_add_u32 v{bB}, {W_BASE}, v34
    v_xor_b32 v{bB+1}, 32, v{bB}
    v_xor_b32 v{bB+2}, 128, v{bB}
    v_xor_b32 v{bB+3}, 160, v{bB}
    s_mov_b64 s[64:65], -1
    s_mov_b64 s[66:67], -1
    s_cmp_eq_u32 s50, 0
    s_cbranch_scc1 L_nomask
    s_cmp_eq_u32 s47, 249
    s_cselect_b32 s65, 0xffff, -1
    s_cselect_b32 s67, -1, 0xffff
    L_nomask:
    v_bfe_u32 v34, v32, 2, 1
    v_mul_u32_u24 v34, 10, v34
    v_lshrrev_b32 v35, 3, v32
    v_or_b32 v34, v34, v35
    v_and_b32 v35, 1, v33
    v_xor_b32 v35, s51, v35
    v_lshl_add_u32 v34, v35, 2, v34
    v_lshlrev_b32 v34, 4, v34
    v_and_b32 v35, 3, v32
    v_lshl_add_u32 v34, v35, 2, v34
    v_lshl_add_u32 v34, v33, 13, v34
    s_lshl_b32 s52, s50, 15
    s_add_u32 s52, s52, {W_BASE}
    v_add_u32 v{VIMG}, s52, v34
    v_lshrrev_b32 v34, 5, v0
    v_lshl_add_u32 v34, v34, 4, v32
    s_lshl_b32 s52, s49, 8
    v_lshl_add_u32 v{VPART}, v34, 3, s52
    v_lshlrev_b32 v{VPRD}, 4, v0
    s_lshl_b32 s39, s48, 5
    s_add_u32 s39, s39, s44
    s_lshl_b32 s39, s39, 10
    s_add_u32 s39, s39, 512
    v_add_u32 v{VREC}, s39, v{VPRD}
    s_lshl_b32 s52, s49, 3
    s_lshl_b64 s[90:91], 0xff, s52
    s_lshl_b32 s52, s49, 2
    v_mov_b32 v15, s52
    s_waitcnt lgkmcnt(0)
    s_mov_b32 s20, s36
    s_mov_b32 s21, s37
    s_mov_b32 s22, 0x40000
    s_mov_b32 s23, 0x20000
    """)
    final_setup("c")
    if acc0 is None:
        for i in range(0, 128, 2): a(f"v_mov_b64 v[{ACC+i}:{ACC+i+1}], 0")
    else:
        for i in range(128): a(f"v_mov_b32 v{ACC+i}, {f2u(acc0)}")
    if stamps: a(f"v_writelane_b32 v{VST}, s92, 0")
    a(f"""
    s_mov_b32 s54, 0                      ; sE
    s_mov_b32 s55, {A_SLOT}               ; sO
    s_mov_b32 s56, 0
    s_mov_b32 s57, 4
    s_mov_b32 s63, 16384
    s_mov_b32 s61, 16
    """)
    if hop:
        if hopwait: a("s_waitcnt vmcnt(0)")
        a("""
        s_mov_b64 exec, 0
        s_cmp_eq_u32 s49, 0
        s_cbranch_scc1 L_hopg0
        s_cmp_eq_u32 s49, 1
        s_cbranch_scc1 L_hopg1
        s_cmp_eq_u32 s49, 2
        s_cbranch_scc1 L_hopg2
        s_branch L_hopg3
        L_hopret:
        s_mov_b64 exec, -1
        """)
    stamp(7)
    a("s_barrier")
    lq = []; ring = {}; rpos = [0]; occ = {}; dead = set()
    def afrags(t, j):
        if t < 2:
            return [("F", t, 0), ("F", t, 1)] if j == 0 else [("F", t, j + 1)]
        return [("G", 0, j), ("G", 1, j)]
    def atext(tag, d):
        kind, x, j = tag[:3]
        if kind == "F":
            if j < 8: return f"ds_read_b128 v[{d}:{d+3}], v{aE+x} offset:{j*2048}"
            return f"ds_read_b128 v[{d}:{d+3}], v{aE8+x}"
        return f"ds_read_b128 v[{d}:{d+3}], v{aO+x} offset:{j*2048}"
    def aread(tag):
        idx = rpos[0] % NRING; rpos[0] += 1
        if tag[0] == "F" and tag[2] == 8: rpos[0] += 1
        if idx in occ: assert occ[idx] in dead, (tag, idx, occ[idx])
        occ[idx] = tag; dead.discard(tag)
        ring[tag] = idx
        return ("lds", tag, atext(tag, AF + idx * 4))
    def bfrag(tag, d, n, pq, extra=0):
        return [("lds", tag, f"ds_read_b64_tr_b16 v[{d+2*h}:{d+2*h+1}], v{bB+n} offset:{extra + pq*8192 + h*1024}") for h in range(2)]
    def breg(buf, pq, n): return BF + buf * 32 + (pq * 4 + n) * 4
    def breads(buf):
        r = []
        for n in range(4):
            for pq in range(2): r += bfrag(("B", buf), breg(buf, pq, n), n, pq)
        return r
    def emit(op):
        if isinstance(op, tuple):
            lq.append(op[1]); a(op[2])
        else: a(op)
    def lwait(tags):
        last = max([i for i, t in enumerate(lq) if t in tags], default=-1)
        if last < 0: return
        n = min(15, len(lq) - 1 - last)
        a(f"s_waitcnt lgkmcnt({n})")
        del lq[:len(lq) - n]
    def badv():
        return ["s_add_u32 s56, s56, 16384", "s_cmp_eq_u32 s56, 0x10000", "s_cselect_b32 s58, 0xffff4000, s63", "s_and_b32 s56, s56, 0xffff"] + \
               [f"v_add_u32 v{bB+n}, s58, v{bB+n}" for n in range(4)]
    def mfma(d, ar, br): a(f"v_mfma_f32_16x16x32_bf16 v[{d}:{d+3}], v[{ar}:{ar+3}], v[{br}:{br+3}], v[{d}:{d+3}]")
    def bar():
        a("s_barrier")
        if itstamps:
            a(f"s_mov_b32 m0, s61\ns_add_u32 s61, s61, 1\nv_writelane_b32 v{VST}, s96, m0\nv_writelane_b32 v{VST2}, s98, m0")
            a("s_memrealtime s[96:97]\ns_memtime s[98:99]")
    if onebar: stamp(1)
    for op in breads(0): emit(op)
    for op in badv(): a(op)
    if not onebar:
        a("s_waitcnt lgkmcnt(0)")
        a("s_barrier")
        stamp(1)
    lq[:] = []
    if itstamps: a("s_memrealtime s[96:97]\ns_memtime s[98:99]")
    for j in range(LA):
        for tg in afrags(0, j): emit(aread(tg))
    for _ in range(shift): a("s_nop 0")
    init_state = (list(lq), dict(ring), rpos[0] % NRING)
    def run_gaps(mf, q, barrier_after=None, first_free=0, reserve_last=True):
        ng = len(mf)
        def isvalu(op): return isinstance(op, str) and op.startswith("v_")
        gaps = [g for g in range(first_free, ng) if not (reserve_last and g == ng - 1 and len(q) < ng - first_free)]
        if barrier_after is not None: gaps = [g for g in gaps if g > barrier_after]
        plan = {g: [] for g in range(ng)}
        cap = max(1, -(-len(q) // max(1, len(gaps))))
        while True:
            for g in plan: plan[g] = []
            gi = 0; ok = True
            for op in q:
                while gi < len(gaps) and (len(plan[gaps[gi]]) >= cap or (isvalu(op) and not valu_in and gaps[gi] % 2 == 0)): gi += 1
                if gi >= len(gaps): ok = False; break
                plan[gaps[gi]].append(op)
            if ok: break
            if reserve_last and ng - 1 not in gaps: gaps.append(ng - 1)
            else: cap += 1
        for g, m in enumerate(mf):
            mfma(*m)
            if g == barrier_after: bar()
            for op in plan[g]:
                if isinstance(op, tuple) and op[0] == "A": op = aread(op[1])
                emit(op)
    def step(k):
        t = k % 3; buf = k & 1
        tn = (t + 1) % 3
        bq = breads(buf ^ 1)
        JB = 8 - LA
        nb_per = 4
        bv = badv()
        for j in range(8):
            X, Y = (("F", t, j), ("F", t, j + 1)) if t < 2 else (("G", 0, j), ("G", 1, j))
            need = {X, Y}
            if j == 0: need.add(("B", buf))
            q = []
            if j == JB: lwait(set(lq))
            else: lwait(need)
            if j + LA < 8: q += [("A", tg) for tg in afrags(t, j + LA)]
            else: q += [("A", tg) for tg in afrags(tn, j + LA - 8)]
            for _ in range(nb_per):
                if bq: q.append(bq.pop(0))
            def mix(q, v):
                out = []
                while q or v:
                    if q: out.append(q.pop(0))
                    if v: out.append(v.pop(0))
                return out
            if j == 4: q += bv[:4]
            if j == 5: q = mix(q, bv[4:])
            if t == 1 and j == 6: q += [f"s_add_u32 s59, s54, s55", f"s_sub_u32 s59, {3*A_SLOT}, s59", "s_sub_u32 s60, s59, s54"]
            if t == 1 and j == 7: q = mix(q, [f"v_add_u32 v{r}, s60, v{r}" for r in (aE, aE + 1, aE8, aE8 + 1)])
            if t == 2 and j == 6: q += ["s_sub_u32 s60, s54, s55", "s_mov_b32 s55, s54", "s_mov_b32 s54, s59"]
            if t == 2 and j == 7:
                q = mix(q, [f"v_add_u32 v{r}, s60, v{r}" for r in (aO, aO + 1)])
                if k == 2: q += ["s_sub_u32 s57, s57, 1", "s_cmp_eq_u32 s57, 0"]
            xr = AF + ring[X] * 4; yr = AF + ring[Y] * 4
            mf = []
            for n in range(4):
                pr = [(xr, breg(buf, 0, n)), (yr, breg(buf, 1, n))]
                if n % 2 == 1: pr = pr[::-1]
                mf += [(acc(j, n), ar, br) for ar, br in pr]
            run_gaps(mf, q, barrier_after=1 if j == JB else None)
            dead.add(X)
            if t == 2 or j == 7: dead.add(Y)
        assert not bq
    a("L_cloop:")
    for k in range(6):
        a(f"; ---- step {k}")
        step(k)
        if k == 2:
            saved = (list(lq), dict(ring))
            a("s_cbranch_scc1 L_clast")
    end_state = (list(lq), {k_: v for k_, v in ring.items() if k_ in init_state[1]}, rpos[0] % NRING)
    assert end_state == init_state, (end_state, init_state)
    a("s_branch L_cloop")
    a("L_clast:")
    if cprio: a(f"s_setprio {cprio}")
    stamp(11)
    lq[:] = [t + (0,) for t in saved[0]]
    loc = {t + (0,): AF + saved[1][t] * 4 for t in saved[0]}
    free = [AF + 4 * i for i in range(NRING) if AF + 4 * i not in loc.values()]
    bloc = {}
    for n in range(4):
        for pq in range(2):
            bloc[(0, pq, n)] = breg(1, pq, n); bloc[(1, pq, n)] = breg(0, pq, n)
            bloc[(2, pq, n)] = breg(1, pq, n) if n < 2 else breg(0, pq, n - 2)
    T0 = breg(1, 0, 0)
    def stats(h):
        for n in (2 * h, 2 * h + 1):
            a(f"v_cndmask_b32 v{acc(1,n)+3}, 0, v{acc(1,n)+3}, s[64:65]")
            a(f"v_cndmask_b32 v{acc(2,n)+3}, 0, v{acc(2,n)+3}, s[66:67]")
        for j in range(8):
            for hh in range(2):
                for n in (2 * h, 2 * h + 1):
                    x = acc(j, n) + 2 * hh; S = T0 + 4 * (n & 1); Q = S + 2
                    if j == 0 and hh == 0:
                        a(f"v_pk_mul_f32 v[{Q}:{Q+1}], v[{x}:{x+1}], v[{x}:{x+1}]")
                    else:
                        a(f"v_pk_fma_f32 v[{Q}:{Q+1}], v[{x}:{x+1}], v[{x}:{x+1}], v[{Q}:{Q+1}]")
                        src = f"v[{x-2}:{x-1}]" if j == 0 else f"v[{S}:{S+1}]"
                        a(f"v_pk_add_f32 v[{S}:{S+1}], {src}, v[{x}:{x+1}]")
        a(f"""
        v_add_f32 v{T0}, v{T0}, v{T0+1}
        v_add_f32 v{T0+4}, v{T0+4}, v{T0+5}
        v_add_f32 v{T0+1}, v{T0+2}, v{T0+3}
        v_add_f32 v{T0+5}, v{T0+6}, v{T0+7}
        s_nop 0
        v_permlane32_swap_b32 v{T0}, v{T0+4}
        v_permlane32_swap_b32 v{T0+1}, v{T0+5}
        s_nop 0
        v_add_f32 v{T0}, v{T0}, v{T0+4}
        v_add_f32 v{T0+1}, v{T0+1}, v{T0+5}
        v_mov_b32 v{T0+4}, v{T0}
        v_mov_b32 v{T0+5}, v{T0+1}
        s_nop 1
        v_permlane16_swap_b32 v{T0}, v{T0+4}
        v_permlane16_swap_b32 v{T0+1}, v{T0+5}
        s_nop 0
        v_add_f32 v{T0}, v{T0}, v{T0+4}
        v_add_f32 v{T0+1}, v{T0+1}, v{T0+5}
        """)
        emit(("lds", "P", f"ds_write_b64 v{VPART}, v[{T0}:{T0+1}] offset:{PART + 1024*h}"))
    def image_ops(h):
        ops = []
        for n in (2 * h, 2 * h + 1):
            for f in range(2):
                ops.append(f"v_xor_b32 v{4+f}, {((n&1)<<5) ^ (f<<7)}, v{VIMG}")
                for j in range(8):
                    if (j >> 1) & 1 != f: continue
                    for r in (0, 2):
                        x = acc(j, n) + r
                        ops.append(("lds", "I", f"ds_write2st64_b32 v{4+f}, v{x}, v{x+1} offset0:{8*r+j} offset1:{8*(r+1)+j}"))
        ops.append(("lds", "F", f"ds_write_b32 v15, v13 offset:{FLAGS + 16 + 16*h}"))
        return ops
    seq = [(0, t, j) for t in range(3) for j in range(8)]
    if jouter: seq += [(1, t, j) for j in range(8) for t in range(3)]
    else: seq += [(1, t, j) for t in range(3) for j in range(8)]
    aorder = []
    for s, (h, t, j) in enumerate(seq):
        for tg in afrags(t, j):
            if tg + (h,) not in loc: aorder.append((s, tg + (h,)))
    s_a0, s_a1, s_a2 = 7, 16 - LB, 16 + 5
    bq = []; iq = []; sq = []
    def plain_stats(j):
        ops = []
        for n in (2, 3):
            if j in (1, 2): ops.append(f"v_cndmask_b32 v{acc(j,n)+3}, 0, v{acc(j,n)+3}, s[{62+2*j}:{63+2*j}]")
        for r in range(4):
            for n in (2, 3):
                x = acc(j, n) + r; S = T0 + 4 * (n & 1) + 2; Q = S + 1
                if j == 0 and r == 0: ops.append(f"v_mul_f32 v{Q}, v{x}, v{x}")
                else:
                    ops.append(f"v_fmac_f32 v{Q}, v{x}, v{x}")
                    ops.append(f"v_add_f32 v{S}, v{x-1 if (j == 0 and r == 1) else S}, v{x}")
        return ops
    def pairs_of(h, t, j):
        X, Y = (("F", t, j, h), ("F", t, j + 1, h)) if t < 2 else (("G", 0, j, h), ("G", 1, j, h))
        return X, Y
    for s, (h, t, j) in enumerate(seq):
        if h == 0 and j == 0:
            a(f"; ---- last chunk pass A step {t}")
            bq = []
            if t == 1: late = carry
            ns_ = range(4) if t == 0 else (range(2) if t == 1 else range(2, 4))
            for n in ns_:
                for pq in range(2):
                    tb = 1 if t == 0 else 2
                    bq += bfrag(("LB", tb, n >> 1), bloc[(tb, pq, n)], n, pq, extra=(tb - 1) * 16384)
            if t == 1: bq += late
        if s == 24:
            a("; ---- last chunk pass B")
            a("s_nop 4")
            stats(0)
            stamp(5)
            iq = image_ops(0)
            free += [breg(1, 1, 0), breg(1, 1, 1)]
        X, Y = pairs_of(h, t, j)
        need = {X, Y} | ({("LB", t, h)} if j == 0 else set())
        if s == s_a2: need |= {("LB", 2, 1)}
        lwait(need)
        q = []
        while aorder and aorder[0][0] <= s + LB and free and len(q) < 2 and not (aorder[0][1][0] == "G" and s < s_a1):
            _, tg = aorder.pop(0)
            d = free.pop(0); loc[tg] = d
            q.append(("lds", tg, atext(tg, d)))
        for _ in range(2):
            if bq and (len(q) < 3 or t == 2): q.append(bq.pop(0))
        while iq and len(q) < 2 + iper: q.append(iq.pop(0))
        mf = []
        for n in (2 * h, 2 * h + 1):
            pr = [(loc[X], bloc[(t, 0, n)]), (loc[Y], bloc[(t, 1, n)])]
            if n % 2 == 1: pr = pr[::-1]
            mf += [(acc(j, n), ar, br) for ar, br in pr]
        run_gaps(mf, q, barrier_after=1 if s in (s_a0, s_a1, s_a2) else None, first_free=1 if j == 0 else 0)
        free.append(loc[X])
        if t == 2 or j == 7: free.append(loc[Y])
        if h == 0 and t == 0 and j == 7: carry = list(bq)
        if h == 0 and t > 0 and (j == 7 or s == s_a2 - 1): assert not bq, (s, bq)
    assert not aorder and not iq
    stamp(2)
    if probes:
        for pi in range(10):
            a(f"v_writelane_b32 v{VST}, s{68+2*pi}, {40+pi}")
            a(f"s_mov_b32 s100, L_probe{pi}-{NAME}_kernel\nv_writelane_b32 v{VST2}, s100, {40+pi}")
        a(f"s_getpc_b64 s[100:101]\nL_pq:\ns_sub_u32 s100, s100, L_pq-{NAME}_kernel\nv_writelane_b32 v{VST2}, s100, 50")
    a(f"s_nop 7\ns_mov_b32 s59, {SPIN}")
    if jouter:
        for op in plain_stats(7): a(op)
        a(f"""
        s_nop 0
        v_permlane32_swap_b32 v{T0+3}, v{T0+7}
        v_permlane32_swap_b32 v{T0+2}, v{T0+6}
        s_nop 0
        v_add_f32 v{T0+3}, v{T0+3}, v{T0+7}
        v_add_f32 v{T0+2}, v{T0+2}, v{T0+6}
        v_mov_b32 v{T0+7}, v{T0+3}
        v_mov_b32 v{T0+6}, v{T0+2}
        s_nop 1
        v_permlane16_swap_b32 v{T0+3}, v{T0+7}
        v_permlane16_swap_b32 v{T0+2}, v{T0+6}
        s_nop 0
        v_add_f32 v{T0+3}, v{T0+3}, v{T0+7}
        v_add_f32 v{T0+2}, v{T0+2}, v{T0+6}
        ds_write_b64 v{VPART}, v[{T0+2}:{T0+3}] offset:{PART + 1024}
        """)
    else:
        stats(1)
    stamp(13)
    part_publish("L_cpart", VPRD, 1, 32, VREC, "s[90:91]", 0)
    if not hk: a("s_setprio 0")
    stamp(3)
    a(f"v_add_u32 v{VIMG}, s40, v{VIMG}")
    for op in image_ops(1): emit(op)
    SC, SH, T, O, Y = 16, 24, 32, 40, 48
    a(f"""
    L_imgwait:
    s_mov_b32 s59, {SPIN*16}
    L_img:
    ds_read_b32 v15, v12 offset:{FLAGS+16}
    s_waitcnt lgkmcnt(0)
    v_cmp_eq_u32 vcc, 0, v15
    s_cbranch_vccz L_job
    s_sleep {isleep}
    s_sub_u32 s59, s59, 1
    s_cmp_gt_i32 s59, 0
    s_cbranch_scc1 L_img
    L_job:
    """)
    preread(4)
    if hk == 2: a("s_cmp_ge_u32 s3, 4\ns_cbranch_scc1 L_fw\ns_setprio 0")
    a(f"""
    L_fw:
    ds_read_b32 v15, v14 offset:{FLAGS}
    ds_read_b128 v[{SC}:{SC+3}], v11 offset:{CONST}
    ds_read_b128 v[{SC+4}:{SC+7}], v11 offset:{CONST+16}
    ds_read_b128 v[{SH}:{SH+3}], v11 offset:{CONST+512}
    ds_read_b128 v[{SH+4}:{SH+7}], v11 offset:{CONST+528}
    s_waitcnt lgkmcnt(0)
    v_cmp_eq_u32 vcc, 0, v15
    s_cbranch_vccz L_fw_ok
    {"s_sleep %d" % fsleep if fsleep else ""}
    s_sub_u32 s59, s59, 1
    s_cmp_gt_i32 s59, 0
    s_cbranch_scc1 L_fw
    L_fw_ok:
    """)
    if stamps or amp == 14:
        a("s_cmp_eq_u32 s42, 0\ns_cbranch_scc1 L_st8")
        stamp(14)
        a("L_st8:")
    stamp(8)
    def lowprio(lb):
        if hk == 1: a(f"s_setprio 1\ns_cmp_ge_u32 s3, 4\ns_cbranch_scc1 {lb}\ns_setprio 0\n{lb}:")
    lowprio("L_lp1")
    def p(x): return f"v[{x}:{x+1}]"
    for i in (3, 2, 1, 0):
        if i == 1: a("L_g2:")
        h = HH + 8 * i; o = O + 4 * (i & 1)
        for j in range(0, 8, 2): a(f"v_pk_fma_f32 {p(h+j)}, {p(h+j)}, {p(SC+j)}, {p(SH+j)}")
        for j in range(0, 8, 2): a(f"v_pk_fma_f32 {p(T+j)}, {p(h+j)}, {p(h+j)}, s[24:25]")
        for j in range(0, 8, 2): a(f"v_pk_mul_f32 {p(T+j)}, {p(T+j)}, {p(h+j)} neg_lo:[1,0] neg_hi:[1,0]")
        for j in range(8): a(f"v_exp_f32 v{T+j}, v{T+j}")
        for j in range(0, 8, 2): a(f"v_pk_fma_f32 {p(T+j)}, {p(T+j)}, s[26:27], s[26:27]")
        for j in range(8): a(f"v_rcp_f32 v{T+j}, v{T+j}")
        for j in range(0, 8, 2): a(f"v_pk_mul_f32 {p(T+j)}, {p(T+j)}, {p(h+j)}")
        for j in range(0, 8, 2): a(f"v_cvt_pk_bf16_f32 v{o+j//2}, v{T+j}, v{T+j+1}")
        if sthr is not None: a(f"s_waitcnt vmcnt({sthr})")
        if not nostore: a(f"buffer_store_dwordx4 v[{o}:{o+3}], v{10 if i == 0 else VO+i}, s[16:19], 0 offen{omod}")
    a("s_cmp_eq_u32 s42, 0\ns_cbranch_scc1 L_fin")
    if hk == 1: a("s_setprio 2")
    if hk == 2: a("s_cmp_ge_u32 s3, 4\ns_cbranch_scc1 L_hk2\ns_setprio 3\nL_hk2:")
    stamp(12)
    a("s_sub_u32 s42, s42, 1\ns_cmp_eq_u32 s42, 0\ns_cbranch_scc1 L_toB")
    a(f"""
    v_add_u32 v8, s0, v6
    v_add_u32 v10, s1, v7
    v_xor_b32 v9, 160, v8
    """)
    preread(2)
    a("s_waitcnt lgkmcnt(0)")
    lowprio("L_lp2")
    a("s_branch L_g2\nL_toB:")
    nextjob_regs()
    if not ded: a("s_cmp_ge_u32 s3, 6\ns_cbranch_scc1 L_gather")
    a("s_branch L_imgwait\nL_fin:")
    if hold in (9, 10) and not stamps: stamp(hold)
    if amp is not None:
        if amp == 9: stamp(9)
        a("s_waitcnt vmcnt(0)")
        if amp == 10: stamp(10)
        a("s_waitcnt lgkmcnt(0)")
        if ampw == "c": a("s_cmp_ge_u32 s3, 4\ns_cselect_b32 s94, s92, s94")
        if ampw == "l": a("s_cmp_lt_u32 s3, 4\ns_cselect_b32 s94, s92, s94")
        a(f"""
        L_amp0:
        s_sleep 8
        s_memrealtime s[96:97]
        s_waitcnt lgkmcnt(0)
        s_sub_u32 s96, s96, s92
        s_cmp_lt_u32 s96, 4000
        s_cbranch_scc1 L_amp0
        s_not_b32 s95, s92
        v_mov_b32 v4, s94
        v_mov_b32 v5, s95
        v_mov_b32 v1, 8
        s_mov_b64 exec, 1
        global_atomic_umax v1, v4, s[34:35]
        global_atomic_umax v1, v5, s[34:35] offset:4
        s_waitcnt vmcnt(0)
        L_amp1:
        s_sleep 8
        s_memrealtime s[96:97]
        s_waitcnt lgkmcnt(0)
        s_sub_u32 s96, s96, s92
        s_cmp_lt_u32 s96, 16000
        s_cbranch_scc1 L_amp1
        global_load_dwordx2 v[4:5], v1, s[34:35] sc1
        s_waitcnt vmcnt(0)
        v_readfirstlane_b32 s94, v4
        v_readfirstlane_b32 s95, v5
        s_not_b32 s95, s95
        s_sub_u32 s94, s94, s95
        s_mul_i32 s94, s94, 10
        s_add_u32 s94, s94, 18900
        s_min_u32 s94, s94, 100000
        L_amp2:
        s_sleep 2
        s_memrealtime s[96:97]
        s_waitcnt lgkmcnt(0)
        s_sub_u32 s96, s96, s95
        s_cmp_lt_u32 s96, s94
        s_cbranch_scc1 L_amp2
        """)
    if stamps:
        stamp(9)
        a("s_waitcnt vmcnt(0)")
        stamp(10)
        a(f"""
        s_lshl_b32 s52, s2, 12
        s_lshl_b32 s53, s3, 9
        s_add_u32 s52, s52, s53
        s_add_u32 s52, s52, {STAMP_OFF}
        v_lshlrev_b32 v1, 3, v0
        v_add_u32 v1, s52, v1
        global_store_dwordx2 v1, v[{VST}:{VST2}], s[36:37]
        s_waitcnt vmcnt(0)
        """)
    a("L_end:\ns_endpgm")
    if relayout:
        L = a.lines
        ix = {t: L.index(t) for t in ("L_ltail:", "L_compute:", "L_cloop:", "L_imgwait:", "L_end:")}
        a.lines = (L[:ix["L_ltail:"]] + ["    s_branch L_ltail", ".p2align 12", "L_page:"] +
                   L[ix["L_compute:"]:ix["L_cloop:"]] + ["    s_branch L_cloop"] +
                   L[ix["L_ltail:"]:ix["L_compute:"]] + L[ix["L_imgwait:"]:ix["L_end:"]] + ["    s_endpgm", ".p2align 6"] +
                   L[ix["L_cloop:"]:ix["L_imgwait:"]] + ["    s_branch L_imgwait"] + L[ix["L_end:"]:])
        if hop: a.lines = add_hops(a.lines, [("L_ltail:", "L_end:")], hop, page="L_page:")
    elif hop: a.lines = add_hops(a.lines, [("L_lloop:", "L_compute:"), ("L_cloop:", "L_end:")], hop)
    if align8: a.lines = pad8(a.lines, "L_cloop:", "L_cpart:")
    hazcheck(a.lines)
    return wrap(a.text(), 256, 512, 163840, 256)

if __name__ == "__main__":
    out = sys.argv[1]
    kw = json.loads(sys.argv[2]) if len(sys.argv) > 2 else {}
    open(out, "w").write(gen(**kw))
```

```python
import sys, json, struct
from asmlib import *

def f2u(f): return struct.unpack("<I", struct.pack("<f", f))[0]

LROWS = 7999
C1 = -2.0 * 0.7978845608028654 * 1.4426950408889634
C2 = C1 * 0.044715
KS = (-C2) ** (1.0 / 3.0)
CP = -C1 / KS
SENT = 0xBF800000
A_SLOT = 32768
W_BASE = 98304
MISC = 32768
PART = MISC
CONST = MISC + 2048
FLAGS = MISC + 3072
STAMP_OFF = 1 << 20
SPIN = 0x40000

DOC = """    ; Fused strided conv (as a GEMM, K = 3 taps x 512) + per-(batch,channel) norm over time + tanh-GELU.
    ; Exchange: every workgroup resets its {sum, sumsq} record in d_ws to a sentinel, counts that in d_debug,
"""

def gen(stamps=False, xmod="", wmod="", omod=" sc1", codepf=True, itstamps=False, hold=None, holdus=40,
        parity=True, psleep=1, fsleep=1, rsleep=0, lprio=2, cprio=3, LA=2, LB=3, only=None, wpar=True, jouter=False, ded=False, onebar=False, align8=False, shift=0, pf2=False, isleep=2, probes=False, ilv=True, hop=0, acc0=None, relayout=True, hopwait=False, nostore=False, gprio=None, hk=False, sthr=None, alt=1, snake=False, amp=None, ampw=None, swap=False, mprio=0, valu_in=False, iper=1, lag=True, lagfrom=3, rampv=0, pfk=19, otouch=None, bmap=0):
    a = Asm()
    VST, VST2 = 2, 3
    def stamp(k):
        if hold == k:
            lb = a.label("L_hold")
            a(f"""s_waitcnt lgkmcnt(0)
            {lb}:
            s_memrealtime s[96:97]
            s_waitcnt lgkmcnt(0)
            s_sub_u32 s96, s96, s92
            s_cmp_lt_u32 s96, {holdus*100}
            s_cbranch_scc1 {lb}""")
        if amp == k: a("s_memrealtime s[94:95]")
        if not stamps or (only is not None and k not in only): return
        a(f"s_memrealtime s[100:101]\ns_waitcnt lgkmcnt(0)\nv_writelane_b32 v{VST}, s100, {k}")
        if k in (1, 2, 8, 9): a(f"s_memtime s[100:101]\ns_waitcnt lgkmcnt(0)\nv_writelane_b32 v{VST2}, s100, {k}")
    def final_setup(role):
        a(f"""
        s_mul_i32 s38, s43, {LROWS}
        s_add_u32 s38, s38, s45
        s_lshl_b32 s38, s38, 10
        s_add_u32 s16, s32, s38
        s_addc_u32 s17, s33, 0
        s_lshl_b32 s18, s47, 10
        s_mov_b32 s19, 0x20000
        v_and_b32 v1, 7, v0                   ; o
        v_lshrrev_b32 v8, 3, v0
        s_and_b32 s38, s49, 1
        s_lshl_b32 s40, s38, 5
        s_add_u32 s40, s40, {64 if role == "c" else 0}
        v_add_u32 v8, s40, v8
        s_lshl_b32 s38, s38, 2
        v_xor_b32 v9, s38, v1                 ; o ^ 4*((row>>5)&1)
        v_bfe_u32 v10, v0, 4, 1               ; f
        v_lshl_add_u32 v9, v10, 3, v9
        v_lshlrev_b32 v9, 4, v9
        v_lshl_add_u32 v9, v8, 8, v9
        s_lshr_b32 s38, s49, 1
        s_lshl_b32 s40, s38, 15
        s_add_u32 s42, s40, {W_BASE}
        v_add_u32 v6, s42, v9
        s_sub_u32 s40, s40, {W_BASE}
        s_lshl_b32 s42, s38, 7
        v_add_u32 v8, s42, v8
        v_lshlrev_b32 v8, 10, v8
        v_lshl_add_u32 v7, v1, 4, v8
        s_lshl_b32 s42, s41, 8
        v_add_u32 v7, s42, v7
        v_lshlrev_b32 v11, 5, v1
        v_and_b32 v14, 1, v0
        v_lshlrev_b32 v14, 2, v14             ; constflag[lane&1]
        v_and_b32 v12, 3, v0
        v_lshlrev_b32 v12, 2, v12             ; imgflag[lane&3]
        v_mov_b32 v13, 1
        v_mov_b32 v8, v6
        v_xor_b32 v9, 160, v6
        v_mov_b32 v10, v7
        s_mov_b32 s24, {f2u(CP)}
        s_mov_b32 s25, {f2u(CP)}
        s_mov_b32 s26, {f2u(KS)}
        s_mov_b32 s27, {f2u(KS)}
        """)
        if not ded: a("s_mov_b32 s42, 1")
        elif role == "l": a("s_mov_b32 s42, 2\ns_mov_b32 s0, 32768\ns_mov_b32 s1, 131072")
        else: a(f"s_add_u32 s42, s38, 1\ns_mov_b32 s0, {(-48*256) & 0xffffffff}\ns_mov_b32 s1, {(-48*1024) & 0xffffffff}")
    HH, VO = 160, 60
    def preread(n):
        for i in range(n - 1, -1, -1):
            a(f"ds_read_b128 v[{HH+8*i}:{HH+8*i+3}], v8 offset:{2048*i}\nds_read_b128 v[{HH+8*i+4}:{HH+8*i+7}], v9 offset:{2048*i}")
        for i in range(1, n): a(f"v_add_u32 v{VO+i}, {8192*i}, v10")
    def part_publish(lbl, vaddr, half, x, vrec, maskreg, sleep):
        a(f"""
        {lbl}:
        ds_read_b128 v[{x}:{x+3}], v{vaddr} offset:{PART + 1024*half}
        s_waitcnt lgkmcnt(0)
        v_min_f32 v1, v{x+1}, v{x+3}
        v_cmp_gt_f32 vcc, 0, v1
        s_cbranch_vccz {lbl}_ok
        {"s_sleep %d" % sleep if sleep else ""}
        s_sub_u32 s59, s59, 1
        s_cmp_gt_i32 s59, 0
        s_cbranch_scc1 {lbl}
        {lbl}_ok:
        """)
        for i in range(4): a(f"v_mov_b32 v{x+4+i}, v{x+i}")
        for i in range(4): a(f"v_permlane32_swap_b32 v{x+i}, v{x+4+i}")
        for i in range(4): a(f"v_add_f32 v{x+i}, v{x+i}, v{x+4+i}")
        a(f"""
        s_mov_b64 exec, {maskreg}
        buffer_store_dwordx4 v[{x}:{x+3}], v{vrec}, s[20:23], 0 offen sc1
        s_mov_b64 exec, -1
        """)
    a(f"""
    s_cmp_ge_u32 s2, 256
    s_cbranch_scc1 L_end
    s_load_dwordx4 s[4:7], s[0:1], 0      ; x, w
    s_load_dwordx4 s[28:31], s[0:1], 16
    s_load_dwordx4 s[32:35], s[0:1], 32
    s_load_dwordx2 s[36:37], s[0:1], 48   ; ws
    """)
    if stamps or hold is not None or amp is not None: a("s_memrealtime s[92:93]")
    if amp is not None: a("s_memrealtime s[94:95]")
    a(f"""
    v_lshrrev_b32 v1, 6, v0
    v_and_b32 v0, 63, v0
    v_readfirstlane_b32 s3, v1
    s_and_b32 s38, s2, 7
    {"s_lshr_b32 s40, s38, 1" if bmap else ""}
    {"s_and_b32 s38, s38, 1" if bmap else ""}
    {"s_lshl_b32 s38, s38, 2" if bmap else ""}
    {"s_add_u32 s38, s38, s40" if bmap else ""}
    s_bfe_u32 s40, s2, 0x30005
    s_bfe_u32 s41, s2, 0x20003
    s_lshl_b32 s42, s38, 3
    s_add_u32 s42, s42, s40               ; mt 0..63
    s_lshr_b32 s43, s42, 5                ; batch
    s_and_b32 s44, s42, 31
    s_mul_i32 s45, s44, 250
    s_mul_i32 s46, s43, 8000
    s_add_u32 s46, s46, s45
    s_cmp_eq_u32 s44, 31
    s_cselect_b32 s47, 1, 0
    s_sub_u32 s47, 250, s47               ; nvalid
    s_lshl_b32 s48, s43, 2
    s_add_u32 s48, s48, s41
    s_and_b32 s49, s3, 3
    {"s_xor_b32 s3, s3, 4" if swap else ""}
    s_cmp_lt_u32 s3, 4
    s_cbranch_scc1 L_compute
    """)
    VA, VW = 56, 60
    a(f"""
    v_lshrrev_b32 v4, 4, v0               ; l>>4
    v_and_b32 v5, 15, v0
    v_lshlrev_b32 v6, 1, v4
    v_xor_b32 v5, v5, v6                  ; W chunk (n<2)
    s_and_b32 s50, s49, 1
    s_lshl_b32 s51, s50, 14
    s_lshl_b32 s52, s41, 8
    s_add_u32 s51, s51, s52
    v_lshlrev_b32 v5, 4, v5
    v_lshl_add_u32 v5, v4, 10, v5
    s_and_b32 s53, s40, {1 if wpar else 0}
    s_mul_i32 s52, s53, {8192 + 128}
    v_add_u32 v5, s51, v5
    v_xor_b32 v{VW}, s52, v5
    v_xor_b32 v{VW+2}, {8192 + 128}, v{VW}
    v_add_u32 v{VW+1}, 3072, v{VW}
    v_add_u32 v{VW+3}, 3072, v{VW+2}
    s_lshl_b32 s51, s49, 12
    s_lshl_b32 s53, s53, 11
    s_add_u32 s51, s51, s53
    s_add_u32 s51, s51, {W_BASE}
    s_lshr_b32 s62, s49, 1                ; lw>=2
    s_lshl_b32 s54, s62, 20               ; sB0
    s_mov_b32 s14, 1572864
    s_mov_b32 s15, 0x20000
    s_mov_b32 m0, s51
    s_waitcnt lgkmcnt(0)
    s_mov_b32 s12, s6
    s_mov_b32 s13, s7
    """)
    if stamps: a(f"v_writelane_b32 v{VST}, s92, 0")
    vq = []
    def issueA(slot_s, soff, tag, halves=(0, 1)):
        for half in halves:
            if half == halves[0]: a(f"s_add_u32 m0, s50, {slot_s}")
            if half == 1: a(f"s_xor_b32 m0, m0, 4096")
            a("s_nop 0")
            for n in range(4):
                vq.append(tag)
                a(f"buffer_load_dwordx4 v{VA+half*2+(n&1)}, s[8:11], {soff} offen offset:{n*1024}{xmod} lds")
    def issueW(slot_s, soff, tag, setm0=True, halves=(0, 1)):
        for half in halves:
            if half == halves[0] and setm0: a(f"s_add_u32 m0, s51, {slot_s}")
            if half == 1: a("s_xor_b32 m0, m0, 2048")
            if setm0 or half == 1: a("s_nop 0")
            for n in range(2):
                vq.append(tag)
                a(f"buffer_load_dwordx4 v{VW+2*half+n}, s[12:15], {soff} offen offset:{n*1024}{wmod} lds")
    def vwait(tags):
        last = max([i for i, t in enumerate(vq) if t in tags], default=-1)
        n = len(vq) - 1 - last
        a(f"s_waitcnt vmcnt({n})")
        return n
    def Aname(k): return f"E{k//3}" if k % 3 < 2 else f"O{k//3}"
    issueW(0, "s54", "B0", setm0=False, halves=(0,) if wpar else (0, 1))
    a(f"""
    v_and_b32 v5, 7, v0
    v_xor_b32 v5, v5, v4
    v_lshlrev_b32 v5, 4, v5
    v_lshrrev_b32 v6, 3, v0
    v_lshl_add_u32 v5, v6, 14, v5
    s_lshl_b32 s52, s62, 18
    s_lshl_b32 s53, s50, 13
    s_add_u32 s52, s52, s53
    s_and_b32 s53, s41, {1 if parity else 0}
    s_lshl_b32 s53, s53, 12
    s_add_u32 s52, s52, s53
    v_add_u32 v{VA}, s52, v5
    v_xor_b32 v{VA+2}, 4096, v{VA}
    v_xor_b32 v{VA+1}, 64, v{VA}
    v_xor_b32 v{VA+3}, 64, v{VA+2}
    v_add_u32 v{VA+1}, {64*2048 - 1024}, v{VA+1}
    v_add_u32 v{VA+3}, {64*2048 - 1024}, v{VA+3}
    s_lshl_b32 s50, s49, 13
    s_add_u32 s50, s50, s53
    s_lshl_b32 s10, s47, 11
    s_add_u32 s10, s10, 1024
    s_mov_b32 s11, 0x20000
    s_lshl_b32 s57, s46, 11
    s_add_u32 s8, s4, s57
    s_addc_u32 s9, s5, 0
    s_mov_b32 s52, 0                      ; x k-offset (E)
    s_mov_b32 s53, 1024                   ; x k-offset (O)
    s_add_u32 s55, s54, 0x8000            ; sB1
    s_lshl_b32 s56, s62, 15
    s_add_u32 s56, s56, 0x80000           ; sB2
    """)
    issueA(0, "s52", "E0", halves=(0,))
    if wpar: issueW(16384, "s55", "B1", halves=(0,))
    stamp(5)
    R = 80
    NG = 8; MK = 64; G = 96
    a(f"""
    s_mov_b32 s20, s36
    s_mov_b32 s21, s37
    s_mov_b32 s22, 0x40000
    s_mov_b32 s23, 0x20000
    s_lshl_b32 s39, s48, 5
    s_add_u32 s39, s39, s44
    s_lshl_b32 s39, s39, 10
    v_lshlrev_b32 v{R+6}, 4, v0
    v_add_u32 v{R+5}, s39, v{R+6}
    v_and_b32 v1, 15, v0
    v_lshrrev_b32 v5, 5, v0
    v_lshl_add_u32 v5, v1, 1, v5
    s_lshl_b32 s57, s49, 5
    v_add_u32 v{R}, s57, v5
    s_lshl_b32 s57, s41, 7
    v_add_u32 v{R+7}, s57, v{R}
    v_lshlrev_b32 v{R+7}, 1, v{R+7}
    v_lshlrev_b32 v{R}, 2, v{R}
    v_lshlrev_b32 v1, 4, v1
    v_lshl_add_u32 v1, v4, 10, v1
    s_lshl_b32 s57, s48, 15
    s_lshl_b32 s58, s49, 8
    s_add_u32 s57, s57, s58
    v_add_u32 v{R+3}, s57, v1
    s_lshl_b32 s57, s48, 5
    v_mov_b32 v{R+4}, s57
    s_add_u32 s57, s39, s58
    v_lshl_add_u32 v{R+8}, v0, 2, s57
    v_mov_b32 v29, 0
    v_mov_b32 v{R+10}, {SENT}
    v_mov_b32 v{R+11}, {SENT}
    s_lshl_b32 s57, s49, 4
    s_lshl_b64 s[90:91], 0xffff, s57
    """)
    for i in range(NG): a(f"s_mov_b64 s[{MK+2*i}:{MK+2*i+1}], -1")
    for i in range(1, NG): a(f"s_mov_b32 s{80+i}, {i*4096}")
    final_setup("l")
    stamp(13)
    if wpar: issueW(0, "s54", "B0", halves=(1,))
    issueA(0, "s52", "E0", halves=(1,))
    if wpar: issueW(16384, "s55", "B1", halves=(1,))
    if onebar:
        if not wpar: issueW(16384, "s55", "B1")
        issueW(32768, "s56", "B2")
        stamp(6)
        vwait({"B0", "E0", "B1"}); a("s_barrier")
        stamp(1)
    else:
        stamp(7)
        vwait({"B0"}); stamp(15); a("s_barrier")
        if not wpar: issueW(16384, "s55", "B1")
    a(f"""
    buffer_store_dword v{R+10}, v{R+8}, s[20:23], 0 offen sc1
    global_load_ushort v{R+1}, v{R+7}, s[28:29]
    global_load_ushort v{R+2}, v{R+7}, s[30:31]
    s_lshl_b32 s57, s49, 9
    v_lshl_add_u32 v{R+7}, v0, 3, s57
    v_lshlrev_b32 v{R+8}, 2, v0
    v_mov_b32 v{R+9}, 0
    """)
    vq += ["S", "g", "g"]
    if not onebar: issueW(32768, "s56", "B2")
    a(f"""
    s_mov_b32 s57, {2*A_SLOT}
    s_mov_b32 s58, {A_SLOT}
    s_mov_b32 s59, 49152
    """)
    if not onebar:
        stamp(6)
        vwait({"E0", "B1"}); a("s_barrier")
        stamp(1)
    def iB(kb, ph, nth=0):
        sreg = ["s54", "s55", "s56"][kb % 3]
        if ph in (0, None): a(f"s_add_u32 {sreg}, {sreg}, 0x10000")
        issueW("s59", sreg, f"B{kb}", halves=(0, 1) if ph is None else (ph,))
        if ph in (1, None): a("s_add_u32 s59, s59, 16384\ns_and_b32 s59, s59, 0xffff")
    def iO(c, ph):
        if c > 0 and ph in (0, None): a("s_add_u32 s53, s53, 128")
        issueA("s58", "s53", f"O{c}", halves=(0, 1) if ph is None else (ph,))
    def iE(c, ph):
        if ph in (0, None): a("s_add_u32 s52, s52, 128")
        issueA("s57", "s52", f"E{c}", halves=(0, 1) if ph is None else (ph,))
        if ph in (1, None): a(f"s_add_u32 s61, s57, s58\ns_mov_b32 s57, s58\ns_sub_u32 s58, {3*A_SLOT}, s61")
    ramp = {-1: [("O", 0), ("B", 3)], 0: [("E", 1), ("B", 4)], 1: [("B", 5), ("O", 1)], 2: [("B", 6), ("E", 2)], 3: [("B", 7), ("B", 8)]}
    if rampv == 1: ramp = {-1: [("O", 0), ("B", 3)], 0: [("E", 1), ("B", 4)], 1: [("B", 5), ("O", 1)], 2: [("B", 6), ("E", 2)], 3: [("B", 7)], 4: [("B", 8), ("B", 9), ("O", 2)]}
    pend = []
    fn = {"B": iB, "O": iO, "E": iE}
    def lstep(k):
        c = k // 3
        if k in ramp: todo = list(ramp[k])
        else:
            todo = []
            if k + 5 <= 23: todo.append(("B", k + 5))
            if k % 3 == 1 and c + 1 <= 7: todo.append(("O", c + 1))
            if k % 3 == 2 and c + 2 <= 7: todo.append(("E", c + 2))
        for kind, i in pend: fn[kind](i, 1)
        pend[:] = []
        if lag and lagfrom <= k < 19:
            if len(todo) >= 2 and todo[0][0] == todo[1][0]:
                fn[todo[0][0]](todo[0][1], None); todo = todo[1:]
            for kind, i in todo: fn[kind](i, 0)
            pend[:] = todo
        else:
            two = ilv and len(todo) == 2 and todo[0][0] != todo[1][0]
            for ph in ((0, 1) if two else (None,)):
                for kind, i in todo: fn[kind](i, ph)
        if pf2 and k == pfk:
            a(f"""
            s_getpc_b64 s[88:89]
            L_pfbase2:
            s_add_u32 s88, s88, L_compute-L_pfbase2
            s_addc_u32 s89, s89, 0
            s_bfe_u32 s61, s2, 0x30005
            s_lshl_b32 s63, s49, 5
            s_add_u32 s61, s61, s63
            s_lshl_b32 s61, s61, 7
            v_lshl_add_u32 v1, v0, 10, s61
            v_min_u32 v1, L_end-L_compute, v1
            s_mov_b64 exec, 15
            global_load_dword v16, v1, s[88:89]
            s_mov_b64 exec, -1
            """)
            vq.append("c")
        if otouch == k:
            a(f"""
            s_lshl_b32 s61, s49, 16
            v_lshl_add_u32 v1, v0, 12, s61
            s_mov_b64 exec, 0xffff
            buffer_load_dword v17, v1, s[16:19], 0 offen
            s_mov_b64 exec, -1
            """)
            vq.append("o")
        need = {Aname(k + 2), f"B{k+3}"}
        assert not need & {f"{kd}{i}" for kd, i in pend}
        return vwait(need)
    K0 = 5 if lag else 4
    NLI = 4 if lag else 5
    for k in range(-1, K0):
        lstep(k); a("s_barrier")
    a(f"""
    s_mov_b32 s60, {NLI}
    s_and_b32 s62, s44, 3
    s_min_u32 s62, s62, 2
    s_add_u32 s62, s62, 2
    s_cmp_lg_u32 s49, 0
    s_cselect_b32 s62, 0, s62
    L_lloop:
    """)
    ns = []
    for k in range(K0, K0 + 3):
        ns.append(lstep(k))
        if k == 6:
            a(f"""
            s_cmp_lg_u32 s60, s62
            s_cbranch_scc1 L_noat
            s_mov_b64 exec, 1
            global_atomic_add v{R+4}, v13, s[34:35]
            s_mov_b64 exec, -1
            L_noat:
            """)
        a("s_barrier")
    a("s_sub_u32 s60, s60, 1\ns_cmp_lg_u32 s60, 0\ns_cbranch_scc1 L_lloop")
    keep = len(a.lines)
    mins = list(ns)
    for k in range(K0 + 3, K0 + 3 * NLI):
        n = lstep(k); mins[(k - K0) % 3] = min(mins[(k - K0) % 3], n)
    del a.lines[keep:]
    li = a.lines.index("L_lloop:"); wi = 0
    for q in range(li, len(a.lines)):
        if "s_waitcnt vmcnt" in a.lines[q]:
            a.lines[q] = f"    s_waitcnt vmcnt({mins[wi]})"; wi += 1
    assert wi == 3
    for k in range(K0 + 3 * NLI, 19):
        lstep(k); a("s_barrier")
    lstep(19); a("s_barrier")
    a("L_ltail:")
    stamp(11)
    a(f"""
    ds_write_b64 v{R+7}, v[{R+10}:{R+11}] offset:{PART}
    ds_write_b32 v{R+8}, v{R+9} offset:{FLAGS}
    s_waitcnt lgkmcnt(0)
    """)
    vwait({"B23"}); a("s_barrier")
    a(f"""
    s_waitcnt vmcnt(0)
    s_barrier
    global_load_dword v{R+9}, v{R+4}, s[34:35] sc1
    s_mov_b32 s52, {f2u(KS)}
    v_lshlrev_b32 v{R+1}, 16, v{R+1}
    v_lshlrev_b32 v{R+2}, 16, v{R+2}
    v_mul_f32 v{R+1}, s52, v{R+1}
    v_mul_f32 v{R+2}, s52, v{R+2}
    s_mov_b32 s59, {SPIN}
    s_barrier
    """)
    stamp(2)
    if lprio: a(f"s_setprio {lprio}")
    def nextjob_regs():
        a(f"""
        v_add_u32 v8, s40, v6
        v_add_u32 v10, 128, v7
        v_xor_b32 v9, 160, v8
        v_add_u32 v11, 256, v11
        v_add_u32 v14, 8, v14
        v_add_u32 v12, 16, v12
        """)
    a("s_cmp_ge_u32 s49, 2\ns_cbranch_scc1 L_nopub")
    part_publish("L_part", R + 6, 0, G, R + 5, "s[90:91]", psleep)
    stamp(3)
    a(f"""
    L_nopub:
    L_cnt:
    s_waitcnt vmcnt(0)
    v_readfirstlane_b32 s52, v{R+9}
    s_cmp_ge_u32 s52, 32
    s_cbranch_scc1 L_cnt_ok
    s_sleep 32
    global_load_dword v{R+9}, v{R+4}, s[34:35] sc1
    s_sub_u32 s59, s59, 1
    s_cmp_gt_i32 s59, 0
    s_cbranch_scc1 L_cnt
    L_cnt_ok:
    s_cmp_lt_u32 s49, 2
    s_cbranch_scc1 L_gather
    """)
    if ded:
        a(f"""
        s_mov_b32 s42, 0
        """)
        nextjob_regs()
        a(f"""
        s_mov_b32 s59, {SPIN}
        L_img2:
        ds_read_b32 v15, v12 offset:{FLAGS+16}
        s_waitcnt lgkmcnt(0)
        v_cmp_eq_u32 vcc, 0, v15
        s_cbranch_vccz L_img2_ok
        s_sleep 1
        s_sub_u32 s59, s59, 1
        s_cmp_gt_i32 s59, 0
        s_cbranch_scc1 L_img2
        L_img2_ok:
        """)
        preread(4)
    else:
        a("s_branch L_imgwait")
    a("L_gather:")
    if stamps: a("s_mov_b32 s94, 0")
    a(f"s_mov_b32 s59, {SPIN}\nL_poll:")
    if stamps: a("s_add_u32 s94, s94, 1")
    for i in range(NG):
        a(f"s_or_b64 exec, s[{MK+2*i}:{MK+2*i+1}], 1")
        a(f"buffer_load_dwordx4 v[{G+4*i}:{G+4*i+3}], v{R+3}, s[20:23], {'s%d' % (80+i) if i else 0} offen sc1")
    a("s_mov_b64 exec, -1\ns_waitcnt vmcnt(0)")
    for i in range(NG):
        a(f"v_min_f32 v1, v{G+4*i+1}, v{G+4*i+3}")
        a(f"v_cmp_gt_f32 s[{MK+2*i}:{MK+2*i+1}], 0, v1")
    a(f"s_or_b64 s[52:53], s[{MK}:{MK+1}], s[{MK+2}:{MK+3}]")
    for i in range(2, NG):
        a(f"s_or_b64 s[52:53], s[52:53], s[{MK+2*i}:{MK+2*i+1}]")
    a(f"""
    s_cbranch_scc0 L_poll_done
    {"s_sleep %d" % rsleep if rsleep else ""}
    s_sub_u32 s59, s59, 1
    s_cmp_gt_i32 s59, 0
    s_cbranch_scc1 L_poll
    L_poll_done:
    """)
    if stamps: a(f"v_writelane_b32 v{VST2}, s94, 63")
    stamp(4)
    for step_ in (4, 2, 1):
        for i in range(step_):
            for h in range(4):
                x = G + 4 * i + h; y = G + 4 * (i + step_) + h
                a(f"v_add_f32 v{x}, v{x}, v{y}")
    x = G
    a(f"""
    s_mov_b32 s52, {f2u(1.0/LROWS)}
    s_nop 0
    v_permlane32_swap_b32 v{x}, v{x+2}
    v_permlane32_swap_b32 v{x+1}, v{x+3}
    s_nop 1
    v_add_f32 v{x}, v{x}, v{x+2}
    v_add_f32 v{x+1}, v{x+1}, v{x+3}
    v_mov_b32 v{x+2}, v{x}
    v_mov_b32 v{x+3}, v{x+1}
    s_nop 1
    v_permlane16_swap_b32 v{x}, v{x+2}
    v_permlane16_swap_b32 v{x+1}, v{x+3}
    s_nop 1
    v_add_f32 v{x}, v{x}, v{x+2}
    v_add_f32 v{x+1}, v{x+1}, v{x+3}
    v_mul_f32 v{G}, s52, v{G}             ; mean
    v_mul_f32 v{G+1}, s52, v{G+1}         ; E[h^2]
    v_fma_f32 v{G+1}, -v{G}, v{G}, v{G+1} ; var
    v_max_f32 v{G+1}, 0, v{G+1}
    v_add_f32 v{G+1}, {f2u(1e-5)}, v{G+1}
    v_rsq_f32 v{G+1}, v{G+1}
    s_lshl_b32 s52, s49, 2
    v_mul_f32 v{G+1}, v{G+1}, v{R+1}      ; KS*scale
    v_mov_b32 v1, s52
    v_fma_f32 v{G}, -v{G}, v{G+1}, v{R+2} ; KS*shift
    ds_write_b32 v{R}, v{G+1} offset:{CONST}
    ds_write_b32 v{R}, v{G} offset:{CONST+512}
    ds_write_b32 v1, v13 offset:{FLAGS}
    s_mov_b32 s59, {SPIN*16}
    """)
    if gprio is not None: a(f"s_setprio {gprio}")
    if ded: a("s_cmp_ge_u32 s49, 2\ns_cbranch_scc1 L_fw")
    a("s_branch L_imgwait")

    ACC = 128
    def acc(j, n): return ACC + (j * 4 + n) * 4
    BF = 64; AF = 32; NRING = 8
    aE, aE8, aO, bB = 16, 18, 20, 22
    VIMG, VPART, VPRD, VREC = 26, 27, 28, 29
    a("L_compute:")
    if mprio: a(f"s_setprio {mprio}")
    if codepf:
        a(f"""
        s_getpc_b64 s[52:53]
        L_pfbase:
        s_sub_u32 s52, s52, L_pfbase-L_compute
        s_subb_u32 s53, s53, 0
        s_lshl_b32 s50, s49, 5
        s_add_u32 s50, s50, s40
        s_lshl_b32 s50, s50, 7
        v_lshl_add_u32 v1, v0, 10, s50
        v_min_u32 v1, L_end-L_compute, v1
        s_mov_b64 exec, 15
        global_load_dword v30, v1, s[52:53]
        s_mov_b64 exec, -1
        """)
    a(f"""
    s_lshr_b32 s50, s49, 1                ; wm
    s_and_b32 s51, s49, 1                 ; wn
    v_and_b32 v32, 15, v0                 ; i
    v_lshrrev_b32 v33, 4, v0              ; g
    s_lshl_b32 s52, s50, 14
    v_bfe_u32 v34, v32, 1, 3
    v_xor_b32 v34, v34, v33
    v_lshlrev_b32 v34, 4, v34
    v_lshl_add_u32 v34, v32, 7, v34
    v_add_u32 v{aE}, s52, v34
    v_xor_b32 v{aE+1}, 64, v{aE}
    v_add_u32 v{aO}, {A_SLOT}, v{aE}
    v_add_u32 v{aO+1}, {A_SLOT}, v{aE+1}
    v_add_u32 v35, 1, v32
    s_mul_i32 s52, s50, 127
    s_add_u32 s52, s52, 128
    s_lshl_b32 s53, s50, 7
    v_add_u32 v35, s53, v35
    v_mov_b32 v36, s52
    v_cmp_eq_u32 vcc, 15, v32
    s_nop 1
    v_cndmask_b32 v35, v35, v36, vcc
    v_bfe_u32 v34, v35, 1, 3
    v_xor_b32 v34, v34, v33
    v_lshlrev_b32 v34, 4, v34
    v_lshl_add_u32 v{aE8}, v35, 7, v34
    v_xor_b32 v{aE8+1}, 64, v{aE8}
    v_bfe_u32 v34, v0, 2, 2
    v_lshl_add_u32 v35, v33, 3, v34
    v_bfe_u32 v34, v0, 2, 3
    v_lshlrev_b32 v34, 5, v34
    s_lshl_b32 s52, s51, 6
    v_xor_b32 v34, s52, v34
    v_and_b32 v36, 3, v0
    v_lshl_add_u32 v34, v36, 3, v34
    v_lshl_add_u32 v34, v35, 8, v34
    v_add_u32 v{bB}, {W_BASE}, v34
    v_xor_b32 v{bB+1}, 32, v{bB}
    v_xor_b32 v{bB+2}, 128, v{bB}
    v_xor_b32 v{bB+3}, 160, v{bB}
    s_mov_b64 s[64:65], -1
    s_mov_b64 s[66:67], -1
    s_cmp_eq_u32 s50, 0
    s_cbranch_scc1 L_nomask
    s_cmp_eq_u32 s47, 249
    s_cselect_b32 s65, 0xffff, -1
    s_cselect_b32 s67, -1, 0xffff
    L_nomask:
    v_bfe_u32 v34, v32, 2, 1
    v_mul_u32_u24 v34, 10, v34
    v_lshrrev_b32 v35, 3, v32
    v_or_b32 v34, v34, v35
    v_and_b32 v35, 1, v33
    v_xor_b32 v35, s51, v35
    v_lshl_add_u32 v34, v35, 2, v34
    v_lshlrev_b32 v34, 4, v34
    v_and_b32 v35, 3, v32
    v_lshl_add_u32 v34, v35, 2, v34
    v_lshl_add_u32 v34, v33, 13, v34
    s_lshl_b32 s52, s50, 15
    s_add_u32 s52, s52, {W_BASE}
    v_add_u32 v{VIMG}, s52, v34
    v_lshrrev_b32 v34, 5, v0
    v_lshl_add_u32 v34, v34, 4, v32
    s_lshl_b32 s52, s49, 8
    v_lshl_add_u32 v{VPART}, v34, 3, s52
    v_lshlrev_b32 v{VPRD}, 4, v0
    s_lshl_b32 s39, s48, 5
    s_add_u32 s39, s39, s44
    s_lshl_b32 s39, s39, 10
    s_add_u32 s39, s39, 512
    v_add_u32 v{VREC}, s39, v{VPRD}
    s_lshl_b32 s52, s49, 3
    s_lshl_b64 s[90:91], 0xff, s52
    s_lshl_b32 s52, s49, 2
    v_mov_b32 v15, s52
    s_waitcnt lgkmcnt(0)
    s_mov_b32 s20, s36
    s_mov_b32 s21, s37
    s_mov_b32 s22, 0x40000
    s_mov_b32 s23, 0x20000
    """)
    final_setup("c")
    if acc0 is None:
        for i in range(0, 128, 2): a(f"v_mov_b64 v[{ACC+i}:{ACC+i+1}], 0")
    else:
        for i in range(128): a(f"v_mov_b32 v{ACC+i}, {f2u(acc0)}")
    if stamps: a(f"v_writelane_b32 v{VST}, s92, 0")
    a(f"""
    s_mov_b32 s54, 0                      ; sE
    s_mov_b32 s55, {A_SLOT}               ; sO
    s_mov_b32 s56, 0
    s_mov_b32 s57, 4
    s_mov_b32 s63, 16384
    s_mov_b32 s61, 16
    """)
    if hop:
        if hopwait: a("s_waitcnt vmcnt(0)")
        a("""
        s_mov_b64 exec, 0
        s_cmp_eq_u32 s49, 0
        s_cbranch_scc1 L_hopg0
        s_cmp_eq_u32 s49, 1
        s_cbranch_scc1 L_hopg1
        s_cmp_eq_u32 s49, 2
        s_cbranch_scc1 L_hopg2
        s_branch L_hopg3
        L_hopret:
        s_mov_b64 exec, -1
        """)
    stamp(7)
    a("s_barrier")
    lq = []; ring = {}; rpos = [0]; occ = {}; dead = set()
    def afrags(t, j):
        if t < 2:
            return [("F", t, 0), ("F", t, 1)] if j == 0 else [("F", t, j + 1)]
        return [("G", 0, j), ("G", 1, j)]
    def atext(tag, d):
        kind, x, j = tag[:3]
        if kind == "F":
            if j < 8: return f"ds_read_b128 v[{d}:{d+3}], v{aE+x} offset:{j*2048}"
            return f"ds_read_b128 v[{d}:{d+3}], v{aE8+x}"
        return f"ds_read_b128 v[{d}:{d+3}], v{aO+x} offset:{j*2048}"
    def aread(tag):
        idx = rpos[0] % NRING; rpos[0] += 1
        if tag[0] == "F" and tag[2] == 8: rpos[0] += 1
        if idx in occ: assert occ[idx] in dead, (tag, idx, occ[idx])
        occ[idx] = tag; dead.discard(tag)
        ring[tag] = idx
        return ("lds", tag, atext(tag, AF + idx * 4))
    def bfrag(tag, d, n, pq, extra=0):
        return [("lds", tag, f"ds_read_b64_tr_b16 v[{d+2*h}:{d+2*h+1}], v{bB+n} offset:{extra + pq*8192 + h*1024}") for h in range(2)]
    def breg(buf, pq, n): return BF + buf * 32 + (pq * 4 + n) * 4
    def breads(buf):
        r = []
        for n in range(4):
            for pq in range(2): r += bfrag(("B", buf), breg(buf, pq, n), n, pq)
        return r
    def emit(op):
        if isinstance(op, tuple):
            lq.append(op[1]); a(op[2])
        else: a(op)
    def lwait(tags):
        last = max([i for i, t in enumerate(lq) if t in tags], default=-1)
        if last < 0: return
        n = min(15, len(lq) - 1 - last)
        a(f"s_waitcnt lgkmcnt({n})")
        del lq[:len(lq) - n]
    def badv():
        return ["s_add_u32 s56, s56, 16384", "s_cmp_eq_u32 s56, 0x10000", "s_cselect_b32 s58, 0xffff4000, s63", "s_and_b32 s56, s56, 0xffff"] + \
               [f"v_add_u32 v{bB+n}, s58, v{bB+n}" for n in range(4)]
    def mfma(d, ar, br): a(f"v_mfma_f32_16x16x32_bf16 v[{d}:{d+3}], v[{ar}:{ar+3}], v[{br}:{br+3}], v[{d}:{d+3}]")
    def bar():
        a("s_barrier")
        if itstamps:
            a(f"s_mov_b32 m0, s61\ns_add_u32 s61, s61, 1\nv_writelane_b32 v{VST}, s96, m0\nv_writelane_b32 v{VST2}, s98, m0")
            a("s_memrealtime s[96:97]\ns_memtime s[98:99]")
    if onebar: stamp(1)
    for op in breads(0): emit(op)
    for op in badv(): a(op)
    if not onebar:
        a("s_waitcnt lgkmcnt(0)")
        a("s_barrier")
        stamp(1)
    lq[:] = []
    if itstamps: a("s_memrealtime s[96:97]\ns_memtime s[98:99]")
    for j in range(LA):
        for tg in afrags(0, j): emit(aread(tg))
    for _ in range(shift): a("s_nop 0")
    init_state = (list(lq), dict(ring), rpos[0] % NRING)
    def run_gaps(mf, q, barrier_after=None, first_free=0, reserve_last=True):
        ng = len(mf)
        def isvalu(op): return isinstance(op, str) and op.startswith("v_")
        gaps = [g for g in range(first_free, ng) if not (reserve_last and g == ng - 1 and len(q) < ng - first_free)]
        if barrier_after is not None: gaps = [g for g in gaps if g > barrier_after]
        plan = {g: [] for g in range(ng)}
        cap = max(1, -(-len(q) // max(1, len(gaps))))
        while True:
            for g in plan: plan[g] = []
            gi = 0; ok = True
            for op in q:
                while gi < len(gaps) and (len(plan[gaps[gi]]) >= cap or (isvalu(op) and not valu_in and gaps[gi] % 2 == 0)): gi += 1
                if gi >= len(gaps): ok = False; break
                plan[gaps[gi]].append(op)
            if ok: break
            if reserve_last and ng - 1 not in gaps: gaps.append(ng - 1)
            else: cap += 1
        for g, m in enumerate(mf):
            mfma(*m)
            if g == barrier_after: bar()
            for op in plan[g]:
                if isinstance(op, tuple) and op[0] == "A": op = aread(op[1])
                emit(op)
    def step(k):
        t = k % 3; buf = k & 1
        tn = (t + 1) % 3
        bq = breads(buf ^ 1)
        JB = 8 - LA
        nb_per = 4
        bv = badv()
        for j in range(8):
            X, Y = (("F", t, j), ("F", t, j + 1)) if t < 2 else (("G", 0, j), ("G", 1, j))
            need = {X, Y}
            if j == 0: need.add(("B", buf))
            q = []
            if j == JB: lwait(set(lq))
            else: lwait(need)
            if j + LA < 8: q += [("A", tg) for tg in afrags(t, j + LA)]
            else: q += [("A", tg) for tg in afrags(tn, j + LA - 8)]
            for _ in range(nb_per):
                if bq: q.append(bq.pop(0))
            def mix(q, v):
                out = []
                while q or v:
                    if q: out.append(q.pop(0))
                    if v: out.append(v.pop(0))
                return out
            if j == 4: q += bv[:4]
            if j == 5: q = mix(q, bv[4:])
            if t == 1 and j == 6: q += [f"s_add_u32 s59, s54, s55", f"s_sub_u32 s59, {3*A_SLOT}, s59", "s_sub_u32 s60, s59, s54"]
            if t == 1 and j == 7: q = mix(q, [f"v_add_u32 v{r}, s60, v{r}" for r in (aE, aE + 1, aE8, aE8 + 1)])
            if t == 2 and j == 6: q += ["s_sub_u32 s60, s54, s55", "s_mov_b32 s55, s54", "s_mov_b32 s54, s59"]
            if t == 2 and j == 7:
                q = mix(q, [f"v_add_u32 v{r}, s60, v{r}" for r in (aO, aO + 1)])
                if k == 2: q += ["s_sub_u32 s57, s57, 1", "s_cmp_eq_u32 s57, 0"]
            xr = AF + ring[X] * 4; yr = AF + ring[Y] * 4
            mf = []
            for n in range(4):
                pr = [(xr, breg(buf, 0, n)), (yr, breg(buf, 1, n))]
                if n % 2 == 1: pr = pr[::-1]
                mf += [(acc(j, n), ar, br) for ar, br in pr]
            run_gaps(mf, q, barrier_after=1 if j == JB else None)
            dead.add(X)
            if t == 2 or j == 7: dead.add(Y)
        assert not bq
    a("L_cloop:")
    for k in range(6):
        a(f"; ---- step {k}")
        step(k)
        if k == 2:
            saved = (list(lq), dict(ring))
            a("s_cbranch_scc1 L_clast")
    end_state = (list(lq), {k_: v for k_, v in ring.items() if k_ in init_state[1]}, rpos[0] % NRING)
    assert end_state == init_state, (end_state, init_state)
    a("s_branch L_cloop")
    a("L_clast:")
    if cprio: a(f"s_setprio {cprio}")
    stamp(11)
    lq[:] = [t + (0,) for t in saved[0]]
    loc = {t + (0,): AF + saved[1][t] * 4 for t in saved[0]}
    free = [AF + 4 * i for i in range(NRING) if AF + 4 * i not in loc.values()]
    bloc = {}
    for n in range(4):
        for pq in range(2):
            bloc[(0, pq, n)] = breg(1, pq, n); bloc[(1, pq, n)] = breg(0, pq, n)
            bloc[(2, pq, n)] = breg(1, pq, n) if n < 2 else breg(0, pq, n - 2)
    T0 = breg(1, 0, 0)
    def stats(h):
        for n in (2 * h, 2 * h + 1):
            a(f"v_cndmask_b32 v{acc(1,n)+3}, 0, v{acc(1,n)+3}, s[64:65]")
            a(f"v_cndmask_b32 v{acc(2,n)+3}, 0, v{acc(2,n)+3}, s[66:67]")
        for j in range(8):
            for hh in range(2):
                for n in (2 * h, 2 * h + 1):
                    x = acc(j, n) + 2 * hh; S = T0 + 4 * (n & 1); Q = S + 2
                    if j == 0 and hh == 0:
                        a(f"v_pk_mul_f32 v[{Q}:{Q+1}], v[{x}:{x+1}], v[{x}:{x+1}]")
                    else:
                        a(f"v_pk_fma_f32 v[{Q}:{Q+1}], v[{x}:{x+1}], v[{x}:{x+1}], v[{Q}:{Q+1}]")
                        src = f"v[{x-2}:{x-1}]" if j == 0 else f"v[{S}:{S+1}]"
                        a(f"v_pk_add_f32 v[{S}:{S+1}], {src}, v[{x}:{x+1}]")
        a(f"""
        v_add_f32 v{T0}, v{T0}, v{T0+1}
        v_add_f32 v{T0+4}, v{T0+4}, v{T0+5}
        v_add_f32 v{T0+1}, v{T0+2}, v{T0+3}
        v_add_f32 v{T0+5}, v{T0+6}, v{T0+7}
        s_nop 0
        v_permlane32_swap_b32 v{T0}, v{T0+4}
        v_permlane32_swap_b32 v{T0+1}, v{T0+5}
        s_nop 0
        v_add_f32 v{T0}, v{T0}, v{T0+4}
        v_add_f32 v{T0+1}, v{T0+1}, v{T0+5}
        v_mov_b32 v{T0+4}, v{T0}
        v_mov_b32 v{T0+5}, v{T0+1}
        s_nop 1
        v_permlane16_swap_b32 v{T0}, v{T0+4}
        v_permlane16_swap_b32 v{T0+1}, v{T0+5}
        s_nop 0
        v_add_f32 v{T0}, v{T0}, v{T0+4}
        v_add_f32 v{T0+1}, v{T0+1}, v{T0+5}
        """)
        emit(("lds", "P", f"ds_write_b64 v{VPART}, v[{T0}:{T0+1}] offset:{PART + 1024*h}"))
    def image_ops(h):
        ops = []
        for n in (2 * h, 2 * h + 1):
            for f in range(2):
                ops.append(f"v_xor_b32 v{4+f}, {((n&1)<<5) ^ (f<<7)}, v{VIMG}")
                for j in range(8):
                    if (j >> 1) & 1 != f: continue
                    for r in (0, 2):
                        x = acc(j, n) + r
                        ops.append(("lds", "I", f"ds_write2st64_b32 v{4+f}, v{x}, v{x+1} offset0:{8*r+j} offset1:{8*(r+1)+j}"))
        ops.append(("lds", "F", f"ds_write_b32 v15, v13 offset:{FLAGS + 16 + 16*h}"))
        return ops
    seq = [(0, t, j) for t in range(3) for j in range(8)]
    if jouter: seq += [(1, t, j) for j in range(8) for t in range(3)]
    else: seq += [(1, t, j) for t in range(3) for j in range(8)]
    aorder = []
    for s, (h, t, j) in enumerate(seq):
        for tg in afrags(t, j):
            if tg + (h,) not in loc: aorder.append((s, tg + (h,)))
    s_a0, s_a1, s_a2 = 7, 16 - LB, 16 + 5
    bq = []; iq = []; sq = []
    def plain_stats(j):
        ops = []
        for n in (2, 3):
            if j in (1, 2): ops.append(f"v_cndmask_b32 v{acc(j,n)+3}, 0, v{acc(j,n)+3}, s[{62+2*j}:{63+2*j}]")
        for r in range(4):
            for n in (2, 3):
                x = acc(j, n) + r; S = T0 + 4 * (n & 1) + 2; Q = S + 1
                if j == 0 and r == 0: ops.append(f"v_mul_f32 v{Q}, v{x}, v{x}")
                else:
                    ops.append(f"v_fmac_f32 v{Q}, v{x}, v{x}")
                    ops.append(f"v_add_f32 v{S}, v{x-1 if (j == 0 and r == 1) else S}, v{x}")
        return ops
    def pairs_of(h, t, j):
        X, Y = (("F", t, j, h), ("F", t, j + 1, h)) if t < 2 else (("G", 0, j, h), ("G", 1, j, h))
        return X, Y
    for s, (h, t, j) in enumerate(seq):
        if h == 0 and j == 0:
            a(f"; ---- last chunk pass A step {t}")
            bq = []
            if t == 1: late = carry
            ns_ = range(4) if t == 0 else (range(2) if t == 1 else range(2, 4))
            for n in ns_:
                for pq in range(2):
                    tb = 1 if t == 0 else 2
                    bq += bfrag(("LB", tb, n >> 1), bloc[(tb, pq, n)], n, pq, extra=(tb - 1) * 16384)
            if t == 1: bq += late
        if s == 24:
            a("; ---- last chunk pass B")
            a("s_nop 4")
            stats(0)
            stamp(5)
            iq = image_ops(0)
            free += [breg(1, 1, 0), breg(1, 1, 1)]
        X, Y = pairs_of(h, t, j)
        need = {X, Y} | ({("LB", t, h)} if j == 0 else set())
        if s == s_a2: need |= {("LB", 2, 1)}
        lwait(need)
        q = []
        while aorder and aorder[0][0] <= s + LB and free and len(q) < 2 and not (aorder[0][1][0] == "G" and s < s_a1):
            _, tg = aorder.pop(0)
            d = free.pop(0); loc[tg] = d
            q.append(("lds", tg, atext(tg, d)))
        for _ in range(2):
            if bq and (len(q) < 3 or t == 2): q.append(bq.pop(0))
        while iq and len(q) < 2 + iper: q.append(iq.pop(0))
        mf = []
        for n in (2 * h, 2 * h + 1):
            pr = [(loc[X], bloc[(t, 0, n)]), (loc[Y], bloc[(t, 1, n)])]
            if n % 2 == 1: pr = pr[::-1]
            mf += [(acc(j, n), ar, br) for ar, br in pr]
        run_gaps(mf, q, barrier_after=1 if s in (s_a0, s_a1, s_a2) else None, first_free=1 if j == 0 else 0)
        free.append(loc[X])
        if t == 2 or j == 7: free.append(loc[Y])
        if h == 0 and t == 0 and j == 7: carry = list(bq)
        if h == 0 and t > 0 and (j == 7 or s == s_a2 - 1): assert not bq, (s, bq)
    assert not aorder and not iq
    stamp(2)
    if probes:
        for pi in range(10):
            a(f"v_writelane_b32 v{VST}, s{68+2*pi}, {40+pi}")
            a(f"s_mov_b32 s100, L_probe{pi}-{NAME}_kernel\nv_writelane_b32 v{VST2}, s100, {40+pi}")
        a(f"s_getpc_b64 s[100:101]\nL_pq:\ns_sub_u32 s100, s100, L_pq-{NAME}_kernel\nv_writelane_b32 v{VST2}, s100, 50")
    a(f"s_nop 7\ns_mov_b32 s59, {SPIN}")
    if jouter:
        for op in plain_stats(7): a(op)
        a(f"""
        s_nop 0
        v_permlane32_swap_b32 v{T0+3}, v{T0+7}
        v_permlane32_swap_b32 v{T0+2}, v{T0+6}
        s_nop 0
        v_add_f32 v{T0+3}, v{T0+3}, v{T0+7}
        v_add_f32 v{T0+2}, v{T0+2}, v{T0+6}
        v_mov_b32 v{T0+7}, v{T0+3}
        v_mov_b32 v{T0+6}, v{T0+2}
        s_nop 1
        v_permlane16_swap_b32 v{T0+3}, v{T0+7}
        v_permlane16_swap_b32 v{T0+2}, v{T0+6}
        s_nop 0
        v_add_f32 v{T0+3}, v{T0+3}, v{T0+7}
        v_add_f32 v{T0+2}, v{T0+2}, v{T0+6}
        ds_write_b64 v{VPART}, v[{T0+2}:{T0+3}] offset:{PART + 1024}
        """)
    else:
        stats(1)
    stamp(13)
    part_publish("L_cpart", VPRD, 1, 32, VREC, "s[90:91]", 0)
    if not hk: a("s_setprio 0")
    stamp(3)
    a(f"v_add_u32 v{VIMG}, s40, v{VIMG}")
    for op in image_ops(1): emit(op)
    SC, SH, T, O, Y = 16, 24, 32, 40, 48
    a(f"""
    L_imgwait:
    s_mov_b32 s59, {SPIN*16}
    L_img:
    ds_read_b32 v15, v12 offset:{FLAGS+16}
    s_waitcnt lgkmcnt(0)
    v_cmp_eq_u32 vcc, 0, v15
    s_cbranch_vccz L_job
    s_sleep {isleep}
    s_sub_u32 s59, s59, 1
    s_cmp_gt_i32 s59, 0
    s_cbranch_scc1 L_img
    L_job:
    """)
    preread(4)
    if hk == 2: a("s_cmp_ge_u32 s3, 4\ns_cbranch_scc1 L_fw\ns_setprio 0")
    a(f"""
    L_fw:
    ds_read_b32 v15, v14 offset:{FLAGS}
    ds_read_b128 v[{SC}:{SC+3}], v11 offset:{CONST}
    ds_read_b128 v[{SC+4}:{SC+7}], v11 offset:{CONST+16}
    ds_read_b128 v[{SH}:{SH+3}], v11 offset:{CONST+512}
    ds_read_b128 v[{SH+4}:{SH+7}], v11 offset:{CONST+528}
    s_waitcnt lgkmcnt(0)
    v_cmp_eq_u32 vcc, 0, v15
    s_cbranch_vccz L_fw_ok
    {"s_sleep %d" % fsleep if fsleep else ""}
    s_sub_u32 s59, s59, 1
    s_cmp_gt_i32 s59, 0
    s_cbranch_scc1 L_fw
    L_fw_ok:
    """)
    if stamps or amp == 14:
        a("s_cmp_eq_u32 s42, 0\ns_cbranch_scc1 L_st8")
        stamp(14)
        a("L_st8:")
    stamp(8)
    def lowprio(lb):
        if hk == 1: a(f"s_setprio 1\ns_cmp_ge_u32 s3, 4\ns_cbranch_scc1 {lb}\ns_setprio 0\n{lb}:")
    lowprio("L_lp1")
    def p(x): return f"v[{x}:{x+1}]"
    for i in (3, 2, 1, 0):
        if i == 1: a("L_g2:")
        h = HH + 8 * i; o = O + 4 * (i & 1)
        for j in range(0, 8, 2): a(f"v_pk_fma_f32 {p(h+j)}, {p(h+j)}, {p(SC+j)}, {p(SH+j)}")
        for j in range(0, 8, 2): a(f"v_pk_fma_f32 {p(T+j)}, {p(h+j)}, {p(h+j)}, s[24:25]")
        for j in range(0, 8, 2): a(f"v_pk_mul_f32 {p(T+j)}, {p(T+j)}, {p(h+j)} neg_lo:[1,0] neg_hi:[1,0]")
        for j in range(8): a(f"v_exp_f32 v{T+j}, v{T+j}")
        for j in range(0, 8, 2): a(f"v_pk_fma_f32 {p(T+j)}, {p(T+j)}, s[26:27], s[26:27]")
        for j in range(8): a(f"v_rcp_f32 v{T+j}, v{T+j}")
        for j in range(0, 8, 2): a(f"v_pk_mul_f32 {p(T+j)}, {p(T+j)}, {p(h+j)}")
        for j in range(0, 8, 2): a(f"v_cvt_pk_bf16_f32 v{o+j//2}, v{T+j}, v{T+j+1}")
        if sthr is not None: a(f"s_waitcnt vmcnt({sthr})")
        if not nostore: a(f"buffer_store_dwordx4 v[{o}:{o+3}], v{10 if i == 0 else VO+i}, s[16:19], 0 offen{omod}")
    a("s_cmp_eq_u32 s42, 0\ns_cbranch_scc1 L_fin")
    if hk == 1: a("s_setprio 2")
    if hk == 2: a("s_cmp_ge_u32 s3, 4\ns_cbranch_scc1 L_hk2\ns_setprio 3\nL_hk2:")
    stamp(12)
    if ded:
        a("s_sub_u32 s42, s42, 1\ns_cmp_eq_u32 s42, 0\ns_cbranch_scc1 L_toB")
        a(f"""
        v_add_u32 v8, s0, v6
        v_add_u32 v10, s1, v7
        v_xor_b32 v9, 160, v8
        """)
        preread(2)
        a("s_waitcnt lgkmcnt(0)")
        lowprio("L_lp2")
        a("s_branch L_g2\nL_toB:")
    else: a("s_mov_b32 s42, 0")
    nextjob_regs()
    if not ded: a("s_cmp_ge_u32 s3, 6\ns_cbranch_scc1 L_gather")
    a("s_branch L_imgwait\nL_fin:")
    if hold in (9, 10) and not stamps: stamp(hold)
    if amp is not None:
        if amp == 9: stamp(9)
        a("s_waitcnt vmcnt(0)")
        if amp == 10: stamp(10)
        a("s_waitcnt lgkmcnt(0)")
        if ampw == "c": a("s_cmp_ge_u32 s3, 4\ns_cselect_b32 s94, s92, s94")
        if ampw == "l": a("s_cmp_lt_u32 s3, 4\ns_cselect_b32 s94, s92, s94")
        a(f"""
        L_amp0:
        s_sleep 8
        s_memrealtime s[96:97]
        s_waitcnt lgkmcnt(0)
        s_sub_u32 s96, s96, s92
        s_cmp_lt_u32 s96, 4000
        s_cbranch_scc1 L_amp0
        s_not_b32 s95, s92
        v_mov_b32 v4, s94
        v_mov_b32 v5, s95
        v_mov_b32 v1, 8
        s_mov_b64 exec, 1
        global_atomic_umax v1, v4, s[34:35]
        global_atomic_umax v1, v5, s[34:35] offset:4
        s_waitcnt vmcnt(0)
        L_amp1:
        s_sleep 8
        s_memrealtime s[96:97]
        s_waitcnt lgkmcnt(0)
        s_sub_u32 s96, s96, s92
        s_cmp_lt_u32 s96, 16000
        s_cbranch_scc1 L_amp1
        global_load_dwordx2 v[4:5], v1, s[34:35] sc1
        s_waitcnt vmcnt(0)
        v_readfirstlane_b32 s94, v4
        v_readfirstlane_b32 s95, v5
        s_not_b32 s95, s95
        s_sub_u32 s94, s94, s95
        s_mul_i32 s94, s94, 10
        s_add_u32 s94, s94, 18900
        s_min_u32 s94, s94, 100000
        L_amp2:
        s_sleep 2
        s_memrealtime s[96:97]
        s_waitcnt lgkmcnt(0)
        s_sub_u32 s96, s96, s95
        s_cmp_lt_u32 s96, s94
        s_cbranch_scc1 L_amp2
        """)
    if stamps:
        stamp(9)
        a("s_waitcnt vmcnt(0)")
        stamp(10)
        a(f"""
        s_lshl_b32 s52, s2, 12
        s_lshl_b32 s53, s3, 9
        s_add_u32 s52, s52, s53
        s_add_u32 s52, s52, {STAMP_OFF}
        v_lshlrev_b32 v1, 3, v0
        v_add_u32 v1, s52, v1
        global_store_dwordx2 v1, v[{VST}:{VST2}], s[36:37]
        s_waitcnt vmcnt(0)
        """)
    a("L_end:\ns_endpgm")
    if relayout:
        L = a.lines
        ix = {t: L.index(t) for t in ("L_ltail:", "L_compute:", "L_cloop:", "L_imgwait:", "L_end:")}
        a.lines = (L[:ix["L_ltail:"]] + ["    s_branch L_ltail", ".p2align 12", "L_page:"] +
                   L[ix["L_compute:"]:ix["L_cloop:"]] + ["    s_branch L_cloop"] +
                   L[ix["L_ltail:"]:ix["L_compute:"]] + L[ix["L_imgwait:"]:ix["L_end:"]] + ["    s_endpgm", ".p2align 6"] +
                   L[ix["L_cloop:"]:ix["L_imgwait:"]] + ["    s_branch L_imgwait"] + L[ix["L_end:"]:])
        if hop: a.lines = add_hops(a.lines, [("L_ltail:", "L_end:")], hop, page="L_page:")
    elif hop: a.lines = add_hops(a.lines, [("L_lloop:", "L_compute:"), ("L_cloop:", "L_end:")], hop)
    if align8: a.lines = pad8(a.lines, "L_cloop:", "L_cpart:")
    hazcheck(a.lines)
    return wrap(DOC + a.text(), 256, 512, 163840, 256)

if __name__ == "__main__":
    out = sys.argv[1]
    kw = json.loads(sys.argv[2]) if len(sys.argv) > 2 else {}
    open(out, "w").write(gen(**kw))
```

```python
import sys, json, struct
from asmlib import *

def f2u(f): return struct.unpack("<I", struct.pack("<f", f))[0]

LROWS = 7999
C1 = -2.0 * 0.7978845608028654 * 1.4426950408889634
C2 = C1 * 0.044715
KS = (-C2) ** (1.0 / 3.0)
CP = -C1 / KS
SENT = 0xBF800000
A_SLOT = 32768
W_BASE = 98304
MISC = 32768
PART = MISC
CONST = MISC + 2048
FLAGS = MISC + 3072
STAMP_OFF = 1 << 20
SPIN = 0x40000

DOC = """    ; Fused strided conv (as a GEMM, K = 3 taps x 512) + per-(batch,channel) norm over time + tanh-GELU.
    ; Exchange: every workgroup resets its {sum, sumsq} record in d_ws to a sentinel, counts that in d_debug,
"""

def gen(stamps=False, xmod="", wmod="", omod=" sc1", codepf=True, itstamps=False, hold=None, holdus=40,
        parity=True, psleep=1, fsleep=1, rsleep=0, lprio=2, cprio=3, LA=2, LB=3, only=None, wpar=True, jouter=False, ded=False, onebar=False, align8=False, shift=0, pf2=False, isleep=2, probes=False, ilv=True, hop=0, acc0=None, relayout=True, hopwait=False, nostore=False, gprio=None, hk=False, sthr=None, alt=1, snake=False, amp=None, ampw=None, swap=False, mprio=0, valu_in=False, iper=1, lag=True, lagfrom=3, rampv=0, pfk=19, otouch=None, bmap=0, adelay=None, gdelay=0):
    a = Asm()
    VST, VST2 = 2, 3
    def stamp(k):
        if hold == k:
            lb = a.label("L_hold")
            a(f"""s_waitcnt lgkmcnt(0)
            {lb}:
            s_memrealtime s[96:97]
            s_waitcnt lgkmcnt(0)
            s_sub_u32 s96, s96, s92
            s_cmp_lt_u32 s96, {holdus*100}
            s_cbranch_scc1 {lb}""")
        if amp == k: a("s_memrealtime s[94:95]")
        if not stamps or (only is not None and k not in only): return
        a(f"s_memrealtime s[100:101]\ns_waitcnt lgkmcnt(0)\nv_writelane_b32 v{VST}, s100, {k}")
        if k in (1, 2, 8, 9): a(f"s_memtime s[100:101]\ns_waitcnt lgkmcnt(0)\nv_writelane_b32 v{VST2}, s100, {k}")
    def final_setup(role):
        a(f"""
        s_mul_i32 s38, s43, {LROWS}
        s_add_u32 s38, s38, s45
        s_lshl_b32 s38, s38, 10
        s_add_u32 s16, s32, s38
        s_addc_u32 s17, s33, 0
        s_lshl_b32 s18, s47, 10
        s_mov_b32 s19, 0x20000
        v_and_b32 v1, 7, v0                   ; o
        v_lshrrev_b32 v8, 3, v0
        s_and_b32 s38, s49, 1
        s_lshl_b32 s40, s38, 5
        s_add_u32 s40, s40, {64 if role == "c" else 0}
        v_add_u32 v8, s40, v8
        s_lshl_b32 s38, s38, 2
        v_xor_b32 v9, s38, v1                 ; o ^ 4*((row>>5)&1)
        v_bfe_u32 v10, v0, 4, 1               ; f
        v_lshl_add_u32 v9, v10, 3, v9
        v_lshlrev_b32 v9, 4, v9
        v_lshl_add_u32 v9, v8, 8, v9
        s_lshr_b32 s38, s49, 1
        s_lshl_b32 s40, s38, 15
        s_add_u32 s42, s40, {W_BASE}
        v_add_u32 v6, s42, v9
        s_sub_u32 s40, s40, {W_BASE}
        s_lshl_b32 s42, s38, 7
        v_add_u32 v8, s42, v8
        v_lshlrev_b32 v8, 10, v8
        v_lshl_add_u32 v7, v1, 4, v8
        s_lshl_b32 s42, s41, 8
        v_add_u32 v7, s42, v7
        v_lshlrev_b32 v11, 5, v1
        v_and_b32 v14, 1, v0
        v_lshlrev_b32 v14, 2, v14             ; constflag[lane&1]
        v_and_b32 v12, 3, v0
        v_lshlrev_b32 v12, 2, v12             ; imgflag[lane&3]
        v_mov_b32 v13, 1
        v_mov_b32 v8, v6
        v_xor_b32 v9, 160, v6
        v_mov_b32 v10, v7
        s_mov_b32 s24, {f2u(CP)}
        s_mov_b32 s25, {f2u(CP)}
        s_mov_b32 s26, {f2u(KS)}
        s_mov_b32 s27, {f2u(KS)}
        """)
        if not ded: a("s_mov_b32 s42, 1")
        elif role == "l": a("s_mov_b32 s42, 2\ns_mov_b32 s0, 32768\ns_mov_b32 s1, 131072")
        else: a(f"s_add_u32 s42, s38, 1\ns_mov_b32 s0, {(-48*256) & 0xffffffff}\ns_mov_b32 s1, {(-48*1024) & 0xffffffff}")
    HH, VO = 160, 60
    def preread(n):
        for i in range(n - 1, -1, -1):
            a(f"ds_read_b128 v[{HH+8*i}:{HH+8*i+3}], v8 offset:{2048*i}\nds_read_b128 v[{HH+8*i+4}:{HH+8*i+7}], v9 offset:{2048*i}")
        for i in range(1, n): a(f"v_add_u32 v{VO+i}, {8192*i}, v10")
    def part_publish(lbl, vaddr, half, x, vrec, maskreg, sleep):
        a(f"""
        {lbl}:
        ds_read_b128 v[{x}:{x+3}], v{vaddr} offset:{PART + 1024*half}
        s_waitcnt lgkmcnt(0)
        v_min_f32 v1, v{x+1}, v{x+3}
        v_cmp_gt_f32 vcc, 0, v1
        s_cbranch_vccz {lbl}_ok
        {"s_sleep %d" % sleep if sleep else ""}
        s_sub_u32 s59, s59, 1
        s_cmp_gt_i32 s59, 0
        s_cbranch_scc1 {lbl}
        {lbl}_ok:
        """)
        for i in range(4): a(f"v_mov_b32 v{x+4+i}, v{x+i}")
        for i in range(4): a(f"v_permlane32_swap_b32 v{x+i}, v{x+4+i}")
        for i in range(4): a(f"v_add_f32 v{x+i}, v{x+i}, v{x+4+i}")
        a(f"""
        s_mov_b64 exec, {maskreg}
        buffer_store_dwordx4 v[{x}:{x+3}], v{vrec}, s[20:23], 0 offen sc1
        s_mov_b64 exec, -1
        """)
    a(f"""
    s_cmp_ge_u32 s2, 256
    s_cbranch_scc1 L_end
    s_load_dwordx4 s[4:7], s[0:1], 0      ; x, w
    s_load_dwordx4 s[28:31], s[0:1], 16
    s_load_dwordx4 s[32:35], s[0:1], 32
    s_load_dwordx2 s[36:37], s[0:1], 48   ; ws
    """)
    if stamps or hold is not None or amp is not None: a("s_memrealtime s[92:93]")
    if amp is not None: a("s_memrealtime s[94:95]")
    a(f"""
    v_lshrrev_b32 v1, 6, v0
    v_and_b32 v0, 63, v0
    v_readfirstlane_b32 s3, v1
    s_and_b32 s38, s2, 7
    {"s_lshr_b32 s40, s38, 1" if bmap else ""}
    {"s_and_b32 s38, s38, 1" if bmap else ""}
    {"s_lshl_b32 s38, s38, 2" if bmap else ""}
    {"s_add_u32 s38, s38, s40" if bmap else ""}
    s_bfe_u32 s40, s2, 0x30005
    s_bfe_u32 s41, s2, 0x20003
    s_lshl_b32 s42, s38, 3
    s_add_u32 s42, s42, s40               ; mt 0..63
    s_lshr_b32 s43, s42, 5                ; batch
    s_and_b32 s44, s42, 31
    s_mul_i32 s45, s44, 250
    s_mul_i32 s46, s43, 8000
    s_add_u32 s46, s46, s45
    s_cmp_eq_u32 s44, 31
    s_cselect_b32 s47, 1, 0
    s_sub_u32 s47, 250, s47               ; nvalid
    s_lshl_b32 s48, s43, 2
    s_add_u32 s48, s48, s41
    s_and_b32 s49, s3, 3
    {"s_xor_b32 s3, s3, 4" if swap else ""}
    s_cmp_lt_u32 s3, 4
    s_cbranch_scc1 L_compute
    """)
    VA, VW = 56, 60
    a(f"""
    v_lshrrev_b32 v4, 4, v0               ; l>>4
    v_and_b32 v5, 15, v0
    v_lshlrev_b32 v6, 1, v4
    v_xor_b32 v5, v5, v6                  ; W chunk (n<2)
    s_and_b32 s50, s49, 1
    s_lshl_b32 s51, s50, 14
    s_lshl_b32 s52, s41, 8
    s_add_u32 s51, s51, s52
    v_lshlrev_b32 v5, 4, v5
    v_lshl_add_u32 v5, v4, 10, v5
    s_and_b32 s53, s40, {1 if wpar else 0}
    s_mul_i32 s52, s53, {8192 + 128}
    v_add_u32 v5, s51, v5
    v_xor_b32 v{VW}, s52, v5
    v_xor_b32 v{VW+2}, {8192 + 128}, v{VW}
    v_add_u32 v{VW+1}, 3072, v{VW}
    v_add_u32 v{VW+3}, 3072, v{VW+2}
    s_lshl_b32 s51, s49, 12
    s_lshl_b32 s53, s53, 11
    s_add_u32 s51, s51, s53
    s_add_u32 s51, s51, {W_BASE}
    s_lshr_b32 s62, s49, 1                ; lw>=2
    s_lshl_b32 s54, s62, 20               ; sB0
    s_mov_b32 s14, 1572864
    s_mov_b32 s15, 0x20000
    s_mov_b32 m0, s51
    s_waitcnt lgkmcnt(0)
    s_mov_b32 s12, s6
    s_mov_b32 s13, s7
    """)
    if stamps: a(f"v_writelane_b32 v{VST}, s92, 0")
    vq = []
    def issueA(slot_s, soff, tag, halves=(0, 1)):
        for half in halves:
            if half == halves[0]: a(f"s_add_u32 m0, s50, {slot_s}")
            if half == 1: a(f"s_xor_b32 m0, m0, 4096")
            a("s_nop 0")
            for n in range(4):
                vq.append(tag)
                a(f"buffer_load_dwordx4 v{VA+half*2+(n&1)}, s[8:11], {soff} offen offset:{n*1024}{xmod} lds")
    def issueW(slot_s, soff, tag, setm0=True, halves=(0, 1)):
        for half in halves:
            if half == halves[0] and setm0: a(f"s_add_u32 m0, s51, {slot_s}")
            if half == 1: a("s_xor_b32 m0, m0, 2048")
            if setm0 or half == 1: a("s_nop 0")
            for n in range(2):
                vq.append(tag)
                a(f"buffer_load_dwordx4 v{VW+2*half+n}, s[12:15], {soff} offen offset:{n*1024}{wmod} lds")
    def vwait(tags):
        last = max([i for i, t in enumerate(vq) if t in tags], default=-1)
        n = len(vq) - 1 - last
        a(f"s_waitcnt vmcnt({n})")
        return n
    def Aname(k): return f"E{k//3}" if k % 3 < 2 else f"O{k//3}"
    issueW(0, "s54", "B0", setm0=False, halves=(0,) if wpar else (0, 1))
    a(f"""
    v_and_b32 v5, 7, v0
    v_xor_b32 v5, v5, v4
    v_lshlrev_b32 v5, 4, v5
    v_lshrrev_b32 v6, 3, v0
    v_lshl_add_u32 v5, v6, 14, v5
    s_lshl_b32 s52, s62, 18
    s_lshl_b32 s53, s50, 13
    s_add_u32 s52, s52, s53
    s_and_b32 s53, s41, {1 if parity else 0}
    s_lshl_b32 s53, s53, 12
    s_add_u32 s52, s52, s53
    v_add_u32 v{VA}, s52, v5
    v_xor_b32 v{VA+2}, 4096, v{VA}
    v_xor_b32 v{VA+1}, 64, v{VA}
    v_xor_b32 v{VA+3}, 64, v{VA+2}
    v_add_u32 v{VA+1}, {64*2048 - 1024}, v{VA+1}
    v_add_u32 v{VA+3}, {64*2048 - 1024}, v{VA+3}
    s_lshl_b32 s50, s49, 13
    s_add_u32 s50, s50, s53
    s_lshl_b32 s10, s47, 11
    s_add_u32 s10, s10, 1024
    s_mov_b32 s11, 0x20000
    s_lshl_b32 s57, s46, 11
    s_add_u32 s8, s4, s57
    s_addc_u32 s9, s5, 0
    s_mov_b32 s52, 0                      ; x k-offset (E)
    s_mov_b32 s53, 1024                   ; x k-offset (O)
    s_add_u32 s55, s54, 0x8000            ; sB1
    s_lshl_b32 s56, s62, 15
    s_add_u32 s56, s56, 0x80000           ; sB2
    """)
    issueA(0, "s52", "E0", halves=(0,))
    if wpar: issueW(16384, "s55", "B1", halves=(0,))
    stamp(5)
    R = 80
    NG = 8; MK = 64; G = 96
    a(f"""
    s_mov_b32 s20, s36
    s_mov_b32 s21, s37
    s_mov_b32 s22, 0x40000
    s_mov_b32 s23, 0x20000
    s_lshl_b32 s39, s48, 5
    s_add_u32 s39, s39, s44
    s_lshl_b32 s39, s39, 10
    v_lshlrev_b32 v{R+6}, 4, v0
    v_add_u32 v{R+5}, s39, v{R+6}
    v_and_b32 v1, 15, v0
    v_lshrrev_b32 v5, 5, v0
    v_lshl_add_u32 v5, v1, 1, v5
    s_lshl_b32 s57, s49, 5
    v_add_u32 v{R}, s57, v5
    s_lshl_b32 s57, s41, 7
    v_add_u32 v{R+7}, s57, v{R}
    v_lshlrev_b32 v{R+7}, 1, v{R+7}
    v_lshlrev_b32 v{R}, 2, v{R}
    v_lshlrev_b32 v1, 4, v1
    v_lshl_add_u32 v1, v4, 10, v1
    s_lshl_b32 s57, s48, 15
    s_lshl_b32 s58, s49, 8
    s_add_u32 s57, s57, s58
    v_add_u32 v{R+3}, s57, v1
    s_lshl_b32 s57, s48, 5
    v_mov_b32 v{R+4}, s57
    s_add_u32 s57, s39, s58
    v_lshl_add_u32 v{R+8}, v0, 2, s57
    v_mov_b32 v29, 0
    v_mov_b32 v{R+10}, {SENT}
    v_mov_b32 v{R+11}, {SENT}
    s_lshl_b32 s57, s49, 4
    s_lshl_b64 s[90:91], 0xffff, s57
    """)
    for i in range(NG): a(f"s_mov_b64 s[{MK+2*i}:{MK+2*i+1}], -1")
    for i in range(1, NG): a(f"s_mov_b32 s{80+i}, {i*4096}")
    final_setup("l")
    stamp(13)
    if wpar: issueW(0, "s54", "B0", halves=(1,))
    issueA(0, "s52", "E0", halves=(1,))
    if wpar: issueW(16384, "s55", "B1", halves=(1,))
    if onebar:
        if not wpar: issueW(16384, "s55", "B1")
        issueW(32768, "s56", "B2")
        stamp(6)
        vwait({"B0", "E0", "B1"}); a("s_barrier")
        stamp(1)
    else:
        stamp(7)
        vwait({"B0"}); stamp(15); a("s_barrier")
        if not wpar: issueW(16384, "s55", "B1")
    a(f"""
    buffer_store_dword v{R+10}, v{R+8}, s[20:23], 0 offen sc1
    global_load_ushort v{R+1}, v{R+7}, s[28:29]
    global_load_ushort v{R+2}, v{R+7}, s[30:31]
    s_lshl_b32 s57, s49, 9
    v_lshl_add_u32 v{R+7}, v0, 3, s57
    v_lshlrev_b32 v{R+8}, 2, v0
    v_mov_b32 v{R+9}, 0
    """)
    vq += ["S", "g", "g"]
    if not onebar: issueW(32768, "s56", "B2")
    a(f"""
    s_mov_b32 s57, {2*A_SLOT}
    s_mov_b32 s58, {A_SLOT}
    s_mov_b32 s59, 49152
    """)
    if not onebar:
        stamp(6)
        vwait({"E0", "B1"}); a("s_barrier")
        stamp(1)
    def iB(kb, ph, nth=0):
        sreg = ["s54", "s55", "s56"][kb % 3]
        if ph in (0, None): a(f"s_add_u32 {sreg}, {sreg}, 0x10000")
        issueW("s59", sreg, f"B{kb}", halves=(0, 1) if ph is None else (ph,))
        if ph in (1, None): a("s_add_u32 s59, s59, 16384\ns_and_b32 s59, s59, 0xffff")
    def iO(c, ph):
        if c > 0 and ph in (0, None): a("s_add_u32 s53, s53, 128")
        issueA("s58", "s53", f"O{c}", halves=(0, 1) if ph is None else (ph,))
    def iE(c, ph):
        if ph in (0, None): a("s_add_u32 s52, s52, 128")
        issueA("s57", "s52", f"E{c}", halves=(0, 1) if ph is None else (ph,))
        if ph in (1, None): a(f"s_add_u32 s61, s57, s58\ns_mov_b32 s57, s58\ns_sub_u32 s58, {3*A_SLOT}, s61")
    ramp = {-1: [("O", 0), ("B", 3)], 0: [("E", 1), ("B", 4)], 1: [("B", 5), ("O", 1)], 2: [("B", 6), ("E", 2)], 3: [("B", 7), ("B", 8)]}
    if rampv == 1: ramp = {-1: [("O", 0), ("B", 3)], 0: [("E", 1), ("B", 4)], 1: [("B", 5), ("O", 1)], 2: [("B", 6), ("E", 2)], 3: [("B", 7)], 4: [("B", 8), ("B", 9), ("O", 2)]}
    pend = []
    fn = {"B": iB, "O": iO, "E": iE}
    def lstep(k):
        c = k // 3
        if k in ramp: todo = list(ramp[k])
        else:
            todo = []
            if k + 5 <= 23: todo.append(("B", k + 5))
            if k % 3 == 1 and c + 1 <= 7: todo.append(("O", c + 1))
            if k % 3 == 2 and c + 2 <= 7: todo.append(("E", c + 2))
        for kind, i in pend: fn[kind](i, 1)
        pend[:] = []
        if lag and lagfrom <= k < 19:
            if len(todo) >= 2 and todo[0][0] == todo[1][0]:
                fn[todo[0][0]](todo[0][1], None); todo = todo[1:]
            for kind, i in todo: fn[kind](i, 0)
            pend[:] = todo
        else:
            two = ilv and len(todo) == 2 and todo[0][0] != todo[1][0]
            for ph in ((0, 1) if two else (None,)):
                for kind, i in todo: fn[kind](i, ph)
        if pf2 and k == pfk:
            a(f"""
            s_getpc_b64 s[88:89]
            L_pfbase2:
            s_add_u32 s88, s88, L_compute-L_pfbase2
            s_addc_u32 s89, s89, 0
            s_bfe_u32 s61, s2, 0x30005
            s_lshl_b32 s63, s49, 5
            s_add_u32 s61, s61, s63
            s_lshl_b32 s61, s61, 7
            v_lshl_add_u32 v1, v0, 10, s61
            v_min_u32 v1, L_end-L_compute, v1
            s_mov_b64 exec, 15
            global_load_dword v16, v1, s[88:89]
            s_mov_b64 exec, -1
            """)
            vq.append("c")
        if otouch == k:
            a(f"""
            s_lshl_b32 s61, s49, 16
            v_lshl_add_u32 v1, v0, 12, s61
            s_mov_b64 exec, 0xffff
            buffer_load_dword v17, v1, s[16:19], 0 offen
            s_mov_b64 exec, -1
            """)
            vq.append("o")
        need = {Aname(k + 2), f"B{k+3}"}
        assert not need & {f"{kd}{i}" for kd, i in pend}
        return vwait(need)
    K0 = 5 if lag else 4
    NLI = 4 if lag else 5
    for k in range(-1, K0):
        lstep(k); a("s_barrier")
    a(f"""
    s_mov_b32 s60, {NLI}
    s_and_b32 s62, s44, 3
    s_min_u32 s62, s62, 2
    s_add_u32 s62, s62, 2
    s_cmp_lg_u32 s49, 0
    s_cselect_b32 s62, 0, s62
    L_lloop:
    """)
    ns = []
    for k in range(K0, K0 + 3):
        ns.append(lstep(k))
        if k == 6:
            a(f"""
            s_cmp_lg_u32 s60, s62
            s_cbranch_scc1 L_noat
            s_mov_b64 exec, 1
            global_atomic_add v{R+4}, v13, s[34:35]
            s_mov_b64 exec, -1
            L_noat:
            """)
        a("s_barrier")
    a("s_sub_u32 s60, s60, 1\ns_cmp_lg_u32 s60, 0\ns_cbranch_scc1 L_lloop")
    keep = len(a.lines)
    mins = list(ns)
    for k in range(K0 + 3, K0 + 3 * NLI):
        n = lstep(k); mins[(k - K0) % 3] = min(mins[(k - K0) % 3], n)
    del a.lines[keep:]
    li = a.lines.index("L_lloop:"); wi = 0
    for q in range(li, len(a.lines)):
        if "s_waitcnt vmcnt" in a.lines[q]:
            a.lines[q] = f"    s_waitcnt vmcnt({mins[wi]})"; wi += 1
    assert wi == 3
    for k in range(K0 + 3 * NLI, 19):
        lstep(k); a("s_barrier")
    lstep(19); a("s_barrier")
    a("L_ltail:")
    stamp(11)
    a(f"""
    ds_write_b64 v{R+7}, v[{R+10}:{R+11}] offset:{PART}
    ds_write_b32 v{R+8}, v{R+9} offset:{FLAGS}
    s_waitcnt lgkmcnt(0)
    """)
    vwait({"B23"}); a("s_barrier")
    a(f"""
    s_waitcnt vmcnt(0)
    s_barrier
    global_load_dword v{R+9}, v{R+4}, s[34:35] sc1
    s_mov_b32 s52, {f2u(KS)}
    v_lshlrev_b32 v{R+1}, 16, v{R+1}
    v_lshlrev_b32 v{R+2}, 16, v{R+2}
    v_mul_f32 v{R+1}, s52, v{R+1}
    v_mul_f32 v{R+2}, s52, v{R+2}
    s_mov_b32 s59, {SPIN}
    s_barrier
    """)
    stamp(2)
    if lprio: a(f"s_setprio {lprio}")
    def nextjob_regs():
        a(f"""
        v_add_u32 v8, s40, v6
        v_add_u32 v10, 128, v7
        v_xor_b32 v9, 160, v8
        v_add_u32 v11, 256, v11
        v_add_u32 v14, 8, v14
        v_add_u32 v12, 16, v12
        """)
    a("s_cmp_ge_u32 s49, 2\ns_cbranch_scc1 L_nopub")
    part_publish("L_part", R + 6, 0, G, R + 5, "s[90:91]", psleep)
    stamp(3)
    if adelay is not None:
        a(f"s_sleep {adelay}\ns_waitcnt vmcnt(1)\ns_branch L_cnt1")
    a(f"""
    L_nopub:
    L_cnt:
    s_waitcnt vmcnt(0)
    L_cnt1:
    v_readfirstlane_b32 s52, v{R+9}
    s_cmp_ge_u32 s52, 32
    s_cbranch_scc1 L_cnt_ok
    s_sleep 32
    global_load_dword v{R+9}, v{R+4}, s[34:35] sc1
    s_sub_u32 s59, s59, 1
    s_cmp_gt_i32 s59, 0
    s_cbranch_scc1 L_cnt
    L_cnt_ok:
    s_cmp_lt_u32 s49, 2
    s_cbranch_scc1 L_gather
    """)
    if ded:
        a(f"""
        s_mov_b32 s42, 0
        """)
        nextjob_regs()
        a(f"""
        s_mov_b32 s59, {SPIN}
        L_img2:
        ds_read_b32 v15, v12 offset:{FLAGS+16}
        s_waitcnt lgkmcnt(0)
        v_cmp_eq_u32 vcc, 0, v15
        s_cbranch_vccz L_img2_ok
        s_sleep 1
        s_sub_u32 s59, s59, 1
        s_cmp_gt_i32 s59, 0
        s_cbranch_scc1 L_img2
        L_img2_ok:
        """)
        preread(4)
    else:
        a("s_branch L_imgwait")
    a("L_gather:")
    if gdelay: a(f"s_sleep {gdelay}")
    if stamps: a("s_mov_b32 s94, 0")
    a(f"s_mov_b32 s59, {SPIN}\nL_poll:")
    if stamps: a("s_add_u32 s94, s94, 1")
    for i in range(NG):
        a(f"s_or_b64 exec, s[{MK+2*i}:{MK+2*i+1}], 1")
        a(f"buffer_load_dwordx4 v[{G+4*i}:{G+4*i+3}], v{R+3}, s[20:23], {'s%d' % (80+i) if i else 0} offen sc1")
    a("s_mov_b64 exec, -1\ns_waitcnt vmcnt(0)")
    for i in range(NG):
        a(f"v_min_f32 v1, v{G+4*i+1}, v{G+4*i+3}")
        a(f"v_cmp_gt_f32 s[{MK+2*i}:{MK+2*i+1}], 0, v1")
    a(f"s_or_b64 s[52:53], s[{MK}:{MK+1}], s[{MK+2}:{MK+3}]")
    for i in range(2, NG):
        a(f"s_or_b64 s[52:53], s[52:53], s[{MK+2*i}:{MK+2*i+1}]")
    a(f"""
    s_cbranch_scc0 L_poll_done
    {"s_sleep %d" % rsleep if rsleep else ""}
    s_sub_u32 s59, s59, 1
    s_cmp_gt_i32 s59, 0
    s_cbranch_scc1 L_poll
    L_poll_done:
    """)
    if stamps: a(f"v_writelane_b32 v{VST2}, s94, 63")
    stamp(4)
    for step_ in (4, 2, 1):
        for i in range(step_):
            for h in range(4):
                x = G + 4 * i + h; y = G + 4 * (i + step_) + h
                a(f"v_add_f32 v{x}, v{x}, v{y}")
    x = G
    a(f"""
    s_mov_b32 s52, {f2u(1.0/LROWS)}
    s_nop 0
    v_permlane32_swap_b32 v{x}, v{x+2}
    v_permlane32_swap_b32 v{x+1}, v{x+3}
    s_nop 1
    v_add_f32 v{x}, v{x}, v{x+2}
    v_add_f32 v{x+1}, v{x+1}, v{x+3}
    v_mov_b32 v{x+2}, v{x}
    v_mov_b32 v{x+3}, v{x+1}
    s_nop 1
    v_permlane16_swap_b32 v{x}, v{x+2}
    v_permlane16_swap_b32 v{x+1}, v{x+3}
    s_nop 1
    v_add_f32 v{x}, v{x}, v{x+2}
    v_add_f32 v{x+1}, v{x+1}, v{x+3}
    v_mul_f32 v{G}, s52, v{G}             ; mean
    v_mul_f32 v{G+1}, s52, v{G+1}         ; E[h^2]
    v_fma_f32 v{G+1}, -v{G}, v{G}, v{G+1} ; var
    v_max_f32 v{G+1}, 0, v{G+1}
    v_add_f32 v{G+1}, {f2u(1e-5)}, v{G+1}
    v_rsq_f32 v{G+1}, v{G+1}
    s_lshl_b32 s52, s49, 2
    v_mul_f32 v{G+1}, v{G+1}, v{R+1}      ; KS*scale
    v_mov_b32 v1, s52
    v_fma_f32 v{G}, -v{G}, v{G+1}, v{R+2} ; KS*shift
    ds_write_b32 v{R}, v{G+1} offset:{CONST}
    ds_write_b32 v{R}, v{G} offset:{CONST+512}
    ds_write_b32 v1, v13 offset:{FLAGS}
    s_mov_b32 s59, {SPIN*16}
    """)
    if gprio is not None: a(f"s_setprio {gprio}")
    if ded: a("s_cmp_ge_u32 s49, 2\ns_cbranch_scc1 L_fw")
    a("s_branch L_imgwait")

    ACC = 128
    def acc(j, n): return ACC + (j * 4 + n) * 4
    BF = 64; AF = 32; NRING = 8
    aE, aE8, aO, bB = 16, 18, 20, 22
    VIMG, VPART, VPRD, VREC = 26, 27, 28, 29
    a("L_compute:")
    if mprio: a(f"s_setprio {mprio}")
    if codepf:
        a(f"""
        s_getpc_b64 s[52:53]
        L_pfbase:
        s_sub_u32 s52, s52, L_pfbase-L_compute
        s_subb_u32 s53, s53, 0
        s_lshl_b32 s50, s49, 5
        s_add_u32 s50, s50, s40
        s_lshl_b32 s50, s50, 7
        v_lshl_add_u32 v1, v0, 10, s50
        v_min_u32 v1, L_end-L_compute, v1
        s_mov_b64 exec, 15
        global_load_dword v30, v1, s[52:53]
        s_mov_b64 exec, -1
        """)
    a(f"""
    s_lshr_b32 s50, s49, 1                ; wm
    s_and_b32 s51, s49, 1                 ; wn
    v_and_b32 v32, 15, v0                 ; i
    v_lshrrev_b32 v33, 4, v0              ; g
    s_lshl_b32 s52, s50, 14
    v_bfe_u32 v34, v32, 1, 3
    v_xor_b32 v34, v34, v33
    v_lshlrev_b32 v34, 4, v34
    v_lshl_add_u32 v34, v32, 7, v34
    v_add_u32 v{aE}, s52, v34
    v_xor_b32 v{aE+1}, 64, v{aE}
    v_add_u32 v{aO}, {A_SLOT}, v{aE}
    v_add_u32 v{aO+1}, {A_SLOT}, v{aE+1}
    v_add_u32 v35, 1, v32
    s_mul_i32 s52, s50, 127
    s_add_u32 s52, s52, 128
    s_lshl_b32 s53, s50, 7
    v_add_u32 v35, s53, v35
    v_mov_b32 v36, s52
    v_cmp_eq_u32 vcc, 15, v32
    s_nop 1
    v_cndmask_b32 v35, v35, v36, vcc
    v_bfe_u32 v34, v35, 1, 3
    v_xor_b32 v34, v34, v33
    v_lshlrev_b32 v34, 4, v34
    v_lshl_add_u32 v{aE8}, v35, 7, v34
    v_xor_b32 v{aE8+1}, 64, v{aE8}
    v_bfe_u32 v34, v0, 2, 2
    v_lshl_add_u32 v35, v33, 3, v34
    v_bfe_u32 v34, v0, 2, 3
    v_lshlrev_b32 v34, 5, v34
    s_lshl_b32 s52, s51, 6
    v_xor_b32 v34, s52, v34
    v_and_b32 v36, 3, v0
    v_lshl_add_u32 v34, v36, 3, v34
    v_lshl_add_u32 v34, v35, 8, v34
    v_add_u32 v{bB}, {W_BASE}, v34
    v_xor_b32 v{bB+1}, 32, v{bB}
    v_xor_b32 v{bB+2}, 128, v{bB}
    v_xor_b32 v{bB+3}, 160, v{bB}
    s_mov_b64 s[64:65], -1
    s_mov_b64 s[66:67], -1
    s_cmp_eq_u32 s50, 0
    s_cbranch_scc1 L_nomask
    s_cmp_eq_u32 s47, 249
    s_cselect_b32 s65, 0xffff, -1
    s_cselect_b32 s67, -1, 0xffff
    L_nomask:
    v_bfe_u32 v34, v32, 2, 1
    v_mul_u32_u24 v34, 10, v34
    v_lshrrev_b32 v35, 3, v32
    v_or_b32 v34, v34, v35
    v_and_b32 v35, 1, v33
    v_xor_b32 v35, s51, v35
    v_lshl_add_u32 v34, v35, 2, v34
    v_lshlrev_b32 v34, 4, v34
    v_and_b32 v35, 3, v32
    v_lshl_add_u32 v34, v35, 2, v34
    v_lshl_add_u32 v34, v33, 13, v34
    s_lshl_b32 s52, s50, 15
    s_add_u32 s52, s52, {W_BASE}
    v_add_u32 v{VIMG}, s52, v34
    v_lshrrev_b32 v34, 5, v0
    v_lshl_add_u32 v34, v34, 4, v32
    s_lshl_b32 s52, s49, 8
    v_lshl_add_u32 v{VPART}, v34, 3, s52
    v_lshlrev_b32 v{VPRD}, 4, v0
    s_lshl_b32 s39, s48, 5
    s_add_u32 s39, s39, s44
    s_lshl_b32 s39, s39, 10
    s_add_u32 s39, s39, 512
    v_add_u32 v{VREC}, s39, v{VPRD}
    s_lshl_b32 s52, s49, 3
    s_lshl_b64 s[90:91], 0xff, s52
    s_lshl_b32 s52, s49, 2
    v_mov_b32 v15, s52
    s_waitcnt lgkmcnt(0)
    s_mov_b32 s20, s36
    s_mov_b32 s21, s37
    s_mov_b32 s22, 0x40000
    s_mov_b32 s23, 0x20000
    """)
    final_setup("c")
    if acc0 is None:
        for i in range(0, 128, 2): a(f"v_mov_b64 v[{ACC+i}:{ACC+i+1}], 0")
    else:
        for i in range(128): a(f"v_mov_b32 v{ACC+i}, {f2u(acc0)}")
    if stamps: a(f"v_writelane_b32 v{VST}, s92, 0")
    a(f"""
    s_mov_b32 s54, 0                      ; sE
    s_mov_b32 s55, {A_SLOT}               ; sO
    s_mov_b32 s56, 0
    s_mov_b32 s57, 4
    s_mov_b32 s63, 16384
    s_mov_b32 s61, 16
    """)
    if hop:
        if hopwait: a("s_waitcnt vmcnt(0)")
        a("""
        s_mov_b64 exec, 0
        s_cmp_eq_u32 s49, 0
        s_cbranch_scc1 L_hopg0
        s_cmp_eq_u32 s49, 1
        s_cbranch_scc1 L_hopg1
        s_cmp_eq_u32 s49, 2
        s_cbranch_scc1 L_hopg2
        s_branch L_hopg3
        L_hopret:
        s_mov_b64 exec, -1
        """)
    stamp(7)
    a("s_barrier")
    lq = []; ring = {}; rpos = [0]; occ = {}; dead = set()
    def afrags(t, j):
        if t < 2:
            return [("F", t, 0), ("F", t, 1)] if j == 0 else [("F", t, j + 1)]
        return [("G", 0, j), ("G", 1, j)]
    def atext(tag, d):
        kind, x, j = tag[:3]
        if kind == "F":
            if j < 8: return f"ds_read_b128 v[{d}:{d+3}], v{aE+x} offset:{j*2048}"
            return f"ds_read_b128 v[{d}:{d+3}], v{aE8+x}"
        return f"ds_read_b128 v[{d}:{d+3}], v{aO+x} offset:{j*2048}"
    def aread(tag):
        idx = rpos[0] % NRING; rpos[0] += 1
        if tag[0] == "F" and tag[2] == 8: rpos[0] += 1
        if idx in occ: assert occ[idx] in dead, (tag, idx, occ[idx])
        occ[idx] = tag; dead.discard(tag)
        ring[tag] = idx
        return ("lds", tag, atext(tag, AF + idx * 4))
    def bfrag(tag, d, n, pq, extra=0):
        return [("lds", tag, f"ds_read_b64_tr_b16 v[{d+2*h}:{d+2*h+1}], v{bB+n} offset:{extra + pq*8192 + h*1024}") for h in range(2)]
    def breg(buf, pq, n): return BF + buf * 32 + (pq * 4 + n) * 4
    def breads(buf):
        r = []
        for n in range(4):
            for pq in range(2): r += bfrag(("B", buf), breg(buf, pq, n), n, pq)
        return r
    def emit(op):
        if isinstance(op, tuple):
            lq.append(op[1]); a(op[2])
        else: a(op)
    def lwait(tags):
        last = max([i for i, t in enumerate(lq) if t in tags], default=-1)
        if last < 0: return
        n = min(15, len(lq) - 1 - last)
        a(f"s_waitcnt lgkmcnt({n})")
        del lq[:len(lq) - n]
    def badv():
        return ["s_add_u32 s56, s56, 16384", "s_cmp_eq_u32 s56, 0x10000", "s_cselect_b32 s58, 0xffff4000, s63", "s_and_b32 s56, s56, 0xffff"] + \
               [f"v_add_u32 v{bB+n}, s58, v{bB+n}" for n in range(4)]
    def mfma(d, ar, br): a(f"v_mfma_f32_16x16x32_bf16 v[{d}:{d+3}], v[{ar}:{ar+3}], v[{br}:{br+3}], v[{d}:{d+3}]")
    def bar():
        a("s_barrier")
        if itstamps:
            a(f"s_mov_b32 m0, s61\ns_add_u32 s61, s61, 1\nv_writelane_b32 v{VST}, s96, m0\nv_writelane_b32 v{VST2}, s98, m0")
            a("s_memrealtime s[96:97]\ns_memtime s[98:99]")
    if onebar: stamp(1)
    for op in breads(0): emit(op)
    for op in badv(): a(op)
    if not onebar:
        a("s_waitcnt lgkmcnt(0)")
        a("s_barrier")
        stamp(1)
    lq[:] = []
    if itstamps: a("s_memrealtime s[96:97]\ns_memtime s[98:99]")
    for j in range(LA):
        for tg in afrags(0, j): emit(aread(tg))
    for _ in range(shift): a("s_nop 0")
    init_state = (list(lq), dict(ring), rpos[0] % NRING)
    def run_gaps(mf, q, barrier_after=None, first_free=0, reserve_last=True):
        ng = len(mf)
        def isvalu(op): return isinstance(op, str) and op.startswith("v_")
        gaps = [g for g in range(first_free, ng) if not (reserve_last and g == ng - 1 and len(q) < ng - first_free)]
        if barrier_after is not None: gaps = [g for g in gaps if g > barrier_after]
        plan = {g: [] for g in range(ng)}
        cap = max(1, -(-len(q) // max(1, len(gaps))))
        while True:
            for g in plan: plan[g] = []
            gi = 0; ok = True
            for op in q:
                while gi < len(gaps) and (len(plan[gaps[gi]]) >= cap or (isvalu(op) and not valu_in and gaps[gi] % 2 == 0)): gi += 1
                if gi >= len(gaps): ok = False; break
                plan[gaps[gi]].append(op)
            if ok: break
            if reserve_last and ng - 1 not in gaps: gaps.append(ng - 1)
            else: cap += 1
        for g, m in enumerate(mf):
            mfma(*m)
            if g == barrier_after: bar()
            for op in plan[g]:
                if isinstance(op, tuple) and op[0] == "A": op = aread(op[1])
                emit(op)
    def step(k):
        t = k % 3; buf = k & 1
        tn = (t + 1) % 3
        bq = breads(buf ^ 1)
        JB = 8 - LA
        nb_per = 4
        bv = badv()
        for j in range(8):
            X, Y = (("F", t, j), ("F", t, j + 1)) if t < 2 else (("G", 0, j), ("G", 1, j))
            need = {X, Y}
            if j == 0: need.add(("B", buf))
            q = []
            if j == JB: lwait(set(lq))
            else: lwait(need)
            if j + LA < 8: q += [("A", tg) for tg in afrags(t, j + LA)]
            else: q += [("A", tg) for tg in afrags(tn, j + LA - 8)]
            for _ in range(nb_per):
                if bq: q.append(bq.pop(0))
            def mix(q, v):
                out = []
                while q or v:
                    if q: out.append(q.pop(0))
                    if v: out.append(v.pop(0))
                return out
            if j == 4: q += bv[:4]
            if j == 5: q = mix(q, bv[4:])
            if t == 1 and j == 6: q += [f"s_add_u32 s59, s54, s55", f"s_sub_u32 s59, {3*A_SLOT}, s59", "s_sub_u32 s60, s59, s54"]
            if t == 1 and j == 7: q = mix(q, [f"v_add_u32 v{r}, s60, v{r}" for r in (aE, aE + 1, aE8, aE8 + 1)])
            if t == 2 and j == 6: q += ["s_sub_u32 s60, s54, s55", "s_mov_b32 s55, s54", "s_mov_b32 s54, s59"]
            if t == 2 and j == 7:
                q = mix(q, [f"v_add_u32 v{r}, s60, v{r}" for r in (aO, aO + 1)])
                if k == 2: q += ["s_sub_u32 s57, s57, 1", "s_cmp_eq_u32 s57, 0"]
            xr = AF + ring[X] * 4; yr = AF + ring[Y] * 4
            mf = []
            for n in range(4):
                pr = [(xr, breg(buf, 0, n)), (yr, breg(buf, 1, n))]
                if n % 2 == 1: pr = pr[::-1]
                mf += [(acc(j, n), ar, br) for ar, br in pr]
            run_gaps(mf, q, barrier_after=1 if j == JB else None)
            dead.add(X)
            if t == 2 or j == 7: dead.add(Y)
        assert not bq
    a("L_cloop:")
    for k in range(6):
        a(f"; ---- step {k}")
        step(k)
        if k == 2:
            saved = (list(lq), dict(ring))
            a("s_cbranch_scc1 L_clast")
    end_state = (list(lq), {k_: v for k_, v in ring.items() if k_ in init_state[1]}, rpos[0] % NRING)
    assert end_state == init_state, (end_state, init_state)
    a("s_branch L_cloop")
    a("L_clast:")
    if cprio: a(f"s_setprio {cprio}")
    stamp(11)
    lq[:] = [t + (0,) for t in saved[0]]
    loc = {t + (0,): AF + saved[1][t] * 4 for t in saved[0]}
    free = [AF + 4 * i for i in range(NRING) if AF + 4 * i not in loc.values()]
    bloc = {}
    for n in range(4):
        for pq in range(2):
            bloc[(0, pq, n)] = breg(1, pq, n); bloc[(1, pq, n)] = breg(0, pq, n)
            bloc[(2, pq, n)] = breg(1, pq, n) if n < 2 else breg(0, pq, n - 2)
    T0 = breg(1, 0, 0)
    def stats(h):
        for n in (2 * h, 2 * h + 1):
            a(f"v_cndmask_b32 v{acc(1,n)+3}, 0, v{acc(1,n)+3}, s[64:65]")
            a(f"v_cndmask_b32 v{acc(2,n)+3}, 0, v{acc(2,n)+3}, s[66:67]")
        for j in range(8):
            for hh in range(2):
                for n in (2 * h, 2 * h + 1):
                    x = acc(j, n) + 2 * hh; S = T0 + 4 * (n & 1); Q = S + 2
                    if j == 0 and hh == 0:
                        a(f"v_pk_mul_f32 v[{Q}:{Q+1}], v[{x}:{x+1}], v[{x}:{x+1}]")
                    else:
                        a(f"v_pk_fma_f32 v[{Q}:{Q+1}], v[{x}:{x+1}], v[{x}:{x+1}], v[{Q}:{Q+1}]")
                        src = f"v[{x-2}:{x-1}]" if j == 0 else f"v[{S}:{S+1}]"
                        a(f"v_pk_add_f32 v[{S}:{S+1}], {src}, v[{x}:{x+1}]")
        a(f"""
        v_add_f32 v{T0}, v{T0}, v{T0+1}
        v_add_f32 v{T0+4}, v{T0+4}, v{T0+5}
        v_add_f32 v{T0+1}, v{T0+2}, v{T0+3}
        v_add_f32 v{T0+5}, v{T0+6}, v{T0+7}
        s_nop 0
        v_permlane32_swap_b32 v{T0}, v{T0+4}
        v_permlane32_swap_b32 v{T0+1}, v{T0+5}
        s_nop 0
        v_add_f32 v{T0}, v{T0}, v{T0+4}
        v_add_f32 v{T0+1}, v{T0+1}, v{T0+5}
        v_mov_b32 v{T0+4}, v{T0}
        v_mov_b32 v{T0+5}, v{T0+1}
        s_nop 1
        v_permlane16_swap_b32 v{T0}, v{T0+4}
        v_permlane16_swap_b32 v{T0+1}, v{T0+5}
        s_nop 0
        v_add_f32 v{T0}, v{T0}, v{T0+4}
        v_add_f32 v{T0+1}, v{T0+1}, v{T0+5}
        """)
        emit(("lds", "P", f"ds_write_b64 v{VPART}, v[{T0}:{T0+1}] offset:{PART + 1024*h}"))
    def image_ops(h):
        ops = []
        for n in (2 * h, 2 * h + 1):
            for f in range(2):
                ops.append(f"v_xor_b32 v{4+f}, {((n&1)<<5) ^ (f<<7)}, v{VIMG}")
                for j in range(8):
                    if (j >> 1) & 1 != f: continue
                    for r in (0, 2):
                        x = acc(j, n) + r
                        ops.append(("lds", "I", f"ds_write2st64_b32 v{4+f}, v{x}, v{x+1} offset0:{8*r+j} offset1:{8*(r+1)+j}"))
        ops.append(("lds", "F", f"ds_write_b32 v15, v13 offset:{FLAGS + 16 + 16*h}"))
        return ops
    seq = [(0, t, j) for t in range(3) for j in range(8)]
    if jouter: seq += [(1, t, j) for j in range(8) for t in range(3)]
    else: seq += [(1, t, j) for t in range(3) for j in range(8)]
    aorder = []
    for s, (h, t, j) in enumerate(seq):
        for tg in afrags(t, j):
            if tg + (h,) not in loc: aorder.append((s, tg + (h,)))
    s_a0, s_a1, s_a2 = 7, 16 - LB, 16 + 5
    bq = []; iq = []; sq = []
    def plain_stats(j):
        ops = []
        for n in (2, 3):
            if j in (1, 2): ops.append(f"v_cndmask_b32 v{acc(j,n)+3}, 0, v{acc(j,n)+3}, s[{62+2*j}:{63+2*j}]")
        for r in range(4):
            for n in (2, 3):
                x = acc(j, n) + r; S = T0 + 4 * (n & 1) + 2; Q = S + 1
                if j == 0 and r == 0: ops.append(f"v_mul_f32 v{Q}, v{x}, v{x}")
                else:
                    ops.append(f"v_fmac_f32 v{Q}, v{x}, v{x}")
                    ops.append(f"v_add_f32 v{S}, v{x-1 if (j == 0 and r == 1) else S}, v{x}")
        return ops
    def pairs_of(h, t, j):
        X, Y = (("F", t, j, h), ("F", t, j + 1, h)) if t < 2 else (("G", 0, j, h), ("G", 1, j, h))
        return X, Y
    for s, (h, t, j) in enumerate(seq):
        if h == 0 and j == 0:
            a(f"; ---- last chunk pass A step {t}")
            bq = []
            if t == 1: late = carry
            ns_ = range(4) if t == 0 else (range(2) if t == 1 else range(2, 4))
            for n in ns_:
                for pq in range(2):
                    tb = 1 if t == 0 else 2
                    bq += bfrag(("LB", tb, n >> 1), bloc[(tb, pq, n)], n, pq, extra=(tb - 1) * 16384)
            if t == 1: bq += late
        if s == 24:
            a("; ---- last chunk pass B")
            a("s_nop 4")
            stats(0)
            stamp(5)
            iq = image_ops(0)
            free += [breg(1, 1, 0), breg(1, 1, 1)]
        X, Y = pairs_of(h, t, j)
        need = {X, Y} | ({("LB", t, h)} if j == 0 else set())
        if s == s_a2: need |= {("LB", 2, 1)}
        lwait(need)
        q = []
        while aorder and aorder[0][0] <= s + LB and free and len(q) < 2 and not (aorder[0][1][0] == "G" and s < s_a1):
            _, tg = aorder.pop(0)
            d = free.pop(0); loc[tg] = d
            q.append(("lds", tg, atext(tg, d)))
        for _ in range(2):
            if bq and (len(q) < 3 or t == 2): q.append(bq.pop(0))
        while iq and len(q) < 2 + iper: q.append(iq.pop(0))
        mf = []
        for n in (2 * h, 2 * h + 1):
            pr = [(loc[X], bloc[(t, 0, n)]), (loc[Y], bloc[(t, 1, n)])]
            if n % 2 == 1: pr = pr[::-1]
            mf += [(acc(j, n), ar, br) for ar, br in pr]
        run_gaps(mf, q, barrier_after=1 if s in (s_a0, s_a1, s_a2) else None, first_free=1 if j == 0 else 0)
        free.append(loc[X])
        if t == 2 or j == 7: free.append(loc[Y])
        if h == 0 and t == 0 and j == 7: carry = list(bq)
        if h == 0 and t > 0 and (j == 7 or s == s_a2 - 1): assert not bq, (s, bq)
    assert not aorder and not iq
    stamp(2)
    if probes:
        for pi in range(10):
            a(f"v_writelane_b32 v{VST}, s{68+2*pi}, {40+pi}")
            a(f"s_mov_b32 s100, L_probe{pi}-{NAME}_kernel\nv_writelane_b32 v{VST2}, s100, {40+pi}")
        a(f"s_getpc_b64 s[100:101]\nL_pq:\ns_sub_u32 s100, s100, L_pq-{NAME}_kernel\nv_writelane_b32 v{VST2}, s100, 50")
    a(f"s_nop 7\ns_mov_b32 s59, {SPIN}")
    if jouter:
        for op in plain_stats(7): a(op)
        a(f"""
        s_nop 0
        v_permlane32_swap_b32 v{T0+3}, v{T0+7}
        v_permlane32_swap_b32 v{T0+2}, v{T0+6}
        s_nop 0
        v_add_f32 v{T0+3}, v{T0+3}, v{T0+7}
        v_add_f32 v{T0+2}, v{T0+2}, v{T0+6}
        v_mov_b32 v{T0+7}, v{T0+3}
        v_mov_b32 v{T0+6}, v{T0+2}
        s_nop 1
        v_permlane16_swap_b32 v{T0+3}, v{T0+7}
        v_permlane16_swap_b32 v{T0+2}, v{T0+6}
        s_nop 0
        v_add_f32 v{T0+3}, v{T0+3}, v{T0+7}
        v_add_f32 v{T0+2}, v{T0+2}, v{T0+6}
        ds_write_b64 v{VPART}, v[{T0+2}:{T0+3}] offset:{PART + 1024}
        """)
    else:
        stats(1)
    stamp(13)
    part_publish("L_cpart", VPRD, 1, 32, VREC, "s[90:91]", 0)
    if not hk: a("s_setprio 0")
    stamp(3)
    a(f"v_add_u32 v{VIMG}, s40, v{VIMG}")
    for op in image_ops(1): emit(op)
    SC, SH, T, O, Y = 16, 24, 32, 40, 48
    a(f"""
    L_imgwait:
    s_mov_b32 s59, {SPIN*16}
    L_img:
    ds_read_b32 v15, v12 offset:{FLAGS+16}
    s_waitcnt lgkmcnt(0)
    v_cmp_eq_u32 vcc, 0, v15
    s_cbranch_vccz L_job
    s_sleep {isleep}
    s_sub_u32 s59, s59, 1
    s_cmp_gt_i32 s59, 0
    s_cbranch_scc1 L_img
    L_job:
    """)
    preread(4)
    if hk == 2: a("s_cmp_ge_u32 s3, 4\ns_cbranch_scc1 L_fw\ns_setprio 0")
    a(f"""
    L_fw:
    ds_read_b32 v15, v14 offset:{FLAGS}
    ds_read_b128 v[{SC}:{SC+3}], v11 offset:{CONST}
    ds_read_b128 v[{SC+4}:{SC+7}], v11 offset:{CONST+16}
    ds_read_b128 v[{SH}:{SH+3}], v11 offset:{CONST+512}
    ds_read_b128 v[{SH+4}:{SH+7}], v11 offset:{CONST+528}
    s_waitcnt lgkmcnt(0)
    v_cmp_eq_u32 vcc, 0, v15
    s_cbranch_vccz L_fw_ok
    {"s_sleep %d" % fsleep if fsleep else ""}
    s_sub_u32 s59, s59, 1
    s_cmp_gt_i32 s59, 0
    s_cbranch_scc1 L_fw
    L_fw_ok:
    """)
    if stamps or amp == 14:
        a("s_cmp_eq_u32 s42, 0\ns_cbranch_scc1 L_st8")
        stamp(14)
        a("L_st8:")
    stamp(8)
    def lowprio(lb):
        if hk == 1: a(f"s_setprio 1\ns_cmp_ge_u32 s3, 4\ns_cbranch_scc1 {lb}\ns_setprio 0\n{lb}:")
    lowprio("L_lp1")
    def p(x): return f"v[{x}:{x+1}]"
    for i in (3, 2, 1, 0):
        if i == 1: a("L_g2:")
        h = HH + 8 * i; o = O + 4 * (i & 1)
        for j in range(0, 8, 2): a(f"v_pk_fma_f32 {p(h+j)}, {p(h+j)}, {p(SC+j)}, {p(SH+j)}")
        for j in range(0, 8, 2): a(f"v_pk_fma_f32 {p(T+j)}, {p(h+j)}, {p(h+j)}, s[24:25]")
        for j in range(0, 8, 2): a(f"v_pk_mul_f32 {p(T+j)}, {p(T+j)}, {p(h+j)} neg_lo:[1,0] neg_hi:[1,0]")
        for j in range(8): a(f"v_exp_f32 v{T+j}, v{T+j}")
        for j in range(0, 8, 2): a(f"v_pk_fma_f32 {p(T+j)}, {p(T+j)}, s[26:27], s[26:27]")
        for j in range(8): a(f"v_rcp_f32 v{T+j}, v{T+j}")
        for j in range(0, 8, 2): a(f"v_pk_mul_f32 {p(T+j)}, {p(T+j)}, {p(h+j)}")
        for j in range(0, 8, 2): a(f"v_cvt_pk_bf16_f32 v{o+j//2}, v{T+j}, v{T+j+1}")
        if sthr is not None: a(f"s_waitcnt vmcnt({sthr})")
        if not nostore: a(f"buffer_store_dwordx4 v[{o}:{o+3}], v{10 if i == 0 else VO+i}, s[16:19], 0 offen{omod}")
    a("s_cmp_eq_u32 s42, 0\ns_cbranch_scc1 L_fin")
    if hk == 1: a("s_setprio 2")
    if hk == 2: a("s_cmp_ge_u32 s3, 4\ns_cbranch_scc1 L_hk2\ns_setprio 3\nL_hk2:")
    stamp(12)
    if ded:
        a("s_sub_u32 s42, s42, 1\ns_cmp_eq_u32 s42, 0\ns_cbranch_scc1 L_toB")
        a(f"""
        v_add_u32 v8, s0, v6
        v_add_u32 v10, s1, v7
        v_xor_b32 v9, 160, v8
        """)
        preread(2)
        a("s_waitcnt lgkmcnt(0)")
        lowprio("L_lp2")
        a("s_branch L_g2\nL_toB:")
    else: a("s_mov_b32 s42, 0")
    nextjob_regs()
    if not ded: a("s_cmp_ge_u32 s3, 6\ns_cbranch_scc1 L_gather")
    a("s_branch L_imgwait\nL_fin:")
    if hold in (9, 10) and not stamps: stamp(hold)
    if amp is not None:
        if amp == 9: stamp(9)
        a("s_waitcnt vmcnt(0)")
        if amp == 10: stamp(10)
        a("s_waitcnt lgkmcnt(0)")
        if ampw == "c": a("s_cmp_ge_u32 s3, 4\ns_cselect_b32 s94, s92, s94")
        if ampw == "l": a("s_cmp_lt_u32 s3, 4\ns_cselect_b32 s94, s92, s94")
        a(f"""
        L_amp0:
        s_sleep 8
        s_memrealtime s[96:97]
        s_waitcnt lgkmcnt(0)
        s_sub_u32 s96, s96, s92
        s_cmp_lt_u32 s96, 4000
        s_cbranch_scc1 L_amp0
        s_not_b32 s95, s92
        v_mov_b32 v4, s94
        v_mov_b32 v5, s95
        v_mov_b32 v1, 8
        s_mov_b64 exec, 1
        global_atomic_umax v1, v4, s[34:35]
        global_atomic_umax v1, v5, s[34:35] offset:4
        s_waitcnt vmcnt(0)
        L_amp1:
        s_sleep 8
        s_memrealtime s[96:97]
        s_waitcnt lgkmcnt(0)
        s_sub_u32 s96, s96, s92
        s_cmp_lt_u32 s96, 16000
        s_cbranch_scc1 L_amp1
        global_load_dwordx2 v[4:5], v1, s[34:35] sc1
        s_waitcnt vmcnt(0)
        v_readfirstlane_b32 s94, v4
        v_readfirstlane_b32 s95, v5
        s_not_b32 s95, s95
        s_sub_u32 s94, s94, s95
        s_mul_i32 s94, s94, 10
        s_add_u32 s94, s94, 18900
        s_min_u32 s94, s94, 100000
        L_amp2:
        s_sleep 2
        s_memrealtime s[96:97]
        s_waitcnt lgkmcnt(0)
        s_sub_u32 s96, s96, s95
        s_cmp_lt_u32 s96, s94
        s_cbranch_scc1 L_amp2
        """)
    if stamps:
        stamp(9)
        a("s_waitcnt vmcnt(0)")
        stamp(10)
        a(f"""
        s_lshl_b32 s52, s2, 12
        s_lshl_b32 s53, s3, 9
        s_add_u32 s52, s52, s53
        s_add_u32 s52, s52, {STAMP_OFF}
        v_lshlrev_b32 v1, 3, v0
        v_add_u32 v1, s52, v1
        global_store_dwordx2 v1, v[{VST}:{VST2}], s[36:37]
        s_waitcnt vmcnt(0)
        """)
    a("L_end:\ns_endpgm")
    if relayout:
        L = a.lines
        ix = {t: L.index(t) for t in ("L_ltail:", "L_compute:", "L_cloop:", "L_imgwait:", "L_end:")}
        a.lines = (L[:ix["L_ltail:"]] + ["    s_branch L_ltail", ".p2align 12", "L_page:"] +
                   L[ix["L_compute:"]:ix["L_cloop:"]] + ["    s_branch L_cloop"] +
                   L[ix["L_ltail:"]:ix["L_compute:"]] + L[ix["L_imgwait:"]:ix["L_end:"]] + ["    s_endpgm", ".p2align 6"] +
                   L[ix["L_cloop:"]:ix["L_imgwait:"]] + ["    s_branch L_imgwait"] + L[ix["L_end:"]:])
        if hop: a.lines = add_hops(a.lines, [("L_ltail:", "L_end:")], hop, page="L_page:")
    elif hop: a.lines = add_hops(a.lines, [("L_lloop:", "L_compute:"), ("L_cloop:", "L_end:")], hop)
    if align8: a.lines = pad8(a.lines, "L_cloop:", "L_cpart:")
    hazcheck(a.lines)
    return wrap(DOC + a.text(), 256, 512, 163840, 256)

if __name__ == "__main__":
    out = sys.argv[1]
    kw = json.loads(sys.argv[2]) if len(sys.argv) > 2 else {}
    open(out, "w").write(gen(**kw))
```

```python
import sys, json, struct
from asmlib import *

def f2u(f): return struct.unpack("<I", struct.pack("<f", f))[0]

LROWS = 7999
C1 = -2.0 * 0.7978845608028654 * 1.4426950408889634
C2 = C1 * 0.044715
KS = (-C2) ** (1.0 / 3.0)
CP = -C1 / KS
SENT = 0xBF800000
A_SLOT = 32768
W_BASE = 98304
MISC = 32768
PART = MISC
CONST = MISC + 2048
FLAGS = MISC + 3072
STAMP_OFF = 1 << 20
SPIN = 0x40000

DOC = """    ; Fused strided conv (as a GEMM, K = 3 taps x 512) + per-(batch,channel) norm over time + tanh-GELU.
    ; Exchange: every workgroup resets its {sum, sumsq} record in d_ws to a sentinel, counts that in d_debug,
"""

def gen(stamps=False, xmod="", wmod="", omod=" sc1", codepf=True, itstamps=False, hold=None, holdus=40,
        parity=True, psleep=1, fsleep=1, rsleep=0, lprio=2, cprio=3, LA=2, LB=3, only=None, wpar=True, jouter=False, ded=False, onebar=False, align8=False, shift=0, pf2=False, isleep=2, probes=False, ilv=True, hop=0, acc0=None, relayout=True, hopwait=False, nostore=False, gprio=None, hk=False, sthr=None, alt=1, snake=False, amp=None, ampw=None, swap=False, mprio=0, valu_in=False, iper=1, lag=True, lagfrom=3, rampv=0, pfk=19, otouch=None, bmap=0, adelay=None, gdelay=0, bdelay=0, edelay=0, ackfirst=False):
    a = Asm()
    VST, VST2 = 2, 3
    def stamp(k):
        if hold == k:
            lb = a.label("L_hold")
            a(f"""s_waitcnt lgkmcnt(0)
            {lb}:
            s_memrealtime s[96:97]
            s_waitcnt lgkmcnt(0)
            s_sub_u32 s96, s96, s92
            s_cmp_lt_u32 s96, {holdus*100}
            s_cbranch_scc1 {lb}""")
        if amp == k: a("s_memrealtime s[94:95]")
        if not stamps or (only is not None and k not in only): return
        a(f"s_memrealtime s[100:101]\ns_waitcnt lgkmcnt(0)\nv_writelane_b32 v{VST}, s100, {k}")
        if k in (1, 2, 8, 9): a(f"s_memtime s[100:101]\ns_waitcnt lgkmcnt(0)\nv_writelane_b32 v{VST2}, s100, {k}")
    def final_setup(role):
        a(f"""
        s_mul_i32 s38, s43, {LROWS}
        s_add_u32 s38, s38, s45
        s_lshl_b32 s38, s38, 10
        s_add_u32 s16, s32, s38
        s_addc_u32 s17, s33, 0
        s_lshl_b32 s18, s47, 10
        s_mov_b32 s19, 0x20000
        v_and_b32 v1, 7, v0                   ; o
        v_lshrrev_b32 v8, 3, v0
        s_and_b32 s38, s49, 1
        s_lshl_b32 s40, s38, 5
        s_add_u32 s40, s40, {64 if role == "c" else 0}
        v_add_u32 v8, s40, v8
        s_lshl_b32 s38, s38, 2
        v_xor_b32 v9, s38, v1                 ; o ^ 4*((row>>5)&1)
        v_bfe_u32 v10, v0, 4, 1               ; f
        v_lshl_add_u32 v9, v10, 3, v9
        v_lshlrev_b32 v9, 4, v9
        v_lshl_add_u32 v9, v8, 8, v9
        s_lshr_b32 s38, s49, 1
        s_lshl_b32 s40, s38, 15
        s_add_u32 s42, s40, {W_BASE}
        v_add_u32 v6, s42, v9
        s_sub_u32 s40, s40, {W_BASE}
        s_lshl_b32 s42, s38, 7
        v_add_u32 v8, s42, v8
        v_lshlrev_b32 v8, 10, v8
        v_lshl_add_u32 v7, v1, 4, v8
        s_lshl_b32 s42, s41, 8
        v_add_u32 v7, s42, v7
        v_lshlrev_b32 v11, 5, v1
        v_and_b32 v14, 1, v0
        v_lshlrev_b32 v14, 2, v14             ; constflag[lane&1]
        v_and_b32 v12, 3, v0
        v_lshlrev_b32 v12, 2, v12             ; imgflag[lane&3]
        v_mov_b32 v13, 1
        v_mov_b32 v8, v6
        v_xor_b32 v9, 160, v6
        v_mov_b32 v10, v7
        s_mov_b32 s24, {f2u(CP)}
        s_mov_b32 s25, {f2u(CP)}
        s_mov_b32 s26, {f2u(KS)}
        s_mov_b32 s27, {f2u(KS)}
        """)
        if not ded: a("s_mov_b32 s42, 1")
        elif role == "l": a("s_mov_b32 s42, 2\ns_mov_b32 s0, 32768\ns_mov_b32 s1, 131072")
        else: a(f"s_add_u32 s42, s38, 1\ns_mov_b32 s0, {(-48*256) & 0xffffffff}\ns_mov_b32 s1, {(-48*1024) & 0xffffffff}")
    HH, VO = 160, 60
    def preread(n):
        for i in range(n - 1, -1, -1):
            a(f"ds_read_b128 v[{HH+8*i}:{HH+8*i+3}], v8 offset:{2048*i}\nds_read_b128 v[{HH+8*i+4}:{HH+8*i+7}], v9 offset:{2048*i}")
        for i in range(1, n): a(f"v_add_u32 v{VO+i}, {8192*i}, v10")
    def part_publish(lbl, vaddr, half, x, vrec, maskreg, sleep):
        a(f"""
        {lbl}:
        ds_read_b128 v[{x}:{x+3}], v{vaddr} offset:{PART + 1024*half}
        s_waitcnt lgkmcnt(0)
        v_min_f32 v1, v{x+1}, v{x+3}
        v_cmp_gt_f32 vcc, 0, v1
        s_cbranch_vccz {lbl}_ok
        {"s_sleep %d" % sleep if sleep else ""}
        s_sub_u32 s59, s59, 1
        s_cmp_gt_i32 s59, 0
        s_cbranch_scc1 {lbl}
        {lbl}_ok:
        """)
        for i in range(4): a(f"v_mov_b32 v{x+4+i}, v{x+i}")
        for i in range(4): a(f"v_permlane32_swap_b32 v{x+i}, v{x+4+i}")
        for i in range(4): a(f"v_add_f32 v{x+i}, v{x+i}, v{x+4+i}")
        a(f"""
        s_mov_b64 exec, {maskreg}
        buffer_store_dwordx4 v[{x}:{x+3}], v{vrec}, s[20:23], 0 offen sc1
        s_mov_b64 exec, -1
        """)
    a(f"""
    s_cmp_ge_u32 s2, 256
    s_cbranch_scc1 L_end
    s_load_dwordx4 s[4:7], s[0:1], 0      ; x, w
    s_load_dwordx4 s[28:31], s[0:1], 16
    s_load_dwordx4 s[32:35], s[0:1], 32
    s_load_dwordx2 s[36:37], s[0:1], 48   ; ws
    """)
    if stamps or hold is not None or amp is not None: a("s_memrealtime s[92:93]")
    if amp is not None: a("s_memrealtime s[94:95]")
    a(f"""
    v_lshrrev_b32 v1, 6, v0
    v_and_b32 v0, 63, v0
    v_readfirstlane_b32 s3, v1
    s_and_b32 s38, s2, 7
    {"s_lshr_b32 s40, s38, 1" if bmap else ""}
    {"s_and_b32 s38, s38, 1" if bmap else ""}
    {"s_lshl_b32 s38, s38, 2" if bmap else ""}
    {"s_add_u32 s38, s38, s40" if bmap else ""}
    s_bfe_u32 s40, s2, 0x30005
    s_bfe_u32 s41, s2, 0x20003
    s_lshl_b32 s42, s38, 3
    s_add_u32 s42, s42, s40               ; mt 0..63
    s_lshr_b32 s43, s42, 5                ; batch
    s_and_b32 s44, s42, 31
    s_mul_i32 s45, s44, 250
    s_mul_i32 s46, s43, 8000
    s_add_u32 s46, s46, s45
    s_cmp_eq_u32 s44, 31
    s_cselect_b32 s47, 1, 0
    s_sub_u32 s47, 250, s47               ; nvalid
    s_lshl_b32 s48, s43, 2
    s_add_u32 s48, s48, s41
    s_and_b32 s49, s3, 3
    {"s_xor_b32 s3, s3, 4" if swap else ""}
    s_cmp_lt_u32 s3, 4
    s_cbranch_scc1 L_compute
    """)
    VA, VW = 56, 60
    a(f"""
    v_lshrrev_b32 v4, 4, v0               ; l>>4
    v_and_b32 v5, 15, v0
    v_lshlrev_b32 v6, 1, v4
    v_xor_b32 v5, v5, v6                  ; W chunk (n<2)
    s_and_b32 s50, s49, 1
    s_lshl_b32 s51, s50, 14
    s_lshl_b32 s52, s41, 8
    s_add_u32 s51, s51, s52
    v_lshlrev_b32 v5, 4, v5
    v_lshl_add_u32 v5, v4, 10, v5
    s_and_b32 s53, s40, {1 if wpar else 0}
    s_mul_i32 s52, s53, {8192 + 128}
    v_add_u32 v5, s51, v5
    v_xor_b32 v{VW}, s52, v5
    v_xor_b32 v{VW+2}, {8192 + 128}, v{VW}
    v_add_u32 v{VW+1}, 3072, v{VW}
    v_add_u32 v{VW+3}, 3072, v{VW+2}
    s_lshl_b32 s51, s49, 12
    s_lshl_b32 s53, s53, 11
    s_add_u32 s51, s51, s53
    s_add_u32 s51, s51, {W_BASE}
    s_lshr_b32 s62, s49, 1                ; lw>=2
    s_lshl_b32 s54, s62, 20               ; sB0
    s_mov_b32 s14, 1572864
    s_mov_b32 s15, 0x20000
    s_mov_b32 m0, s51
    s_waitcnt lgkmcnt(0)
    s_mov_b32 s12, s6
    s_mov_b32 s13, s7
    """)
    if stamps: a(f"v_writelane_b32 v{VST}, s92, 0")
    vq = []
    def issueA(slot_s, soff, tag, halves=(0, 1)):
        for half in halves:
            if half == halves[0]: a(f"s_add_u32 m0, s50, {slot_s}")
            if half == 1: a(f"s_xor_b32 m0, m0, 4096")
            a("s_nop 0")
            for n in range(4):
                vq.append(tag)
                a(f"buffer_load_dwordx4 v{VA+half*2+(n&1)}, s[8:11], {soff} offen offset:{n*1024}{xmod} lds")
    def issueW(slot_s, soff, tag, setm0=True, halves=(0, 1)):
        for half in halves:
            if half == halves[0] and setm0: a(f"s_add_u32 m0, s51, {slot_s}")
            if half == 1: a("s_xor_b32 m0, m0, 2048")
            if setm0 or half == 1: a("s_nop 0")
            for n in range(2):
                vq.append(tag)
                a(f"buffer_load_dwordx4 v{VW+2*half+n}, s[12:15], {soff} offen offset:{n*1024}{wmod} lds")
    def vwait(tags):
        last = max([i for i, t in enumerate(vq) if t in tags], default=-1)
        n = len(vq) - 1 - last
        a(f"s_waitcnt vmcnt({n})")
        return n
    def Aname(k): return f"E{k//3}" if k % 3 < 2 else f"O{k//3}"
    issueW(0, "s54", "B0", setm0=False, halves=(0,) if wpar else (0, 1))
    a(f"""
    v_and_b32 v5, 7, v0
    v_xor_b32 v5, v5, v4
    v_lshlrev_b32 v5, 4, v5
    v_lshrrev_b32 v6, 3, v0
    v_lshl_add_u32 v5, v6, 14, v5
    s_lshl_b32 s52, s62, 18
    s_lshl_b32 s53, s50, 13
    s_add_u32 s52, s52, s53
    s_and_b32 s53, s41, {1 if parity else 0}
    s_lshl_b32 s53, s53, 12
    s_add_u32 s52, s52, s53
    v_add_u32 v{VA}, s52, v5
    v_xor_b32 v{VA+2}, 4096, v{VA}
    v_xor_b32 v{VA+1}, 64, v{VA}
    v_xor_b32 v{VA+3}, 64, v{VA+2}
    v_add_u32 v{VA+1}, {64*2048 - 1024}, v{VA+1}
    v_add_u32 v{VA+3}, {64*2048 - 1024}, v{VA+3}
    s_lshl_b32 s50, s49, 13
    s_add_u32 s50, s50, s53
    s_lshl_b32 s10, s47, 11
    s_add_u32 s10, s10, 1024
    s_mov_b32 s11, 0x20000
    s_lshl_b32 s57, s46, 11
    s_add_u32 s8, s4, s57
    s_addc_u32 s9, s5, 0
    s_mov_b32 s52, 0                      ; x k-offset (E)
    s_mov_b32 s53, 1024                   ; x k-offset (O)
    s_add_u32 s55, s54, 0x8000            ; sB1
    s_lshl_b32 s56, s62, 15
    s_add_u32 s56, s56, 0x80000           ; sB2
    """)
    issueA(0, "s52", "E0", halves=(0,))
    if wpar: issueW(16384, "s55", "B1", halves=(0,))
    stamp(5)
    R = 80
    NG = 8; MK = 64; G = 96
    a(f"""
    s_mov_b32 s20, s36
    s_mov_b32 s21, s37
    s_mov_b32 s22, 0x40000
    s_mov_b32 s23, 0x20000
    s_lshl_b32 s39, s48, 5
    s_add_u32 s39, s39, s44
    s_lshl_b32 s39, s39, 10
    v_lshlrev_b32 v{R+6}, 4, v0
    v_add_u32 v{R+5}, s39, v{R+6}
    v_and_b32 v1, 15, v0
    v_lshrrev_b32 v5, 5, v0
    v_lshl_add_u32 v5, v1, 1, v5
    s_lshl_b32 s57, s49, 5
    v_add_u32 v{R}, s57, v5
    s_lshl_b32 s57, s41, 7
    v_add_u32 v{R+7}, s57, v{R}
    v_lshlrev_b32 v{R+7}, 1, v{R+7}
    v_lshlrev_b32 v{R}, 2, v{R}
    v_lshlrev_b32 v1, 4, v1
    v_lshl_add_u32 v1, v4, 10, v1
    s_lshl_b32 s57, s48, 15
    s_lshl_b32 s58, s49, 8
    s_add_u32 s57, s57, s58
    v_add_u32 v{R+3}, s57, v1
    s_lshl_b32 s57, s48, 5
    v_mov_b32 v{R+4}, s57
    s_add_u32 s57, s39, s58
    v_lshl_add_u32 v{R+8}, v0, 2, s57
    v_mov_b32 v29, 0
    v_mov_b32 v{R+10}, {SENT}
    v_mov_b32 v{R+11}, {SENT}
    s_lshl_b32 s57, s49, 4
    s_lshl_b64 s[90:91], 0xffff, s57
    """)
    for i in range(NG): a(f"s_mov_b64 s[{MK+2*i}:{MK+2*i+1}], -1")
    for i in range(1, NG): a(f"s_mov_b32 s{80+i}, {i*4096}")
    final_setup("l")
    stamp(13)
    if wpar: issueW(0, "s54", "B0", halves=(1,))
    issueA(0, "s52", "E0", halves=(1,))
    if wpar: issueW(16384, "s55", "B1", halves=(1,))
    if onebar:
        if not wpar: issueW(16384, "s55", "B1")
        issueW(32768, "s56", "B2")
        stamp(6)
        vwait({"B0", "E0", "B1"}); a("s_barrier")
        stamp(1)
    else:
        stamp(7)
        vwait({"B0"}); stamp(15); a("s_barrier")
        if not wpar: issueW(16384, "s55", "B1")
    a(f"""
    buffer_store_dword v{R+10}, v{R+8}, s[20:23], 0 offen sc1
    global_load_ushort v{R+1}, v{R+7}, s[28:29]
    global_load_ushort v{R+2}, v{R+7}, s[30:31]
    s_lshl_b32 s57, s49, 9
    v_lshl_add_u32 v{R+7}, v0, 3, s57
    v_lshlrev_b32 v{R+8}, 2, v0
    v_mov_b32 v{R+9}, 0
    """)
    vq += ["S", "g", "g"]
    if not onebar: issueW(32768, "s56", "B2")
    a(f"""
    s_mov_b32 s57, {2*A_SLOT}
    s_mov_b32 s58, {A_SLOT}
    s_mov_b32 s59, 49152
    """)
    if not onebar:
        stamp(6)
        vwait({"E0", "B1"}); a("s_barrier")
        stamp(1)
    def iB(kb, ph, nth=0):
        sreg = ["s54", "s55", "s56"][kb % 3]
        if ph in (0, None): a(f"s_add_u32 {sreg}, {sreg}, 0x10000")
        issueW("s59", sreg, f"B{kb}", halves=(0, 1) if ph is None else (ph,))
        if ph in (1, None): a("s_add_u32 s59, s59, 16384\ns_and_b32 s59, s59, 0xffff")
    def iO(c, ph):
        if c > 0 and ph in (0, None): a("s_add_u32 s53, s53, 128")
        issueA("s58", "s53", f"O{c}", halves=(0, 1) if ph is None else (ph,))
    def iE(c, ph):
        if ph in (0, None): a("s_add_u32 s52, s52, 128")
        issueA("s57", "s52", f"E{c}", halves=(0, 1) if ph is None else (ph,))
        if ph in (1, None): a(f"s_add_u32 s61, s57, s58\ns_mov_b32 s57, s58\ns_sub_u32 s58, {3*A_SLOT}, s61")
    ramp = {-1: [("O", 0), ("B", 3)], 0: [("E", 1), ("B", 4)], 1: [("B", 5), ("O", 1)], 2: [("B", 6), ("E", 2)], 3: [("B", 7), ("B", 8)]}
    if rampv == 1: ramp = {-1: [("O", 0), ("B", 3)], 0: [("E", 1), ("B", 4)], 1: [("B", 5), ("O", 1)], 2: [("B", 6), ("E", 2)], 3: [("B", 7)], 4: [("B", 8), ("B", 9), ("O", 2)]}
    pend = []
    fn = {"B": iB, "O": iO, "E": iE}
    def lstep(k):
        c = k // 3
        if k in ramp: todo = list(ramp[k])
        else:
            todo = []
            if k + 5 <= 23: todo.append(("B", k + 5))
            if k % 3 == 1 and c + 1 <= 7: todo.append(("O", c + 1))
            if k % 3 == 2 and c + 2 <= 7: todo.append(("E", c + 2))
        for kind, i in pend: fn[kind](i, 1)
        pend[:] = []
        if lag and lagfrom <= k < 19:
            if len(todo) >= 2 and todo[0][0] == todo[1][0]:
                fn[todo[0][0]](todo[0][1], None); todo = todo[1:]
            for kind, i in todo: fn[kind](i, 0)
            pend[:] = todo
        else:
            two = ilv and len(todo) == 2 and todo[0][0] != todo[1][0]
            for ph in ((0, 1) if two else (None,)):
                for kind, i in todo: fn[kind](i, ph)
        if pf2 and k == pfk:
            a(f"""
            s_getpc_b64 s[88:89]
            L_pfbase2:
            s_add_u32 s88, s88, L_compute-L_pfbase2
            s_addc_u32 s89, s89, 0
            s_bfe_u32 s61, s2, 0x30005
            s_lshl_b32 s63, s49, 5
            s_add_u32 s61, s61, s63
            s_lshl_b32 s61, s61, 7
            v_lshl_add_u32 v1, v0, 10, s61
            v_min_u32 v1, L_end-L_compute, v1
            s_mov_b64 exec, 15
            global_load_dword v16, v1, s[88:89]
            s_mov_b64 exec, -1
            """)
            vq.append("c")
        if otouch == k:
            a(f"""
            s_lshl_b32 s61, s49, 16
            v_lshl_add_u32 v1, v0, 12, s61
            s_mov_b64 exec, 0xffff
            buffer_load_dword v17, v1, s[16:19], 0 offen
            s_mov_b64 exec, -1
            """)
            vq.append("o")
        need = {Aname(k + 2), f"B{k+3}"}
        assert not need & {f"{kd}{i}" for kd, i in pend}
        return vwait(need)
    K0 = 5 if lag else 4
    NLI = 4 if lag else 5
    for k in range(-1, K0):
        lstep(k); a("s_barrier")
    a(f"""
    s_mov_b32 s60, {NLI}
    s_and_b32 s62, s44, 3
    s_min_u32 s62, s62, 2
    s_add_u32 s62, s62, 2
    s_cmp_lg_u32 s49, 0
    s_cselect_b32 s62, 0, s62
    L_lloop:
    """)
    ns = []
    for k in range(K0, K0 + 3):
        ns.append(lstep(k))
        if k == 6:
            a(f"""
            s_cmp_lg_u32 s60, s62
            s_cbranch_scc1 L_noat
            s_mov_b64 exec, 1
            global_atomic_add v{R+4}, v13, s[34:35]
            s_mov_b64 exec, -1
            L_noat:
            """)
        a("s_barrier")
    a("s_sub_u32 s60, s60, 1\ns_cmp_lg_u32 s60, 0\ns_cbranch_scc1 L_lloop")
    keep = len(a.lines)
    mins = list(ns)
    for k in range(K0 + 3, K0 + 3 * NLI):
        n = lstep(k); mins[(k - K0) % 3] = min(mins[(k - K0) % 3], n)
    del a.lines[keep:]
    li = a.lines.index("L_lloop:"); wi = 0
    for q in range(li, len(a.lines)):
        if "s_waitcnt vmcnt" in a.lines[q]:
            a.lines[q] = f"    s_waitcnt vmcnt({mins[wi]})"; wi += 1
    assert wi == 3
    for k in range(K0 + 3 * NLI, 19):
        lstep(k); a("s_barrier")
    lstep(19); a("s_barrier")
    a("L_ltail:")
    stamp(11)
    a(f"""
    ds_write_b64 v{R+7}, v[{R+10}:{R+11}] offset:{PART}
    ds_write_b32 v{R+8}, v{R+9} offset:{FLAGS}
    s_waitcnt lgkmcnt(0)
    """)
    vwait({"B23"}); a("s_barrier")
    a(f"""
    s_waitcnt vmcnt(0)
    s_barrier
    global_load_dword v{R+9}, v{R+4}, s[34:35] sc1
    s_mov_b32 s52, {f2u(KS)}
    v_lshlrev_b32 v{R+1}, 16, v{R+1}
    v_lshlrev_b32 v{R+2}, 16, v{R+2}
    v_mul_f32 v{R+1}, s52, v{R+1}
    v_mul_f32 v{R+2}, s52, v{R+2}
    s_mov_b32 s59, {SPIN}
    s_barrier
    """)
    stamp(2)
    if lprio: a(f"s_setprio {lprio}")
    def nextjob_regs():
        a(f"""
        v_add_u32 v8, s40, v6
        v_add_u32 v10, 128, v7
        v_xor_b32 v9, 160, v8
        v_add_u32 v11, 256, v11
        v_add_u32 v14, 8, v14
        v_add_u32 v12, 16, v12
        """)
    a("s_cmp_ge_u32 s49, 2\ns_cbranch_scc1 L_nopub")
    part_publish("L_part", R + 6, 0, G, R + 5, "s[90:91]", psleep)
    stamp(3)
    if adelay is not None:
        a(f"s_sleep {adelay}\ns_waitcnt vmcnt(1)\ns_branch L_cnt1")
    a(f"""
    L_nopub:
    L_cnt:
    s_waitcnt vmcnt(0)
    L_cnt1:
    v_readfirstlane_b32 s52, v{R+9}
    s_cmp_ge_u32 s52, 32
    s_cbranch_scc1 L_cnt_ok
    s_sleep 32
    global_load_dword v{R+9}, v{R+4}, s[34:35] sc1
    s_sub_u32 s59, s59, 1
    s_cmp_gt_i32 s59, 0
    s_cbranch_scc1 L_cnt
    L_cnt_ok:
    s_cmp_lt_u32 s49, 2
    s_cbranch_scc1 L_gather
    """)
    if ded:
        a(f"""
        s_mov_b32 s42, 0
        """)
        nextjob_regs()
        a(f"""
        s_mov_b32 s59, {SPIN}
        L_img2:
        ds_read_b32 v15, v12 offset:{FLAGS+16}
        s_waitcnt lgkmcnt(0)
        v_cmp_eq_u32 vcc, 0, v15
        s_cbranch_vccz L_img2_ok
        s_sleep 1
        s_sub_u32 s59, s59, 1
        s_cmp_gt_i32 s59, 0
        s_cbranch_scc1 L_img2
        L_img2_ok:
        """)
        preread(4)
    else:
        a("s_branch L_imgwait")
    a("L_gather:")
    if gdelay: a(f"s_sleep {gdelay}")
    if stamps: a("s_mov_b32 s94, 0")
    a(f"s_mov_b32 s59, {SPIN}\nL_poll:")
    if stamps: a("s_add_u32 s94, s94, 1")
    for i in range(NG):
        a(f"s_or_b64 exec, s[{MK+2*i}:{MK+2*i+1}], 1")
        a(f"buffer_load_dwordx4 v[{G+4*i}:{G+4*i+3}], v{R+3}, s[20:23], {'s%d' % (80+i) if i else 0} offen sc1")
    a("s_mov_b64 exec, -1\ns_waitcnt vmcnt(0)")
    for i in range(NG):
        a(f"v_min_f32 v1, v{G+4*i+1}, v{G+4*i+3}")
        a(f"v_cmp_gt_f32 s[{MK+2*i}:{MK+2*i+1}], 0, v1")
    a(f"s_or_b64 s[52:53], s[{MK}:{MK+1}], s[{MK+2}:{MK+3}]")
    for i in range(2, NG):
        a(f"s_or_b64 s[52:53], s[52:53], s[{MK+2*i}:{MK+2*i+1}]")
    a(f"""
    s_cbranch_scc0 L_poll_done
    {"s_sleep %d" % rsleep if rsleep else ""}
    s_sub_u32 s59, s59, 1
    s_cmp_gt_i32 s59, 0
    s_cbranch_scc1 L_poll
    L_poll_done:
    """)
    if stamps: a(f"v_writelane_b32 v{VST2}, s94, 63")
    stamp(4)
    for step_ in (4, 2, 1):
        for i in range(step_):
            for h in range(4):
                x = G + 4 * i + h; y = G + 4 * (i + step_) + h
                a(f"v_add_f32 v{x}, v{x}, v{y}")
    x = G
    a(f"""
    s_mov_b32 s52, {f2u(1.0/LROWS)}
    s_nop 0
    v_permlane32_swap_b32 v{x}, v{x+2}
    v_permlane32_swap_b32 v{x+1}, v{x+3}
    s_nop 1
    v_add_f32 v{x}, v{x}, v{x+2}
    v_add_f32 v{x+1}, v{x+1}, v{x+3}
    v_mov_b32 v{x+2}, v{x}
    v_mov_b32 v{x+3}, v{x+1}
    s_nop 1
    v_permlane16_swap_b32 v{x}, v{x+2}
    v_permlane16_swap_b32 v{x+1}, v{x+3}
    s_nop 1
    v_add_f32 v{x}, v{x}, v{x+2}
    v_add_f32 v{x+1}, v{x+1}, v{x+3}
    v_mul_f32 v{G}, s52, v{G}             ; mean
    v_mul_f32 v{G+1}, s52, v{G+1}         ; E[h^2]
    v_fma_f32 v{G+1}, -v{G}, v{G}, v{G+1} ; var
    v_max_f32 v{G+1}, 0, v{G+1}
    v_add_f32 v{G+1}, {f2u(1e-5)}, v{G+1}
    v_rsq_f32 v{G+1}, v{G+1}
    s_lshl_b32 s52, s49, 2
    v_mul_f32 v{G+1}, v{G+1}, v{R+1}      ; KS*scale
    v_mov_b32 v1, s52
    v_fma_f32 v{G}, -v{G}, v{G+1}, v{R+2} ; KS*shift
    ds_write_b32 v{R}, v{G+1} offset:{CONST}
    ds_write_b32 v{R}, v{G} offset:{CONST+512}
    ds_write_b32 v1, v13 offset:{FLAGS}
    s_mov_b32 s59, {SPIN*16}
    """)
    if gprio is not None: a(f"s_setprio {gprio}")
    if ded: a("s_cmp_ge_u32 s49, 2\ns_cbranch_scc1 L_fw")
    a("s_branch L_imgwait")

    ACC = 128
    def acc(j, n): return ACC + (j * 4 + n) * 4
    BF = 64; AF = 32; NRING = 8
    aE, aE8, aO, bB = 16, 18, 20, 22
    VIMG, VPART, VPRD, VREC = 26, 27, 28, 29
    a("L_compute:")
    if mprio: a(f"s_setprio {mprio}")
    if codepf:
        a(f"""
        s_getpc_b64 s[52:53]
        L_pfbase:
        s_sub_u32 s52, s52, L_pfbase-L_compute
        s_subb_u32 s53, s53, 0
        s_lshl_b32 s50, s49, 5
        s_add_u32 s50, s50, s40
        s_lshl_b32 s50, s50, 7
        v_lshl_add_u32 v1, v0, 10, s50
        v_min_u32 v1, L_end-L_compute, v1
        s_mov_b64 exec, 15
        global_load_dword v30, v1, s[52:53]
        s_mov_b64 exec, -1
        """)
    a(f"""
    s_lshr_b32 s50, s49, 1                ; wm
    s_and_b32 s51, s49, 1                 ; wn
    v_and_b32 v32, 15, v0                 ; i
    v_lshrrev_b32 v33, 4, v0              ; g
    s_lshl_b32 s52, s50, 14
    v_bfe_u32 v34, v32, 1, 3
    v_xor_b32 v34, v34, v33
    v_lshlrev_b32 v34, 4, v34
    v_lshl_add_u32 v34, v32, 7, v34
    v_add_u32 v{aE}, s52, v34
    v_xor_b32 v{aE+1}, 64, v{aE}
    v_add_u32 v{aO}, {A_SLOT}, v{aE}
    v_add_u32 v{aO+1}, {A_SLOT}, v{aE+1}
    v_add_u32 v35, 1, v32
    s_mul_i32 s52, s50, 127
    s_add_u32 s52, s52, 128
    s_lshl_b32 s53, s50, 7
    v_add_u32 v35, s53, v35
    v_mov_b32 v36, s52
    v_cmp_eq_u32 vcc, 15, v32
    s_nop 1
    v_cndmask_b32 v35, v35, v36, vcc
    v_bfe_u32 v34, v35, 1, 3
    v_xor_b32 v34, v34, v33
    v_lshlrev_b32 v34, 4, v34
    v_lshl_add_u32 v{aE8}, v35, 7, v34
    v_xor_b32 v{aE8+1}, 64, v{aE8}
    v_bfe_u32 v34, v0, 2, 2
    v_lshl_add_u32 v35, v33, 3, v34
    v_bfe_u32 v34, v0, 2, 3
    v_lshlrev_b32 v34, 5, v34
    s_lshl_b32 s52, s51, 6
    v_xor_b32 v34, s52, v34
    v_and_b32 v36, 3, v0
    v_lshl_add_u32 v34, v36, 3, v34
    v_lshl_add_u32 v34, v35, 8, v34
    v_add_u32 v{bB}, {W_BASE}, v34
    v_xor_b32 v{bB+1}, 32, v{bB}
    v_xor_b32 v{bB+2}, 128, v{bB}
    v_xor_b32 v{bB+3}, 160, v{bB}
    s_mov_b64 s[64:65], -1
    s_mov_b64 s[66:67], -1
    s_cmp_eq_u32 s50, 0
    s_cbranch_scc1 L_nomask
    s_cmp_eq_u32 s47, 249
    s_cselect_b32 s65, 0xffff, -1
    s_cselect_b32 s67, -1, 0xffff
    L_nomask:
    v_bfe_u32 v34, v32, 2, 1
    v_mul_u32_u24 v34, 10, v34
    v_lshrrev_b32 v35, 3, v32
    v_or_b32 v34, v34, v35
    v_and_b32 v35, 1, v33
    v_xor_b32 v35, s51, v35
    v_lshl_add_u32 v34, v35, 2, v34
    v_lshlrev_b32 v34, 4, v34
    v_and_b32 v35, 3, v32
    v_lshl_add_u32 v34, v35, 2, v34
    v_lshl_add_u32 v34, v33, 13, v34
    s_lshl_b32 s52, s50, 15
    s_add_u32 s52, s52, {W_BASE}
    v_add_u32 v{VIMG}, s52, v34
    v_lshrrev_b32 v34, 5, v0
    v_lshl_add_u32 v34, v34, 4, v32
    s_lshl_b32 s52, s49, 8
    v_lshl_add_u32 v{VPART}, v34, 3, s52
    v_lshlrev_b32 v{VPRD}, 4, v0
    s_lshl_b32 s39, s48, 5
    s_add_u32 s39, s39, s44
    s_lshl_b32 s39, s39, 10
    s_add_u32 s39, s39, 512
    v_add_u32 v{VREC}, s39, v{VPRD}
    s_lshl_b32 s52, s49, 3
    s_lshl_b64 s[90:91], 0xff, s52
    s_lshl_b32 s52, s49, 2
    v_mov_b32 v15, s52
    s_waitcnt lgkmcnt(0)
    s_mov_b32 s20, s36
    s_mov_b32 s21, s37
    s_mov_b32 s22, 0x40000
    s_mov_b32 s23, 0x20000
    """)
    final_setup("c")
    if acc0 is None:
        for i in range(0, 128, 2): a(f"v_mov_b64 v[{ACC+i}:{ACC+i+1}], 0")
    else:
        for i in range(128): a(f"v_mov_b32 v{ACC+i}, {f2u(acc0)}")
    if stamps: a(f"v_writelane_b32 v{VST}, s92, 0")
    a(f"""
    s_mov_b32 s54, 0                      ; sE
    s_mov_b32 s55, {A_SLOT}               ; sO
    s_mov_b32 s56, 0
    s_mov_b32 s57, 4
    s_mov_b32 s63, 16384
    s_mov_b32 s61, 16
    """)
    if hop:
        if hopwait: a("s_waitcnt vmcnt(0)")
        a("""
        s_mov_b64 exec, 0
        s_cmp_eq_u32 s49, 0
        s_cbranch_scc1 L_hopg0
        s_cmp_eq_u32 s49, 1
        s_cbranch_scc1 L_hopg1
        s_cmp_eq_u32 s49, 2
        s_cbranch_scc1 L_hopg2
        s_branch L_hopg3
        L_hopret:
        s_mov_b64 exec, -1
        """)
    stamp(7)
    a("s_barrier")
    lq = []; ring = {}; rpos = [0]; occ = {}; dead = set()
    def afrags(t, j):
        if t < 2:
            return [("F", t, 0), ("F", t, 1)] if j == 0 else [("F", t, j + 1)]
        return [("G", 0, j), ("G", 1, j)]
    def atext(tag, d):
        kind, x, j = tag[:3]
        if kind == "F":
            if j < 8: return f"ds_read_b128 v[{d}:{d+3}], v{aE+x} offset:{j*2048}"
            return f"ds_read_b128 v[{d}:{d+3}], v{aE8+x}"
        return f"ds_read_b128 v[{d}:{d+3}], v{aO+x} offset:{j*2048}"
    def aread(tag):
        idx = rpos[0] % NRING; rpos[0] += 1
        if tag[0] == "F" and tag[2] == 8: rpos[0] += 1
        if idx in occ: assert occ[idx] in dead, (tag, idx, occ[idx])
        occ[idx] = tag; dead.discard(tag)
        ring[tag] = idx
        return ("lds", tag, atext(tag, AF + idx * 4))
    def bfrag(tag, d, n, pq, extra=0):
        return [("lds", tag, f"ds_read_b64_tr_b16 v[{d+2*h}:{d+2*h+1}], v{bB+n} offset:{extra + pq*8192 + h*1024}") for h in range(2)]
    def breg(buf, pq, n): return BF + buf * 32 + (pq * 4 + n) * 4
    def breads(buf):
        r = []
        for n in range(4):
            for pq in range(2): r += bfrag(("B", buf), breg(buf, pq, n), n, pq)
        return r
    def emit(op):
        if isinstance(op, tuple):
            lq.append(op[1]); a(op[2])
        else: a(op)
    def lwait(tags):
        last = max([i for i, t in enumerate(lq) if t in tags], default=-1)
        if last < 0: return
        n = min(15, len(lq) - 1 - last)
        a(f"s_waitcnt lgkmcnt({n})")
        del lq[:len(lq) - n]
    def badv():
        return ["s_add_u32 s56, s56, 16384", "s_cmp_eq_u32 s56, 0x10000", "s_cselect_b32 s58, 0xffff4000, s63", "s_and_b32 s56, s56, 0xffff"] + \
               [f"v_add_u32 v{bB+n}, s58, v{bB+n}" for n in range(4)]
    def mfma(d, ar, br): a(f"v_mfma_f32_16x16x32_bf16 v[{d}:{d+3}], v[{ar}:{ar+3}], v[{br}:{br+3}], v[{d}:{d+3}]")
    def bar():
        a("s_barrier")
        if itstamps:
            a(f"s_mov_b32 m0, s61\ns_add_u32 s61, s61, 1\nv_writelane_b32 v{VST}, s96, m0\nv_writelane_b32 v{VST2}, s98, m0")
            a("s_memrealtime s[96:97]\ns_memtime s[98:99]")
    if onebar: stamp(1)
    for op in breads(0): emit(op)
    for op in badv(): a(op)
    if not onebar:
        a("s_waitcnt lgkmcnt(0)")
        a("s_barrier")
        stamp(1)
    lq[:] = []
    if itstamps: a("s_memrealtime s[96:97]\ns_memtime s[98:99]")
    for j in range(LA):
        for tg in afrags(0, j): emit(aread(tg))
    for _ in range(shift): a("s_nop 0")
    init_state = (list(lq), dict(ring), rpos[0] % NRING)
    def run_gaps(mf, q, barrier_after=None, first_free=0, reserve_last=True):
        ng = len(mf)
        def isvalu(op): return isinstance(op, str) and op.startswith("v_")
        gaps = [g for g in range(first_free, ng) if not (reserve_last and g == ng - 1 and len(q) < ng - first_free)]
        if barrier_after is not None: gaps = [g for g in gaps if g > barrier_after]
        plan = {g: [] for g in range(ng)}
        cap = max(1, -(-len(q) // max(1, len(gaps))))
        while True:
            for g in plan: plan[g] = []
            gi = 0; ok = True
            for op in q:
                while gi < len(gaps) and (len(plan[gaps[gi]]) >= cap or (isvalu(op) and not valu_in and gaps[gi] % 2 == 0)): gi += 1
                if gi >= len(gaps): ok = False; break
                plan[gaps[gi]].append(op)
            if ok: break
            if reserve_last and ng - 1 not in gaps: gaps.append(ng - 1)
            else: cap += 1
        for g, m in enumerate(mf):
            mfma(*m)
            if g == barrier_after: bar()
            for op in plan[g]:
                if isinstance(op, tuple) and op[0] == "A": op = aread(op[1])
                emit(op)
    def step(k):
        t = k % 3; buf = k & 1
        tn = (t + 1) % 3
        bq = breads(buf ^ 1)
        JB = 8 - LA
        nb_per = 4
        bv = badv()
        for j in range(8):
            X, Y = (("F", t, j), ("F", t, j + 1)) if t < 2 else (("G", 0, j), ("G", 1, j))
            need = {X, Y}
            if j == 0: need.add(("B", buf))
            q = []
            if j == JB: lwait(set(lq))
            else: lwait(need)
            if j + LA < 8: q += [("A", tg) for tg in afrags(t, j + LA)]
            else: q += [("A", tg) for tg in afrags(tn, j + LA - 8)]
            for _ in range(nb_per):
                if bq: q.append(bq.pop(0))
            def mix(q, v):
                out = []
                while q or v:
                    if q: out.append(q.pop(0))
                    if v: out.append(v.pop(0))
                return out
            if j == 4: q += bv[:4]
            if j == 5: q = mix(q, bv[4:])
            if t == 1 and j == 6: q += [f"s_add_u32 s59, s54, s55", f"s_sub_u32 s59, {3*A_SLOT}, s59", "s_sub_u32 s60, s59, s54"]
            if t == 1 and j == 7: q = mix(q, [f"v_add_u32 v{r}, s60, v{r}" for r in (aE, aE + 1, aE8, aE8 + 1)])
            if t == 2 and j == 6: q += ["s_sub_u32 s60, s54, s55", "s_mov_b32 s55, s54", "s_mov_b32 s54, s59"]
            if t == 2 and j == 7:
                q = mix(q, [f"v_add_u32 v{r}, s60, v{r}" for r in (aO, aO + 1)])
                if k == 2: q += ["s_sub_u32 s57, s57, 1", "s_cmp_eq_u32 s57, 0"]
            xr = AF + ring[X] * 4; yr = AF + ring[Y] * 4
            mf = []
            for n in range(4):
                pr = [(xr, breg(buf, 0, n)), (yr, breg(buf, 1, n))]
                if n % 2 == 1: pr = pr[::-1]
                mf += [(acc(j, n), ar, br) for ar, br in pr]
            run_gaps(mf, q, barrier_after=1 if j == JB else None)
            dead.add(X)
            if t == 2 or j == 7: dead.add(Y)
        assert not bq
    a("L_cloop:")
    for k in range(6):
        a(f"; ---- step {k}")
        step(k)
        if k == 2:
            saved = (list(lq), dict(ring))
            a("s_cbranch_scc1 L_clast")
    end_state = (list(lq), {k_: v for k_, v in ring.items() if k_ in init_state[1]}, rpos[0] % NRING)
    assert end_state == init_state, (end_state, init_state)
    a("s_branch L_cloop")
    a("L_clast:")
    if cprio: a(f"s_setprio {cprio}")
    stamp(11)
    lq[:] = [t + (0,) for t in saved[0]]
    loc = {t + (0,): AF + saved[1][t] * 4 for t in saved[0]}
    free = [AF + 4 * i for i in range(NRING) if AF + 4 * i not in loc.values()]
    bloc = {}
    for n in range(4):
        for pq in range(2):
            bloc[(0, pq, n)] = breg(1, pq, n); bloc[(1, pq, n)] = breg(0, pq, n)
            bloc[(2, pq, n)] = breg(1, pq, n) if n < 2 else breg(0, pq, n - 2)
    T0 = breg(1, 0, 0)
    def stats(h):
        for n in (2 * h, 2 * h + 1):
            a(f"v_cndmask_b32 v{acc(1,n)+3}, 0, v{acc(1,n)+3}, s[64:65]")
            a(f"v_cndmask_b32 v{acc(2,n)+3}, 0, v{acc(2,n)+3}, s[66:67]")
        for j in range(8):
            for hh in range(2):
                for n in (2 * h, 2 * h + 1):
                    x = acc(j, n) + 2 * hh; S = T0 + 4 * (n & 1); Q = S + 2
                    if j == 0 and hh == 0:
                        a(f"v_pk_mul_f32 v[{Q}:{Q+1}], v[{x}:{x+1}], v[{x}:{x+1}]")
                    else:
                        a(f"v_pk_fma_f32 v[{Q}:{Q+1}], v[{x}:{x+1}], v[{x}:{x+1}], v[{Q}:{Q+1}]")
                        src = f"v[{x-2}:{x-1}]" if j == 0 else f"v[{S}:{S+1}]"
                        a(f"v_pk_add_f32 v[{S}:{S+1}], {src}, v[{x}:{x+1}]")
        a(f"""
        v_add_f32 v{T0}, v{T0}, v{T0+1}
        v_add_f32 v{T0+4}, v{T0+4}, v{T0+5}
        v_add_f32 v{T0+1}, v{T0+2}, v{T0+3}
        v_add_f32 v{T0+5}, v{T0+6}, v{T0+7}
        s_nop 0
        v_permlane32_swap_b32 v{T0}, v{T0+4}
        v_permlane32_swap_b32 v{T0+1}, v{T0+5}
        s_nop 0
        v_add_f32 v{T0}, v{T0}, v{T0+4}
        v_add_f32 v{T0+1}, v{T0+1}, v{T0+5}
        v_mov_b32 v{T0+4}, v{T0}
        v_mov_b32 v{T0+5}, v{T0+1}
        s_nop 1
        v_permlane16_swap_b32 v{T0}, v{T0+4}
        v_permlane16_swap_b32 v{T0+1}, v{T0+5}
        s_nop 0
        v_add_f32 v{T0}, v{T0}, v{T0+4}
        v_add_f32 v{T0+1}, v{T0+1}, v{T0+5}
        """)
        emit(("lds", "P", f"ds_write_b64 v{VPART}, v[{T0}:{T0+1}] offset:{PART + 1024*h}"))
    def image_ops(h):
        ops = []
        for n in (2 * h, 2 * h + 1):
            for f in range(2):
                ops.append(f"v_xor_b32 v{4+f}, {((n&1)<<5) ^ (f<<7)}, v{VIMG}")
                for j in range(8):
                    if (j >> 1) & 1 != f: continue
                    for r in (0, 2):
                        x = acc(j, n) + r
                        ops.append(("lds", "I", f"ds_write2st64_b32 v{4+f}, v{x}, v{x+1} offset0:{8*r+j} offset1:{8*(r+1)+j}"))
        ops.append(("lds", "F", f"ds_write_b32 v15, v13 offset:{FLAGS + 16 + 16*h}"))
        return ops
    seq = [(0, t, j) for t in range(3) for j in range(8)]
    if jouter: seq += [(1, t, j) for j in range(8) for t in range(3)]
    else: seq += [(1, t, j) for t in range(3) for j in range(8)]
    aorder = []
    for s, (h, t, j) in enumerate(seq):
        for tg in afrags(t, j):
            if tg + (h,) not in loc: aorder.append((s, tg + (h,)))
    s_a0, s_a1, s_a2 = 7, 16 - LB, 16 + 5
    bq = []; iq = []; sq = []
    def plain_stats(j):
        ops = []
        for n in (2, 3):
            if j in (1, 2): ops.append(f"v_cndmask_b32 v{acc(j,n)+3}, 0, v{acc(j,n)+3}, s[{62+2*j}:{63+2*j}]")
        for r in range(4):
            for n in (2, 3):
                x = acc(j, n) + r; S = T0 + 4 * (n & 1) + 2; Q = S + 1
                if j == 0 and r == 0: ops.append(f"v_mul_f32 v{Q}, v{x}, v{x}")
                else:
                    ops.append(f"v_fmac_f32 v{Q}, v{x}, v{x}")
                    ops.append(f"v_add_f32 v{S}, v{x-1 if (j == 0 and r == 1) else S}, v{x}")
        return ops
    def pairs_of(h, t, j):
        X, Y = (("F", t, j, h), ("F", t, j + 1, h)) if t < 2 else (("G", 0, j, h), ("G", 1, j, h))
        return X, Y
    for s, (h, t, j) in enumerate(seq):
        if h == 0 and j == 0:
            a(f"; ---- last chunk pass A step {t}")
            bq = []
            if t == 1: late = carry
            ns_ = range(4) if t == 0 else (range(2) if t == 1 else range(2, 4))
            for n in ns_:
                for pq in range(2):
                    tb = 1 if t == 0 else 2
                    bq += bfrag(("LB", tb, n >> 1), bloc[(tb, pq, n)], n, pq, extra=(tb - 1) * 16384)
            if t == 1: bq += late
        if s == 24:
            a("; ---- last chunk pass B")
            a("s_nop 4")
            stats(0)
            stamp(5)
            iq = image_ops(0)
            free += [breg(1, 1, 0), breg(1, 1, 1)]
        X, Y = pairs_of(h, t, j)
        need = {X, Y} | ({("LB", t, h)} if j == 0 else set())
        if s == s_a2: need |= {("LB", 2, 1)}
        lwait(need)
        q = []
        while aorder and aorder[0][0] <= s + LB and free and len(q) < 2 and not (aorder[0][1][0] == "G" and s < s_a1):
            _, tg = aorder.pop(0)
            d = free.pop(0); loc[tg] = d
            q.append(("lds", tg, atext(tg, d)))
        for _ in range(2):
            if bq and (len(q) < 3 or t == 2): q.append(bq.pop(0))
        while iq and len(q) < 2 + iper: q.append(iq.pop(0))
        mf = []
        for n in (2 * h, 2 * h + 1):
            pr = [(loc[X], bloc[(t, 0, n)]), (loc[Y], bloc[(t, 1, n)])]
            if n % 2 == 1: pr = pr[::-1]
            mf += [(acc(j, n), ar, br) for ar, br in pr]
        run_gaps(mf, q, barrier_after=1 if s in (s_a0, s_a1, s_a2) else None, first_free=1 if j == 0 else 0)
        free.append(loc[X])
        if t == 2 or j == 7: free.append(loc[Y])
        if h == 0 and t == 0 and j == 7: carry = list(bq)
        if h == 0 and t > 0 and (j == 7 or s == s_a2 - 1): assert not bq, (s, bq)
    assert not aorder and not iq
    stamp(2)
    if probes:
        for pi in range(10):
            a(f"v_writelane_b32 v{VST}, s{68+2*pi}, {40+pi}")
            a(f"s_mov_b32 s100, L_probe{pi}-{NAME}_kernel\nv_writelane_b32 v{VST2}, s100, {40+pi}")
        a(f"s_getpc_b64 s[100:101]\nL_pq:\ns_sub_u32 s100, s100, L_pq-{NAME}_kernel\nv_writelane_b32 v{VST2}, s100, 50")
    a(f"s_nop 7\ns_mov_b32 s59, {SPIN}")
    if jouter:
        for op in plain_stats(7): a(op)
        a(f"""
        s_nop 0
        v_permlane32_swap_b32 v{T0+3}, v{T0+7}
        v_permlane32_swap_b32 v{T0+2}, v{T0+6}
        s_nop 0
        v_add_f32 v{T0+3}, v{T0+3}, v{T0+7}
        v_add_f32 v{T0+2}, v{T0+2}, v{T0+6}
        v_mov_b32 v{T0+7}, v{T0+3}
        v_mov_b32 v{T0+6}, v{T0+2}
        s_nop 1
        v_permlane16_swap_b32 v{T0+3}, v{T0+7}
        v_permlane16_swap_b32 v{T0+2}, v{T0+6}
        s_nop 0
        v_add_f32 v{T0+3}, v{T0+3}, v{T0+7}
        v_add_f32 v{T0+2}, v{T0+2}, v{T0+6}
        ds_write_b64 v{VPART}, v[{T0+2}:{T0+3}] offset:{PART + 1024}
        """)
    else:
        stats(1)
    stamp(13)
    part_publish("L_cpart", VPRD, 1, 32, VREC, "s[90:91]", 0)
    if not hk: a("s_setprio 0")
    stamp(3)
    a(f"v_add_u32 v{VIMG}, s40, v{VIMG}")
    for op in image_ops(1): emit(op)
    SC, SH, T, O, Y = 16, 24, 32, 40, 48
    a(f"""
    L_imgwait:
    s_mov_b32 s59, {SPIN*16}
    L_img:
    ds_read_b32 v15, v12 offset:{FLAGS+16}
    s_waitcnt lgkmcnt(0)
    v_cmp_eq_u32 vcc, 0, v15
    s_cbranch_vccz L_job
    s_sleep {isleep}
    s_sub_u32 s59, s59, 1
    s_cmp_gt_i32 s59, 0
    s_cbranch_scc1 L_img
    L_job:
    """)
    preread(4)
    if hk == 2: a("s_cmp_ge_u32 s3, 4\ns_cbranch_scc1 L_fw\ns_setprio 0")
    a(f"""
    L_fw:
    ds_read_b32 v15, v14 offset:{FLAGS}
    ds_read_b128 v[{SC}:{SC+3}], v11 offset:{CONST}
    ds_read_b128 v[{SC+4}:{SC+7}], v11 offset:{CONST+16}
    ds_read_b128 v[{SH}:{SH+3}], v11 offset:{CONST+512}
    ds_read_b128 v[{SH+4}:{SH+7}], v11 offset:{CONST+528}
    s_waitcnt lgkmcnt(0)
    v_cmp_eq_u32 vcc, 0, v15
    s_cbranch_vccz L_fw_ok
    {"s_sleep %d" % fsleep if fsleep else ""}
    s_sub_u32 s59, s59, 1
    s_cmp_gt_i32 s59, 0
    s_cbranch_scc1 L_fw
    L_fw_ok:
    """)
    if stamps or amp == 14:
        a("s_cmp_eq_u32 s42, 0\ns_cbranch_scc1 L_st8")
        stamp(14)
        a("L_st8:")
    stamp(8)
    def lowprio(lb):
        if hk == 1: a(f"s_setprio 1\ns_cmp_ge_u32 s3, 4\ns_cbranch_scc1 {lb}\ns_setprio 0\n{lb}:")
    lowprio("L_lp1")
    if edelay: a(f"ds_read_b32 v5, v12 offset:{FLAGS+32}")
    def p(x): return f"v[{x}:{x+1}]"
    for i in (3, 2, 1, 0):
        if i == 1: a("L_g2:")
        h = HH + 8 * i; o = O + 4 * (i & 1)
        for j in range(0, 8, 2): a(f"v_pk_fma_f32 {p(h+j)}, {p(h+j)}, {p(SC+j)}, {p(SH+j)}")
        for j in range(0, 8, 2): a(f"v_pk_fma_f32 {p(T+j)}, {p(h+j)}, {p(h+j)}, s[24:25]")
        for j in range(0, 8, 2): a(f"v_pk_mul_f32 {p(T+j)}, {p(T+j)}, {p(h+j)} neg_lo:[1,0] neg_hi:[1,0]")
        for j in range(8): a(f"v_exp_f32 v{T+j}, v{T+j}")
        for j in range(0, 8, 2): a(f"v_pk_fma_f32 {p(T+j)}, {p(T+j)}, s[26:27], s[26:27]")
        for j in range(8): a(f"v_rcp_f32 v{T+j}, v{T+j}")
        for j in range(0, 8, 2): a(f"v_pk_mul_f32 {p(T+j)}, {p(T+j)}, {p(h+j)}")
        for j in range(0, 8, 2): a(f"v_cvt_pk_bf16_f32 v{o+j//2}, v{T+j}, v{T+j+1}")
        if sthr is not None: a(f"s_waitcnt vmcnt({sthr})")
        if not nostore: a(f"buffer_store_dwordx4 v[{o}:{o+3}], v{10 if i == 0 else VO+i}, s[16:19], 0 offen{omod}")
    a("s_cmp_eq_u32 s42, 0\ns_cbranch_scc1 L_fin")
    if hk == 1: a("s_setprio 2")
    if hk == 2: a("s_cmp_ge_u32 s3, 4\ns_cbranch_scc1 L_hk2\ns_setprio 3\nL_hk2:")
    stamp(12)
    if ded:
        a("s_sub_u32 s42, s42, 1\ns_cmp_eq_u32 s42, 0\ns_cbranch_scc1 L_toB")
        a(f"""
        v_add_u32 v8, s0, v6
        v_add_u32 v10, s1, v7
        v_xor_b32 v9, 160, v8
        """)
        preread(2)
        a("s_waitcnt lgkmcnt(0)")
        lowprio("L_lp2")
        a("s_branch L_g2\nL_toB:")
    else: a("s_mov_b32 s42, 0")
    nextjob_regs()
    if not ded:
        a("s_cmp_lt_u32 s3, 6\ns_cbranch_scc1 L_imgwait")
        if bdelay: a(f"s_sleep {bdelay}")
        if ackfirst: a("s_waitcnt vmcnt(0)")
        if edelay:
            a(f"s_waitcnt lgkmcnt(0)\nv_cmp_eq_u32 vcc, 0, v5\ns_cbranch_vccnz L_gather\ns_sleep {edelay}")
        a("s_branch L_gather")
    else: a("s_branch L_imgwait")
    a("L_fin:")
    if hold in (9, 10) and not stamps: stamp(hold)
    if amp is not None:
        if amp == 9: stamp(9)
        a("s_waitcnt vmcnt(0)")
        if amp == 10: stamp(10)
        a("s_waitcnt lgkmcnt(0)")
        if ampw == "c": a("s_cmp_ge_u32 s3, 4\ns_cselect_b32 s94, s92, s94")
        if ampw == "l": a("s_cmp_lt_u32 s3, 4\ns_cselect_b32 s94, s92, s94")
        a(f"""
        L_amp0:
        s_sleep 8
        s_memrealtime s[96:97]
        s_waitcnt lgkmcnt(0)
        s_sub_u32 s96, s96, s92
        s_cmp_lt_u32 s96, 4000
        s_cbranch_scc1 L_amp0
        s_not_b32 s95, s92
        v_mov_b32 v4, s94
        v_mov_b32 v5, s95
        v_mov_b32 v1, 8
        s_mov_b64 exec, 1
        global_atomic_umax v1, v4, s[34:35]
        global_atomic_umax v1, v5, s[34:35] offset:4
        s_waitcnt vmcnt(0)
        L_amp1:
        s_sleep 8
        s_memrealtime s[96:97]
        s_waitcnt lgkmcnt(0)
        s_sub_u32 s96, s96, s92
        s_cmp_lt_u32 s96, 16000
        s_cbranch_scc1 L_amp1
        global_load_dwordx2 v[4:5], v1, s[34:35] sc1
        s_waitcnt vmcnt(0)
        v_readfirstlane_b32 s94, v4
        v_readfirstlane_b32 s95, v5
        s_not_b32 s95, s95
        s_sub_u32 s94, s94, s95
        s_mul_i32 s94, s94, 10
        s_add_u32 s94, s94, 18900
        s_min_u32 s94, s94, 100000
        L_amp2:
        s_sleep 2
        s_memrealtime s[96:97]
        s_waitcnt lgkmcnt(0)
        s_sub_u32 s96, s96, s95
        s_cmp_lt_u32 s96, s94
        s_cbranch_scc1 L_amp2
        """)
    if stamps:
        stamp(9)
        a("s_waitcnt vmcnt(0)")
        stamp(10)
        a(f"""
        s_lshl_b32 s52, s2, 12
        s_lshl_b32 s53, s3, 9
        s_add_u32 s52, s52, s53
        s_add_u32 s52, s52, {STAMP_OFF}
        v_lshlrev_b32 v1, 3, v0
        v_add_u32 v1, s52, v1
        global_store_dwordx2 v1, v[{VST}:{VST2}], s[36:37]
        s_waitcnt vmcnt(0)
        """)
    a("L_end:\ns_endpgm")
    if relayout:
        L = a.lines
        ix = {t: L.index(t) for t in ("L_ltail:", "L_compute:", "L_cloop:", "L_imgwait:", "L_end:")}
        a.lines = (L[:ix["L_ltail:"]] + ["    s_branch L_ltail", ".p2align 12", "L_page:"] +
                   L[ix["L_compute:"]:ix["L_cloop:"]] + ["    s_branch L_cloop"] +
                   L[ix["L_ltail:"]:ix["L_compute:"]] + L[ix["L_imgwait:"]:ix["L_end:"]] + ["    s_endpgm", ".p2align 6"] +
                   L[ix["L_cloop:"]:ix["L_imgwait:"]] + ["    s_branch L_imgwait"] + L[ix["L_end:"]:])
        if hop: a.lines = add_hops(a.lines, [("L_ltail:", "L_end:")], hop, page="L_page:")
    elif hop: a.lines = add_hops(a.lines, [("L_lloop:", "L_compute:"), ("L_cloop:", "L_end:")], hop)
    if align8: a.lines = pad8(a.lines, "L_cloop:", "L_cpart:")
    hazcheck(a.lines)
    return wrap(DOC + a.text(), 256, 512, 163840, 256)

if __name__ == "__main__":
    out = sys.argv[1]
    kw = json.loads(sys.argv[2]) if len(sys.argv) > 2 else {}
    open(out, "w").write(gen(**kw))
```

```python
import sys, json, struct
from asmlib import *

def f2u(f): return struct.unpack("<I", struct.pack("<f", f))[0]

LROWS = 7999
C1 = -2.0 * 0.7978845608028654 * 1.4426950408889634
C2 = C1 * 0.044715
KS = (-C2) ** (1.0 / 3.0)
CP = -C1 / KS
SENT = 0xBF800000
A_SLOT = 32768
W_BASE = 98304
MISC = 32768
PART = MISC
CONST = MISC + 2048
FLAGS = MISC + 3072
STAMP_OFF = 1 << 20
SPIN = 0x40000

DOC = """    ; Fused strided conv (as a GEMM, K = 3 taps x 512) + per-(batch,channel) norm over time + tanh-GELU.
    ; Exchange: every workgroup resets its {sum, sumsq} record in d_ws to a sentinel, counts that in d_debug,
"""

def gen(stamps=False, xmod="", wmod="", omod=" sc1", codepf=True, itstamps=False, hold=None, holdus=40,
        parity=True, psleep=1, fsleep=1, rsleep=0, lprio=2, cprio=3, LA=2, LB=3, only=None, wpar=True, jouter=False, ded=False, onebar=False, align8=False, shift=0, pf2=False, isleep=2, probes=False, ilv=True, hop=0, acc0=None, relayout=True, hopwait=False, nostore=False, gprio=None, hk=False, sthr=None, alt=1, snake=False, amp=None, ampw=None, swap=False, mprio=0, valu_in=False, iper=1, lag=True, lagfrom=3, rampv=0, pfk=19, otouch=None, bmap=0, adelay=None, gdelay=0, bdelay=0, edelay=0, ackfirst=False, lastp=0, lastmod='', lastc=False):
    a = Asm()
    VST, VST2 = 2, 3
    def stamp(k):
        if hold == k:
            lb = a.label("L_hold")
            a(f"""s_waitcnt lgkmcnt(0)
            {lb}:
            s_memrealtime s[96:97]
            s_waitcnt lgkmcnt(0)
            s_sub_u32 s96, s96, s92
            s_cmp_lt_u32 s96, {holdus*100}
            s_cbranch_scc1 {lb}""")
        if amp == k: a("s_memrealtime s[94:95]")
        if not stamps or (only is not None and k not in only): return
        a(f"s_memrealtime s[100:101]\ns_waitcnt lgkmcnt(0)\nv_writelane_b32 v{VST}, s100, {k}")
        if k in (1, 2, 8, 9): a(f"s_memtime s[100:101]\ns_waitcnt lgkmcnt(0)\nv_writelane_b32 v{VST2}, s100, {k}")
    def final_setup(role):
        a(f"""
        s_mul_i32 s38, s43, {LROWS}
        s_add_u32 s38, s38, s45
        s_lshl_b32 s38, s38, 10
        s_add_u32 s16, s32, s38
        s_addc_u32 s17, s33, 0
        s_lshl_b32 s18, s47, 10
        s_mov_b32 s19, 0x20000
        v_and_b32 v1, 7, v0                   ; o
        v_lshrrev_b32 v8, 3, v0
        s_and_b32 s38, s49, 1
        s_lshl_b32 s40, s38, 5
        s_add_u32 s40, s40, {64 if role == "c" else 0}
        v_add_u32 v8, s40, v8
        s_lshl_b32 s38, s38, 2
        v_xor_b32 v9, s38, v1                 ; o ^ 4*((row>>5)&1)
        v_bfe_u32 v10, v0, 4, 1               ; f
        v_lshl_add_u32 v9, v10, 3, v9
        v_lshlrev_b32 v9, 4, v9
        v_lshl_add_u32 v9, v8, 8, v9
        s_lshr_b32 s38, s49, 1
        s_lshl_b32 s40, s38, 15
        s_add_u32 s42, s40, {W_BASE}
        v_add_u32 v6, s42, v9
        s_sub_u32 s40, s40, {W_BASE}
        s_lshl_b32 s42, s38, 7
        v_add_u32 v8, s42, v8
        v_lshlrev_b32 v8, 10, v8
        v_lshl_add_u32 v7, v1, 4, v8
        s_lshl_b32 s42, s41, 8
        v_add_u32 v7, s42, v7
        v_lshlrev_b32 v11, 5, v1
        v_and_b32 v14, 1, v0
        v_lshlrev_b32 v14, 2, v14             ; constflag[lane&1]
        v_and_b32 v12, 3, v0
        v_lshlrev_b32 v12, 2, v12             ; imgflag[lane&3]
        v_mov_b32 v13, 1
        v_mov_b32 v8, v6
        v_xor_b32 v9, 160, v6
        v_mov_b32 v10, v7
        s_mov_b32 s24, {f2u(CP)}
        s_mov_b32 s25, {f2u(CP)}
        s_mov_b32 s26, {f2u(KS)}
        s_mov_b32 s27, {f2u(KS)}
        """)
        if not ded: a("s_mov_b32 s42, 1")
        elif role == "l": a("s_mov_b32 s42, 2\ns_mov_b32 s0, 32768\ns_mov_b32 s1, 131072")
        else: a(f"s_add_u32 s42, s38, 1\ns_mov_b32 s0, {(-48*256) & 0xffffffff}\ns_mov_b32 s1, {(-48*1024) & 0xffffffff}")
    HH, VO = 160, 60
    def preread(n):
        for i in range(n - 1, -1, -1):
            a(f"ds_read_b128 v[{HH+8*i}:{HH+8*i+3}], v8 offset:{2048*i}\nds_read_b128 v[{HH+8*i+4}:{HH+8*i+7}], v9 offset:{2048*i}")
        for i in range(1, n): a(f"v_add_u32 v{VO+i}, {8192*i}, v10")
    def part_publish(lbl, vaddr, half, x, vrec, maskreg, sleep):
        a(f"""
        {lbl}:
        ds_read_b128 v[{x}:{x+3}], v{vaddr} offset:{PART + 1024*half}
        s_waitcnt lgkmcnt(0)
        v_min_f32 v1, v{x+1}, v{x+3}
        v_cmp_gt_f32 vcc, 0, v1
        s_cbranch_vccz {lbl}_ok
        {"s_sleep %d" % sleep if sleep else ""}
        s_sub_u32 s59, s59, 1
        s_cmp_gt_i32 s59, 0
        s_cbranch_scc1 {lbl}
        {lbl}_ok:
        """)
        for i in range(4): a(f"v_mov_b32 v{x+4+i}, v{x+i}")
        for i in range(4): a(f"v_permlane32_swap_b32 v{x+i}, v{x+4+i}")
        for i in range(4): a(f"v_add_f32 v{x+i}, v{x+i}, v{x+4+i}")
        a(f"""
        s_mov_b64 exec, {maskreg}
        buffer_store_dwordx4 v[{x}:{x+3}], v{vrec}, s[20:23], 0 offen sc1
        s_mov_b64 exec, -1
        """)
    a(f"""
    s_cmp_ge_u32 s2, 256
    s_cbranch_scc1 L_end
    s_load_dwordx4 s[4:7], s[0:1], 0      ; x, w
    s_load_dwordx4 s[28:31], s[0:1], 16
    s_load_dwordx4 s[32:35], s[0:1], 32
    s_load_dwordx2 s[36:37], s[0:1], 48   ; ws
    """)
    if stamps or hold is not None or amp is not None: a("s_memrealtime s[92:93]")
    if amp is not None: a("s_memrealtime s[94:95]")
    a(f"""
    v_lshrrev_b32 v1, 6, v0
    v_and_b32 v0, 63, v0
    v_readfirstlane_b32 s3, v1
    s_and_b32 s38, s2, 7
    {"s_lshr_b32 s40, s38, 1" if bmap else ""}
    {"s_and_b32 s38, s38, 1" if bmap else ""}
    {"s_lshl_b32 s38, s38, 2" if bmap else ""}
    {"s_add_u32 s38, s38, s40" if bmap else ""}
    s_bfe_u32 s40, s2, 0x30005
    s_bfe_u32 s41, s2, 0x20003
    s_lshl_b32 s42, s38, 3
    s_add_u32 s42, s42, s40               ; mt 0..63
    s_lshr_b32 s43, s42, 5                ; batch
    s_and_b32 s44, s42, 31
    s_mul_i32 s45, s44, 250
    s_mul_i32 s46, s43, 8000
    s_add_u32 s46, s46, s45
    s_cmp_eq_u32 s44, 31
    s_cselect_b32 s47, 1, 0
    s_sub_u32 s47, 250, s47               ; nvalid
    s_lshl_b32 s48, s43, 2
    s_add_u32 s48, s48, s41
    s_and_b32 s49, s3, 3
    {"s_xor_b32 s3, s3, 4" if swap else ""}
    s_cmp_lt_u32 s3, 4
    s_cbranch_scc1 L_compute
    """)
    VA, VW = 56, 60
    a(f"""
    v_lshrrev_b32 v4, 4, v0               ; l>>4
    v_and_b32 v5, 15, v0
    v_lshlrev_b32 v6, 1, v4
    v_xor_b32 v5, v5, v6                  ; W chunk (n<2)
    s_and_b32 s50, s49, 1
    s_lshl_b32 s51, s50, 14
    s_lshl_b32 s52, s41, 8
    s_add_u32 s51, s51, s52
    v_lshlrev_b32 v5, 4, v5
    v_lshl_add_u32 v5, v4, 10, v5
    s_and_b32 s53, s40, {1 if wpar else 0}
    s_mul_i32 s52, s53, {8192 + 128}
    v_add_u32 v5, s51, v5
    v_xor_b32 v{VW}, s52, v5
    v_xor_b32 v{VW+2}, {8192 + 128}, v{VW}
    v_add_u32 v{VW+1}, 3072, v{VW}
    v_add_u32 v{VW+3}, 3072, v{VW+2}
    s_lshl_b32 s51, s49, 12
    s_lshl_b32 s53, s53, 11
    s_add_u32 s51, s51, s53
    s_add_u32 s51, s51, {W_BASE}
    s_lshr_b32 s62, s49, 1                ; lw>=2
    s_lshl_b32 s54, s62, 20               ; sB0
    s_mov_b32 s14, 1572864
    s_mov_b32 s15, 0x20000
    s_mov_b32 m0, s51
    s_waitcnt lgkmcnt(0)
    s_mov_b32 s12, s6
    s_mov_b32 s13, s7
    """)
    if stamps: a(f"v_writelane_b32 v{VST}, s92, 0")
    vq = []
    def issueA(slot_s, soff, tag, halves=(0, 1)):
        for half in halves:
            if half == halves[0]: a(f"s_add_u32 m0, s50, {slot_s}")
            if half == 1: a(f"s_xor_b32 m0, m0, 4096")
            a("s_nop 0")
            for n in range(4):
                vq.append(tag)
                a(f"buffer_load_dwordx4 v{VA+half*2+(n&1)}, s[8:11], {soff} offen offset:{n*1024}{xmod} lds")
    def issueW(slot_s, soff, tag, setm0=True, halves=(0, 1)):
        for half in halves:
            if half == halves[0] and setm0: a(f"s_add_u32 m0, s51, {slot_s}")
            if half == 1: a("s_xor_b32 m0, m0, 2048")
            if setm0 or half == 1: a("s_nop 0")
            for n in range(2):
                vq.append(tag)
                a(f"buffer_load_dwordx4 v{VW+2*half+n}, s[12:15], {soff} offen offset:{n*1024}{wmod} lds")
    def vwait(tags):
        last = max([i for i, t in enumerate(vq) if t in tags], default=-1)
        n = len(vq) - 1 - last
        a(f"s_waitcnt vmcnt({n})")
        return n
    def Aname(k): return f"E{k//3}" if k % 3 < 2 else f"O{k//3}"
    issueW(0, "s54", "B0", setm0=False, halves=(0,) if wpar else (0, 1))
    a(f"""
    v_and_b32 v5, 7, v0
    v_xor_b32 v5, v5, v4
    v_lshlrev_b32 v5, 4, v5
    v_lshrrev_b32 v6, 3, v0
    v_lshl_add_u32 v5, v6, 14, v5
    s_lshl_b32 s52, s62, 18
    s_lshl_b32 s53, s50, 13
    s_add_u32 s52, s52, s53
    s_and_b32 s53, s41, {1 if parity else 0}
    s_lshl_b32 s53, s53, 12
    s_add_u32 s52, s52, s53
    v_add_u32 v{VA}, s52, v5
    v_xor_b32 v{VA+2}, 4096, v{VA}
    v_xor_b32 v{VA+1}, 64, v{VA}
    v_xor_b32 v{VA+3}, 64, v{VA+2}
    v_add_u32 v{VA+1}, {64*2048 - 1024}, v{VA+1}
    v_add_u32 v{VA+3}, {64*2048 - 1024}, v{VA+3}
    s_lshl_b32 s50, s49, 13
    s_add_u32 s50, s50, s53
    s_lshl_b32 s10, s47, 11
    s_add_u32 s10, s10, 1024
    s_mov_b32 s11, 0x20000
    s_lshl_b32 s57, s46, 11
    s_add_u32 s8, s4, s57
    s_addc_u32 s9, s5, 0
    s_mov_b32 s52, 0                      ; x k-offset (E)
    s_mov_b32 s53, 1024                   ; x k-offset (O)
    s_add_u32 s55, s54, 0x8000            ; sB1
    s_lshl_b32 s56, s62, 15
    s_add_u32 s56, s56, 0x80000           ; sB2
    """)
    issueA(0, "s52", "E0", halves=(0,))
    if wpar: issueW(16384, "s55", "B1", halves=(0,))
    stamp(5)
    R = 80
    NG = 8; MK = 64; G = 96
    a(f"""
    s_mov_b32 s20, s36
    s_mov_b32 s21, s37
    s_mov_b32 s22, 0x40000
    s_mov_b32 s23, 0x20000
    s_lshl_b32 s39, s48, 5
    s_add_u32 s39, s39, s44
    s_lshl_b32 s39, s39, 10
    v_lshlrev_b32 v{R+6}, 4, v0
    v_add_u32 v{R+5}, s39, v{R+6}
    v_and_b32 v1, 15, v0
    v_lshrrev_b32 v5, 5, v0
    v_lshl_add_u32 v5, v1, 1, v5
    s_lshl_b32 s57, s49, 5
    v_add_u32 v{R}, s57, v5
    s_lshl_b32 s57, s41, 7
    v_add_u32 v{R+7}, s57, v{R}
    v_lshlrev_b32 v{R+7}, 1, v{R+7}
    v_lshlrev_b32 v{R}, 2, v{R}
    v_lshlrev_b32 v1, 4, v1
    v_lshl_add_u32 v1, v4, 10, v1
    s_lshl_b32 s57, s48, 15
    s_lshl_b32 s58, s49, 8
    s_add_u32 s57, s57, s58
    v_add_u32 v{R+3}, s57, v1
    s_lshl_b32 s57, s48, 5
    v_mov_b32 v{R+4}, s57
    s_add_u32 s57, s39, s58
    v_lshl_add_u32 v{R+8}, v0, 2, s57
    v_mov_b32 v29, 0
    v_mov_b32 v{R+10}, {SENT}
    v_mov_b32 v{R+11}, {SENT}
    s_lshl_b32 s57, s49, 4
    s_lshl_b64 s[90:91], 0xffff, s57
    """)
    for i in range(NG): a(f"s_mov_b64 s[{MK+2*i}:{MK+2*i+1}], -1")
    for i in range(1, NG): a(f"s_mov_b32 s{80+i}, {i*4096}")
    final_setup("l")
    stamp(13)
    if wpar: issueW(0, "s54", "B0", halves=(1,))
    issueA(0, "s52", "E0", halves=(1,))
    if wpar: issueW(16384, "s55", "B1", halves=(1,))
    if onebar:
        if not wpar: issueW(16384, "s55", "B1")
        issueW(32768, "s56", "B2")
        stamp(6)
        vwait({"B0", "E0", "B1"}); a("s_barrier")
        stamp(1)
    else:
        stamp(7)
        vwait({"B0"}); stamp(15); a("s_barrier")
        if not wpar: issueW(16384, "s55", "B1")
    a(f"""
    buffer_store_dword v{R+10}, v{R+8}, s[20:23], 0 offen sc1
    global_load_ushort v{R+1}, v{R+7}, s[28:29]
    global_load_ushort v{R+2}, v{R+7}, s[30:31]
    s_lshl_b32 s57, s49, 9
    v_lshl_add_u32 v{R+7}, v0, 3, s57
    v_lshlrev_b32 v{R+8}, 2, v0
    v_mov_b32 v{R+9}, 0
    """)
    vq += ["S", "g", "g"]
    if not onebar: issueW(32768, "s56", "B2")
    a(f"""
    s_mov_b32 s57, {2*A_SLOT}
    s_mov_b32 s58, {A_SLOT}
    s_mov_b32 s59, 49152
    """)
    if not onebar:
        stamp(6)
        vwait({"E0", "B1"}); a("s_barrier")
        stamp(1)
    def iB(kb, ph, nth=0):
        sreg = ["s54", "s55", "s56"][kb % 3]
        if ph in (0, None): a(f"s_add_u32 {sreg}, {sreg}, 0x10000")
        issueW("s59", sreg, f"B{kb}", halves=(0, 1) if ph is None else (ph,))
        if ph in (1, None): a("s_add_u32 s59, s59, 16384\ns_and_b32 s59, s59, 0xffff")
    def iO(c, ph):
        if c > 0 and ph in (0, None): a("s_add_u32 s53, s53, 128")
        issueA("s58", "s53", f"O{c}", halves=(0, 1) if ph is None else (ph,))
    def iE(c, ph):
        if ph in (0, None): a("s_add_u32 s52, s52, 128")
        issueA("s57", "s52", f"E{c}", halves=(0, 1) if ph is None else (ph,))
        if ph in (1, None): a(f"s_add_u32 s61, s57, s58\ns_mov_b32 s57, s58\ns_sub_u32 s58, {3*A_SLOT}, s61")
    ramp = {-1: [("O", 0), ("B", 3)], 0: [("E", 1), ("B", 4)], 1: [("B", 5), ("O", 1)], 2: [("B", 6), ("E", 2)], 3: [("B", 7), ("B", 8)]}
    if rampv == 1: ramp = {-1: [("O", 0), ("B", 3)], 0: [("E", 1), ("B", 4)], 1: [("B", 5), ("O", 1)], 2: [("B", 6), ("E", 2)], 3: [("B", 7)], 4: [("B", 8), ("B", 9), ("O", 2)]}
    pend = []
    fn = {"B": iB, "O": iO, "E": iE}
    def lstep(k):
        c = k // 3
        if k in ramp: todo = list(ramp[k])
        else:
            todo = []
            if k + 5 <= 23: todo.append(("B", k + 5))
            if k % 3 == 1 and c + 1 <= 7: todo.append(("O", c + 1))
            if k % 3 == 2 and c + 2 <= 7: todo.append(("E", c + 2))
        for kind, i in pend: fn[kind](i, 1)
        pend[:] = []
        if lag and lagfrom <= k < 19:
            if len(todo) >= 2 and todo[0][0] == todo[1][0]:
                fn[todo[0][0]](todo[0][1], None); todo = todo[1:]
            for kind, i in todo: fn[kind](i, 0)
            pend[:] = todo
        else:
            two = ilv and len(todo) == 2 and todo[0][0] != todo[1][0]
            for ph in ((0, 1) if two else (None,)):
                for kind, i in todo: fn[kind](i, ph)
        if pf2 and k == pfk:
            a(f"""
            s_getpc_b64 s[88:89]
            L_pfbase2:
            s_add_u32 s88, s88, L_compute-L_pfbase2
            s_addc_u32 s89, s89, 0
            s_bfe_u32 s61, s2, 0x30005
            s_lshl_b32 s63, s49, 5
            s_add_u32 s61, s61, s63
            s_lshl_b32 s61, s61, 7
            v_lshl_add_u32 v1, v0, 10, s61
            v_min_u32 v1, L_end-L_compute, v1
            s_mov_b64 exec, 15
            global_load_dword v16, v1, s[88:89]
            s_mov_b64 exec, -1
            """)
            vq.append("c")
        if otouch == k:
            a(f"""
            s_lshl_b32 s61, s49, 16
            v_lshl_add_u32 v1, v0, 12, s61
            s_mov_b64 exec, 0xffff
            buffer_load_dword v17, v1, s[16:19], 0 offen
            s_mov_b64 exec, -1
            """)
            vq.append("o")
        need = {Aname(k + 2), f"B{k+3}"}
        assert not need & {f"{kd}{i}" for kd, i in pend}
        return vwait(need)
    K0 = 5 if lag else 4
    NLI = 4 if lag else 5
    for k in range(-1, K0):
        lstep(k); a("s_barrier")
    a(f"""
    s_mov_b32 s60, {NLI}
    s_and_b32 s62, s44, 3
    s_min_u32 s62, s62, 2
    s_add_u32 s62, s62, 2
    s_cmp_lg_u32 s49, 0
    s_cselect_b32 s62, 0, s62
    L_lloop:
    """)
    ns = []
    for k in range(K0, K0 + 3):
        ns.append(lstep(k))
        if k == 6:
            a(f"""
            s_cmp_lg_u32 s60, s62
            s_cbranch_scc1 L_noat
            s_mov_b64 exec, 1
            global_atomic_add v{R+4}, v13, s[34:35]
            s_mov_b64 exec, -1
            L_noat:
            """)
        a("s_barrier")
    a("s_sub_u32 s60, s60, 1\ns_cmp_lg_u32 s60, 0\ns_cbranch_scc1 L_lloop")
    keep = len(a.lines)
    mins = list(ns)
    for k in range(K0 + 3, K0 + 3 * NLI):
        n = lstep(k); mins[(k - K0) % 3] = min(mins[(k - K0) % 3], n)
    del a.lines[keep:]
    li = a.lines.index("L_lloop:"); wi = 0
    for q in range(li, len(a.lines)):
        if "s_waitcnt vmcnt" in a.lines[q]:
            a.lines[q] = f"    s_waitcnt vmcnt({mins[wi]})"; wi += 1
    assert wi == 3
    for k in range(K0 + 3 * NLI, 19):
        lstep(k); a("s_barrier")
    lstep(19); a("s_barrier")
    a("L_ltail:")
    stamp(11)
    a(f"""
    ds_write_b64 v{R+7}, v[{R+10}:{R+11}] offset:{PART}
    ds_write_b32 v{R+8}, v{R+9} offset:{FLAGS}
    s_waitcnt lgkmcnt(0)
    """)
    vwait({"B23"}); a("s_barrier")
    a(f"""
    s_waitcnt vmcnt(0)
    s_barrier
    global_load_dword v{R+9}, v{R+4}, s[34:35] sc1
    s_mov_b32 s52, {f2u(KS)}
    v_lshlrev_b32 v{R+1}, 16, v{R+1}
    v_lshlrev_b32 v{R+2}, 16, v{R+2}
    v_mul_f32 v{R+1}, s52, v{R+1}
    v_mul_f32 v{R+2}, s52, v{R+2}
    s_mov_b32 s59, {SPIN}
    s_barrier
    """)
    stamp(2)
    if lprio: a(f"s_setprio {lprio}")
    def nextjob_regs():
        a(f"""
        v_add_u32 v8, s40, v6
        v_add_u32 v10, 128, v7
        v_xor_b32 v9, 160, v8
        v_add_u32 v11, 256, v11
        v_add_u32 v14, 8, v14
        v_add_u32 v12, 16, v12
        """)
    a("s_cmp_ge_u32 s49, 2\ns_cbranch_scc1 L_nopub")
    part_publish("L_part", R + 6, 0, G, R + 5, "s[90:91]", psleep)
    stamp(3)
    if adelay is not None:
        a(f"s_sleep {adelay}\ns_waitcnt vmcnt(1)\ns_branch L_cnt1")
    a(f"""
    L_nopub:
    L_cnt:
    s_waitcnt vmcnt(0)
    L_cnt1:
    v_readfirstlane_b32 s52, v{R+9}
    s_cmp_ge_u32 s52, 32
    s_cbranch_scc1 L_cnt_ok
    s_sleep 32
    global_load_dword v{R+9}, v{R+4}, s[34:35] sc1
    s_sub_u32 s59, s59, 1
    s_cmp_gt_i32 s59, 0
    s_cbranch_scc1 L_cnt
    L_cnt_ok:
    s_cmp_lt_u32 s49, 2
    s_cbranch_scc1 L_gather
    """)
    if ded:
        a(f"""
        s_mov_b32 s42, 0
        """)
        nextjob_regs()
        a(f"""
        s_mov_b32 s59, {SPIN}
        L_img2:
        ds_read_b32 v15, v12 offset:{FLAGS+16}
        s_waitcnt lgkmcnt(0)
        v_cmp_eq_u32 vcc, 0, v15
        s_cbranch_vccz L_img2_ok
        s_sleep 1
        s_sub_u32 s59, s59, 1
        s_cmp_gt_i32 s59, 0
        s_cbranch_scc1 L_img2
        L_img2_ok:
        """)
        preread(4)
    else:
        a("s_branch L_imgwait")
    a("L_gather:")
    if gdelay: a(f"s_sleep {gdelay}")
    if stamps: a("s_mov_b32 s94, 0")
    a(f"s_mov_b32 s59, {SPIN}\nL_poll:")
    if stamps: a("s_add_u32 s94, s94, 1")
    for i in range(NG):
        a(f"s_or_b64 exec, s[{MK+2*i}:{MK+2*i+1}], 1")
        a(f"buffer_load_dwordx4 v[{G+4*i}:{G+4*i+3}], v{R+3}, s[20:23], {'s%d' % (80+i) if i else 0} offen sc1")
    a("s_mov_b64 exec, -1\ns_waitcnt vmcnt(0)")
    for i in range(NG):
        a(f"v_min_f32 v1, v{G+4*i+1}, v{G+4*i+3}")
        a(f"v_cmp_gt_f32 s[{MK+2*i}:{MK+2*i+1}], 0, v1")
    a(f"s_or_b64 s[52:53], s[{MK}:{MK+1}], s[{MK+2}:{MK+3}]")
    for i in range(2, NG):
        a(f"s_or_b64 s[52:53], s[52:53], s[{MK+2*i}:{MK+2*i+1}]")
    a(f"""
    s_cbranch_scc0 L_poll_done
    {"s_sleep %d" % rsleep if rsleep else ""}
    s_sub_u32 s59, s59, 1
    s_cmp_gt_i32 s59, 0
    s_cbranch_scc1 L_poll
    L_poll_done:
    """)
    if stamps: a(f"v_writelane_b32 v{VST2}, s94, 63")
    stamp(4)
    for step_ in (4, 2, 1):
        for i in range(step_):
            for h in range(4):
                x = G + 4 * i + h; y = G + 4 * (i + step_) + h
                a(f"v_add_f32 v{x}, v{x}, v{y}")
    x = G
    a(f"""
    s_mov_b32 s52, {f2u(1.0/LROWS)}
    s_nop 0
    v_permlane32_swap_b32 v{x}, v{x+2}
    v_permlane32_swap_b32 v{x+1}, v{x+3}
    s_nop 1
    v_add_f32 v{x}, v{x}, v{x+2}
    v_add_f32 v{x+1}, v{x+1}, v{x+3}
    v_mov_b32 v{x+2}, v{x}
    v_mov_b32 v{x+3}, v{x+1}
    s_nop 1
    v_permlane16_swap_b32 v{x}, v{x+2}
    v_permlane16_swap_b32 v{x+1}, v{x+3}
    s_nop 1
    v_add_f32 v{x}, v{x}, v{x+2}
    v_add_f32 v{x+1}, v{x+1}, v{x+3}
    v_mul_f32 v{G}, s52, v{G}             ; mean
    v_mul_f32 v{G+1}, s52, v{G+1}         ; E[h^2]
    v_fma_f32 v{G+1}, -v{G}, v{G}, v{G+1} ; var
    v_max_f32 v{G+1}, 0, v{G+1}
    v_add_f32 v{G+1}, {f2u(1e-5)}, v{G+1}
    v_rsq_f32 v{G+1}, v{G+1}
    s_lshl_b32 s52, s49, 2
    v_mul_f32 v{G+1}, v{G+1}, v{R+1}      ; KS*scale
    v_mov_b32 v1, s52
    v_fma_f32 v{G}, -v{G}, v{G+1}, v{R+2} ; KS*shift
    ds_write_b32 v{R}, v{G+1} offset:{CONST}
    ds_write_b32 v{R}, v{G} offset:{CONST+512}
    ds_write_b32 v1, v13 offset:{FLAGS}
    s_mov_b32 s59, {SPIN*16}
    """)
    if gprio is not None: a(f"s_setprio {gprio}")
    if ded: a("s_cmp_ge_u32 s49, 2\ns_cbranch_scc1 L_fw")
    a("s_branch L_imgwait")

    ACC = 128
    def acc(j, n): return ACC + (j * 4 + n) * 4
    BF = 64; AF = 32; NRING = 8
    aE, aE8, aO, bB = 16, 18, 20, 22
    VIMG, VPART, VPRD, VREC = 26, 27, 28, 29
    a("L_compute:")
    if mprio: a(f"s_setprio {mprio}")
    if codepf:
        a(f"""
        s_getpc_b64 s[52:53]
        L_pfbase:
        s_sub_u32 s52, s52, L_pfbase-L_compute
        s_subb_u32 s53, s53, 0
        s_lshl_b32 s50, s49, 5
        s_add_u32 s50, s50, s40
        s_lshl_b32 s50, s50, 7
        v_lshl_add_u32 v1, v0, 10, s50
        v_min_u32 v1, L_end-L_compute, v1
        s_mov_b64 exec, 15
        global_load_dword v30, v1, s[52:53]
        s_mov_b64 exec, -1
        """)
    a(f"""
    s_lshr_b32 s50, s49, 1                ; wm
    s_and_b32 s51, s49, 1                 ; wn
    v_and_b32 v32, 15, v0                 ; i
    v_lshrrev_b32 v33, 4, v0              ; g
    s_lshl_b32 s52, s50, 14
    v_bfe_u32 v34, v32, 1, 3
    v_xor_b32 v34, v34, v33
    v_lshlrev_b32 v34, 4, v34
    v_lshl_add_u32 v34, v32, 7, v34
    v_add_u32 v{aE}, s52, v34
    v_xor_b32 v{aE+1}, 64, v{aE}
    v_add_u32 v{aO}, {A_SLOT}, v{aE}
    v_add_u32 v{aO+1}, {A_SLOT}, v{aE+1}
    v_add_u32 v35, 1, v32
    s_mul_i32 s52, s50, 127
    s_add_u32 s52, s52, 128
    s_lshl_b32 s53, s50, 7
    v_add_u32 v35, s53, v35
    v_mov_b32 v36, s52
    v_cmp_eq_u32 vcc, 15, v32
    s_nop 1
    v_cndmask_b32 v35, v35, v36, vcc
    v_bfe_u32 v34, v35, 1, 3
    v_xor_b32 v34, v34, v33
    v_lshlrev_b32 v34, 4, v34
    v_lshl_add_u32 v{aE8}, v35, 7, v34
    v_xor_b32 v{aE8+1}, 64, v{aE8}
    v_bfe_u32 v34, v0, 2, 2
    v_lshl_add_u32 v35, v33, 3, v34
    v_bfe_u32 v34, v0, 2, 3
    v_lshlrev_b32 v34, 5, v34
    s_lshl_b32 s52, s51, 6
    v_xor_b32 v34, s52, v34
    v_and_b32 v36, 3, v0
    v_lshl_add_u32 v34, v36, 3, v34
    v_lshl_add_u32 v34, v35, 8, v34
    v_add_u32 v{bB}, {W_BASE}, v34
    v_xor_b32 v{bB+1}, 32, v{bB}
    v_xor_b32 v{bB+2}, 128, v{bB}
    v_xor_b32 v{bB+3}, 160, v{bB}
    s_mov_b64 s[64:65], -1
    s_mov_b64 s[66:67], -1
    s_cmp_eq_u32 s50, 0
    s_cbranch_scc1 L_nomask
    s_cmp_eq_u32 s47, 249
    s_cselect_b32 s65, 0xffff, -1
    s_cselect_b32 s67, -1, 0xffff
    L_nomask:
    v_bfe_u32 v34, v32, 2, 1
    v_mul_u32_u24 v34, 10, v34
    v_lshrrev_b32 v35, 3, v32
    v_or_b32 v34, v34, v35
    v_and_b32 v35, 1, v33
    v_xor_b32 v35, s51, v35
    v_lshl_add_u32 v34, v35, 2, v34
    v_lshlrev_b32 v34, 4, v34
    v_and_b32 v35, 3, v32
    v_lshl_add_u32 v34, v35, 2, v34
    v_lshl_add_u32 v34, v33, 13, v34
    s_lshl_b32 s52, s50, 15
    s_add_u32 s52, s52, {W_BASE}
    v_add_u32 v{VIMG}, s52, v34
    v_lshrrev_b32 v34, 5, v0
    v_lshl_add_u32 v34, v34, 4, v32
    s_lshl_b32 s52, s49, 8
    v_lshl_add_u32 v{VPART}, v34, 3, s52
    v_lshlrev_b32 v{VPRD}, 4, v0
    s_lshl_b32 s39, s48, 5
    s_add_u32 s39, s39, s44
    s_lshl_b32 s39, s39, 10
    s_add_u32 s39, s39, 512
    v_add_u32 v{VREC}, s39, v{VPRD}
    s_lshl_b32 s52, s49, 3
    s_lshl_b64 s[90:91], 0xff, s52
    s_lshl_b32 s52, s49, 2
    v_mov_b32 v15, s52
    s_waitcnt lgkmcnt(0)
    s_mov_b32 s20, s36
    s_mov_b32 s21, s37
    s_mov_b32 s22, 0x40000
    s_mov_b32 s23, 0x20000
    """)
    final_setup("c")
    if acc0 is None:
        for i in range(0, 128, 2): a(f"v_mov_b64 v[{ACC+i}:{ACC+i+1}], 0")
    else:
        for i in range(128): a(f"v_mov_b32 v{ACC+i}, {f2u(acc0)}")
    if stamps: a(f"v_writelane_b32 v{VST}, s92, 0")
    a(f"""
    s_mov_b32 s54, 0                      ; sE
    s_mov_b32 s55, {A_SLOT}               ; sO
    s_mov_b32 s56, 0
    s_mov_b32 s57, 4
    s_mov_b32 s63, 16384
    s_mov_b32 s61, 16
    """)
    if hop:
        if hopwait: a("s_waitcnt vmcnt(0)")
        a("""
        s_mov_b64 exec, 0
        s_cmp_eq_u32 s49, 0
        s_cbranch_scc1 L_hopg0
        s_cmp_eq_u32 s49, 1
        s_cbranch_scc1 L_hopg1
        s_cmp_eq_u32 s49, 2
        s_cbranch_scc1 L_hopg2
        s_branch L_hopg3
        L_hopret:
        s_mov_b64 exec, -1
        """)
    stamp(7)
    a("s_barrier")
    lq = []; ring = {}; rpos = [0]; occ = {}; dead = set()
    def afrags(t, j):
        if t < 2:
            return [("F", t, 0), ("F", t, 1)] if j == 0 else [("F", t, j + 1)]
        return [("G", 0, j), ("G", 1, j)]
    def atext(tag, d):
        kind, x, j = tag[:3]
        if kind == "F":
            if j < 8: return f"ds_read_b128 v[{d}:{d+3}], v{aE+x} offset:{j*2048}"
            return f"ds_read_b128 v[{d}:{d+3}], v{aE8+x}"
        return f"ds_read_b128 v[{d}:{d+3}], v{aO+x} offset:{j*2048}"
    def aread(tag):
        idx = rpos[0] % NRING; rpos[0] += 1
        if tag[0] == "F" and tag[2] == 8: rpos[0] += 1
        if idx in occ: assert occ[idx] in dead, (tag, idx, occ[idx])
        occ[idx] = tag; dead.discard(tag)
        ring[tag] = idx
        return ("lds", tag, atext(tag, AF + idx * 4))
    def bfrag(tag, d, n, pq, extra=0):
        return [("lds", tag, f"ds_read_b64_tr_b16 v[{d+2*h}:{d+2*h+1}], v{bB+n} offset:{extra + pq*8192 + h*1024}") for h in range(2)]
    def breg(buf, pq, n): return BF + buf * 32 + (pq * 4 + n) * 4
    def breads(buf):
        r = []
        for n in range(4):
            for pq in range(2): r += bfrag(("B", buf), breg(buf, pq, n), n, pq)
        return r
    def emit(op):
        if isinstance(op, tuple):
            lq.append(op[1]); a(op[2])
        else: a(op)
    def lwait(tags):
        last = max([i for i, t in enumerate(lq) if t in tags], default=-1)
        if last < 0: return
        n = min(15, len(lq) - 1 - last)
        a(f"s_waitcnt lgkmcnt({n})")
        del lq[:len(lq) - n]
    def badv():
        return ["s_add_u32 s56, s56, 16384", "s_cmp_eq_u32 s56, 0x10000", "s_cselect_b32 s58, 0xffff4000, s63", "s_and_b32 s56, s56, 0xffff"] + \
               [f"v_add_u32 v{bB+n}, s58, v{bB+n}" for n in range(4)]
    def mfma(d, ar, br): a(f"v_mfma_f32_16x16x32_bf16 v[{d}:{d+3}], v[{ar}:{ar+3}], v[{br}:{br+3}], v[{d}:{d+3}]")
    def bar():
        a("s_barrier")
        if itstamps:
            a(f"s_mov_b32 m0, s61\ns_add_u32 s61, s61, 1\nv_writelane_b32 v{VST}, s96, m0\nv_writelane_b32 v{VST2}, s98, m0")
            a("s_memrealtime s[96:97]\ns_memtime s[98:99]")
    if onebar: stamp(1)
    for op in breads(0): emit(op)
    for op in badv(): a(op)
    if not onebar:
        a("s_waitcnt lgkmcnt(0)")
        a("s_barrier")
        stamp(1)
    lq[:] = []
    if itstamps: a("s_memrealtime s[96:97]\ns_memtime s[98:99]")
    for j in range(LA):
        for tg in afrags(0, j): emit(aread(tg))
    for _ in range(shift): a("s_nop 0")
    init_state = (list(lq), dict(ring), rpos[0] % NRING)
    def run_gaps(mf, q, barrier_after=None, first_free=0, reserve_last=True):
        ng = len(mf)
        def isvalu(op): return isinstance(op, str) and op.startswith("v_")
        gaps = [g for g in range(first_free, ng) if not (reserve_last and g == ng - 1 and len(q) < ng - first_free)]
        if barrier_after is not None: gaps = [g for g in gaps if g > barrier_after]
        plan = {g: [] for g in range(ng)}
        cap = max(1, -(-len(q) // max(1, len(gaps))))
        while True:
            for g in plan: plan[g] = []
            gi = 0; ok = True
            for op in q:
                while gi < len(gaps) and (len(plan[gaps[gi]]) >= cap or (isvalu(op) and not valu_in and gaps[gi] % 2 == 0)): gi += 1
                if gi >= len(gaps): ok = False; break
                plan[gaps[gi]].append(op)
            if ok: break
            if reserve_last and ng - 1 not in gaps: gaps.append(ng - 1)
            else: cap += 1
        for g, m in enumerate(mf):
            mfma(*m)
            if g == barrier_after: bar()
            for op in plan[g]:
                if isinstance(op, tuple) and op[0] == "A": op = aread(op[1])
                emit(op)
    def step(k):
        t = k % 3; buf = k & 1
        tn = (t + 1) % 3
        bq = breads(buf ^ 1)
        JB = 8 - LA
        nb_per = 4
        bv = badv()
        for j in range(8):
            X, Y = (("F", t, j), ("F", t, j + 1)) if t < 2 else (("G", 0, j), ("G", 1, j))
            need = {X, Y}
            if j == 0: need.add(("B", buf))
            q = []
            if j == JB: lwait(set(lq))
            else: lwait(need)
            if j + LA < 8: q += [("A", tg) for tg in afrags(t, j + LA)]
            else: q += [("A", tg) for tg in afrags(tn, j + LA - 8)]
            for _ in range(nb_per):
                if bq: q.append(bq.pop(0))
            def mix(q, v):
                out = []
                while q or v:
                    if q: out.append(q.pop(0))
                    if v: out.append(v.pop(0))
                return out
            if j == 4: q += bv[:4]
            if j == 5: q = mix(q, bv[4:])
            if t == 1 and j == 6: q += [f"s_add_u32 s59, s54, s55", f"s_sub_u32 s59, {3*A_SLOT}, s59", "s_sub_u32 s60, s59, s54"]
            if t == 1 and j == 7: q = mix(q, [f"v_add_u32 v{r}, s60, v{r}" for r in (aE, aE + 1, aE8, aE8 + 1)])
            if t == 2 and j == 6: q += ["s_sub_u32 s60, s54, s55", "s_mov_b32 s55, s54", "s_mov_b32 s54, s59"]
            if t == 2 and j == 7:
                q = mix(q, [f"v_add_u32 v{r}, s60, v{r}" for r in (aO, aO + 1)])
                if k == 2: q += ["s_sub_u32 s57, s57, 1", "s_cmp_eq_u32 s57, 0"]
            xr = AF + ring[X] * 4; yr = AF + ring[Y] * 4
            mf = []
            for n in range(4):
                pr = [(xr, breg(buf, 0, n)), (yr, breg(buf, 1, n))]
                if n % 2 == 1: pr = pr[::-1]
                mf += [(acc(j, n), ar, br) for ar, br in pr]
            run_gaps(mf, q, barrier_after=1 if j == JB else None)
            dead.add(X)
            if t == 2 or j == 7: dead.add(Y)
        assert not bq
    a("L_cloop:")
    for k in range(6):
        a(f"; ---- step {k}")
        step(k)
        if k == 2:
            saved = (list(lq), dict(ring))
            a("s_cbranch_scc1 L_clast")
    end_state = (list(lq), {k_: v for k_, v in ring.items() if k_ in init_state[1]}, rpos[0] % NRING)
    assert end_state == init_state, (end_state, init_state)
    a("s_branch L_cloop")
    a("L_clast:")
    if cprio: a(f"s_setprio {cprio}")
    stamp(11)
    lq[:] = [t + (0,) for t in saved[0]]
    loc = {t + (0,): AF + saved[1][t] * 4 for t in saved[0]}
    free = [AF + 4 * i for i in range(NRING) if AF + 4 * i not in loc.values()]
    bloc = {}
    for n in range(4):
        for pq in range(2):
            bloc[(0, pq, n)] = breg(1, pq, n); bloc[(1, pq, n)] = breg(0, pq, n)
            bloc[(2, pq, n)] = breg(1, pq, n) if n < 2 else breg(0, pq, n - 2)
    T0 = breg(1, 0, 0)
    def stats(h):
        for n in (2 * h, 2 * h + 1):
            a(f"v_cndmask_b32 v{acc(1,n)+3}, 0, v{acc(1,n)+3}, s[64:65]")
            a(f"v_cndmask_b32 v{acc(2,n)+3}, 0, v{acc(2,n)+3}, s[66:67]")
        for j in range(8):
            for hh in range(2):
                for n in (2 * h, 2 * h + 1):
                    x = acc(j, n) + 2 * hh; S = T0 + 4 * (n & 1); Q = S + 2
                    if j == 0 and hh == 0:
                        a(f"v_pk_mul_f32 v[{Q}:{Q+1}], v[{x}:{x+1}], v[{x}:{x+1}]")
                    else:
                        a(f"v_pk_fma_f32 v[{Q}:{Q+1}], v[{x}:{x+1}], v[{x}:{x+1}], v[{Q}:{Q+1}]")
                        src = f"v[{x-2}:{x-1}]" if j == 0 else f"v[{S}:{S+1}]"
                        a(f"v_pk_add_f32 v[{S}:{S+1}], {src}, v[{x}:{x+1}]")
        a(f"""
        v_add_f32 v{T0}, v{T0}, v{T0+1}
        v_add_f32 v{T0+4}, v{T0+4}, v{T0+5}
        v_add_f32 v{T0+1}, v{T0+2}, v{T0+3}
        v_add_f32 v{T0+5}, v{T0+6}, v{T0+7}
        s_nop 0
        v_permlane32_swap_b32 v{T0}, v{T0+4}
        v_permlane32_swap_b32 v{T0+1}, v{T0+5}
        s_nop 0
        v_add_f32 v{T0}, v{T0}, v{T0+4}
        v_add_f32 v{T0+1}, v{T0+1}, v{T0+5}
        v_mov_b32 v{T0+4}, v{T0}
        v_mov_b32 v{T0+5}, v{T0+1}
        s_nop 1
        v_permlane16_swap_b32 v{T0}, v{T0+4}
        v_permlane16_swap_b32 v{T0+1}, v{T0+5}
        s_nop 0
        v_add_f32 v{T0}, v{T0}, v{T0+4}
        v_add_f32 v{T0+1}, v{T0+1}, v{T0+5}
        """)
        emit(("lds", "P", f"ds_write_b64 v{VPART}, v[{T0}:{T0+1}] offset:{PART + 1024*h}"))
    def image_ops(h):
        ops = []
        for n in (2 * h, 2 * h + 1):
            for f in range(2):
                ops.append(f"v_xor_b32 v{4+f}, {((n&1)<<5) ^ (f<<7)}, v{VIMG}")
                for j in range(8):
                    if (j >> 1) & 1 != f: continue
                    for r in (0, 2):
                        x = acc(j, n) + r
                        ops.append(("lds", "I", f"ds_write2st64_b32 v{4+f}, v{x}, v{x+1} offset0:{8*r+j} offset1:{8*(r+1)+j}"))
        ops.append(("lds", "F", f"ds_write_b32 v15, v13 offset:{FLAGS + 16 + 16*h}"))
        return ops
    seq = [(0, t, j) for t in range(3) for j in range(8)]
    if jouter: seq += [(1, t, j) for j in range(8) for t in range(3)]
    else: seq += [(1, t, j) for t in range(3) for j in range(8)]
    aorder = []
    for s, (h, t, j) in enumerate(seq):
        for tg in afrags(t, j):
            if tg + (h,) not in loc: aorder.append((s, tg + (h,)))
    s_a0, s_a1, s_a2 = 7, 16 - LB, 16 + 5
    bq = []; iq = []; sq = []
    def plain_stats(j):
        ops = []
        for n in (2, 3):
            if j in (1, 2): ops.append(f"v_cndmask_b32 v{acc(j,n)+3}, 0, v{acc(j,n)+3}, s[{62+2*j}:{63+2*j}]")
        for r in range(4):
            for n in (2, 3):
                x = acc(j, n) + r; S = T0 + 4 * (n & 1) + 2; Q = S + 1
                if j == 0 and r == 0: ops.append(f"v_mul_f32 v{Q}, v{x}, v{x}")
                else:
                    ops.append(f"v_fmac_f32 v{Q}, v{x}, v{x}")
                    ops.append(f"v_add_f32 v{S}, v{x-1 if (j == 0 and r == 1) else S}, v{x}")
        return ops
    def pairs_of(h, t, j):
        X, Y = (("F", t, j, h), ("F", t, j + 1, h)) if t < 2 else (("G", 0, j, h), ("G", 1, j, h))
        return X, Y
    for s, (h, t, j) in enumerate(seq):
        if h == 0 and j == 0:
            a(f"; ---- last chunk pass A step {t}")
            bq = []
            if t == 1: late = carry
            ns_ = range(4) if t == 0 else (range(2) if t == 1 else range(2, 4))
            for n in ns_:
                for pq in range(2):
                    tb = 1 if t == 0 else 2
                    bq += bfrag(("LB", tb, n >> 1), bloc[(tb, pq, n)], n, pq, extra=(tb - 1) * 16384)
            if t == 1: bq += late
        if s == 24:
            a("; ---- last chunk pass B")
            a("s_nop 4")
            stats(0)
            stamp(5)
            iq = image_ops(0)
            free += [breg(1, 1, 0), breg(1, 1, 1)]
        X, Y = pairs_of(h, t, j)
        need = {X, Y} | ({("LB", t, h)} if j == 0 else set())
        if s == s_a2: need |= {("LB", 2, 1)}
        lwait(need)
        q = []
        while aorder and aorder[0][0] <= s + LB and free and len(q) < 2 and not (aorder[0][1][0] == "G" and s < s_a1):
            _, tg = aorder.pop(0)
            d = free.pop(0); loc[tg] = d
            q.append(("lds", tg, atext(tg, d)))
        for _ in range(2):
            if bq and (len(q) < 3 or t == 2): q.append(bq.pop(0))
        while iq and len(q) < 2 + iper: q.append(iq.pop(0))
        mf = []
        for n in (2 * h, 2 * h + 1):
            pr = [(loc[X], bloc[(t, 0, n)]), (loc[Y], bloc[(t, 1, n)])]
            if n % 2 == 1: pr = pr[::-1]
            mf += [(acc(j, n), ar, br) for ar, br in pr]
        run_gaps(mf, q, barrier_after=1 if s in (s_a0, s_a1, s_a2) else None, first_free=1 if j == 0 else 0)
        free.append(loc[X])
        if t == 2 or j == 7: free.append(loc[Y])
        if h == 0 and t == 0 and j == 7: carry = list(bq)
        if h == 0 and t > 0 and (j == 7 or s == s_a2 - 1): assert not bq, (s, bq)
    assert not aorder and not iq
    stamp(2)
    if probes:
        for pi in range(10):
            a(f"v_writelane_b32 v{VST}, s{68+2*pi}, {40+pi}")
            a(f"s_mov_b32 s100, L_probe{pi}-{NAME}_kernel\nv_writelane_b32 v{VST2}, s100, {40+pi}")
        a(f"s_getpc_b64 s[100:101]\nL_pq:\ns_sub_u32 s100, s100, L_pq-{NAME}_kernel\nv_writelane_b32 v{VST2}, s100, 50")
    a(f"s_nop 7\ns_mov_b32 s59, {SPIN}")
    if jouter:
        for op in plain_stats(7): a(op)
        a(f"""
        s_nop 0
        v_permlane32_swap_b32 v{T0+3}, v{T0+7}
        v_permlane32_swap_b32 v{T0+2}, v{T0+6}
        s_nop 0
        v_add_f32 v{T0+3}, v{T0+3}, v{T0+7}
        v_add_f32 v{T0+2}, v{T0+2}, v{T0+6}
        v_mov_b32 v{T0+7}, v{T0+3}
        v_mov_b32 v{T0+6}, v{T0+2}
        s_nop 1
        v_permlane16_swap_b32 v{T0+3}, v{T0+7}
        v_permlane16_swap_b32 v{T0+2}, v{T0+6}
        s_nop 0
        v_add_f32 v{T0+3}, v{T0+3}, v{T0+7}
        v_add_f32 v{T0+2}, v{T0+2}, v{T0+6}
        ds_write_b64 v{VPART}, v[{T0+2}:{T0+3}] offset:{PART + 1024}
        """)
    else:
        stats(1)
    stamp(13)
    part_publish("L_cpart", VPRD, 1, 32, VREC, "s[90:91]", 0)
    if not hk: a("s_setprio 0")
    stamp(3)
    a(f"v_add_u32 v{VIMG}, s40, v{VIMG}")
    for op in image_ops(1): emit(op)
    SC, SH, T, O, Y = 16, 24, 32, 40, 48
    a(f"""
    L_imgwait:
    s_mov_b32 s59, {SPIN*16}
    L_img:
    ds_read_b32 v15, v12 offset:{FLAGS+16}
    s_waitcnt lgkmcnt(0)
    v_cmp_eq_u32 vcc, 0, v15
    s_cbranch_vccz L_job
    s_sleep {isleep}
    s_sub_u32 s59, s59, 1
    s_cmp_gt_i32 s59, 0
    s_cbranch_scc1 L_img
    L_job:
    """)
    preread(4)
    if hk == 2: a("s_cmp_ge_u32 s3, 4\ns_cbranch_scc1 L_fw\ns_setprio 0")
    a(f"""
    L_fw:
    ds_read_b32 v15, v14 offset:{FLAGS}
    ds_read_b128 v[{SC}:{SC+3}], v11 offset:{CONST}
    ds_read_b128 v[{SC+4}:{SC+7}], v11 offset:{CONST+16}
    ds_read_b128 v[{SH}:{SH+3}], v11 offset:{CONST+512}
    ds_read_b128 v[{SH+4}:{SH+7}], v11 offset:{CONST+528}
    s_waitcnt lgkmcnt(0)
    v_cmp_eq_u32 vcc, 0, v15
    s_cbranch_vccz L_fw_ok
    {"s_sleep %d" % fsleep if fsleep else ""}
    s_sub_u32 s59, s59, 1
    s_cmp_gt_i32 s59, 0
    s_cbranch_scc1 L_fw
    L_fw_ok:
    """)
    if stamps or amp == 14:
        a("s_cmp_eq_u32 s42, 0\ns_cbranch_scc1 L_st8")
        stamp(14)
        a("L_st8:")
    stamp(8)
    def lowprio(lb):
        if hk == 1: a(f"s_setprio 1\ns_cmp_ge_u32 s3, 4\ns_cbranch_scc1 {lb}\ns_setprio 0\n{lb}:")
    lowprio("L_lp1")
    if edelay: a(f"ds_read_b32 v5, v12 offset:{FLAGS+32}")
    if lastp:
        if lastc: a("s_lshr_b32 s52, s3, 2\ns_or_b32 s52, s52, s42\ns_cmp_eq_u32 s52, 0")
        else: a("s_cmp_eq_u32 s42, 0")
    def p(x): return f"v[{x}:{x+1}]"
    for i in (3, 2, 1, 0):
        if i == 1: a("L_g2:")
        h = HH + 8 * i; o = O + 4 * (i & 1)
        for j in range(0, 8, 2): a(f"v_pk_fma_f32 {p(h+j)}, {p(h+j)}, {p(SC+j)}, {p(SH+j)}")
        for j in range(0, 8, 2): a(f"v_pk_fma_f32 {p(T+j)}, {p(h+j)}, {p(h+j)}, s[24:25]")
        for j in range(0, 8, 2): a(f"v_pk_mul_f32 {p(T+j)}, {p(T+j)}, {p(h+j)} neg_lo:[1,0] neg_hi:[1,0]")
        for j in range(8): a(f"v_exp_f32 v{T+j}, v{T+j}")
        for j in range(0, 8, 2): a(f"v_pk_fma_f32 {p(T+j)}, {p(T+j)}, s[26:27], s[26:27]")
        for j in range(8): a(f"v_rcp_f32 v{T+j}, v{T+j}")
        for j in range(0, 8, 2): a(f"v_pk_mul_f32 {p(T+j)}, {p(T+j)}, {p(h+j)}")
        for j in range(0, 8, 2): a(f"v_cvt_pk_bf16_f32 v{o+j//2}, v{T+j}, v{T+j+1}")
        if sthr is not None: a(f"s_waitcnt vmcnt({sthr})")
        st_ = f"buffer_store_dwordx4 v[{o}:{o+3}], v{10 if i == 0 else VO+i}, s[16:19], 0 offen"
        if i < lastp:
            a(f"s_cbranch_scc1 L_pl{i}\n{st_}{omod}\ns_branch L_pd{i}\nL_pl{i}:\n{st_}{lastmod}\nL_pd{i}:")
        elif not nostore: a(st_ + omod)
    a("s_cmp_eq_u32 s42, 0\ns_cbranch_scc1 L_fin")
    if hk == 1: a("s_setprio 2")
    if hk == 2: a("s_cmp_ge_u32 s3, 4\ns_cbranch_scc1 L_hk2\ns_setprio 3\nL_hk2:")
    stamp(12)
    if ded:
        a("s_sub_u32 s42, s42, 1\ns_cmp_eq_u32 s42, 0\ns_cbranch_scc1 L_toB")
        a(f"""
        v_add_u32 v8, s0, v6
        v_add_u32 v10, s1, v7
        v_xor_b32 v9, 160, v8
        """)
        preread(2)
        a("s_waitcnt lgkmcnt(0)")
        lowprio("L_lp2")
        a("s_branch L_g2\nL_toB:")
    else: a("s_mov_b32 s42, 0")
    nextjob_regs()
    if not ded:
        a("s_cmp_lt_u32 s3, 6\ns_cbranch_scc1 L_imgwait")
        if bdelay: a(f"s_sleep {bdelay}")
        if ackfirst: a("s_waitcnt vmcnt(0)")
        if edelay:
            a(f"s_waitcnt lgkmcnt(0)\nv_cmp_eq_u32 vcc, 0, v5\ns_cbranch_vccnz L_gather\ns_sleep {edelay}")
        a("s_branch L_gather")
    else: a("s_branch L_imgwait")
    a("L_fin:")
    if hold in (9, 10) and not stamps: stamp(hold)
    if amp is not None:
        if amp == 9: stamp(9)
        a("s_waitcnt vmcnt(0)")
        if amp == 10: stamp(10)
        a("s_waitcnt lgkmcnt(0)")
        if ampw == "c": a("s_cmp_ge_u32 s3, 4\ns_cselect_b32 s94, s92, s94")
        if ampw == "l": a("s_cmp_lt_u32 s3, 4\ns_cselect_b32 s94, s92, s94")
        a(f"""
        L_amp0:
        s_sleep 8
        s_memrealtime s[96:97]
        s_waitcnt lgkmcnt(0)
        s_sub_u32 s96, s96, s92
        s_cmp_lt_u32 s96, 4000
        s_cbranch_scc1 L_amp0
        s_not_b32 s95, s92
        v_mov_b32 v4, s94
        v_mov_b32 v5, s95
        v_mov_b32 v1, 8
        s_mov_b64 exec, 1
        global_atomic_umax v1, v4, s[34:35]
        global_atomic_umax v1, v5, s[34:35] offset:4
        s_waitcnt vmcnt(0)
        L_amp1:
        s_sleep 8
        s_memrealtime s[96:97]
        s_waitcnt lgkmcnt(0)
        s_sub_u32 s96, s96, s92
        s_cmp_lt_u32 s96, 16000
        s_cbranch_scc1 L_amp1
        global_load_dwordx2 v[4:5], v1, s[34:35] sc1
        s_waitcnt vmcnt(0)
        v_readfirstlane_b32 s94, v4
        v_readfirstlane_b32 s95, v5
        s_not_b32 s95, s95
        s_sub_u32 s94, s94, s95
        s_mul_i32 s94, s94, 10
        s_add_u32 s94, s94, 18900
        s_min_u32 s94, s94, 100000
        L_amp2:
        s_sleep 2
        s_memrealtime s[96:97]
        s_waitcnt lgkmcnt(0)
        s_sub_u32 s96, s96, s95
        s_cmp_lt_u32 s96, s94
        s_cbranch_scc1 L_amp2
        """)
    if stamps:
        stamp(9)
        a("s_waitcnt vmcnt(0)")
        stamp(10)
        a(f"""
        s_lshl_b32 s52, s2, 12
        s_lshl_b32 s53, s3, 9
        s_add_u32 s52, s52, s53
        s_add_u32 s52, s52, {STAMP_OFF}
        v_lshlrev_b32 v1, 3, v0
        v_add_u32 v1, s52, v1
        global_store_dwordx2 v1, v[{VST}:{VST2}], s[36:37]
        s_waitcnt vmcnt(0)
        """)
    a("L_end:\ns_endpgm")
    if relayout:
        L = a.lines
        ix = {t: L.index(t) for t in ("L_ltail:", "L_compute:", "L_cloop:", "L_imgwait:", "L_end:")}
        a.lines = (L[:ix["L_ltail:"]] + ["    s_branch L_ltail", ".p2align 12", "L_page:"] +
                   L[ix["L_compute:"]:ix["L_cloop:"]] + ["    s_branch L_cloop"] +
                   L[ix["L_ltail:"]:ix["L_compute:"]] + L[ix["L_imgwait:"]:ix["L_end:"]] + ["    s_endpgm", ".p2align 6"] +
                   L[ix["L_cloop:"]:ix["L_imgwait:"]] + ["    s_branch L_imgwait"] + L[ix["L_end:"]:])
        if hop: a.lines = add_hops(a.lines, [("L_ltail:", "L_end:")], hop, page="L_page:")
    elif hop: a.lines = add_hops(a.lines, [("L_lloop:", "L_compute:"), ("L_cloop:", "L_end:")], hop)
    if align8: a.lines = pad8(a.lines, "L_cloop:", "L_cpart:")
    hazcheck(a.lines)
    return wrap(DOC + a.text(), 256, 512, 163840, 256)

if __name__ == "__main__":
    out = sys.argv[1]
    kw = json.loads(sys.argv[2]) if len(sys.argv) > 2 else {}
    open(out, "w").write(gen(**kw))
```

```python
import sys, json, struct
from asmlib import *

def f2u(f): return struct.unpack("<I", struct.pack("<f", f))[0]

LROWS = 7999
C1 = -2.0 * 0.7978845608028654 * 1.4426950408889634
C2 = C1 * 0.044715
KS = (-C2) ** (1.0 / 3.0)
CP = -C1 / KS
SENT = 0xBF800000
A_SLOT = 32768
W_BASE = 98304
MISC = 32768
PART = MISC
CONST = MISC + 2048
FLAGS = MISC + 3072
STAMP_OFF = 1 << 20
SPIN = 0x40000

DOC = """    ; Fused strided conv (as a GEMM, K = 3 taps x 512) + per-(batch,channel) norm over time + tanh-GELU.
    ; Exchange: every workgroup resets its {sum, sumsq} record in d_ws to a sentinel, counts that in d_debug,
"""

def gen(stamps=False, xmod="", wmod="", omod=" sc1", codepf=True, itstamps=False, hold=None, holdus=40,
        parity=True, psleep=1, fsleep=1, rsleep=0, lprio=2, cprio=3, LA=2, LB=3, only=None, wpar=True, jouter=False, ded=False, onebar=False, align8=False, shift=0, pf2=False, isleep=2, probes=False, ilv=True, hop=0, acc0=None, relayout=True, hopwait=False, nostore=False, gprio=None, hk=False, sthr=None, alt=1, snake=False, amp=None, ampw=None, swap=False, mprio=0, valu_in=False, iper=1, lag=True, lagfrom=3, rampv=0, pfk=19, otouch=None, bmap=0, adelay=None, gdelay=0, bdelay=0, edelay=0, ackfirst=False, lastp=0, lastmod='', lastc=False, satom=False, amap=0):
    a = Asm()
    VST, VST2 = 2, 3
    def stamp(k):
        if hold == k:
            lb = a.label("L_hold")
            a(f"""s_waitcnt lgkmcnt(0)
            {lb}:
            s_memrealtime s[96:97]
            s_waitcnt lgkmcnt(0)
            s_sub_u32 s96, s96, s92
            s_cmp_lt_u32 s96, {holdus*100}
            s_cbranch_scc1 {lb}""")
        if amp == k: a("s_memrealtime s[94:95]")
        if not stamps or (only is not None and k not in only): return
        a(f"s_memrealtime s[100:101]\ns_waitcnt lgkmcnt(0)\nv_writelane_b32 v{VST}, s100, {k}")
        if k in (1, 2, 8, 9): a(f"s_memtime s[100:101]\ns_waitcnt lgkmcnt(0)\nv_writelane_b32 v{VST2}, s100, {k}")
    def final_setup(role):
        a(f"""
        s_mul_i32 s38, s43, {LROWS}
        s_add_u32 s38, s38, s45
        s_lshl_b32 s38, s38, 10
        s_add_u32 s16, s32, s38
        s_addc_u32 s17, s33, 0
        s_lshl_b32 s18, s47, 10
        s_mov_b32 s19, 0x20000
        v_and_b32 v1, 7, v0                   ; o
        v_lshrrev_b32 v8, 3, v0
        s_and_b32 s38, s49, 1
        s_lshl_b32 s40, s38, 5
        s_add_u32 s40, s40, {64 if role == "c" else 0}
        v_add_u32 v8, s40, v8
        s_lshl_b32 s38, s38, 2
        v_xor_b32 v9, s38, v1                 ; o ^ 4*((row>>5)&1)
        v_bfe_u32 v10, v0, 4, 1               ; f
        v_lshl_add_u32 v9, v10, 3, v9
        v_lshlrev_b32 v9, 4, v9
        v_lshl_add_u32 v9, v8, 8, v9
        s_lshr_b32 s38, s49, 1
        s_lshl_b32 s40, s38, 15
        s_add_u32 s42, s40, {W_BASE}
        v_add_u32 v6, s42, v9
        s_sub_u32 s40, s40, {W_BASE}
        s_lshl_b32 s42, s38, 7
        v_add_u32 v8, s42, v8
        v_lshlrev_b32 v8, 10, v8
        v_lshl_add_u32 v7, v1, 4, v8
        s_lshl_b32 s42, s41, 8
        v_add_u32 v7, s42, v7
        v_lshlrev_b32 v11, 5, v1
        v_and_b32 v14, 1, v0
        v_lshlrev_b32 v14, 2, v14             ; constflag[lane&1]
        v_and_b32 v12, 3, v0
        v_lshlrev_b32 v12, 2, v12             ; imgflag[lane&3]
        v_mov_b32 v13, 1
        v_mov_b32 v8, v6
        v_xor_b32 v9, 160, v6
        v_mov_b32 v10, v7
        s_mov_b32 s24, {f2u(CP)}
        s_mov_b32 s25, {f2u(CP)}
        s_mov_b32 s26, {f2u(KS)}
        s_mov_b32 s27, {f2u(KS)}
        """)
        if not ded: a("s_mov_b32 s42, 1")
        elif role == "l": a("s_mov_b32 s42, 2\ns_mov_b32 s0, 32768\ns_mov_b32 s1, 131072")
        else: a(f"s_add_u32 s42, s38, 1\ns_mov_b32 s0, {(-48*256) & 0xffffffff}\ns_mov_b32 s1, {(-48*1024) & 0xffffffff}")
    HH, VO = 160, 60
    def preread(n):
        for i in range(n - 1, -1, -1):
            a(f"ds_read_b128 v[{HH+8*i}:{HH+8*i+3}], v8 offset:{2048*i}\nds_read_b128 v[{HH+8*i+4}:{HH+8*i+7}], v9 offset:{2048*i}")
        for i in range(1, n): a(f"v_add_u32 v{VO+i}, {8192*i}, v10")
    def part_publish(lbl, vaddr, half, x, vrec, maskreg, sleep):
        a(f"""
        {lbl}:
        ds_read_b128 v[{x}:{x+3}], v{vaddr} offset:{PART + 1024*half}
        s_waitcnt lgkmcnt(0)
        v_min_f32 v1, v{x+1}, v{x+3}
        v_cmp_gt_f32 vcc, 0, v1
        s_cbranch_vccz {lbl}_ok
        {"s_sleep %d" % sleep if sleep else ""}
        s_sub_u32 s59, s59, 1
        s_cmp_gt_i32 s59, 0
        s_cbranch_scc1 {lbl}
        {lbl}_ok:
        """)
        for i in range(4): a(f"v_mov_b32 v{x+4+i}, v{x+i}")
        for i in range(4): a(f"v_permlane32_swap_b32 v{x+i}, v{x+4+i}")
        for i in range(4): a(f"v_add_f32 v{x+i}, v{x+i}, v{x+4+i}")
        a(f"""
        s_mov_b64 exec, {maskreg}
        buffer_store_dwordx4 v[{x}:{x+3}], v{vrec}, s[20:23], 0 offen sc1
        s_mov_b64 exec, -1
        """)
    a(f"""
    s_cmp_ge_u32 s2, 256
    s_cbranch_scc1 L_end
    s_load_dwordx4 s[4:7], s[0:1], 0      ; x, w
    s_load_dwordx4 s[28:31], s[0:1], 16
    s_load_dwordx4 s[32:35], s[0:1], 32
    s_load_dwordx2 s[36:37], s[0:1], 48   ; ws
    """)
    if stamps or hold is not None or amp is not None: a("s_memrealtime s[92:93]")
    if amp is not None: a("s_memrealtime s[94:95]")
    a(f"""
    v_lshrrev_b32 v1, 6, v0
    v_and_b32 v0, 63, v0
    v_readfirstlane_b32 s3, v1
    s_and_b32 s38, s2, 7
    {"s_lshr_b32 s40, s38, 1" if bmap else ""}
    {"s_and_b32 s38, s38, 1" if bmap else ""}
    {"s_lshl_b32 s38, s38, 2" if bmap else ""}
    {"s_add_u32 s38, s38, s40" if bmap else ""}
    s_bfe_u32 s40, s2, 0x30005
    s_bfe_u32 s41, s2, 0x20003
    s_lshl_b32 s42, s38, 3
    s_add_u32 s42, s42, s40               ; mt 0..63
    s_lshr_b32 s43, s42, 5                ; batch
    s_and_b32 s44, s42, 31
    s_mul_i32 s45, s44, 250
    s_mul_i32 s46, s43, 8000
    s_add_u32 s46, s46, s45
    s_cmp_eq_u32 s44, 31
    s_cselect_b32 s47, 1, 0
    s_sub_u32 s47, 250, s47               ; nvalid
    s_lshl_b32 s48, s43, 2
    s_add_u32 s48, s48, s41
    s_and_b32 s49, s3, 3
    {"s_xor_b32 s3, s3, 4" if swap else ""}
    s_cmp_lt_u32 s3, 4
    s_cbranch_scc1 L_compute
    """)
    VA, VW = 56, 60
    a(f"""
    v_lshrrev_b32 v4, 4, v0               ; l>>4
    v_and_b32 v5, 15, v0
    v_lshlrev_b32 v6, 1, v4
    v_xor_b32 v5, v5, v6                  ; W chunk (n<2)
    s_and_b32 s50, s49, 1
    s_lshl_b32 s51, s50, 14
    s_lshl_b32 s52, s41, 8
    s_add_u32 s51, s51, s52
    v_lshlrev_b32 v5, 4, v5
    v_lshl_add_u32 v5, v4, 10, v5
    s_and_b32 s53, s40, {1 if wpar else 0}
    s_mul_i32 s52, s53, {8192 + 128}
    v_add_u32 v5, s51, v5
    v_xor_b32 v{VW}, s52, v5
    v_xor_b32 v{VW+2}, {8192 + 128}, v{VW}
    v_add_u32 v{VW+1}, 3072, v{VW}
    v_add_u32 v{VW+3}, 3072, v{VW+2}
    s_lshl_b32 s51, s49, 12
    s_lshl_b32 s53, s53, 11
    s_add_u32 s51, s51, s53
    s_add_u32 s51, s51, {W_BASE}
    s_lshr_b32 s62, s49, 1                ; lw>=2
    s_lshl_b32 s54, s62, 20               ; sB0
    s_mov_b32 s14, 1572864
    s_mov_b32 s15, 0x20000
    s_mov_b32 m0, s51
    s_waitcnt lgkmcnt(0)
    s_mov_b32 s12, s6
    s_mov_b32 s13, s7
    """)
    if stamps: a(f"v_writelane_b32 v{VST}, s92, 0")
    vq = []
    def issueA(slot_s, soff, tag, halves=(0, 1)):
        for half in halves:
            if half == halves[0]: a(f"s_add_u32 m0, s50, {slot_s}")
            if half == 1: a(f"s_xor_b32 m0, m0, 4096")
            a("s_nop 0")
            for n in range(4):
                vq.append(tag)
                a(f"buffer_load_dwordx4 v{VA+half*2+(n&1)}, s[8:11], {soff} offen offset:{n*1024}{xmod} lds")
    def issueW(slot_s, soff, tag, setm0=True, halves=(0, 1)):
        for half in halves:
            if half == halves[0] and setm0: a(f"s_add_u32 m0, s51, {slot_s}")
            if half == 1: a("s_xor_b32 m0, m0, 2048")
            if setm0 or half == 1: a("s_nop 0")
            for n in range(2):
                vq.append(tag)
                a(f"buffer_load_dwordx4 v{VW+2*half+n}, s[12:15], {soff} offen offset:{n*1024}{wmod} lds")
    def vwait(tags):
        last = max([i for i, t in enumerate(vq) if t in tags], default=-1)
        n = len(vq) - 1 - last
        a(f"s_waitcnt vmcnt({n})")
        return n
    def Aname(k): return f"E{k//3}" if k % 3 < 2 else f"O{k//3}"
    issueW(0, "s54", "B0", setm0=False, halves=(0,) if wpar else (0, 1))
    a(f"""
    v_and_b32 v5, 7, v0
    v_xor_b32 v5, v5, v4
    v_lshlrev_b32 v5, 4, v5
    v_lshrrev_b32 v6, 3, v0
    v_lshl_add_u32 v5, v6, 14, v5
    s_lshl_b32 s52, s62, 18
    s_lshl_b32 s53, s50, 13
    s_add_u32 s52, s52, s53
    s_and_b32 s53, s41, {1 if parity else 0}
    s_lshl_b32 s53, s53, 12
    s_add_u32 s52, s52, s53
    v_add_u32 v{VA}, s52, v5
    v_xor_b32 v{VA+2}, 4096, v{VA}
    v_xor_b32 v{VA+1}, 64, v{VA}
    v_xor_b32 v{VA+3}, 64, v{VA+2}
    v_add_u32 v{VA+1}, {64*2048 - 1024}, v{VA+1}
    v_add_u32 v{VA+3}, {64*2048 - 1024}, v{VA+3}
    s_lshl_b32 s50, s49, 13
    s_add_u32 s50, s50, s53
    s_lshl_b32 s10, s47, 11
    s_add_u32 s10, s10, 1024
    s_mov_b32 s11, 0x20000
    s_lshl_b32 s57, s46, 11
    s_add_u32 s8, s4, s57
    s_addc_u32 s9, s5, 0
    s_mov_b32 s52, 0                      ; x k-offset (E)
    s_mov_b32 s53, 1024                   ; x k-offset (O)
    s_add_u32 s55, s54, 0x8000            ; sB1
    s_lshl_b32 s56, s62, 15
    s_add_u32 s56, s56, 0x80000           ; sB2
    """)
    issueA(0, "s52", "E0", halves=(0,))
    if wpar: issueW(16384, "s55", "B1", halves=(0,))
    stamp(5)
    R = 80
    NG = 8; MK = 64; G = 96
    a(f"""
    s_mov_b32 s20, s36
    s_mov_b32 s21, s37
    s_mov_b32 s22, 0x40000
    s_mov_b32 s23, 0x20000
    s_lshl_b32 s39, s48, 5
    s_add_u32 s39, s39, s44
    s_lshl_b32 s39, s39, 10
    v_lshlrev_b32 v{R+6}, 4, v0
    v_add_u32 v{R+5}, s39, v{R+6}
    v_and_b32 v1, 15, v0
    v_lshrrev_b32 v5, 5, v0
    v_lshl_add_u32 v5, v1, 1, v5
    s_lshl_b32 s57, s49, 5
    v_add_u32 v{R}, s57, v5
    s_lshl_b32 s57, s41, 7
    v_add_u32 v{R+7}, s57, v{R}
    v_lshlrev_b32 v{R+7}, 1, v{R+7}
    v_lshlrev_b32 v{R}, 2, v{R}
    v_lshlrev_b32 v1, 4, v1
    v_lshl_add_u32 v1, v4, 10, v1
    s_lshl_b32 s57, s48, 15
    s_lshl_b32 s58, s49, 8
    s_add_u32 s57, s57, s58
    v_add_u32 v{R+3}, s57, v1
    s_lshl_b32 s57, s48, 5
    v_mov_b32 v{R+4}, s57
    s_add_u32 s57, s39, s58
    v_lshl_add_u32 v{R+8}, v0, 2, s57
    v_mov_b32 v29, 0
    v_mov_b32 v{R+10}, {SENT}
    v_mov_b32 v{R+11}, {SENT}
    s_lshl_b32 s57, s49, 4
    s_lshl_b64 s[90:91], 0xffff, s57
    """)
    for i in range(NG): a(f"s_mov_b64 s[{MK+2*i}:{MK+2*i+1}], -1")
    for i in range(1, NG): a(f"s_mov_b32 s{80+i}, {i*4096}")
    final_setup("l")
    stamp(13)
    if wpar: issueW(0, "s54", "B0", halves=(1,))
    issueA(0, "s52", "E0", halves=(1,))
    if wpar: issueW(16384, "s55", "B1", halves=(1,))
    if onebar:
        if not wpar: issueW(16384, "s55", "B1")
        issueW(32768, "s56", "B2")
        stamp(6)
        vwait({"B0", "E0", "B1"}); a("s_barrier")
        stamp(1)
    else:
        stamp(7)
        vwait({"B0"}); stamp(15); a("s_barrier")
        if not wpar: issueW(16384, "s55", "B1")
    a(f"""
    buffer_store_dword v{R+10}, v{R+8}, s[20:23], 0 offen sc1
    global_load_ushort v{R+1}, v{R+7}, s[28:29]
    global_load_ushort v{R+2}, v{R+7}, s[30:31]
    s_lshl_b32 s57, s49, 9
    v_lshl_add_u32 v{R+7}, v0, 3, s57
    v_lshlrev_b32 v{R+8}, 2, v0
    v_mov_b32 v{R+9}, 0
    """)
    vq += ["S", "g", "g"]
    if not onebar: issueW(32768, "s56", "B2")
    a(f"""
    s_mov_b32 s57, {2*A_SLOT}
    s_mov_b32 s58, {A_SLOT}
    s_mov_b32 s59, 49152
    """)
    if not onebar:
        stamp(6)
        vwait({"E0", "B1"}); a("s_barrier")
        stamp(1)
    def iB(kb, ph, nth=0):
        sreg = ["s54", "s55", "s56"][kb % 3]
        if ph in (0, None): a(f"s_add_u32 {sreg}, {sreg}, 0x10000")
        issueW("s59", sreg, f"B{kb}", halves=(0, 1) if ph is None else (ph,))
        if ph in (1, None): a("s_add_u32 s59, s59, 16384\ns_and_b32 s59, s59, 0xffff")
    def iO(c, ph):
        if c > 0 and ph in (0, None): a("s_add_u32 s53, s53, 128")
        issueA("s58", "s53", f"O{c}", halves=(0, 1) if ph is None else (ph,))
    def iE(c, ph):
        if ph in (0, None): a("s_add_u32 s52, s52, 128")
        issueA("s57", "s52", f"E{c}", halves=(0, 1) if ph is None else (ph,))
        if ph in (1, None): a(f"s_add_u32 s61, s57, s58\ns_mov_b32 s57, s58\ns_sub_u32 s58, {3*A_SLOT}, s61")
    ramp = {-1: [("O", 0), ("B", 3)], 0: [("E", 1), ("B", 4)], 1: [("B", 5), ("O", 1)], 2: [("B", 6), ("E", 2)], 3: [("B", 7), ("B", 8)]}
    if rampv == 1: ramp = {-1: [("O", 0), ("B", 3)], 0: [("E", 1), ("B", 4)], 1: [("B", 5), ("O", 1)], 2: [("B", 6), ("E", 2)], 3: [("B", 7)], 4: [("B", 8), ("B", 9), ("O", 2)]}
    pend = []
    fn = {"B": iB, "O": iO, "E": iE}
    def lstep(k):
        c = k // 3
        if k in ramp: todo = list(ramp[k])
        else:
            todo = []
            if k + 5 <= 23: todo.append(("B", k + 5))
            if k % 3 == 1 and c + 1 <= 7: todo.append(("O", c + 1))
            if k % 3 == 2 and c + 2 <= 7: todo.append(("E", c + 2))
        for kind, i in pend: fn[kind](i, 1)
        pend[:] = []
        if lag and lagfrom <= k < 19:
            if len(todo) >= 2 and todo[0][0] == todo[1][0]:
                fn[todo[0][0]](todo[0][1], None); todo = todo[1:]
            for kind, i in todo: fn[kind](i, 0)
            pend[:] = todo
        else:
            two = ilv and len(todo) == 2 and todo[0][0] != todo[1][0]
            for ph in ((0, 1) if two else (None,)):
                for kind, i in todo: fn[kind](i, ph)
        if pf2 and k == pfk:
            a(f"""
            s_getpc_b64 s[88:89]
            L_pfbase2:
            s_add_u32 s88, s88, L_compute-L_pfbase2
            s_addc_u32 s89, s89, 0
            s_bfe_u32 s61, s2, 0x30005
            s_lshl_b32 s63, s49, 5
            s_add_u32 s61, s61, s63
            s_lshl_b32 s61, s61, 7
            v_lshl_add_u32 v1, v0, 10, s61
            v_min_u32 v1, L_end-L_compute, v1
            s_mov_b64 exec, 15
            global_load_dword v16, v1, s[88:89]
            s_mov_b64 exec, -1
            """)
            vq.append("c")
        if otouch == k:
            a(f"""
            s_lshl_b32 s61, s49, 16
            v_lshl_add_u32 v1, v0, 12, s61
            s_mov_b64 exec, 0xffff
            buffer_load_dword v17, v1, s[16:19], 0 offen
            s_mov_b64 exec, -1
            """)
            vq.append("o")
        need = {Aname(k + 2), f"B{k+3}"}
        assert not need & {f"{kd}{i}" for kd, i in pend}
        return vwait(need)
    K0 = 5 if lag else 4
    NLI = 4 if lag else 5
    for k in range(-1, K0):
        lstep(k); a("s_barrier")
    a(f"""
    s_mov_b32 s60, {NLI}
    s_and_b32 s62, s44, 3
    {"s_min_u32 s62, s62, 2" if amap == 0 else ""}
    s_add_u32 s62, s62, {2 if amap == 0 else 1}
    s_cmp_lg_u32 s49, 0
    s_cselect_b32 s62, 0, s62
    L_lloop:
    """)
    ns = []
    for k in range(K0, K0 + 3):
        ns.append(lstep(k))
        if k == 6:
            a(f"""
            s_cmp_lg_u32 s60, s62
            s_cbranch_scc1 L_noat
            {"s_mov_b32 s61, 1" if satom else "s_mov_b64 exec, 1"}
            {"s_lshl_b32 s63, s48, 5" if satom else ""}
            {"s_atomic_add s61, s[34:35], s63" if satom else "global_atomic_add v%d, v13, s[34:35]" % (R+4)}
            {"s_waitcnt lgkmcnt(0)" if satom else "s_mov_b64 exec, -1"}
            L_noat:
            """)
        a("s_barrier")
    a("s_sub_u32 s60, s60, 1\ns_cmp_lg_u32 s60, 0\ns_cbranch_scc1 L_lloop")
    keep = len(a.lines)
    mins = list(ns)
    for k in range(K0 + 3, K0 + 3 * NLI):
        n = lstep(k); mins[(k - K0) % 3] = min(mins[(k - K0) % 3], n)
    del a.lines[keep:]
    li = a.lines.index("L_lloop:"); wi = 0
    for q in range(li, len(a.lines)):
        if "s_waitcnt vmcnt" in a.lines[q]:
            a.lines[q] = f"    s_waitcnt vmcnt({mins[wi]})"; wi += 1
    assert wi == 3
    for k in range(K0 + 3 * NLI, 19):
        lstep(k); a("s_barrier")
    lstep(19); a("s_barrier")
    a("L_ltail:")
    stamp(11)
    a(f"""
    ds_write_b64 v{R+7}, v[{R+10}:{R+11}] offset:{PART}
    ds_write_b32 v{R+8}, v{R+9} offset:{FLAGS}
    s_waitcnt lgkmcnt(0)
    """)
    vwait({"B23"}); a("s_barrier")
    a(f"""
    s_waitcnt vmcnt(0)
    s_barrier
    global_load_dword v{R+9}, v{R+4}, s[34:35] sc1
    s_mov_b32 s52, {f2u(KS)}
    v_lshlrev_b32 v{R+1}, 16, v{R+1}
    v_lshlrev_b32 v{R+2}, 16, v{R+2}
    v_mul_f32 v{R+1}, s52, v{R+1}
    v_mul_f32 v{R+2}, s52, v{R+2}
    s_mov_b32 s59, {SPIN}
    s_barrier
    """)
    stamp(2)
    if lprio: a(f"s_setprio {lprio}")
    def nextjob_regs():
        a(f"""
        v_add_u32 v8, s40, v6
        v_add_u32 v10, 128, v7
        v_xor_b32 v9, 160, v8
        v_add_u32 v11, 256, v11
        v_add_u32 v14, 8, v14
        v_add_u32 v12, 16, v12
        """)
    a("s_cmp_ge_u32 s49, 2\ns_cbranch_scc1 L_nopub")
    part_publish("L_part", R + 6, 0, G, R + 5, "s[90:91]", psleep)
    stamp(3)
    if adelay is not None:
        a(f"s_sleep {adelay}\ns_waitcnt vmcnt(1)\ns_branch L_cnt1")
    a(f"""
    L_nopub:
    L_cnt:
    s_waitcnt vmcnt(0)
    L_cnt1:
    v_readfirstlane_b32 s52, v{R+9}
    s_cmp_ge_u32 s52, 32
    s_cbranch_scc1 L_cnt_ok
    s_sleep 32
    global_load_dword v{R+9}, v{R+4}, s[34:35] sc1
    s_sub_u32 s59, s59, 1
    s_cmp_gt_i32 s59, 0
    s_cbranch_scc1 L_cnt
    L_cnt_ok:
    s_cmp_lt_u32 s49, 2
    s_cbranch_scc1 L_gather
    """)
    if ded:
        a(f"""
        s_mov_b32 s42, 0
        """)
        nextjob_regs()
        a(f"""
        s_mov_b32 s59, {SPIN}
        L_img2:
        ds_read_b32 v15, v12 offset:{FLAGS+16}
        s_waitcnt lgkmcnt(0)
        v_cmp_eq_u32 vcc, 0, v15
        s_cbranch_vccz L_img2_ok
        s_sleep 1
        s_sub_u32 s59, s59, 1
        s_cmp_gt_i32 s59, 0
        s_cbranch_scc1 L_img2
        L_img2_ok:
        """)
        preread(4)
    else:
        a("s_branch L_imgwait")
    a("L_gather:")
    if gdelay: a(f"s_sleep {gdelay}")
    if stamps: a("s_mov_b32 s94, 0")
    a(f"s_mov_b32 s59, {SPIN}\nL_poll:")
    if stamps: a("s_add_u32 s94, s94, 1")
    for i in range(NG):
        a(f"s_or_b64 exec, s[{MK+2*i}:{MK+2*i+1}], 1")
        a(f"buffer_load_dwordx4 v[{G+4*i}:{G+4*i+3}], v{R+3}, s[20:23], {'s%d' % (80+i) if i else 0} offen sc1")
    a("s_mov_b64 exec, -1\ns_waitcnt vmcnt(0)")
    for i in range(NG):
        a(f"v_min_f32 v1, v{G+4*i+1}, v{G+4*i+3}")
        a(f"v_cmp_gt_f32 s[{MK+2*i}:{MK+2*i+1}], 0, v1")
    a(f"s_or_b64 s[52:53], s[{MK}:{MK+1}], s[{MK+2}:{MK+3}]")
    for i in range(2, NG):
        a(f"s_or_b64 s[52:53], s[52:53], s[{MK+2*i}:{MK+2*i+1}]")
    a(f"""
    s_cbranch_scc0 L_poll_done
    {"s_sleep %d" % rsleep if rsleep else ""}
    s_sub_u32 s59, s59, 1
    s_cmp_gt_i32 s59, 0
    s_cbranch_scc1 L_poll
    L_poll_done:
    """)
    if stamps: a(f"v_writelane_b32 v{VST2}, s94, 63")
    stamp(4)
    for step_ in (4, 2, 1):
        for i in range(step_):
            for h in range(4):
                x = G + 4 * i + h; y = G + 4 * (i + step_) + h
                a(f"v_add_f32 v{x}, v{x}, v{y}")
    x = G
    a(f"""
    s_mov_b32 s52, {f2u(1.0/LROWS)}
    s_nop 0
    v_permlane32_swap_b32 v{x}, v{x+2}
    v_permlane32_swap_b32 v{x+1}, v{x+3}
    s_nop 1
    v_add_f32 v{x}, v{x}, v{x+2}
    v_add_f32 v{x+1}, v{x+1}, v{x+3}
    v_mov_b32 v{x+2}, v{x}
    v_mov_b32 v{x+3}, v{x+1}
    s_nop 1
    v_permlane16_swap_b32 v{x}, v{x+2}
    v_permlane16_swap_b32 v{x+1}, v{x+3}
    s_nop 1
    v_add_f32 v{x}, v{x}, v{x+2}
    v_add_f32 v{x+1}, v{x+1}, v{x+3}
    v_mul_f32 v{G}, s52, v{G}             ; mean
    v_mul_f32 v{G+1}, s52, v{G+1}         ; E[h^2]
    v_fma_f32 v{G+1}, -v{G}, v{G}, v{G+1} ; var
    v_max_f32 v{G+1}, 0, v{G+1}
    v_add_f32 v{G+1}, {f2u(1e-5)}, v{G+1}
    v_rsq_f32 v{G+1}, v{G+1}
    s_lshl_b32 s52, s49, 2
    v_mul_f32 v{G+1}, v{G+1}, v{R+1}      ; KS*scale
    v_mov_b32 v1, s52
    v_fma_f32 v{G}, -v{G}, v{G+1}, v{R+2} ; KS*shift
    ds_write_b32 v{R}, v{G+1} offset:{CONST}
    ds_write_b32 v{R}, v{G} offset:{CONST+512}
    ds_write_b32 v1, v13 offset:{FLAGS}
    s_mov_b32 s59, {SPIN*16}
    """)
    if gprio is not None: a(f"s_setprio {gprio}")
    if ded: a("s_cmp_ge_u32 s49, 2\ns_cbranch_scc1 L_fw")
    a("s_branch L_imgwait")

    ACC = 128
    def acc(j, n): return ACC + (j * 4 + n) * 4
    BF = 64; AF = 32; NRING = 8
    aE, aE8, aO, bB = 16, 18, 20, 22
    VIMG, VPART, VPRD, VREC = 26, 27, 28, 29
    a("L_compute:")
    if mprio: a(f"s_setprio {mprio}")
    if codepf:
        a(f"""
        s_getpc_b64 s[52:53]
        L_pfbase:
        s_sub_u32 s52, s52, L_pfbase-L_compute
        s_subb_u32 s53, s53, 0
        s_lshl_b32 s50, s49, 5
        s_add_u32 s50, s50, s40
        s_lshl_b32 s50, s50, 7
        v_lshl_add_u32 v1, v0, 10, s50
        v_min_u32 v1, L_end-L_compute, v1
        s_mov_b64 exec, 15
        global_load_dword v30, v1, s[52:53]
        s_mov_b64 exec, -1
        """)
    a(f"""
    s_lshr_b32 s50, s49, 1                ; wm
    s_and_b32 s51, s49, 1                 ; wn
    v_and_b32 v32, 15, v0                 ; i
    v_lshrrev_b32 v33, 4, v0              ; g
    s_lshl_b32 s52, s50, 14
    v_bfe_u32 v34, v32, 1, 3
    v_xor_b32 v34, v34, v33
    v_lshlrev_b32 v34, 4, v34
    v_lshl_add_u32 v34, v32, 7, v34
    v_add_u32 v{aE}, s52, v34
    v_xor_b32 v{aE+1}, 64, v{aE}
    v_add_u32 v{aO}, {A_SLOT}, v{aE}
    v_add_u32 v{aO+1}, {A_SLOT}, v{aE+1}
    v_add_u32 v35, 1, v32
    s_mul_i32 s52, s50, 127
    s_add_u32 s52, s52, 128
    s_lshl_b32 s53, s50, 7
    v_add_u32 v35, s53, v35
    v_mov_b32 v36, s52
    v_cmp_eq_u32 vcc, 15, v32
    s_nop 1
    v_cndmask_b32 v35, v35, v36, vcc
    v_bfe_u32 v34, v35, 1, 3
    v_xor_b32 v34, v34, v33
    v_lshlrev_b32 v34, 4, v34
    v_lshl_add_u32 v{aE8}, v35, 7, v34
    v_xor_b32 v{aE8+1}, 64, v{aE8}
    v_bfe_u32 v34, v0, 2, 2
    v_lshl_add_u32 v35, v33, 3, v34
    v_bfe_u32 v34, v0, 2, 3
    v_lshlrev_b32 v34, 5, v34
    s_lshl_b32 s52, s51, 6
    v_xor_b32 v34, s52, v34
    v_and_b32 v36, 3, v0
    v_lshl_add_u32 v34, v36, 3, v34
    v_lshl_add_u32 v34, v35, 8, v34
    v_add_u32 v{bB}, {W_BASE}, v34
    v_xor_b32 v{bB+1}, 32, v{bB}
    v_xor_b32 v{bB+2}, 128, v{bB}
    v_xor_b32 v{bB+3}, 160, v{bB}
    s_mov_b64 s[64:65], -1
    s_mov_b64 s[66:67], -1
    s_cmp_eq_u32 s50, 0
    s_cbranch_scc1 L_nomask
    s_cmp_eq_u32 s47, 249
    s_cselect_b32 s65, 0xffff, -1
    s_cselect_b32 s67, -1, 0xffff
    L_nomask:
    v_bfe_u32 v34, v32, 2, 1
    v_mul_u32_u24 v34, 10, v34
    v_lshrrev_b32 v35, 3, v32
    v_or_b32 v34, v34, v35
    v_and_b32 v35, 1, v33
    v_xor_b32 v35, s51, v35
    v_lshl_add_u32 v34, v35, 2, v34
    v_lshlrev_b32 v34, 4, v34
    v_and_b32 v35, 3, v32
    v_lshl_add_u32 v34, v35, 2, v34
    v_lshl_add_u32 v34, v33, 13, v34
    s_lshl_b32 s52, s50, 15
    s_add_u32 s52, s52, {W_BASE}
    v_add_u32 v{VIMG}, s52, v34
    v_lshrrev_b32 v34, 5, v0
    v_lshl_add_u32 v34, v34, 4, v32
    s_lshl_b32 s52, s49, 8
    v_lshl_add_u32 v{VPART}, v34, 3, s52
    v_lshlrev_b32 v{VPRD}, 4, v0
    s_lshl_b32 s39, s48, 5
    s_add_u32 s39, s39, s44
    s_lshl_b32 s39, s39, 10
    s_add_u32 s39, s39, 512
    v_add_u32 v{VREC}, s39, v{VPRD}
    s_lshl_b32 s52, s49, 3
    s_lshl_b64 s[90:91], 0xff, s52
    s_lshl_b32 s52, s49, 2
    v_mov_b32 v15, s52
    s_waitcnt lgkmcnt(0)
    s_mov_b32 s20, s36
    s_mov_b32 s21, s37
    s_mov_b32 s22, 0x40000
    s_mov_b32 s23, 0x20000
    """)
    final_setup("c")
    if acc0 is None:
        for i in range(0, 128, 2): a(f"v_mov_b64 v[{ACC+i}:{ACC+i+1}], 0")
    else:
        for i in range(128): a(f"v_mov_b32 v{ACC+i}, {f2u(acc0)}")
    if stamps: a(f"v_writelane_b32 v{VST}, s92, 0")
    a(f"""
    s_mov_b32 s54, 0                      ; sE
    s_mov_b32 s55, {A_SLOT}               ; sO
    s_mov_b32 s56, 0
    s_mov_b32 s57, 4
    s_mov_b32 s63, 16384
    s_mov_b32 s61, 16
    """)
    if hop:
        if hopwait: a("s_waitcnt vmcnt(0)")
        a("""
        s_mov_b64 exec, 0
        s_cmp_eq_u32 s49, 0
        s_cbranch_scc1 L_hopg0
        s_cmp_eq_u32 s49, 1
        s_cbranch_scc1 L_hopg1
        s_cmp_eq_u32 s49, 2
        s_cbranch_scc1 L_hopg2
        s_branch L_hopg3
        L_hopret:
        s_mov_b64 exec, -1
        """)
    stamp(7)
    a("s_barrier")
    lq = []; ring = {}; rpos = [0]; occ = {}; dead = set()
    def afrags(t, j):
        if t < 2:
            return [("F", t, 0), ("F", t, 1)] if j == 0 else [("F", t, j + 1)]
        return [("G", 0, j), ("G", 1, j)]
    def atext(tag, d):
        kind, x, j = tag[:3]
        if kind == "F":
            if j < 8: return f"ds_read_b128 v[{d}:{d+3}], v{aE+x} offset:{j*2048}"
            return f"ds_read_b128 v[{d}:{d+3}], v{aE8+x}"
        return f"ds_read_b128 v[{d}:{d+3}], v{aO+x} offset:{j*2048}"
    def aread(tag):
        idx = rpos[0] % NRING; rpos[0] += 1
        if tag[0] == "F" and tag[2] == 8: rpos[0] += 1
        if idx in occ: assert occ[idx] in dead, (tag, idx, occ[idx])
        occ[idx] = tag; dead.discard(tag)
        ring[tag] = idx
        return ("lds", tag, atext(tag, AF + idx * 4))
    def bfrag(tag, d, n, pq, extra=0):
        return [("lds", tag, f"ds_read_b64_tr_b16 v[{d+2*h}:{d+2*h+1}], v{bB+n} offset:{extra + pq*8192 + h*1024}") for h in range(2)]
    def breg(buf, pq, n): return BF + buf * 32 + (pq * 4 + n) * 4
    def breads(buf):
        r = []
        for n in range(4):
            for pq in range(2): r += bfrag(("B", buf), breg(buf, pq, n), n, pq)
        return r
    def emit(op):
        if isinstance(op, tuple):
            lq.append(op[1]); a(op[2])
        else: a(op)
    def lwait(tags):
        last = max([i for i, t in enumerate(lq) if t in tags], default=-1)
        if last < 0: return
        n = min(15, len(lq) - 1 - last)
        a(f"s_waitcnt lgkmcnt({n})")
        del lq[:len(lq) - n]
    def badv():
        return ["s_add_u32 s56, s56, 16384", "s_cmp_eq_u32 s56, 0x10000", "s_cselect_b32 s58, 0xffff4000, s63", "s_and_b32 s56, s56, 0xffff"] + \
               [f"v_add_u32 v{bB+n}, s58, v{bB+n}" for n in range(4)]
    def mfma(d, ar, br): a(f"v_mfma_f32_16x16x32_bf16 v[{d}:{d+3}], v[{ar}:{ar+3}], v[{br}:{br+3}], v[{d}:{d+3}]")
    def bar():
        a("s_barrier")
        if itstamps:
            a(f"s_mov_b32 m0, s61\ns_add_u32 s61, s61, 1\nv_writelane_b32 v{VST}, s96, m0\nv_writelane_b32 v{VST2}, s98, m0")
            a("s_memrealtime s[96:97]\ns_memtime s[98:99]")
    if onebar: stamp(1)
    for op in breads(0): emit(op)
    for op in badv(): a(op)
    if not onebar:
        a("s_waitcnt lgkmcnt(0)")
        a("s_barrier")
        stamp(1)
    lq[:] = []
    if itstamps: a("s_memrealtime s[96:97]\ns_memtime s[98:99]")
    for j in range(LA):
        for tg in afrags(0, j): emit(aread(tg))
    for _ in range(shift): a("s_nop 0")
    init_state = (list(lq), dict(ring), rpos[0] % NRING)
    def run_gaps(mf, q, barrier_after=None, first_free=0, reserve_last=True):
        ng = len(mf)
        def isvalu(op): return isinstance(op, str) and op.startswith("v_")
        gaps = [g for g in range(first_free, ng) if not (reserve_last and g == ng - 1 and len(q) < ng - first_free)]
        if barrier_after is not None: gaps = [g for g in gaps if g > barrier_after]
        plan = {g: [] for g in range(ng)}
        cap = max(1, -(-len(q) // max(1, len(gaps))))
        while True:
            for g in plan: plan[g] = []
            gi = 0; ok = True
            for op in q:
                while gi < len(gaps) and (len(plan[gaps[gi]]) >= cap or (isvalu(op) and not valu_in and gaps[gi] % 2 == 0)): gi += 1
                if gi >= len(gaps): ok = False; break
                plan[gaps[gi]].append(op)
            if ok: break
            if reserve_last and ng - 1 not in gaps: gaps.append(ng - 1)
            else: cap += 1
        for g, m in enumerate(mf):
            mfma(*m)
            if g == barrier_after: bar()
            for op in plan[g]:
                if isinstance(op, tuple) and op[0] == "A": op = aread(op[1])
                emit(op)
    def step(k):
        t = k % 3; buf = k & 1
        tn = (t + 1) % 3
        bq = breads(buf ^ 1)
        JB = 8 - LA
        nb_per = 4
        bv = badv()
        for j in range(8):
            X, Y = (("F", t, j), ("F", t, j + 1)) if t < 2 else (("G", 0, j), ("G", 1, j))
            need = {X, Y}
            if j == 0: need.add(("B", buf))
            q = []
            if j == JB: lwait(set(lq))
            else: lwait(need)
            if j + LA < 8: q += [("A", tg) for tg in afrags(t, j + LA)]
            else: q += [("A", tg) for tg in afrags(tn, j + LA - 8)]
            for _ in range(nb_per):
                if bq: q.append(bq.pop(0))
            def mix(q, v):
                out = []
                while q or v:
                    if q: out.append(q.pop(0))
                    if v: out.append(v.pop(0))
                return out
            if j == 4: q += bv[:4]
            if j == 5: q = mix(q, bv[4:])
            if t == 1 and j == 6: q += [f"s_add_u32 s59, s54, s55", f"s_sub_u32 s59, {3*A_SLOT}, s59", "s_sub_u32 s60, s59, s54"]
            if t == 1 and j == 7: q = mix(q, [f"v_add_u32 v{r}, s60, v{r}" for r in (aE, aE + 1, aE8, aE8 + 1)])
            if t == 2 and j == 6: q += ["s_sub_u32 s60, s54, s55", "s_mov_b32 s55, s54", "s_mov_b32 s54, s59"]
            if t == 2 and j == 7:
                q = mix(q, [f"v_add_u32 v{r}, s60, v{r}" for r in (aO, aO + 1)])
                if k == 2: q += ["s_sub_u32 s57, s57, 1", "s_cmp_eq_u32 s57, 0"]
            xr = AF + ring[X] * 4; yr = AF + ring[Y] * 4
            mf = []
            for n in range(4):
                pr = [(xr, breg(buf, 0, n)), (yr, breg(buf, 1, n))]
                if n % 2 == 1: pr = pr[::-1]
                mf += [(acc(j, n), ar, br) for ar, br in pr]
            run_gaps(mf, q, barrier_after=1 if j == JB else None)
            dead.add(X)
            if t == 2 or j == 7: dead.add(Y)
        assert not bq
    a("L_cloop:")
    for k in range(6):
        a(f"; ---- step {k}")
        step(k)
        if k == 2:
            saved = (list(lq), dict(ring))
            a("s_cbranch_scc1 L_clast")
    end_state = (list(lq), {k_: v for k_, v in ring.items() if k_ in init_state[1]}, rpos[0] % NRING)
    assert end_state == init_state, (end_state, init_state)
    a("s_branch L_cloop")
    a("L_clast:")
    if cprio: a(f"s_setprio {cprio}")
    stamp(11)
    lq[:] = [t + (0,) for t in saved[0]]
    loc = {t + (0,): AF + saved[1][t] * 4 for t in saved[0]}
    free = [AF + 4 * i for i in range(NRING) if AF + 4 * i not in loc.values()]
    bloc = {}
    for n in range(4):
        for pq in range(2):
            bloc[(0, pq, n)] = breg(1, pq, n); bloc[(1, pq, n)] = breg(0, pq, n)
            bloc[(2, pq, n)] = breg(1, pq, n) if n < 2 else breg(0, pq, n - 2)
    T0 = breg(1, 0, 0)
    def stats(h):
        for n in (2 * h, 2 * h + 1):
            a(f"v_cndmask_b32 v{acc(1,n)+3}, 0, v{acc(1,n)+3}, s[64:65]")
            a(f"v_cndmask_b32 v{acc(2,n)+3}, 0, v{acc(2,n)+3}, s[66:67]")
        for j in range(8):
            for hh in range(2):
                for n in (2 * h, 2 * h + 1):
                    x = acc(j, n) + 2 * hh; S = T0 + 4 * (n & 1); Q = S + 2
                    if j == 0 and hh == 0:
                        a(f"v_pk_mul_f32 v[{Q}:{Q+1}], v[{x}:{x+1}], v[{x}:{x+1}]")
                    else:
                        a(f"v_pk_fma_f32 v[{Q}:{Q+1}], v[{x}:{x+1}], v[{x}:{x+1}], v[{Q}:{Q+1}]")
                        src = f"v[{x-2}:{x-1}]" if j == 0 else f"v[{S}:{S+1}]"
                        a(f"v_pk_add_f32 v[{S}:{S+1}], {src}, v[{x}:{x+1}]")
        a(f"""
        v_add_f32 v{T0}, v{T0}, v{T0+1}
        v_add_f32 v{T0+4}, v{T0+4}, v{T0+5}
        v_add_f32 v{T0+1}, v{T0+2}, v{T0+3}
        v_add_f32 v{T0+5}, v{T0+6}, v{T0+7}
        s_nop 0
        v_permlane32_swap_b32 v{T0}, v{T0+4}
        v_permlane32_swap_b32 v{T0+1}, v{T0+5}
        s_nop 0
        v_add_f32 v{T0}, v{T0}, v{T0+4}
        v_add_f32 v{T0+1}, v{T0+1}, v{T0+5}
        v_mov_b32 v{T0+4}, v{T0}
        v_mov_b32 v{T0+5}, v{T0+1}
        s_nop 1
        v_permlane16_swap_b32 v{T0}, v{T0+4}
        v_permlane16_swap_b32 v{T0+1}, v{T0+5}
        s_nop 0
        v_add_f32 v{T0}, v{T0}, v{T0+4}
        v_add_f32 v{T0+1}, v{T0+1}, v{T0+5}
        """)
        emit(("lds", "P", f"ds_write_b64 v{VPART}, v[{T0}:{T0+1}] offset:{PART + 1024*h}"))
    def image_ops(h):
        ops = []
        for n in (2 * h, 2 * h + 1):
            for f in range(2):
                ops.append(f"v_xor_b32 v{4+f}, {((n&1)<<5) ^ (f<<7)}, v{VIMG}")
                for j in range(8):
                    if (j >> 1) & 1 != f: continue
                    for r in (0, 2):
                        x = acc(j, n) + r
                        ops.append(("lds", "I", f"ds_write2st64_b32 v{4+f}, v{x}, v{x+1} offset0:{8*r+j} offset1:{8*(r+1)+j}"))
        ops.append(("lds", "F", f"ds_write_b32 v15, v13 offset:{FLAGS + 16 + 16*h}"))
        return ops
    seq = [(0, t, j) for t in range(3) for j in range(8)]
    if jouter: seq += [(1, t, j) for j in range(8) for t in range(3)]
    else: seq += [(1, t, j) for t in range(3) for j in range(8)]
    aorder = []
    for s, (h, t, j) in enumerate(seq):
        for tg in afrags(t, j):
            if tg + (h,) not in loc: aorder.append((s, tg + (h,)))
    s_a0, s_a1, s_a2 = 7, 16 - LB, 16 + 5
    bq = []; iq = []; sq = []
    def plain_stats(j):
        ops = []
        for n in (2, 3):
            if j in (1, 2): ops.append(f"v_cndmask_b32 v{acc(j,n)+3}, 0, v{acc(j,n)+3}, s[{62+2*j}:{63+2*j}]")
        for r in range(4):
            for n in (2, 3):
                x = acc(j, n) + r; S = T0 + 4 * (n & 1) + 2; Q = S + 1
                if j == 0 and r == 0: ops.append(f"v_mul_f32 v{Q}, v{x}, v{x}")
                else:
                    ops.append(f"v_fmac_f32 v{Q}, v{x}, v{x}")
                    ops.append(f"v_add_f32 v{S}, v{x-1 if (j == 0 and r == 1) else S}, v{x}")
        return ops
    def pairs_of(h, t, j):
        X, Y = (("F", t, j, h), ("F", t, j + 1, h)) if t < 2 else (("G", 0, j, h), ("G", 1, j, h))
        return X, Y
    for s, (h, t, j) in enumerate(seq):
        if h == 0 and j == 0:
            a(f"; ---- last chunk pass A step {t}")
            bq = []
            if t == 1: late = carry
            ns_ = range(4) if t == 0 else (range(2) if t == 1 else range(2, 4))
            for n in ns_:
                for pq in range(2):
                    tb = 1 if t == 0 else 2
                    bq += bfrag(("LB", tb, n >> 1), bloc[(tb, pq, n)], n, pq, extra=(tb - 1) * 16384)
            if t == 1: bq += late
        if s == 24:
            a("; ---- last chunk pass B")
            a("s_nop 4")
            stats(0)
            stamp(5)
            iq = image_ops(0)
            free += [breg(1, 1, 0), breg(1, 1, 1)]
        X, Y = pairs_of(h, t, j)
        need = {X, Y} | ({("LB", t, h)} if j == 0 else set())
        if s == s_a2: need |= {("LB", 2, 1)}
        lwait(need)
        q = []
        while aorder and aorder[0][0] <= s + LB and free and len(q) < 2 and not (aorder[0][1][0] == "G" and s < s_a1):
            _, tg = aorder.pop(0)
            d = free.pop(0); loc[tg] = d
            q.append(("lds", tg, atext(tg, d)))
        for _ in range(2):
            if bq and (len(q) < 3 or t == 2): q.append(bq.pop(0))
        while iq and len(q) < 2 + iper: q.append(iq.pop(0))
        mf = []
        for n in (2 * h, 2 * h + 1):
            pr = [(loc[X], bloc[(t, 0, n)]), (loc[Y], bloc[(t, 1, n)])]
            if n % 2 == 1: pr = pr[::-1]
            mf += [(acc(j, n), ar, br) for ar, br in pr]
        run_gaps(mf, q, barrier_after=1 if s in (s_a0, s_a1, s_a2) else None, first_free=1 if j == 0 else 0)
        free.append(loc[X])
        if t == 2 or j == 7: free.append(loc[Y])
        if h == 0 and t == 0 and j == 7: carry = list(bq)
        if h == 0 and t > 0 and (j == 7 or s == s_a2 - 1): assert not bq, (s, bq)
    assert not aorder and not iq
    stamp(2)
    if probes:
        for pi in range(10):
            a(f"v_writelane_b32 v{VST}, s{68+2*pi}, {40+pi}")
            a(f"s_mov_b32 s100, L_probe{pi}-{NAME}_kernel\nv_writelane_b32 v{VST2}, s100, {40+pi}")
        a(f"s_getpc_b64 s[100:101]\nL_pq:\ns_sub_u32 s100, s100, L_pq-{NAME}_kernel\nv_writelane_b32 v{VST2}, s100, 50")
    a(f"s_nop 7\ns_mov_b32 s59, {SPIN}")
    if jouter:
        for op in plain_stats(7): a(op)
        a(f"""
        s_nop 0
        v_permlane32_swap_b32 v{T0+3}, v{T0+7}
        v_permlane32_swap_b32 v{T0+2}, v{T0+6}
        s_nop 0
        v_add_f32 v{T0+3}, v{T0+3}, v{T0+7}
        v_add_f32 v{T0+2}, v{T0+2}, v{T0+6}
        v_mov_b32 v{T0+7}, v{T0+3}
        v_mov_b32 v{T0+6}, v{T0+2}
        s_nop 1
        v_permlane16_swap_b32 v{T0+3}, v{T0+7}
        v_permlane16_swap_b32 v{T0+2}, v{T0+6}
        s_nop 0
        v_add_f32 v{T0+3}, v{T0+3}, v{T0+7}
        v_add_f32 v{T0+2}, v{T0+2}, v{T0+6}
        ds_write_b64 v{VPART}, v[{T0+2}:{T0+3}] offset:{PART + 1024}
        """)
    else:
        stats(1)
    stamp(13)
    part_publish("L_cpart", VPRD, 1, 32, VREC, "s[90:91]", 0)
    if not hk: a("s_setprio 0")
    stamp(3)
    a(f"v_add_u32 v{VIMG}, s40, v{VIMG}")
    for op in image_ops(1): emit(op)
    SC, SH, T, O, Y = 16, 24, 32, 40, 48
    a(f"""
    L_imgwait:
    s_mov_b32 s59, {SPIN*16}
    L_img:
    ds_read_b32 v15, v12 offset:{FLAGS+16}
    s_waitcnt lgkmcnt(0)
    v_cmp_eq_u32 vcc, 0, v15
    s_cbranch_vccz L_job
    s_sleep {isleep}
    s_sub_u32 s59, s59, 1
    s_cmp_gt_i32 s59, 0
    s_cbranch_scc1 L_img
    L_job:
    """)
    preread(4)
    if hk == 2: a("s_cmp_ge_u32 s3, 4\ns_cbranch_scc1 L_fw\ns_setprio 0")
    a(f"""
    L_fw:
    ds_read_b32 v15, v14 offset:{FLAGS}
    ds_read_b128 v[{SC}:{SC+3}], v11 offset:{CONST}
    ds_read_b128 v[{SC+4}:{SC+7}], v11 offset:{CONST+16}
    ds_read_b128 v[{SH}:{SH+3}], v11 offset:{CONST+512}
    ds_read_b128 v[{SH+4}:{SH+7}], v11 offset:{CONST+528}
    s_waitcnt lgkmcnt(0)
    v_cmp_eq_u32 vcc, 0, v15
    s_cbranch_vccz L_fw_ok
    {"s_sleep %d" % fsleep if fsleep else ""}
    s_sub_u32 s59, s59, 1
    s_cmp_gt_i32 s59, 0
    s_cbranch_scc1 L_fw
    L_fw_ok:
    """)
    if stamps or amp == 14:
        a("s_cmp_eq_u32 s42, 0\ns_cbranch_scc1 L_st8")
        stamp(14)
        a("L_st8:")
    stamp(8)
    def lowprio(lb):
        if hk == 1: a(f"s_setprio 1\ns_cmp_ge_u32 s3, 4\ns_cbranch_scc1 {lb}\ns_setprio 0\n{lb}:")
    lowprio("L_lp1")
    if edelay: a(f"ds_read_b32 v5, v12 offset:{FLAGS+32}")
    if lastp:
        if lastc: a("s_lshr_b32 s52, s3, 2\ns_or_b32 s52, s52, s42\ns_cmp_eq_u32 s52, 0")
        else: a("s_cmp_eq_u32 s42, 0")
    def p(x): return f"v[{x}:{x+1}]"
    for i in (3, 2, 1, 0):
        if i == 1: a("L_g2:")
        h = HH + 8 * i; o = O + 4 * (i & 1)
        for j in range(0, 8, 2): a(f"v_pk_fma_f32 {p(h+j)}, {p(h+j)}, {p(SC+j)}, {p(SH+j)}")
        for j in range(0, 8, 2): a(f"v_pk_fma_f32 {p(T+j)}, {p(h+j)}, {p(h+j)}, s[24:25]")
        for j in range(0, 8, 2): a(f"v_pk_mul_f32 {p(T+j)}, {p(T+j)}, {p(h+j)} neg_lo:[1,0] neg_hi:[1,0]")
        for j in range(8): a(f"v_exp_f32 v{T+j}, v{T+j}")
        for j in range(0, 8, 2): a(f"v_pk_fma_f32 {p(T+j)}, {p(T+j)}, s[26:27], s[26:27]")
        for j in range(8): a(f"v_rcp_f32 v{T+j}, v{T+j}")
        for j in range(0, 8, 2): a(f"v_pk_mul_f32 {p(T+j)}, {p(T+j)}, {p(h+j)}")
        for j in range(0, 8, 2): a(f"v_cvt_pk_bf16_f32 v{o+j//2}, v{T+j}, v{T+j+1}")
        if sthr is not None: a(f"s_waitcnt vmcnt({sthr})")
        st_ = f"buffer_store_dwordx4 v[{o}:{o+3}], v{10 if i == 0 else VO+i}, s[16:19], 0 offen"
        if i < lastp:
            a(f"s_cbranch_scc1 L_pl{i}\n{st_}{omod}\ns_branch L_pd{i}\nL_pl{i}:\n{st_}{lastmod}\nL_pd{i}:")
        elif not nostore: a(st_ + omod)
    a("s_cmp_eq_u32 s42, 0\ns_cbranch_scc1 L_fin")
    if hk == 1: a("s_setprio 2")
    if hk == 2: a("s_cmp_ge_u32 s3, 4\ns_cbranch_scc1 L_hk2\ns_setprio 3\nL_hk2:")
    stamp(12)
    if ded:
        a("s_sub_u32 s42, s42, 1\ns_cmp_eq_u32 s42, 0\ns_cbranch_scc1 L_toB")
        a(f"""
        v_add_u32 v8, s0, v6
        v_add_u32 v10, s1, v7
        v_xor_b32 v9, 160, v8
        """)
        preread(2)
        a("s_waitcnt lgkmcnt(0)")
        lowprio("L_lp2")
        a("s_branch L_g2\nL_toB:")
    else: a("s_mov_b32 s42, 0")
    nextjob_regs()
    if not ded:
        a("s_cmp_lt_u32 s3, 6\ns_cbranch_scc1 L_imgwait")
        if bdelay: a(f"s_sleep {bdelay}")
        if ackfirst: a("s_waitcnt vmcnt(0)")
        if edelay:
            a(f"s_waitcnt lgkmcnt(0)\nv_cmp_eq_u32 vcc, 0, v5\ns_cbranch_vccnz L_gather\ns_sleep {edelay}")
        a("s_branch L_gather")
    else: a("s_branch L_imgwait")
    a("L_fin:")
    if hold in (9, 10) and not stamps: stamp(hold)
    if amp is not None:
        if amp == 9: stamp(9)
        a("s_waitcnt vmcnt(0)")
        if amp == 10: stamp(10)
        a("s_waitcnt lgkmcnt(0)")
        if ampw == "c": a("s_cmp_ge_u32 s3, 4\ns_cselect_b32 s94, s92, s94")
        if ampw == "l": a("s_cmp_lt_u32 s3, 4\ns_cselect_b32 s94, s92, s94")
        a(f"""
        L_amp0:
        s_sleep 8
        s_memrealtime s[96:97]
        s_waitcnt lgkmcnt(0)
        s_sub_u32 s96, s96, s92
        s_cmp_lt_u32 s96, 4000
        s_cbranch_scc1 L_amp0
        s_not_b32 s95, s92
        v_mov_b32 v4, s94
        v_mov_b32 v5, s95
        v_mov_b32 v1, 8
        s_mov_b64 exec, 1
        global_atomic_umax v1, v4, s[34:35]
        global_atomic_umax v1, v5, s[34:35] offset:4
        s_waitcnt vmcnt(0)
        L_amp1:
        s_sleep 8
        s_memrealtime s[96:97]
        s_waitcnt lgkmcnt(0)
        s_sub_u32 s96, s96, s92
        s_cmp_lt_u32 s96, 16000
        s_cbranch_scc1 L_amp1
        global_load_dwordx2 v[4:5], v1, s[34:35] sc1
        s_waitcnt vmcnt(0)
        v_readfirstlane_b32 s94, v4
        v_readfirstlane_b32 s95, v5
        s_not_b32 s95, s95
        s_sub_u32 s94, s94, s95
        s_mul_i32 s94, s94, 10
        s_add_u32 s94, s94, 18900
        s_min_u32 s94, s94, 100000
        L_amp2:
        s_sleep 2
        s_memrealtime s[96:97]
        s_waitcnt lgkmcnt(0)
        s_sub_u32 s96, s96, s95
        s_cmp_lt_u32 s96, s94
        s_cbranch_scc1 L_amp2
        """)
    if stamps:
        stamp(9)
        a("s_waitcnt vmcnt(0)")
        stamp(10)
        a(f"""
        s_lshl_b32 s52, s2, 12
        s_lshl_b32 s53, s3, 9
        s_add_u32 s52, s52, s53
        s_add_u32 s52, s52, {STAMP_OFF}
        v_lshlrev_b32 v1, 3, v0
        v_add_u32 v1, s52, v1
        global_store_dwordx2 v1, v[{VST}:{VST2}], s[36:37]
        s_waitcnt vmcnt(0)
        """)
    a("L_end:\ns_endpgm")
    if relayout:
        L = a.lines
        ix = {t: L.index(t) for t in ("L_ltail:", "L_compute:", "L_cloop:", "L_imgwait:", "L_end:")}
        a.lines = (L[:ix["L_ltail:"]] + ["    s_branch L_ltail", ".p2align 12", "L_page:"] +
                   L[ix["L_compute:"]:ix["L_cloop:"]] + ["    s_branch L_cloop"] +
                   L[ix["L_ltail:"]:ix["L_compute:"]] + L[ix["L_imgwait:"]:ix["L_end:"]] + ["    s_endpgm", ".p2align 6"] +
                   L[ix["L_cloop:"]:ix["L_imgwait:"]] + ["    s_branch L_imgwait"] + L[ix["L_end:"]:])
        if hop: a.lines = add_hops(a.lines, [("L_ltail:", "L_end:")], hop, page="L_page:")
    elif hop: a.lines = add_hops(a.lines, [("L_lloop:", "L_compute:"), ("L_cloop:", "L_end:")], hop)
    if align8: a.lines = pad8(a.lines, "L_cloop:", "L_cpart:")
    hazcheck(a.lines)
    return wrap(DOC + a.text(), 256, 512, 163840, 256)

if __name__ == "__main__":
    out = sys.argv[1]
    kw = json.loads(sys.argv[2]) if len(sys.argv) > 2 else {}
    open(out, "w").write(gen(**kw))
```
